```python
import torch

def _softmax(x, axis=-1):
    return torch.softmax(x, dim=axis)
def _gelu(x):
    return torch.nn.functional.gelu(x, approximate="tanh")
def _silu(x):
    return torch.nn.functional.silu(x)
def _sigmoid(x):
    return torch.sigmoid(x)
def _layernorm(x, axis=-1, eps=1e-5):
    m = x.mean(dim=axis, keepdim=True)
    v = x.var(dim=axis, keepdim=True, unbiased=False)
    return (x - m) / torch.sqrt(v + eps)
def _scatter_add(tgt, idx, src, axis=0):
    return tgt.clone().index_add_(axis, idx, src)
def _segment_sum(src, seg, n):
    out = torch.zeros((n,) + src.shape[1:], dtype=src.dtype)
    return out.index_add_(0, seg, src)
def _pad(x, pw):
    flat = tuple(v for pair in reversed(pw) for v in pair)
    return torch.nn.functional.pad(x, flat)

kernel_name = 'gated_mix__ssm_conv_h3__dense_activation_silu__prompt'

def setup_inputs():

    _w = (lambda a: (lambda t: t.to(torch.bfloat16) if t.is_floating_point() else t)(torch.as_tensor(a)))
    def _A_setup():
        B, S, D = 1, 2048, 640
        ks = 4
        return {
            "q": _w((lambda *s: torch.randn(*s, dtype=torch.bfloat16) * 0.05)(B, S, D)),
            "k": _w((lambda *s: torch.randn(*s, dtype=torch.bfloat16) * 0.2)(B, S, D)),
            "v": _w((lambda *s: torch.randn(*s, dtype=torch.bfloat16) * 0.2)(B, S, D)),
            "shift_k": _w((lambda *s: torch.randn(*s, dtype=torch.bfloat16) * 0.2)(D, ks) * 0.5),
            "ssm_k": _w((lambda *s: torch.randn(*s, dtype=torch.bfloat16) * 0.4)(D, S) * (1.0 / S ** 0.5)),
            "ssm_D": _w((lambda *s: torch.randn(*s, dtype=torch.bfloat16) * 0.2)(D)),
        }
    _A_in = _A_setup()

    def _B_setup():
        B, S, D, F = 1, 2048, 640, 1536
        return {
            "x": _w((lambda *s: torch.randn(*s, dtype=torch.bfloat16) * 0.05)(B, S, D)),
            "w1": _w((lambda *s: torch.randn(*s, dtype=torch.bfloat16) * 3.2)(D, F) * (D ** -0.5)),
            "w2": _w((lambda *s: torch.randn(*s, dtype=torch.bfloat16) * 0.05)(F, D) * (F ** -0.5)),
        }
    _B_in = _B_setup()

    return {
        "A_q": _A_in["q"],
        "A_k": _A_in["k"],
        "A_v": _A_in["v"],
        "A_shift_k": _A_in["shift_k"],
        "A_ssm_k": _A_in["ssm_k"],
        "A_ssm_D": _A_in["ssm_D"],
        "B_x": _B_in["x"],
        "B_w1": _B_in["w1"],
        "B_w2": _B_in["w2"],
        "gate_w": _w((lambda *s: torch.randn(*s, dtype=torch.bfloat16) * 0.05)(640) * 16.0),
    }

def reference(A_q, A_k, A_v, A_shift_k, A_ssm_k, A_ssm_D, B_x, B_w1, B_w2, gate_w):
    def _A_ref(q, k, v, shift_k, ssm_k, ssm_D):
        B, S, D = q.shape
        ks = shift_k.shape[-1]
        k_pad = _pad(k, ((0, 0), (ks - 1, 0), (0, 0)))
        k_shift = torch.zeros_like(k)
        for t in range(ks):
            k_shift = k_shift + k_pad[:, t:t + S, :] * shift_k[:, ks - 1 - t][None, None, :]
        kv = k_shift * v
        L = 2 * S
        kv_pad = _pad(kv, ((0, 0), (0, S), (0, 0)))
        kf_pad = _pad(ssm_k, ((0, 0), (0, S)))
        kv_f = (lambda x, axes=(-2,-1): torch.fft.rfft2(x.float(), dim=axes))(kv_pad[:, None, :, :], axes=(1, 2))
        kf_f = (lambda x, axes=(-2,-1): torch.fft.rfft2(x.float(), dim=axes))(kf_pad[:, None, :], axes=(1, 2))
        kf_f = (lambda x, *d: x.permute(*d))(kf_f, 1, 2, 0)
        y_f = kv_f * kf_f[None, :, :, :]
        y = (lambda x, s, axes=(-2,-1): torch.fft.irfft2(x, s=s, dim=axes).to(torch.bfloat16))(y_f, (1, L), axes=(1, 2))[:, 0, :S, :]
        y = y + kv * ssm_D[None, None, :]
        return q * y

    def _B_ref(x, w1, w2):
        h = torch.einsum("bsd,df->bsf", x, w1)
        h = _silu(h)
        out = torch.einsum("bsf,fd->bsd", h, w2)
        return out

    x = A_q
    g = _sigmoid((x * gate_w).sum(-1, keepdims=True))
    a = _A_ref(x, A_k, A_v, A_shift_k, A_ssm_k, A_ssm_D)
    b = _B_ref(x, B_w1, B_w2)
    return g * a + (1 - g) * b
```

```python
import re
from collections import deque

TRANS = ("v_exp_f32", "v_rcp_f32", "v_log_f32", "v_rsq_f32", "v_sqrt_f32")
NO_DST_SALU = ("s_cmp", "s_waitcnt", "s_barrier", "s_branch", "s_cbranch", "s_nop", "s_sleep", "s_endpgm",
               "s_setprio", "s_bitcmp")


def regs_of(tok):
    tok = tok.strip()
    m = re.fullmatch(r"([vas])(\d+)", tok)
    if m:
        return [(m.group(1), int(m.group(2)))]
    m = re.fullmatch(r"([vas])\[(\d+):(\d+)\]", tok)
    if m:
        return [(m.group(1), i) for i in range(int(m.group(2)), int(m.group(3)) + 1)]
    if tok == "vcc":
        return [("s", "vcc")]
    if tok == "exec":
        return [("s", "exec")]
    if tok == "m0":
        return [("s", "m0")]
    return []


class Ins:
    __slots__ = ("text", "op", "kind", "w", "r", "srcc", "passes", "dpp", "trans", "dot", "lane", "perm", "wide",
                 "lds", "sdata", "states", "opsel")


def parse(text):
    t = text.split(";")[0].strip()
    sp = t.split(None, 1)
    op = sp[0]
    rest = sp[1] if len(sp) > 1 else ""
    ops, depth, cur = [], 0, ""
    for ch in rest:
        if ch == "[":
            depth += 1
        if ch == "]":
            depth -= 1
        if ch == "," and depth == 0:
            ops.append(cur)
            cur = ""
        else:
            cur += ch
    ops.append(cur)
    last = ops[-1].strip().split()
    mods = last[1:] if last else []
    ops[-1] = last[0] if last else ""
    ops = [o.strip() for o in ops]
    I = Ins()
    I.text, I.op = text, op
    I.w, I.r, I.srcc, I.sdata = [], [], [], []
    I.passes = 0
    I.dpp = I.trans = I.dot = I.lane = I.perm = I.wide = I.lds = I.opsel = False
    I.states = 1
    R = [regs_of(o.lstrip("-").strip("|")) for o in ops]
    allr = lambda k: [x for l in R[k:] for x in l]
    if op.startswith("v_mfma"):
        I.kind = "mfma"
        I.w = R[0]
        I.r = allr(1)
        I.srcc = R[3]
        I.passes = 8 if "32x32x16" in op else 4
    elif op.startswith("v_"):
        I.kind = "valu"
        I.w = R[0]
        I.r = allr(1)
        ms = " ".join(mods)
        if any(k in ms for k in ("row_", "wave_", "quad_perm")):
            I.dpp = True
            I.r = I.r + R[0]
        if op.startswith("v_cndmask") and len(ops) == 3:
            I.r = I.r + [("s", "vcc")]
        if op.startswith(("v_fmac", "v_mac", "v_pk_fmac", "v_dot2c")):
            I.r = I.r + R[0]
        if op.startswith("v_permlane"):
            I.perm = True
            I.w = R[0] + R[1]
            I.r = R[0] + R[1]
        if "sdwa" in op or "dst_sel" in ms:
            I.opsel = True
            I.r = I.r + R[0]
        I.trans = op.replace("_e32", "").replace("_e64", "") in TRANS
        I.dot = op.startswith("v_dot")
        I.lane = op.startswith(("v_readfirstlane", "v_readlane"))
    elif op.startswith("ds_"):
        I.kind = "ds"
        if op.startswith("ds_read"):
            I.w = R[0]
            I.r = allr(1)
            if "d16" in op:
                I.r = I.r + R[0]
        else:
            I.r = allr(0)
    elif op.startswith(("buffer_", "global_")):
        I.kind = "vmem"
        if "lds" in mods:
            I.lds = True
            I.r = allr(0) + [("s", "m0")]
        elif "load" in op:
            I.w = R[0]
            I.r = allr(1)
            if "d16" in op:
                I.r = I.r + R[0]
        else:
            I.r = allr(0)
            I.sdata = R[0] if op.startswith("buffer_") else R[1]
            I.wide = op.endswith(("x3", "x4"))
    elif op.startswith("s_"):
        I.kind = "salu"
        if op.startswith(("s_load", "s_memtime", "s_memrealtime")):
            I.kind = "smem"
            I.w = R[0]
            I.r = allr(1)
        elif op.startswith(NO_DST_SALU):
            I.r = allr(0)
            if op == "s_nop":
                I.states = int(ops[0]) + 1
        else:
            I.w = R[0]
            I.r = allr(1)
    else:
        raise ValueError("unknown instruction " + text)
    return I


def need(p, c):
    n = 0
    pw, cr, cw = set(p.w), set(c.r), set(c.w)
    raw = pw & cr
    waw = pw & cw
    if p.kind == "mfma":
        big = 12 if p.passes == 8 else 8
        if c.kind == "mfma":
            ab = set(c.r) - set(c.srcc) if c.srcc else set(c.r)
            if pw & ab:
                n = max(n, big)
            if pw & set(c.srcc):
                if not (p.w == c.srcc and p.passes == c.passes):
                    n = max(n, big - 2)
            elif waw:
                n = max(n, big)
        elif c.kind in ("valu", "ds", "vmem"):
            if raw or waw:
                n = max(n, big)
        if c.kind in ("valu", "ds", "vmem") and set(p.srcc) & cw:
            n = max(n, 7 if p.passes == 8 else 3)
    elif p.kind == "valu":
        vraw = {x for x in raw if x[0] != "s"}
        sraw = {x for x in raw if x[0] == "s"}
        if c.kind == "mfma" and vraw:
            n = max(n, 3 if p.dot else 2)
        if c.kind == "mfma" and ("s", "exec") in pw:
            n = max(n, 4)
        if c.kind == "vmem" and sraw:
            n = max(n, 5)
        if c.kind == "valu":
            if sraw:
                n = max(n, 4 if c.lane else 2)
            if vraw and c.dpp:
                n = max(n, 2)
            if vraw and c.lane:
                n = max(n, 1)
            if vraw and c.perm:
                n = max(n, 2)
            if vraw and p.trans and not c.trans:
                n = max(n, 1)
            if (vraw or waw) and p.opsel:
                n = max(n, 1)
            if ("s", "exec") in pw and c.dpp:
                n = max(n, 5)
        if p.dot and (vraw or waw):
            same_c = c.kind == "valu" and c.op == p.op and not (pw & set(c.r[:-len(p.w)])) and c.r[-len(p.w):] == p.w
            if not same_c:
                n = max(n, 3)
    elif p.kind == "salu":
        if ("s", "m0") in pw and c.kind == "vmem" and c.lds:
            n = max(n, 1)
    elif p.kind == "vmem":
        if p.wide and set(p.sdata) & cw:
            n = max(n, 2 if c.kind in ("valu", "mfma") else 1)
    return n


class Asm:
    def __init__(self):
        self.out = []
        self.hist = deque(maxlen=16)
        self.q = {"vm": [], "lg": []}
        self.pend = {}
        self.nid = 0
        self.opt = 0
        self.nopt = 0
        self.stats = {"nop": 0, "ins": 0}
        self.nlab = 0

    def raw(self, s):
        self.out.append(s)

    def comment(self, s):
        self.out.append("; " + s)

    def _put(self, I):
        self.out.append("  " + I.text)
        self.hist.append(I)
        self.stats["ins"] += 1

    def _count_after(self, qn, oid):
        q = self.q[qn]
        idx = [i for i, e in enumerate(q) if e["id"] == oid]
        if not idx:
            return None
        n = 0
        for e in q[idx[0] + 1:]:
            if e["opt"] == 0 or e["opt"] == self.opt:
                n += 1
        return n

    def _retire(self, qn, oid):
        q = self.q[qn]
        idx = [i for i, e in enumerate(q) if e["id"] == oid][0]
        done = {e["id"] for e in q[:idx + 1]}
        if self.opt:
            for e in q[:idx + 1]:
                if e["opt"] != self.opt:
                    self._hidden.append((qn, e, {r: v for r, v in self.pend.items() if v == (qn, e["id"])}))
        self.q[qn] = q[idx + 1:]
        for r in [r for r, v in self.pend.items() if v[0] == qn and v[1] in done]:
            del self.pend[r]

    def _wait(self, reqs):
        best = {}
        for qn, oid in reqs:
            n = self._count_after(qn, oid)
            if n is None:
                continue
            if qn not in best or oid > best[qn][1]:
                best[qn] = (n, oid)
        if not best:
            return
        parts = []
        for qn, (n, oid) in best.items():
            mx = 63 if qn == "vm" else 15
            parts.append(("vmcnt(%d)" if qn == "vm" else "lgkmcnt(%d)") % min(n, mx))
            self._retire(qn, oid)
        self._put(parse("s_waitcnt " + " ".join(parts)))

    def wait(self, *tags):
        reqs = []
        for qn in self.q:
            for e in self.q[qn]:
                if e["tag"] in tags:
                    reqs.append((qn, e["id"]))
        self._wait(reqs)

    def waitall(self, vm=True, lg=True):
        parts = []
        if vm:
            parts.append("vmcnt(0)")
            if self.q["vm"]:
                self._retire("vm", self.q["vm"][-1]["id"])
        if lg:
            parts.append("lgkmcnt(0)")
            if self.q["lg"]:
                self._retire("lg", self.q["lg"][-1]["id"])
        self._put(parse("s_waitcnt " + " ".join(parts)))

    def pad_for(self, I):
        d, req = 0, 0
        for p in reversed(self.hist):
            req = max(req, need(p, I) - d)
            d += p.states
            if d >= 14:
                break
        return req

    def __call__(self, text, tag=None):
        for line in text.strip().split("\n"):
            line = line.strip()
            if not line or line.startswith(";"):
                continue
            self.emit(line, tag)

    def emit(self, text, tag=None):
        if getattr(self, "skip", None) and re.search(self.skip, text):
            return None
        I = parse(text)
        reqs = [self.pend[r] for r in set(I.r) | set(I.w) if r in self.pend]
        if reqs:
            if any(q == "sm" for q, _ in reqs):
                raise ValueError("scalar load result used before explicit wait: " + text)
            self._wait(reqs)
        req = self.pad_for(I)
        while req > 0:
            n = min(req, 8)
            self._put(parse("s_nop %d" % (n - 1)))
            self.stats["nop"] += n
            req -= n
        self._put(I)
        if I.kind in ("ds", "vmem"):
            qn = "lg" if I.kind == "ds" else "vm"
            self.nid += 1
            self.q[qn].append({"id": self.nid, "tag": tag, "opt": self.opt, "text": text})
            for r in I.w:
                self.pend[r] = (qn, self.nid)
        return I

    def settle(self):
        d, req = 0, 0
        for p in reversed(self.hist):
            mx = 0
            if p.kind == "mfma":
                mx = 12 if p.passes == 8 else 8
            elif p.kind == "valu":
                mx = 5 if any(x[0] == "s" for x in p.w) else 3
            elif p.kind == "salu" and ("s", "m0") in p.w:
                mx = 1
            elif p.kind == "vmem" and p.wide:
                mx = 2
            req = max(req, mx - d)
            d += p.states
        while req > 0:
            n = min(req, 8)
            self._put(parse("s_nop %d" % (n - 1)))
            req -= n

    def label(self, name):
        self.out.append(name + ":")

    def newlabel(self, base="L"):
        self.nlab += 1
        return "%s_%d" % (base, self.nlab)

    def begin_opt(self, branch, settle=True):
        assert self.opt == 0
        lab = self.newlabel("Lskip")
        if settle:
            self.settle()
        self.emit(branch + " " + lab)
        self.nopt += 1
        self.opt = self.nopt
        self._hidden = []
        self._optlab = lab

    def end_opt(self):
        self.label(self._optlab)
        for qn in self.q:
            back = [h for h in self._hidden if h[0] == qn]
            self.q[qn] = [h[1] for h in back] + self.q[qn]
            for h in back:
                for r, v in h[2].items():
                    self.pend.setdefault(r, v)
        self.opt = 0
        self._hidden = []

    def text(self):
        return "\n".join(self.out) + "\n"


def weave(A, anchors, fillers, cap):
    f = deque(fillers)

    def put(it):
        if callable(it):
            it()
        elif isinstance(it, tuple):
            A(it[0], it[1])
        else:
            A(it)
    for i, grp in enumerate(anchors):
        for it in grp:
            put(it)
        c = cap(i) if callable(cap) else cap
        while f and f[0][0] <= i and c >= f[0][1]:
            c -= f[0][1]
            put(f.popleft()[2])
    return f


def put_item(A, it):
    if callable(it):
        it()
    elif isinstance(it, tuple):
        A(it[0], it[1])
    else:
        A(it)


def weave2(A, anchors, streams, cap):
    S = [deque(s) for s in streams]
    for i, grp in enumerate(anchors):
        for s in S:
            last = -1
            for j, e in enumerate(s):
                if e.get("l", 1 << 30) <= i:
                    last = j
            for _ in range(last + 1):
                e = s.popleft()
                assert e["e"] < i, ("forced before allowed", e, i)
                put_item(A, e["it"])
        for it in grp:
            put_item(A, it)
        c = cap(i) if callable(cap) else cap
        prog = True
        while prog:
            prog = False
            for s in S:
                if s and s[0]["e"] <= i and s[0].get("c", 1) <= c:
                    e = s.popleft()
                    c -= e.get("c", 1)
                    put_item(A, e["it"])
                    prog = True
                    break
    return S


def drain(A, S):
    for s in S:
        while s:
            put_item(A, s.popleft()["it"])
```

```python
import sys, os
sys.path.insert(0, os.path.dirname(os.path.abspath(__file__)))
from asmlib import *

KN = "gated_mix__ssm_conv_h3__dense_activation_silu__prompt"

DEF = dict(stamps=0, mapping="A", rot=1, gs=2, dist=5, p0flag=3, poll_i=20, poll_c=80, w2pace=4, hpre=12,
           spin=200000, early_w1=6)


def gen(**kw):
    O = dict(DEF)
    O.update(kw)
    A = Asm()
    GS, DIST = O["gs"], O["dist"]

    WS_COLP0, WS_COLCV, WS_COLG, WS_ROWH, WS_ROWG, WS_G = 0x0000, 0x1000, 0x2000, 0x3000, 0x5000, 0x8000
    WS_DBG = 0x20000
    WS_KVT, WS_YT, WS_W2P, WS_H = 0x100000, 0x400000, 0x700000, 0x900000
    WS_SIZE = 0x1000000
    TP = 4224
    L_S = 81920
    L_K, L_V, L_W2 = 131072, 142336, 152576
    L_BO = 131072
    L_HB, L_UB, L_YT, L_YS, L_RED = 0, 16896, 33792, 45056, 69632
    HBP, UBP = 4224, 4128
    LDS = 163840
    sQ, sK, sV, sSH, sSK, sD, sW1, sW2, sGW, sOUT, sWS = [f"s[{8+4*i}:{11+4*i}]" for i in range(11)]
    srd = lambda n: int(n[2:].split(":")[0])
    sW, sRB, sCB, sROT = "s3", "s4", "s5", "s6"
    sT0, sT1, sT2, sT3 = "s52", "s53", "s54", "s55"
    sROWOFF = "s56"
    sW1K = "s57"
    sW2K = "s58"
    sTAGC, sTAGR = "s59", "s60"
    sCH = "s61"
    sNL2E = "s[62:63]"
    sJ = [f"s{64+i}" for i in range(10)]
    sHB = ["s74", "s75", "s76"]
    sKVO = "s77"
    sW2L = "s78"
    sSPIN = "s79"
    sHL = "s80"
    sSTAMP = 82

    nst = [0]
    names = []
    STR = [82, 84, 86, 88, 90, 92, 94, 96, 98, 64, 66, 68, 70]

    def stamp(name):
        if O["stamps"]:
            r = STR[nst[0]]
            A(f"s_memtime s[{r}:{r+1}]")
            nst[0] += 1
            names.append(name)

    def vr(a, n=1):
        return f"v{a}" if n == 1 else f"v[{a}:{a+n-1}]"

    def ar(a, n=1):
        return f"a{a}" if n == 1 else f"a[{a}:{a+n-1}]"

    vTID, vLANE, vL16, vT = 0, 1, 2, 3
    vW1 = [4, 5, 6, 7, 8, 9]
    vTR = [10, 11, 12]
    vHS = 13
    vFL = 14
    vPO = 15

    def poll(voff, tag, soff, vres=None, n=1, issue=True, check=True):
        ld = (f"buffer_load_dword {vr(vres)}, {vr(voff)}, {sWS}, {soff} offen sc1" if n == 1 else
              f"buffer_load_dwordx2 {vr(vres,2)}, {vr(voff)}, {sWS}, {soff} offen sc1")
        if issue:
            A(ld)
        if check:
            lo, dn = A.newlabel("Lpoll"), A.newlabel("Lgot")

            def cmp():
                A(f"v_cmp_ne_u32 vcc, {tag}, {vr(vres)}")
                if n == 2:
                    A(f"v_cmp_ne_u32 s[52:53], {tag}, {vr(vres+1)}")
                    A("s_or_b64 vcc, vcc, s[52:53]")
            cmp()
            A(f"s_cbranch_vccz {dn}" if n == 1 else f"s_cbranch_scc0 {dn}")
            A.label(lo)
            A.raw("  s_sleep 1")
            A.raw("  " + ld)
            A.raw("  s_waitcnt vmcnt(0)")
            A.raw(f"  s_sub_u32 {sSPIN}, {sSPIN}, 1")
            A.raw(f"  s_cbranch_scc1 Lend")
            A.raw(f"  v_cmp_ne_u32 vcc, {tag}, {vr(vres)}")
            if n == 2:
                A.raw(f"  v_cmp_ne_u32 s[52:53], {tag}, {vr(vres+1)}")
                A.raw("  s_or_b64 vcc, vcc, s[52:53]")
            A.raw(f"  s_cbranch_vccnz {lo}" if n == 1 else f"  s_cbranch_scc1 {lo}")
            A.label(dn)

    A("s_cmp_ge_u32 s2, 256")
    A("s_cbranch_scc1 Lend")
    for s, off in ((sW2, 64), (sK, 8), (sV, 16), (sQ, 0), (sWS, 96), (sW1, 56), (sSH, 24), (sGW, 72), (sSK, 32),
                   (sD, 40), (sOUT, 80)):
        A(f"s_load_dwordx2 s[{srd(s)}:{srd(s)+1}], s[0:1], {off}")
    if O["stamps"]:
        A("s_memrealtime s[100:101]")
    stamp("start")
    A(f"v_lshrrev_b32 v20, 6, v0")
    A(f"v_and_b32 {vr(vLANE)}, 63, v0")
    A(f"v_readfirstlane_b32 {sW}, v20")
    if O["mapping"] == "A":
        A(f"""s_lshr_b32 {sT0}, s2, 3
              s_and_b32 {sCB}, {sT0}, 7
              s_lshr_b32 {sT0}, {sT0}, 3
              s_and_b32 {sRB}, s2, 7
              s_lshl_b32 {sRB}, {sRB}, 2
              s_add_u32 {sRB}, {sRB}, {sT0}""")
    else:
        A(f"""s_lshr_b32 {sT0}, s2, 3
              s_and_b32 {sCB}, {sT0}, 3
              s_and_b32 {sT1}, s2, 1
              s_lshl_b32 {sT1}, {sT1}, 2
              s_add_u32 {sCB}, {sCB}, {sT1}
              s_lshr_b32 {sT0}, {sT0}, 2
              s_bfe_u32 {sRB}, s2, 0x20001
              s_lshl_b32 {sRB}, {sRB}, 3
              s_add_u32 {sRB}, {sRB}, {sT0}""")
    for s, size in ((sQ, 2621440), (sK, 2621440), (sV, 2621440), (sSH, 5120), (sSK, 2621440), (sD, 1280),
                    (sW1, 1966080), (sW2, 1966080), (sGW, 1280), (sOUT, 2621440), (sWS, WS_SIZE)):
        A(f"s_mov_b32 s{srd(s)+2}, {size}")
        A(f"s_mov_b32 s{srd(s)+3}, 0x20000")
    A(f"""s_mul_i32 {sROWOFF}, {sRB}, 81920
          s_mul_i32 {sT0}, {sCB}, 160
          s_add_u32 {sROWOFF}, {sROWOFF}, {sT0}
          s_lshl_b32 {sW1K}, {sW}, 10
          s_lshl_b32 {sW2K}, {sW}, 11
          s_movk_i32 {sT1}, 6554
          s_movk_i32 {sT2}, 1120
          s_sub_u32 {sT3}, {sROWOFF}, 5120""")
    for n in range(3):
        A(f"v_add_u32 v26, {256*n}, v0") if n else A("v_mov_b32 v26, v0")
        A(f"""v_mul_u32_u24 v27, {sT1}, v26
              v_lshrrev_b32 v27, 16, v27
              v_lshlrev_b32 v26, 4, v26
              v_mad_u32_u24 v{20+n}, v27, {sT2}, v26
              v_add_u32 v{23+n}, {sT3}, v{20+n}""")
    A(f"v_lshlrev_b32 {vr(vL16)}, 4, {vr(vLANE)}")
    A("s_waitcnt lgkmcnt(0)")

    def tile_dma(n, which):
        for s, reg, vo, so in which:
            A(f"s_add_u32 m0, {sW1K}, {reg + 4096*n}")
            A(f"buffer_load_dwordx4 v{vo+n}, {s}, {so} offen lds", "p0in")
    W2T, KT, VT = (sW2, L_W2, 20, sROWOFF), (sK, L_K, 23, "0"), (sV, L_V, 20, sROWOFF)
    tile_dma(0, [W2T, KT, VT])
    tile_dma(1, [W2T, KT, VT])
    A(f"s_cmp_ge_u32 {sW}, 3")
    A.begin_opt("s_cbranch_scc1", settle=False)
    tile_dma(2, [KT])
    A.end_opt()
    A(f"s_cmp_ge_u32 {sW}, 2")
    A.begin_opt("s_cbranch_scc1", settle=False)
    tile_dma(2, [W2T, VT])
    A.end_opt()

    vCT, vI16, vR, vCHL = 28, 29, 30, 31
    A(f"""v_lshrrev_b32 v26, 4, v0
          v_mul_u32_u24 v27, 52, v26
          v_lshrrev_b32 v27, 8, v27
          v_mul_u32_u24 v{vR}, 5, v27
          v_sub_u32 v{vCT}, v26, v{vR}
          v_mul_u32_u24 v{vR}, 24, v27
          v_min_u32 v{vR}, 40, v{vR}
          v_and_b32 v{vI16}, 15, v0
          v_lshl_add_u32 v{vCHL}, v{vCT}, 4, v{vI16}
          v_lshlrev_b32 v26, 3, v{vCHL}
          s_mul_i32 {sT0}, {sCB}, 640""")
    vSH = 32
    A(f"buffer_load_dwordx2 v[{vSH}:{vSH+1}], v26, {sSH}, {sT0} offen")
    vG0, vG1 = 34, 35
    A(f"""s_lshl_b32 {sT0}, {sCB}, 8
          s_lshl_b32 {sT1}, {sRB}, 8
          s_add_u32 {sT0}, {sT0}, {WS_COLG}
          s_add_u32 {sT1}, {sT1}, {WS_ROWG}""")
    A(f"buffer_load_dword v{vG0}, off, {sWS}, {sT0} sc1")
    A(f"buffer_load_dword v{vG1}, off, {sWS}, {sT1} sc1")

    if O["rot"]:
        A(f"""s_mul_i32 {sT0}, {sRB}, 3
              s_add_u32 {sT0}, {sT0}, {sCB}
              s_mul_i32 {sT1}, {sT0}, 6554
              s_lshr_b32 {sT1}, {sT1}, 16
              s_mul_i32 {sT1}, {sT1}, 10
              s_sub_u32 {sROT}, {sT0}, {sT1}""")
    else:
        A(f"s_mov_b32 {sROT}, 0")
    vX0, vX1 = 36, 37
    A(f"""v_lshrrev_b32 v26, 3, {vr(vLANE)}
          v_lshrrev_b32 v27, 4, {vr(vLANE)}
          v_and_b32 v38, 7, {vr(vLANE)}
          v_xor_b32 v39, v38, v27
          s_movk_i32 {sT0}, 1280
          s_mul_i32 {sT1}, {sW}, 20480
          v_lshlrev_b32 v39, 4, v39
          v_mad_u32_u24 v{vX0}, v26, {sT0}, v39
          v_add_u32 v{vX0}, {sT1}, v{vX0}
          v_xor_b32 v{vX1}, 64, v{vX0}
          v_add_u32 v{vX1}, {8*1280-1024}, v{vX1}
          s_mul_i32 {sT2}, {sRB}, 81920
          s_lshl_b32 {sT3}, {sROT}, 7
          s_add_u32 {sT3}, {sT3}, {sT2}
          s_add_u32 {sT2}, {sT2}, 1280""")
    for j in range(10):
        A(f"s_add_u32 m0, {sW2K}, {8192*j}")
        if j:
            A(f"""s_add_u32 {sT3}, {sT3}, 128
                  s_cmp_ge_u32 {sT3}, {sT2}
                  s_cselect_b32 {sT0}, 1280, 0
                  s_sub_u32 {sT3}, {sT3}, {sT0}""")
        A(f"buffer_load_dwordx4 v{vX0}, {sQ}, {sT3} offen lds", "x")
        A(f"buffer_load_dwordx4 v{vX1}, {sQ}, {sT3} offen offset:1024 lds", "x")
    A(f"""v_and_b32 v27, 1, v27
          v_lshlrev_b32 v27, 2, v27
          v_xor_b32 v39, v38, v27
          v_lshlrev_b32 v39, 4, v39
          s_movk_i32 {sT0}, 3072
          s_mul_i32 {sT1}, {sW}, 49152
          v_mad_u32_u24 v{vW1[0]}, v26, {sT0}, v39
          v_add_u32 v{vW1[0]}, {sT1}, v{vW1[0]}
          v_add_u32 v{vW1[1]}, {8*3072-1024}, v{vW1[0]}
          v_add_u32 v{vW1[2]}, 128, v{vW1[0]}
          v_add_u32 v{vW1[3]}, 128, v{vW1[1]}
          v_add_u32 v{vW1[4]}, 256, v{vW1[0]}
          v_add_u32 v{vW1[5]}, 256, v{vW1[1]}
          s_mul_i32 {sT0}, {sCB}, 384
          s_mul_i32 {sJ[0]}, {sROT}, 196608
          s_add_u32 {sJ[0]}, {sJ[0]}, {sT0}""")
    for j in range(1, 10):
        A(f"""s_add_u32 {sJ[j]}, {sJ[j-1]}, 196608
              s_cmp_ge_u32 {sJ[j]}, 1966080
              s_cselect_b32 {sT0}, 1966080, 0
              s_sub_u32 {sJ[j]}, {sJ[j]}, {sT0}""")

    def slot(b):
        p, j = divmod(b, 10)
        return (0 if p == 1 else L_S) + 8192 * j

    def w1_items(b):
        p, j = divmod(b, 10)
        return [f"s_add_u32 m0, {sW2K}, {slot(b)}",
                (f"buffer_load_dwordx4 v{vW1[2*p]}, {sW1}, {sJ[j]} offen lds", f"w1_{b}"),
                (f"buffer_load_dwordx4 v{vW1[2*p+1]}, {sW1}, {sJ[j]} offen offset:1024 lds", f"w1_{b}")]

    vGW = 40
    A(f"""v_bfe_u32 v52, {vr(vLANE)}, 3, 2
          v_add_u32 v53, {sROT}, v52""")
    for n in range(3):
        A(f"""v_add_u32 v54, {4*n}, v53
              v_subrev_u32 v55, 10, v54
              v_min_u32 v54, v54, v55
              v_lshlrev_b32 v54, 7, v54
              v_lshl_add_u32 v54, v38, 4, v54""")
        if n == 2:
            A(f"""v_lshrrev_b32 v55, 1, v52
                  v_lshl_add_u32 v54, v55, 16, v54""")
        A(f"buffer_load_dwordx4 v[{vGW+4*n}:{vGW+4*n+3}], v54, {sGW}, 0 offen")
    for b in range(O["early_w1"]):
        for it in w1_items(b):
            put_item(A, it)
    stamp("issued")

    vKA, vBW, vBR, vRA, vRB_ = 56, 57, 58, 59, 60
    A(f"""v_lshrrev_b32 v26, 2, v{vI16}
          v_add_u32 v26, v26, v{vR}
          v_mul_u32_u24 v26, 160, v26
          v_and_b32 v27, 3, v0
          v_lshl_add_u32 v26, v27, 3, v26
          v_lshl_add_u32 v26, v{vCT}, 5, v26
          v_add_u32 v{vKA}, {L_K}, v26
          v_mul_u32_u24 v26, 144, v{vCHL}
          v_lshl_add_u32 v26, v{vR}, 1, v26
          v_add_u32 v{vBW}, {L_BO}, v26
          v_lshrrev_b32 v26, 3, v0
          v_mul_u32_u24 v54, 144, v26
          v_lshl_add_u32 v54, v38, 4, v54
          v_add_u32 v{vBR}, {L_BO}, v54
          v_mul_u32_u24 v54, {TP}, v26
          v_lshl_add_u32 {vr(vT)}, v38, 4, v54""")
    A(f"""v_lshrrev_b32 v26, 5, {vr(vLANE)}
          v_lshlrev_b32 v26, 4, v26
          v_bfe_u32 v54, {vr(vLANE)}, 2, 3
          v_add_u32 v26, v26, v54
          v_mul_u32_u24 v26, 160, v26
          s_and_b32 {sT0}, {sW}, 1
          s_mul_i32 {sT0}, {sT0}, 5120
          s_add_u32 {sT0}, {sT0}, {L_W2}
          s_lshr_b32 {sT1}, {sW}, 1
          s_lshl_b32 {sT1}, {sT1}, 6
          v_add_u32 v26, {sT0}, v26
          v_lshl_add_u32 v{vRB_}, v27, 3, v26
          v_lshl_add_u32 v{vRA}, v27, 4, v26
          v_add_u32 v{vRA}, {sT1}, v{vRA}""")
    A(f"""v_lshrrev_b32 v26, 5, {vr(vLANE)}
          v_lshlrev_b32 v26, 10, v26
          v_bfe_u32 v54, {vr(vLANE)}, 2, 2
          v_lshl_add_u32 v26, v54, 7, v26
          v_bfe_u32 v54, {vr(vLANE)}, 3, 1
          v_lshlrev_b32 v54, 6, v54
          v_xor_b32 v54, {sT1}, v54
          v_add_u32 v26, v26, v54
          v_bfe_u32 v54, {vr(vLANE)}, 4, 1
          v_lshl_add_u32 v26, v54, 5, v26
          v_lshl_add_u32 v{vTR[0]}, v27, 3, v26
          v_add_u32 v{vTR[1]}, 65536, v{vTR[0]}
          v_add_u32 v{vTR[2]}, 131072, v{vTR[0]}""")
    A(f"""v_lshrrev_b32 v26, 5, {vr(vLANE)}
          v_lshlrev_b32 v26, 8, v26
          v_lshl_add_u32 v26, v{vI16}, 4, v26
          v_mul_u32_u24 v54, 49152, v54
          v_add_u32 v{vHS}, v26, v54
          s_mul_i32 {sHB[0]}, {sRB}, 196608
          s_and_b32 {sT0}, {sW}, 1
          s_mul_i32 {sT0}, {sT0}, 98304
          s_add_u32 {sHB[0]}, {sHB[0]}, {sT0}
          s_mul_i32 {sT0}, {sCB}, 6144
          s_add_u32 {sHB[0]}, {sHB[0]}, {sT0}
          s_lshl_b32 {sT1}, {sT1}, 4
          s_add_u32 {sHB[0]}, {sHB[0]}, {sT1}
          s_add_u32 {sHB[0]}, {sHB[0]}, {WS_H}
          s_add_u32 {sHB[1]}, {sHB[0]}, 2048
          s_add_u32 {sHB[2]}, {sHB[0]}, 4096
          s_mul_i32 {sKVO}, {sCB}, {80*TP}
          s_lshl_b32 {sT0}, {sRB}, 7
          s_add_u32 {sKVO}, {sKVO}, {sT0}
          s_mul_i32 {sCH}, {sCB}, 80
          s_lshl_b32 {sT0}, {sRB}, 2
          s_add_u32 {sCH}, {sCH}, {sT0}
          s_add_u32 {sCH}, {sCH}, {sW}
          s_cmp_lt_u32 {sRB}, 20
          s_cselect_b32 {sCH}, {sCH}, 0x4000
          s_mov_b32 s62, 0xbfb8aa3b
          s_mov_b32 s63, 0xbfb8aa3b
          s_mov_b32 {sSPIN}, {O["spin"]}""")
    A(f"""v_cmp_eq_u32 vcc, 0, {vr(vLANE)}
          v_mov_b32 v26, 0x7ff00000
          v_cndmask_b32 v{vFL}, v26, {vr(vLANE)}, vcc""")
    vXA = 61
    A(f"""v_and_b32 v26, 31, {vr(vLANE)}
          v_lshlrev_b32 v26, 7, v26
          v_lshrrev_b32 v54, 5, {vr(vLANE)}
          v_lshrrev_b32 v55, 1, v{vI16}
          v_xor_b32 v54, v54, v55
          v_lshl_add_u32 v26, v54, 4, v26
          s_and_b32 {sT0}, {sW}, 1
          s_lshl_b32 {sT0}, {sT0}, 12
          v_add_u32 v{vXA}, {sT0}, v26""")
    for ks in range(1, 4):
        A(f"v_xor_b32 v{vXA+ks}, {ks<<5}, v{vXA}")
    for ks in range(4):
        A(f"v_add_u32 v{vXA+4+ks}, 65536, v{vXA+ks}")
    vQA = 69
    A(f"""v_lshrrev_b32 v26, 4, {vr(vLANE)}
          s_mul_i32 {sT0}, {sCB}, 10
          v_lshlrev_b32 v72, 7, v{vI16}
          v_add_u32 v72, {sW2K}, v72""")
    for n in range(3):
        if n < 2:
            A(f"""s_add_u32 {sT1}, {sT0}, {4*n}
                  v_add_u32 v54, {sT1}, v26""")
        else:
            A(f"""s_add_u32 {sT1}, {sT0}, 8
                  v_lshrrev_b32 v54, 1, v26
                  v_add_u32 v54, {sT1}, v54""")
        A(f"""v_lshrrev_b32 v73, 3, v54
              v_subrev_u32 v73, {sROT}, v73
              v_add_u32 v74, 10, v73
              v_min_u32 v73, v73, v74
              v_and_b32 v54, 7, v54
              v_xor_b32 v54, v54, v55
              v_lshl_add_u32 v54, v54, 4, v72
              v_lshl_add_u32 v{vQA+n}, v73, 13, v54""")
    A(f"""v_and_b32 v26, 1, v26
          v_lshl_add_u32 v{vQA+2}, v26, 3, v{vQA+2}""")
    vGA = 75
    A(f"""s_lshl_b32 {sT0}, {sCB}, 2
          s_add_u32 {sT0}, {sT0}, {sW}
          s_and_b32 {sT1}, {sT0}, 7
          s_lshl_b32 {sT0}, {sT0}, 8
          v_xor_b32 v26, {sT1}, v38
          v_lshlrev_b32 v26, 4, v26
          v_lshrrev_b32 v54, 5, {vr(vLANE)}
          v_lshl_add_u32 v26, v54, 7, v26
          v_add_u32 v26, {sT0}, v26
          v_lshl_add_u32 v{vGA}, v52, 13, v26
          v_and_b32 v54, 1, v52
          v_lshl_add_u32 v26, v54, 13, v26
          v_add_u32 v{vGA+1}, 65536, v26""")
    vWa, vWb, vWc, vWd, vWe = 77, 78, 79, 80, 81
    A(f"""s_mov_b32 {sT0}, 0xffff
          v_and_b32 v{vWa}, 0xffff, v{vSH}
          v_bfi_b32 v{vWb}, {sT0}, v{vSH+1}, v{vSH}
          v_and_b32 v{vWc}, 0xffff0000, v{vSH+1}
          v_alignbit_b32 v{vWd}, v{vSH}, v{vSH}, 16
          v_alignbit_b32 v{vWe}, v{vSH+1}, v{vSH+1}, 16""")
    A(f"""v_readfirstlane_b32 {sTAGC}, v{vG0}
          v_readfirstlane_b32 {sTAGR}, v{vG1}
          s_mul_i32 {sTAGC}, {sTAGC}, 0x2C9277B5
          s_mul_i32 {sTAGR}, {sTAGR}, 0x2C9277B5
          s_add_u32 {sTAGC}, {sTAGC}, 0xAC564B05
          s_add_u32 {sTAGR}, {sTAGR}, 0xAC564B05""")

    A.wait("p0in")
    A("s_barrier")
    stamp("p0in")
    vWT = 84
    vP = 96
    vVV = 110
    vO = 122
    vE = 134
    for i, (va, off) in enumerate(((vRA, 0), (vRA, 8), (vRB_, 128))):
        A(f"ds_read_b64_tr_b16 v[{vWT+4*i}:{vWT+4*i+1}], v{va} offset:{off}")
        A(f"ds_read_b64_tr_b16 v[{vWT+4*i+2}:{vWT+4*i+3}], v{va} offset:{off+1280}")
    for m in range(7):
        A(f"ds_read_b64_tr_b16 v[{vP+2*m}:{vP+2*m+1}], v{vKA} offset:{640*m}")
        if m < 6:
            A(f"ds_read_b64_tr_b16 v[{vVV+2*m}:{vVV+2*m+1}], v{vKA} offset:{640*m + L_V - L_K}")
    A(f"""s_mul_i32 {sT0}, {sCB}, 48
          s_lshl_b32 {sT1}, {sRB}, 1
          s_add_u32 {sT0}, {sT0}, {sT1}
          s_and_b32 {sT1}, {sW}, 1
          s_add_u32 {sT0}, {sT0}, {sT1}
          s_mul_i32 {sT0}, {sT0}, 5120
          s_add_u32 {sT0}, {sT0}, {WS_W2P}
          s_cmp_lt_u32 {sRB}, 24
          s_cselect_b32 {sT0}, {sT0}, 0x7f000000
          s_and_b32 {sT1}, {sW}, 2
          s_lshl_b32 {sT1}, {sT1}, 10
          s_add_u32 {sT1}, {sT1}, {sT0}
          s_add_u32 {sT0}, {sT0}, 4096""")
    A(f"buffer_store_dwordx4 v[{vWT}:{vWT+3}], {vr(vL16)}, {sWS}, {sT1} offen sc1", "p0out")
    A(f"buffer_store_dwordx4 v[{vWT+4}:{vWT+7}], {vr(vL16)}, {sWS}, {sT1} offen offset:1024 sc1", "p0out")
    A(f"buffer_store_dwordx4 v[{vWT+8}:{vWT+11}], {vr(vL16)}, {sWS}, {sT0} offen sc1", "p0out")
    for o in range(13):
        e = vE + 4 * (o & 1) * 2
        if o < 12:
            A(f"""v_dot2_f32_bf16 v{e}, v{vP+o+2}, v{vWa}, 0
                  v_dot2_f32_bf16 v{e+1}, v{vP+o+2}, v{vWd}, 0
                  v_dot2_f32_bf16 v{e}, v{vP+o+1}, v{vWb}, v{e}
                  v_dot2_f32_bf16 v{e+1}, v{vP+o+1}, v{vWe}, v{e+1}
                  v_dot2_f32_bf16 v{e}, v{vP+o}, v{vWc}, v{e}
                  v_lshlrev_b32 v{e+2}, 16, v{vVV+o}
                  v_and_b32 v{e+3}, 0xffff0000, v{vVV+o}""")
        if o > 0:
            e = vE + 4 * ((o - 1) & 1) * 2
            A(f"""v_pk_mul_f32 v[{e}:{e+1}], v[{e}:{e+1}], v[{e+2}:{e+3}]
                  v_cvt_pk_bf16_f32 v{vO+o-1}, v{e}, v{e+1}""")
    A("s_barrier")
    for i in range(3):
        A(f"ds_write_b128 v{vBW}, v[{vO+4*i}:{vO+4*i+3}] offset:{16*i}", "bo")
    A.wait("bo")
    A("s_barrier")
    for n in range(3):
        A(f"ds_read_b128 v[{vP+4*n}:{vP+4*n+3}], v{vBR} offset:{4608*n}")
    A(f"""s_add_u32 {sT0}, {sKVO}, {WS_KVT}
          s_add_u32 {sT1}, {sKVO}, {WS_KVT + 32*TP}
          s_add_u32 {sT2}, {sKVO}, {WS_KVT + 64*TP}
          s_cmp_lt_u32 {sW}, 2
          s_cselect_b32 {sT2}, {sT2}, 0x7f000000""")
    for n, s in enumerate((sT0, sT1, sT2)):
        A(f"buffer_store_dwordx4 v[{vP+4*n}:{vP+4*n+3}], {vr(vT)}, {sWS}, {s} offen sc1", "p0out")
    stamp("p0done")
    A.wait("x")
    A("s_barrier")
    stamp("xin")
    for b in range(O["early_w1"], 10):
        for it in w1_items(b):
            put_item(A, it)
    vGX = 84
    A(f"ds_read_b128 v[{vGX}:{vGX+3}], v{vGA}")
    A(f"ds_read_b128 v[{vGX+4}:{vGX+7}], v{vGA} offset:32768")
    A(f"ds_read_b128 v[{vGX+8}:{vGX+11}], v{vGA+1}")
    xr = []
    for j in range(10):
        for ks in range(4):
            va, off = (vXA + ks, 8192 * j) if j < 8 else (vXA + 4 + ks, 8192 * (j - 8))
            xr.append(f"ds_read_b128 {ar(16*j+4*ks,4)}, v{va} offset:{off}")
    xr.append(f"ds_read_b128 a[240:243], v{vQA}")
    xr.append(f"ds_read_b128 a[244:247], v{vQA+1}")
    xr.append(f"ds_read_b64 a[248:249], v{vQA+2}")
    gops = []
    for i in range(12):
        gops.append(f"v_dot2_f32_bf16 v96, v{vGX+i}, v{vGW+i}, " + ("0" if i == 0 else "v96"))
    for m in ("quad_perm:[1,0,3,2]", "quad_perm:[2,3,0,1]", "row_half_mirror", "row_mirror"):
        gops.append(f"v_add_f32_dpp v96, v96, v96 {m} row_mask:0xf bank_mask:0xf")
    gops.append("v_add_f32_dpp v96, v96, v96 row_bcast:15 row_mask:0xa bank_mask:0xf")
    gops += ["v_mul_f32 v96, s62, v96", "v_exp_f32 v96, v96", "v_add_f32 v96, 1.0, v96", "v_rcp_f32 v96, v96"]
    gops += [f"v_and_b32 v97, 31, {vr(vLANE)}", "v_cmp_eq_u32 vcc, 31, v97", f"v_lshrrev_b32 v97, 5, {vr(vLANE)}",
             "v_lshlrev_b32 v97, 2, v97", "v_mov_b32 v98, 0x7ff00000", "v_cndmask_b32 v97, v98, v97, vcc",
             f"s_lshl_b32 {sT0}, {sRB}, 8", f"s_lshl_b32 {sT1}, {sCB}, 5", f"s_add_u32 {sT0}, {sT0}, {sT1}",
             f"s_lshl_b32 {sT1}, {sW}, 3", f"s_add_u32 {sT0}, {sT0}, {sT1}", f"s_add_u32 {sT0}, {sT0}, {WS_G}",
             (f"buffer_store_dword v96, v97, {sWS}, {sT0} offen sc1", "hout")]
    for i in range(8):
        A(xr[i])
    gi = 0
    for i in range(8, len(xr)):
        A(xr[i])
        if gi < len(gops):
            put_item(A, gops[gi]); gi += 1
    for g in gops[gi:]:
        put_item(A, g)
    A.waitall(vm=False)

    vACC = [16, 32]
    NB = 8
    vFR = 48
    vS = 80
    vHO = 96
    vPO = 104
    vPA = 106
    vZ = 107
    vDD = 108
    vGAD, vHAD, vUAD, vYW = 109, 110, 111, 112

    def fr_reads(n):
        b, ks = divmod(n, 4)
        a = slot(b) + 2048 * ks
        base, off = vTR[a >> 16], a & 0xffff
        f = vFR + 4 * (n % NB)
        return [f"ds_read_b64_tr_b16 v[{f}:{f+1}], v{base} offset:{off}",
                f"ds_read_b64_tr_b16 v[{f+2}:{f+3}], v{base} offset:{off+512}"]

    def group_sync(g):
        def f():
            tags = [f"w1_{b}" for b in range(GS * g, GS * g + GS)]
            if g == O["p0flag"]:
                tags.append("p0out")
            A.wait(*tags)
            A("s_barrier")
            if g == O["p0flag"]:
                A(f"""s_lshl_b32 {sT0}, {sCB}, 8
                      s_lshl_b32 {sT1}, {sRB}, 2
                      s_add_u32 {sT0}, {sT0}, {sT1}
                      s_cmp_eq_u32 {sW}, 0
                      s_cselect_b32 {sT0}, {sT0}, 0x7f000000
                      v_mov_b32 v{vZ}, {sTAGC}""")
                A(f"buffer_store_dword v{vZ}, v{vFL}, {sWS}, {sT0} offen sc1")
        return f

    def silu_ops(p):
        ac = vACC[p & 1]
        ops = []
        for h in range(0, 8, 2):
            t0, t1 = vS + 4 * ((h >> 1) & 1), vS + 4 * ((h >> 1) & 1) + 2
            z0, z1 = ac + 2 * h, ac + 2 * h + 2
            ops += [(1, f"v_pk_mul_f32 v[{t0}:{t0+1}], v[{z0}:{z0+1}], {sNL2E}"),
                    (1, f"v_pk_mul_f32 v[{t1}:{t1+1}], v[{z1}:{z1+1}], {sNL2E}"),
                    (2, f"v_exp_f32 v{t0}, v{t0}"), (2, f"v_exp_f32 v{t0+1}, v{t0+1}"),
                    (2, f"v_exp_f32 v{t1}, v{t1}"), (2, f"v_exp_f32 v{t1+1}, v{t1+1}"),
                    (1, f"v_pk_add_f32 v[{t0}:{t0+1}], v[{t0}:{t0+1}], 1.0 op_sel_hi:[1,0]"),
                    (1, f"v_pk_add_f32 v[{t1}:{t1+1}], v[{t1}:{t1+1}], 1.0 op_sel_hi:[1,0]"),
                    (2, f"v_rcp_f32 v{t0}, v{t0}"), (2, f"v_rcp_f32 v{t0+1}, v{t0+1}"),
                    (2, f"v_rcp_f32 v{t1}, v{t1}"), (2, f"v_rcp_f32 v{t1+1}, v{t1+1}"),
                    (1, f"v_pk_mul_f32 v[{t0}:{t0+1}], v[{t0}:{t0+1}], v[{z0}:{z0+1}]"),
                    (1, f"v_pk_mul_f32 v[{t1}:{t1+1}], v[{t1}:{t1+1}], v[{z1}:{z1+1}]"),
                    (1, f"v_cvt_pk_bf16_f32 v{vHO+h}, v{t0}, v{t0+1}"),
                    (1, f"v_cvt_pk_bf16_f32 v{vHO+h+1}, v{t1}, v{t1+1}")]
            if h in (2, 6):
                r = h >> 2
                ops.append((1, (f"buffer_store_dwordx4 v[{vHO+4*r}:{vHO+4*r+3}], v{vHS}, {sWS}, {sHB[p]} offen offset:{512*r} sc1", "hout")))
        return ops

    def w2reg(i):
        return (4 * i + 160) % 240

    def w2_items(i):
        it = []
        if i % 4 == 0 and i:
            it.append(f"s_add_u32 {sW2L}, {sW2L}, 4096")
        it.append(f"buffer_load_dwordx4 {ar(w2reg(i),4)}, {vr(vL16)}, {sWS}, {sW2L} offen offset:{1024*(i%4)} sc1")
        return it

    group_sync(0)()
    stamp("g1start")
    synced = {0}
    for n in range(DIST):
        g = (n // 4) // GS
        if g not in synced:
            group_sync(g)(); synced.add(g)
        for r in fr_reads(n):
            A(r)
    anchors = []
    sync_at = {}
    for n in range(120):
        p, k = divmod(n, 40)
        ac = vACC[p & 1]
        f = vFR + 4 * (n % NB)
        grp = [f"v_mfma_f32_32x32x16_bf16 v[{ac}:{ac+15}], v[{f}:{f+3}], {ar(4*k,4)}, " + ("0" if k == 0 else f"v[{ac}:{ac+15}]")]
        m = n + DIST
        if m < 120:
            g = (m // 4) // GS
            if g not in synced:
                grp.append(group_sync(g)); synced.add(g); sync_at[g] = n
            grp += fr_reads(m)
        anchors.append(grp)
    free_at = lambda b: sync_at[b // GS + 2] if (b // GS + 2) in sync_at else None
    dma = []
    for b in range(10, 30):
        e = -1 if b < 20 else free_at(b - 20)
        lat = sync_at[b // GS]
        for it in w1_items(b):
            dma.append(dict(e=max(e, 0), l=lat, it=it))
    pi = O["poll_i"]
    pos = next(i for i, d in enumerate(dma) if d["e"] >= pi) if any(d["e"] >= pi for d in dma) else len(dma)
    pos -= pos % 3
    pl = [f"v_and_b32 v{vPA}, 31, {vr(vLANE)}", f"v_lshlrev_b32 v{vPA}, 2, v{vPA}", f"s_lshl_b32 {sHL}, {sCB}, 8",
          lambda: poll(vPA, sTAGC, sHL, vPO, check=False)]
    dma[pos:pos] = [dict(e=pi, it=x) for x in pl]
    e_h, e_u = free_at(12), free_at(14)
    misc = [f"s_mul_i32 {sT2}, {sW}, {HBP}", f"v_min_u32 v{vGAD}, 23, {vr(vLANE)}",
            f"v_lshlrev_b32 v{vGAD}, 2, v{vGAD}", f"v_mov_b32 v{vZ}, 0", f"v_add_u32 v{vGAD}, {sT2}, v{vGAD}",
            f"v_mov_b32 v{vDD}, 0",
            (f"ds_write_b32 v{vGAD}, v{vZ} offset:{L_HB}", "pad"),
            f"s_add_u32 m0, {sT2}, {L_HB+96}", f"s_lshl_b32 {sT3}, {sCH}, 12"]
    misc += [(f"buffer_load_dwordx4 {vr(vL16)}, {sSK}, {sT3} offen offset:{1024*i} lds", "hin") for i in range(4)]
    misc += [f"s_lshl_b32 {sT3}, {sCH}, 1", f"buffer_load_short_d16_hi v{vDD}, off, {sD}, {sT3}"]
    misc += [f"v_and_b32 v{vGAD}, 3, {vr(vLANE)}", f"v_lshrrev_b32 v{vHAD}, 4, {vr(vLANE)}",
             f"v_bfe_u32 v{vUAD}, {vr(vLANE)}, 2, 2", f"v_add_u32 v{vYW}, v{vGAD}, v{vHAD}",
             f"v_lshlrev_b32 v{vYW}, 5, v{vYW}", f"v_lshl_add_u32 v{vYW}, v{vUAD}, 3, v{vYW}",
             f"v_sub_u32 v{vGAD}, v{vGAD}, v{vUAD}", f"v_lshlrev_b32 v{vHAD}, 2, v{vHAD}",
             f"v_sub_u32 v{vHAD}, v{vGAD}, v{vHAD}", f"v_add_u32 v{vGAD}, {sT2}, v{vYW}",
             f"s_mul_i32 {sT2}, {sW}, {UBP}", f"s_add_u32 {sT3}, {sT2}, {L_UB+128}",
             f"v_lshlrev_b32 v{vHAD}, 3, v{vHAD}", f"v_add_u32 v{vHAD}, {sT3}, v{vHAD}",
             f"v_lshlrev_b32 v{vYW}, 1, {vr(vLANE)}", f"s_add_u32 {sT3}, {sT2}, {L_UB+32}",
             f"v_add_u32 v{vUAD}, {sT3}, v{vYW}", f"s_lshl_b32 {sT3}, {sW}, 12",
             f"s_add_u32 {sT3}, {sT3}, {L_YS}", f"v_add_u32 v{vYW}, {sT3}, v{vYW}"]
    for x in misc:
        dma.append(dict(e=e_h, it=x))
    pc = max(O["poll_c"], e_u)

    def col_ok():
        poll(vPA, sTAGC, sHL, vPO, issue=False)
        A(f"""s_add_u32 {sT0}, {sHL}, {WS_COLG}
              s_or_b32 {sT1}, {sRB}, {sW}
              s_cmp_eq_u32 {sT1}, 0
              s_cselect_b32 {sT0}, {sT0}, 0x7f000000
              v_mov_b32 v{vPO}, {sTAGC}""")
        A(f"buffer_store_dword v{vPO}, v{vFL}, {sWS}, {sT0} offen sc1")
    misc2 = [col_ok, f"v_and_b32 v{vPA}, 7, {vr(vLANE)}", f"s_mul_i32 {sT2}, {sW}, {UBP}",
             f"v_lshlrev_b32 v{vPA}, 2, v{vPA}", f"v_add_u32 v{vPA}, {sT2}, v{vPA}",
             (f"ds_write_b32 v{vPA}, v{vZ} offset:{L_UB}", "pad"),
             f"s_add_u32 m0, {sT2}, {L_UB+32}", f"s_mul_i32 {sT3}, {sCH}, {TP}", f"s_add_u32 {sT3}, {sT3}, {WS_KVT}"]
    misc2 += [(f"buffer_load_dwordx4 {vr(vL16)}, {sWS}, {sT3} offen offset:{1024*i} sc1 lds", "uin") for i in range(4)]
    misc2 += [f"s_mul_i32 {sW2L}, {sCB}, {48*5120}", f"s_mul_i32 {sT3}, {sW}, {12*5120}",
              f"s_add_u32 {sW2L}, {sW2L}, {sT3}", f"s_add_u32 {sW2L}, {sW2L}, {WS_W2P}"]
    for x in misc2:
        dma.append(dict(e=pc, it=x))
    NW2_G1 = O.get("w2g1", 12)
    for i in range(NW2_G1):
        for x in w2_items(i):
            dma.append(dict(e=min(pc + 8 + 2 * i, 119), it=x))
    sil = []
    for p in range(2):
        for c, x in silu_ops(p):
            sil.append(dict(e=40 * (p + 1) + 2, l=40 * (p + 2), c=c, it=x))
    left = weave2(A, anchors, [dma, sil], O.get("cap1", 3))
    drain(A, left)
    stamp("g1end")

    vG = 114
    vH = 178
    NA = 8
    vCA = 16
    vP2 = [244, 245, 246]
    vP1 = [247, 248, 249]
    vY = [250, 251]
    vU = [252, 253, 254]
    vYO = 96
    vCV = 255
    Hreg = lambda b: vH + 2 * (31 - b)
    rd = []
    for n in range(32):
        rd.append((n, f"ds_read_b64_tr_b16 v[{Hreg(n)}:{Hreg(n)+1}], v{vHAD} offset:{128*n}"))
        if n % 2 == 0:
            for x in (n, n + 1):
                rd.append((n, f"ds_read_b64_tr_b16 v[{vG+2*x}:{vG+2*x+1}], v{vGAD} offset:{L_HB+128*x}"))
    A.wait("hin", "uin", "pad")
    so = silu_ops(2)
    NPRE = 24
    ri = 0
    for i, (c, x) in enumerate(so):
        put_item(A, x)
        if i >= 8 and i % 2 == 0 and ri < NPRE:
            A(rd[ri][1]); ri += 1
    for r in (Hreg(-1), Hreg(-1) + 1, vP2[2], vP1[2], vU[0], vU[1], vU[2], vZ):
        A(f"v_mov_b32 v{r}, 0")
    stamp("silu2")

    vHF = 48
    vL16b, vL16c = 4, 5

    def hload(ph, kk, dst):
        vo = (vL16, vL16b, vL16c)[kk // 4]
        return f"buffer_load_dwordx4 v[{dst}:{dst+3}], v{vo}, {sWS}, {sHL} offen offset:{1024*(kk%4)} sc1"

    def hbase(ph):
        return [f"s_add_u32 {sT0}, {sW}, {1+ph}", f"s_and_b32 {sT0}, {sT0}, 3", f"s_mul_i32 {sT0}, {sT0}, 49152",
                f"s_add_u32 {sHL}, {sT0}, {sHB[0]}"]

    def h_flag():
        A.wait("hout")
        A(f"""s_lshl_b32 {sT0}, {sRB}, 8
              s_lshl_b32 {sT1}, {sCB}, 4
              s_add_u32 {sT0}, {sT0}, {WS_ROWH}
              s_add_u32 {sT1}, {sT1}, {sT0}
              s_lshl_b32 {sT2}, {sW}, 2
              s_add_u32 {sT1}, {sT1}, {sT2}
              v_mov_b32 v{vPO}, {sTAGR}""")
        A(f"buffer_store_dword v{vPO}, v{vFL}, {sWS}, {sT1} offen sc1")

    def row_poll_issue():
        A(f"""v_and_b32 v{vPA}, 31, {vr(vLANE)}
              s_lshl_b32 {sHB[1]}, {sRB}, 8
              v_lshlrev_b32 v{vPA}, 2, v{vPA}
              s_add_u32 {sHB[1]}, {sHB[1]}, {WS_ROWH}""")
        poll(vPA, sTAGR, sHB[1], vPO, check=False)

    vGT = 6
    def row_ok():
        poll(vPA, sTAGR, sHB[1], vPO, issue=False)
        A(f"""s_add_u32 {sT0}, {sHB[1]}, {WS_ROWG - WS_ROWH}
              s_or_b32 {sT1}, {sCB}, {sW}
              s_cmp_eq_u32 {sT1}, 0
              s_cselect_b32 {sT0}, {sT0}, 0x7f000000
              v_mov_b32 v{vPO}, {sTAGR}
              v_add_u32 v{vL16b}, 4096, {vr(vL16)}
              v_add_u32 v{vL16c}, 8192, {vr(vL16)}""")
        A(f"buffer_store_dword v{vPO}, v{vFL}, {sWS}, {sT0} offen sc1")
        A(f"""s_mul_i32 {sHB[0]}, {sRB}, 196608
              s_mul_i32 {sT0}, {sW}, 12288
              s_add_u32 {sHB[0]}, {sHB[0]}, {sT0}
              s_add_u32 {sHB[0]}, {sHB[0]}, {WS_H}
              v_and_b32 v{vPA}, 15, {vr(vLANE)}
              s_lshl_b32 {sT0}, {sRB}, 8
              s_lshl_b32 {sT1}, {sW}, 6
              v_lshlrev_b32 v{vPA}, 2, v{vPA}
              s_add_u32 {sT0}, {sT0}, {sT1}
              s_add_u32 {sT0}, {sT0}, {WS_G}""")
        A(f"buffer_load_dword v{vGT}, v{vPA}, {sWS}, {sT0} offen sc1")
        for x in hbase(0):
            A(x)

    PACE = O["w2pace"]
    common = []
    t = 4
    for i in range(NW2_G1, 60):
        if i == NW2_G1 + O.get("hflag_after", 8):
            common.append(dict(e=t, it=h_flag))
        if i == O.get("rowpoll_at", 52):
            common.append(dict(e=t, it=row_poll_issue))
        for x in w2_items(i):
            common.append(dict(e=t, it=x))
        t += PACE
    t += O.get("rowok_gap", 16)
    common.append(dict(e=t, it=row_ok))
    for kk in range(O["hpre"]):
        t += PACE
        common.append(dict(e=min(t, 270), it=hload(0, kk, vHF + 4 * kk)))

    snapshot_out = len(A.out)
    A(f"s_cmp_ge_u32 {sRB}, 20")
    A.settle()
    A("s_cbranch_scc1 Lnoconv")
    import copy
    saved = (copy.deepcopy(A.q), dict(A.pend), A.nid)
    A.nopt += 1
    A.opt = A.nopt
    A._hidden = []
    optid = A.opt

    def as_common(it):
        def f():
            n0 = {qn: len(A.q[qn]) for qn in A.q}
            ids0 = A.nid
            put_item(A, it)
            for qn in A.q:
                for e in A.q[qn]:
                    if e["id"] > ids0:
                        e["opt"] = 0
        return f

    anchors, last = [], {}
    first = {}
    for n in range(32):
        ac = vCA + 4 * ((n + 4) % NA)
        first[n] = len(anchors)
        for q in range(n // 2 + 1):
            b = n - 2 * q
            anchors.append([f"v_mfma_f32_16x16x32_bf16 v[{ac}:{ac+3}], v[{vG+4*q}:{vG+4*q+3}], v[{Hreg(b)}:{Hreg(b)+3}], " +
                            ("0" if q == 0 else f"v[{ac}:{ac+3}]")])
        last[n] = len(anchors) - 1
    NAN = len(anchors)
    rds = [dict(e=-1, l=first[n], it=x) for n, x in rd[ri:]]
    for d in rds:
        d["e"] = 0 if d["l"] > 0 else -1
    acc = lambda n, r: vCA + 4 * ((n + 4) % NA) + r
    DP = "row_mask:0xf bank_mask:0xf"
    comb = []
    uread = lambda n: f"ds_read_u16_d16_hi v{vU[n%3]}, v{vUAD} offset:{128*n}"
    comb.append(dict(e=0, it=uread(0)))
    comb.append(dict(e=0, it=uread(1)))
    for s in range(32 + 3):
        a, b, c = s, s - 1, s - 2
        e = min(last[min(s, 31)] + 3, NAN + 5)
        l = first[c + NA] if 0 <= c + NA < 32 and c >= 0 else 1 << 30
        it = []
        d3p = (lambda n: acc(n - 1, 3) if n > 0 else vZ)
        if a < 32:
            it.append(f"v_add_f32_dpp v{vP2[a%3]}, v{d3p(a)}, v{acc(a,2)} wave_ror:1 {DP}")
        if 0 <= b < 32:
            it.append(f"v_add_f32_dpp v{vP1[b%3]}, v{vP2[(b-1)%3]}, v{acc(b,1)} wave_ror:1 {DP}")
        if 0 <= c < 32:
            it.append(f"v_add_f32_dpp v{vY[c%2]}, v{vP1[(c-1)%3]}, v{acc(c,0)} wave_ror:1 {DP}")
        if a < 32:
            it.append(f"v_add_f32_dpp v{vP2[a%3]}, v{acc(a,3)}, v{acc(a,2)} wave_shr:1 {DP}")
        if 0 <= b < 32:
            it.append(f"v_add_f32_dpp v{vP1[b%3]}, v{vP2[b%3]}, v{acc(b,1)} wave_shr:1 {DP}")
        if 0 <= c < 32:
            it.append(f"v_add_f32_dpp v{vY[c%2]}, v{vP1[c%3]}, v{acc(c,0)} wave_shr:1 {DP}")
        if a < 32:
            it.append(f"v_fmac_f32 v{acc(a,0)}, v{vU[a%3]}, v{vDD}")
        if a + 2 < 32:
            it.append(uread(a + 2))
        if 0 <= c < 32 and c % 2 == 1:
            it.append(f"v_cvt_pk_bf16_f32 v{vCV}, v{vY[0]}, v{vY[1]}")
            it.append((f"ds_write_b16 v{vYW}, v{vCV} offset:{128*(c-1)}", "ys"))
            it.append((f"ds_write_b16_d16_hi v{vYW}, v{vCV} offset:{128*c}", "ys"))
            if c % 8 == 7:
                i = c // 8
                if i == 0:
                    it += [f"s_lshl_b32 {sT3}, {sW}, 12", f"v_add_u32 v113, {sT3}, {vr(vL16)}",
                           f"s_mul_i32 {sCH}, {sCH}, {TP}", f"s_add_u32 {sCH}, {sCH}, {WS_YT}"]
                it.append(f"ds_read_b128 v[{vYO+4*(i&1)}:{vYO+4*(i&1)+3}], v113 offset:{L_YS+1024*i}")
        dd = s - 3
        if 0 <= dd < 32 and dd % 8 == 7:
            i = dd // 8
            it.append((f"buffer_store_dwordx4 v[{vYO+4*(i&1)}:{vYO+4*(i&1)+3}], {vr(vL16)}, {sWS}, {sCH} offen offset:{1024*i} sc1", "yout"))
        for x in it:
            comb.append(dict(e=e, l=l, it=x))
    com2 = [dict(e=d["e"], it=as_common(d["it"])) for d in common]
    left = weave2(A, anchors, [com2, rds, comb], 2)
    drain(A, [left[1], left[2], left[0]])
    A.wait("yout")
    A(f"""s_lshl_b32 {sT0}, {sCB}, 9
          s_lshl_b32 {sT1}, {sRB}, 4
          s_add_u32 {sT0}, {sT0}, {sT1}
          s_lshl_b32 {sT1}, {sW}, 2
          s_add_u32 {sT0}, {sT0}, {sT1}
          s_add_u32 {sT0}, {sT0}, {WS_COLCV}
          v_mov_b32 v{vPO}, {sTAGC}""")
    A(f"buffer_store_dword v{vPO}, v{vFL}, {sWS}, {sT0} offen sc1")
    A.settle()
    A("s_branch Ljoin")
    for qn in A.q:
        back = [h for h in A._hidden if h[0] == qn]
        A.q[qn] = [h[1] for h in back] + A.q[qn]
        for h in back:
            for r, v in h[2].items():
                A.pend.setdefault(r, v)
    A.opt = 0
    stateA = (A.q, A.pend, A.nid)
    A.label("Lnoconv")
    A.q, A.pend, A.nid = saved[0], saved[1], stateA[2]
    for d in common:
        put_item(A, d["it"])
    A.settle()
    seqB = [e["text"] for e in A.q["vm"]]
    seqA = [e["text"] for e in stateA[0]["vm"] if e["opt"] == 0]
    assert seqA[-len(seqB):] == seqB, (seqA, seqB)
    nid = A.nid
    A.q, A.pend, A.nid = stateA[0], stateA[1], nid
    A.label("Ljoin")
    stamp("conv")

    HF = [48, 114, 162, 210 - 0]
    HF = [48, 112, 160, 208]
    vA2 = [8, 28]
    vFL2, vRW = 7, 96
    vGQ = 48
    vOMG = 68
    vYR = 70
    vTM = 80
    vRD = 112
    vYA, vOA, vOB, vRR = 97, 98, 99, 100
    anchors = []
    for ph in range(4):
        for kk in range(12):
            for nt in range(5):
                ac = vA2[ph & 1] + 4 * nt
                anchors.append([f"v_mfma_f32_16x16x32_bf16 v[{ac}:{ac+3}], {ar(w2reg(kk*5+nt),4)}, v[{HF[ph]+4*kk}:{HF[ph]+4*kk+3}], " +
                                ("0" if kk == 0 else f"v[{ac}:{ac+3}]")])
    pre = []
    for kk in range(O["hpre"], 12):
        pre.append(hload(0, kk, HF[0] + 4 * kk))
    for x in pre:
        A(x)
    ld = []
    t = -1
    H0 = O.get("hburst", 12)
    cnt = 0
    for ph in range(1, 4):
        for x in hbase(ph):
            ld.append(dict(e=t, it=x))
        for kk in range(12):
            ld.append(dict(e=t, l=60 * ph + 5 * kk, it=hload(ph, kk, HF[ph] + 4 * kk)))
            cnt += 1
            if cnt >= H0:
                t += O.get("hpace", 4)
    while ld and ld[0]["e"] < 0:
        put_item(A, ld.pop(0)["it"])
    ty = max(t, 0) + 2

    def y_issue():
        A(f"""v_min_u32 v{vPA}, 39, {vr(vLANE)}
              s_lshl_b32 {sHB[1]}, {sCB}, 9
              v_lshlrev_b32 v{vPA}, 3, v{vPA}
              s_add_u32 {sHB[1]}, {sHB[1]}, {WS_COLCV}""")
        poll(vPA, sTAGC, sHB[1], vPO, n=2, check=False)

    def y_dma():
        poll(vPA, sTAGC, sHB[1], vPO, n=2, issue=False)
        A(f"""s_add_u32 {sT0}, {sKVO}, {WS_YT}
              s_add_u32 m0, {sW1K}, {L_YT}
              s_add_u32 {sT1}, {sKVO}, {WS_YT + 32*TP}""")
        A(f"buffer_load_dwordx4 {vr(vT)}, {sWS}, {sT0} offen sc1 lds", "yin")
        A(f"""s_add_u32 m0, {sW1K}, {L_YT+4096}
              s_add_u32 {sT0}, {sKVO}, {WS_YT + 64*TP}""")
        A(f"buffer_load_dwordx4 {vr(vT)}, {sWS}, {sT1} offen sc1 lds", "yin")
        A(f"s_add_u32 m0, {sW1K}, {L_YT+8192}")
        A(f"s_cmp_ge_u32 {sW}, 2")
        A.begin_opt("s_cbranch_scc1", settle=False)
        A(f"buffer_load_dwordx4 {vr(vT)}, {sWS}, {sT0} offen sc1 lds", "yin")
        A.end_opt()
    ld.append(dict(e=O.get("ypoll_i", ty), it=y_issue))
    ld.append(dict(e=O.get("ypoll_c", 150), it=y_dma))

    red = []
    for ph in range(3):
        e = 60 * (ph + 1) + 2
        its = [f"s_add_u32 {sT2}, {sW}, {1+ph}", f"s_and_b32 {sT2}, {sT2}, 3", f"s_mul_i32 {sT2}, {sT2}, 15360",
               f"s_add_u32 {sT2}, {sT2}, {L_RED + 5120*ph}", f"v_add_u32 v{vRW}, {sT2}, {vr(vL16)}"]
        for x in its:
            red.append(dict(e=e - 8, l=60 * (ph + 2), it=x))
        for nt in range(5):
            ac = vA2[ph & 1] + 4 * nt
            red.append(dict(e=e, l=60 * (ph + 2), it=(f"ds_write_b128 v{vRW}, v[{ac}:{ac+3}] offset:{1024*nt}", "red")))
        if ph == 0:
            its = [f"v_sub_f32 v{vOMG}, 1.0, v{vGT}"]
            for i in range(10):
                its += [f"v_accvgpr_read_b32 v{vTM}, a{240+i}", f"v_lshlrev_b32 v{vGQ+2*i}, 16, v{vTM}",
                        f"v_and_b32 v{vGQ+2*i+1}, 0xffff0000, v{vTM}",
                        f"v_pk_mul_f32 v[{vGQ+2*i}:{vGQ+2*i+1}], v[{vGQ+2*i}:{vGQ+2*i+1}], v[{vGT}:{vGT+1}] op_sel_hi:[1,0]"]
            its += [f"v_lshrrev_b32 v{vTM}, 4, {vr(vLANE)}", f"v_bfe_u32 v{vTM+1}, {vr(vLANE)}, 2, 2",
                    f"v_and_b32 v{vTM+2}, 3, {vr(vLANE)}", f"v_lshlrev_b32 v{vTM+1}, 7, v{vTM+1}",
                    f"v_lshl_add_u32 v{vTM+1}, v{vTM+2}, 3, v{vTM+1}", f"s_lshl_b32 {sT3}, {sW}, 5",
                    f"s_add_u32 {sT3}, {sT3}, {L_YT}", f"v_add_u32 v{vTM+1}, {sT3}, v{vTM+1}",
                    f"v_lshl_add_u32 v{vYA}, v{vTM}, 10, v{vTM+1}", f"v_lshl_add_u32 v101, v{vTM}, 9, v{vTM+1}",
                    f"v_and_b32 v{vTM+2}, 15, {vr(vLANE)}", f"v_mul_u32_u24 v{vTM+2}, 1280, v{vTM+2}",
                    f"v_lshl_add_u32 v{vOA}, v{vTM}, 4, v{vTM+2}", f"v_lshl_add_u32 v{vOB}, v{vTM}, 3, v{vTM+2}",
                    f"s_mul_i32 {sT3}, {sW}, 20480", f"s_add_u32 {sROWOFF}, {sROWOFF}, {sT3}",
                    f"s_mul_i32 {sT3}, {sW}, 15360", f"s_add_u32 {sT3}, {sT3}, {L_RED}",
                    f"v_add_u32 v{vRR}, {sT3}, {vr(vL16)}"]
            for x in its:
                red.append(dict(e=e, it=x))

    def sync2():
        A.wait("red", "yin")
        A("s_barrier")
    e = O.get("sync2", 190)
    red.append(dict(e=e, it=sync2))
    for nt, (va, off) in enumerate(((vYA, 0), (vYA, 512), (vYA, 4096), (vYA, 4608), (101, 8192))):
        red.append(dict(e=e, it=f"ds_read_b64_tr_b16 v[{vYR+2*nt}:{vYR+2*nt+1}], v{va} offset:{off}"))
    for nt in range(5):
        for p in range(3):
            d = vRD + 20 * p + 4 * nt
            red.append(dict(e=e, it=f"ds_read_b128 v[{d}:{d+3}], v{vRR} offset:{5120*p+1024*nt}"))
    for i in range(10):
        t0 = vTM + 2 * (i & 1)
        g, r = vGQ + 2 * i, vRD + 2 * i
        for x in (f"v_lshlrev_b32 v{t0}, 16, v{vYR+i}", f"v_and_b32 v{t0+1}, 0xffff0000, v{vYR+i}",
                  f"v_pk_add_f32 v[{r}:{r+1}], v[{r}:{r+1}], v[{r+20}:{r+21}]",
                  f"v_pk_mul_f32 v[{g}:{g+1}], v[{g}:{g+1}], v[{t0}:{t0+1}]",
                  f"v_pk_add_f32 v[{r}:{r+1}], v[{r}:{r+1}], v[{r+40}:{r+41}]",
                  f"v_pk_fma_f32 v[{g}:{g+1}], v[{r}:{r+1}], v[{vOMG}:{vOMG+1}], v[{g}:{g+1}] op_sel_hi:[1,0,1]"):
            red.append(dict(e=e, it=x))
    left = weave2(A, anchors, [ld, red], 2)
    drain(A, left)
    for i in range(10):
        g, a = vGQ + 2 * i, vA2[1] + 2 * i
        A(f"v_pk_fma_f32 v[{g}:{g+1}], v[{a}:{a+1}], v[{vOMG}:{vOMG+1}], v[{g}:{g+1}] op_sel_hi:[1,0,1]")
        A(f"v_cvt_pk_bf16_f32 v{vYR+i}, v{g}, v{g+1}")
        if i == 3:
            A(f"buffer_store_dwordx4 v[{vYR}:{vYR+3}], v{vOA}, {sOUT}, {sROWOFF} offen")
        if i == 7:
            A(f"buffer_store_dwordx4 v[{vYR+4}:{vYR+7}], v{vOA}, {sOUT}, {sROWOFF} offen offset:64")
    A(f"buffer_store_dwordx2 v[{vYR+8}:{vYR+9}], v{vOB}, {sOUT}, {sROWOFF} offen offset:128")
    if O["stamps"]:
        A.waitall()
        stamp("end")
        A("s_memrealtime s[52:53]")
        A("s_waitcnt lgkmcnt(0)")
        A("v_mov_b32 v8, 0")
        for k in range(nst[0]):
            A(f"v_writelane_b32 v8, s{STR[k]}, {k}")
        A("v_writelane_b32 v8, s100, 13")
        A("v_writelane_b32 v8, s52, 14")
        A(f"v_writelane_b32 v8, {sSPIN}, 15")
        A.raw("; STAMPS " + " ".join(names))
        A(f"""s_lshl_b32 s54, s2, 2
              s_add_u32 s54, s54, {sW}
              s_lshl_b32 s54, s54, 6
              s_add_u32 s54, s54, {WS_DBG}
              v_lshlrev_b32 v9, 2, {vr(vLANE)}
              v_cmp_gt_u32 vcc, 16, {vr(vLANE)}
              v_mov_b32 v10, 0x7ff00000
              v_cndmask_b32 v9, v10, v9, vcc""")
        A(f"buffer_store_dword v8, v9, {sWS}, s54 offen")
    A.label("Lend")
    A("s_endpgm")

    head = f"""; Fused gated mix: one persistent launch, 256 workgroups (32 row blocks x 8 column blocks).
; @launch grid=(256,1,1) block=(256,1,1) lds={LDS}
.amdgcn_target "amdgcn-amd-amdhsa--gfx950"
.text
.globl {KN}_kernel
.p2align 8
.type {KN}_kernel,@function
{KN}_kernel:
"""
    tail = f"""
.section .rodata,"a"
.p2align 6
.amdhsa_kernel {KN}_kernel
  .amdhsa_next_free_vgpr 512
  .amdhsa_next_free_sgpr 102
  .amdhsa_accum_offset 256
  .amdhsa_group_segment_fixed_size 0
  .amdhsa_kernarg_size 104
  .amdhsa_user_sgpr_count 2
  .amdhsa_user_sgpr_kernarg_segment_ptr 1
  .amdhsa_system_sgpr_workgroup_id_x 1
.end_amdhsa_kernel
"""
    return head + A.text() + tail, A.stats


if __name__ == "__main__":
    out = sys.argv[1]
    kw = {}
    for a in sys.argv[2:]:
        k, v = a.split("=")
        kw[k] = int(v) if v.lstrip("-").isdigit() else v
    s, st = gen(**kw)
    open(out, "w").write(s)
    print(out, st)
```

```python
import sys, os
sys.path.insert(0, os.path.dirname(os.path.abspath(__file__)))
from asmlib import *

KN = "gated_mix__ssm_conv_h3__dense_activation_silu__prompt"

DEF = dict(stamps=0, mapping="A", rot=1, gs=2, dist=5, p0flag=3, poll_i=20, poll_c=80, w2pace=4, hpre=12,
           spin=200000, early_w1=6)


def gen(**kw):
    O = dict(DEF)
    O.update(kw)
    A = Asm()
    GS, DIST = O["gs"], O["dist"]
    NT = "nt" if O.get("nt", 0) else ""
    NTX = "nt" if O.get("ntx", 0) else ""

    WS_COLP0, WS_COLCV, WS_COLG, WS_ROWH, WS_ROWG, WS_G = 0x0000, 0x1000, 0x2000, 0x3000, 0x5000, 0x8000
    WS_DBG = 0x20000
    WS_KVT, WS_YT, WS_W2P, WS_H = 0x100000, 0x400000, 0x700000, 0x900000
    WS_SIZE = 0x1000000
    TP = 4224
    L_S = 81920
    L_K, L_V, L_W2 = 131072, 142336, 152576
    L_BO = 131072
    L_HB, L_UB, L_YT, L_YS, L_RED = 0, 16896, 33792, 45056, 69632
    HBP, UBP = 4224, 4128
    LDS = 163840
    sQ, sK, sV, sSH, sSK, sD, sW1, sW2, sGW, sOUT, sWS = [f"s[{8+4*i}:{11+4*i}]" for i in range(11)]
    srd = lambda n: int(n[2:].split(":")[0])
    sW, sRB, sCB, sROT = "s3", "s4", "s5", "s6"
    sT0, sT1, sT2, sT3 = "s52", "s53", "s54", "s55"
    sROWOFF = "s56"
    sW1K = "s57"
    sW2K = "s58"
    sTAGC, sTAGR = "s59", "s60"
    sCH = "s61"
    sNL2E = "s[62:63]"
    sJ = [f"s{64+i}" for i in range(10)]
    sHB = ["s74", "s75", "s76"]
    sKVO = "s77"
    sW2L = "s78"
    sSPIN = "s79"
    sHL = "s80"
    sSTAMP = 82

    nst = [0]
    names = []
    STR = [82, 84, 86, 88, 90, 92, 94, 96, 98, 64, 66, 68]

    def stamp(name):
        if O["stamps"]:
            r = STR[nst[0]]
            A(f"s_memtime s[{r}:{r+1}]")
            nst[0] += 1
            names.append(name)

    def vr(a, n=1):
        return f"v{a}" if n == 1 else f"v[{a}:{a+n-1}]"

    def ar(a, n=1):
        return f"a{a}" if n == 1 else f"a[{a}:{a+n-1}]"

    vTID, vLANE, vL16, vT = 0, 1, 2, 3
    vW1 = [4, 5, 6, 7, 8, 9]
    vTR = [10, 11, 12]
    vHS = 13
    vFL = 14
    vPO = 15

    def poll(voff, tag, soff, vres=None, n=1, issue=True, check=True):
        ld = (f"buffer_load_dword {vr(vres)}, {vr(voff)}, {sWS}, {soff} offen sc1" if n == 1 else
              f"buffer_load_dwordx2 {vr(vres,2)}, {vr(voff)}, {sWS}, {soff} offen sc1")
        if issue:
            A(ld)
        if check:
            lo, dn = A.newlabel("Lpoll"), A.newlabel("Lgot")

            def cmp():
                A(f"v_cmp_ne_u32 vcc, {tag}, {vr(vres)}")
                if n == 2:
                    A(f"v_cmp_ne_u32 s[52:53], {tag}, {vr(vres+1)}")
                    A("s_or_b64 vcc, vcc, s[52:53]")
            cmp()
            A(f"s_cbranch_vccz {dn}" if n == 1 else f"s_cbranch_scc0 {dn}")
            A.label(lo)
            A.raw("  s_sleep 1")
            A.raw("  " + ld)
            A.raw("  s_waitcnt vmcnt(0)")
            A.raw(f"  s_sub_u32 {sSPIN}, {sSPIN}, 1")
            A.raw(f"  s_cbranch_scc1 Lend")
            A.raw(f"  v_cmp_ne_u32 vcc, {tag}, {vr(vres)}")
            if n == 2:
                A.raw(f"  v_cmp_ne_u32 s[52:53], {tag}, {vr(vres+1)}")
                A.raw("  s_or_b64 vcc, vcc, s[52:53]")
            A.raw(f"  s_cbranch_vccnz {lo}" if n == 1 else f"  s_cbranch_scc1 {lo}")
            A.label(dn)

    A("s_cmp_ge_u32 s2, 256")
    A("s_cbranch_scc1 Lend")
    for s, off in ((sW2, 64), (sK, 8), (sV, 16), (sQ, 0), (sWS, 96), (sW1, 56), (sSH, 24), (sGW, 72), (sSK, 32),
                   (sD, 40), (sOUT, 80)):
        A(f"s_load_dwordx2 s[{srd(s)}:{srd(s)+1}], s[0:1], {off}")
    if O["stamps"]:
        A("s_memrealtime s[100:101]")
    stamp("start")
    A(f"v_lshrrev_b32 v20, 6, v0")
    A(f"v_and_b32 {vr(vLANE)}, 63, v0")
    A(f"v_readfirstlane_b32 {sW}, v20")
    if O["mapping"] == "A":
        A(f"""s_lshr_b32 {sT0}, s2, 3
              s_and_b32 {sCB}, {sT0}, 7
              s_lshr_b32 {sT0}, {sT0}, 3
              s_and_b32 {sRB}, s2, 7
              s_lshl_b32 {sRB}, {sRB}, 2
              s_add_u32 {sRB}, {sRB}, {sT0}""")
    else:
        A(f"""s_lshr_b32 {sT0}, s2, 3
              s_and_b32 {sCB}, {sT0}, 3
              s_and_b32 {sT1}, s2, 1
              s_lshl_b32 {sT1}, {sT1}, 2
              s_add_u32 {sCB}, {sCB}, {sT1}
              s_lshr_b32 {sT0}, {sT0}, 2
              s_bfe_u32 {sRB}, s2, 0x20001
              s_lshl_b32 {sRB}, {sRB}, 3
              s_add_u32 {sRB}, {sRB}, {sT0}""")
    for s, size in ((sQ, 2621440), (sK, 2621440), (sV, 2621440), (sSH, 5120), (sSK, 2621440), (sD, 1280),
                    (sW1, 1966080), (sW2, 1966080), (sGW, 1280), (sOUT, 2621440), (sWS, WS_SIZE)):
        A(f"s_mov_b32 s{srd(s)+2}, {size}")
        A(f"s_mov_b32 s{srd(s)+3}, 0x20000")
    A(f"""s_mul_i32 {sROWOFF}, {sRB}, 81920
          s_mul_i32 {sT0}, {sCB}, 160
          s_add_u32 {sROWOFF}, {sROWOFF}, {sT0}
          s_lshl_b32 {sW1K}, {sW}, 10
          s_lshl_b32 {sW2K}, {sW}, 11
          s_movk_i32 {sT1}, 6554
          s_movk_i32 {sT2}, 1120
          s_sub_u32 {sT3}, {sROWOFF}, 5120""")
    for n in range(3):
        A(f"v_add_u32 v26, {256*n}, v0") if n else A("v_mov_b32 v26, v0")
        A(f"""v_mul_u32_u24 v27, {sT1}, v26
              v_lshrrev_b32 v27, 16, v27
              v_lshlrev_b32 v26, 4, v26
              v_mad_u32_u24 v{20+n}, v27, {sT2}, v26
              v_add_u32 v{23+n}, {sT3}, v{20+n}""")
    A(f"v_lshlrev_b32 {vr(vL16)}, 4, {vr(vLANE)}")
    A("s_waitcnt lgkmcnt(0)")

    def tile_dma(n, which):
        for s, reg, vo, so in which:
            A(f"s_add_u32 m0, {sW1K}, {reg + 4096*n}")
            A(f"buffer_load_dwordx4 v{vo+n}, {s}, {so} offen {NT} lds", "p0in")
    W2T, KT, VT = (sW2, L_W2, 20, sROWOFF), (sK, L_K, 23, "0"), (sV, L_V, 20, sROWOFF)
    tile_dma(0, [W2T, KT, VT])
    tile_dma(1, [W2T, KT, VT])
    A(f"s_cmp_ge_u32 {sW}, 3")
    A.begin_opt("s_cbranch_scc1", settle=False)
    tile_dma(2, [KT])
    A.end_opt()
    A(f"s_cmp_ge_u32 {sW}, 2")
    A.begin_opt("s_cbranch_scc1", settle=False)
    tile_dma(2, [W2T, VT])
    A.end_opt()

    vCT, vI16, vR, vCHL = 28, 29, 30, 31
    A(f"""v_lshrrev_b32 v26, 4, v0
          v_mul_u32_u24 v27, 52, v26
          v_lshrrev_b32 v27, 8, v27
          v_mul_u32_u24 v{vR}, 5, v27
          v_sub_u32 v{vCT}, v26, v{vR}
          v_mul_u32_u24 v{vR}, 24, v27
          v_min_u32 v{vR}, 40, v{vR}
          v_and_b32 v{vI16}, 15, v0
          v_lshl_add_u32 v{vCHL}, v{vCT}, 4, v{vI16}
          v_lshlrev_b32 v26, 3, v{vCHL}
          s_mul_i32 {sT0}, {sCB}, 640""")
    vSH = 32
    A(f"buffer_load_dwordx2 v[{vSH}:{vSH+1}], v26, {sSH}, {sT0} offen")
    vG0, vG1 = 34, 35
    A(f"""s_lshl_b32 {sT0}, {sCB}, 8
          s_lshl_b32 {sT1}, {sRB}, 8
          s_add_u32 {sT0}, {sT0}, {WS_COLG}
          s_add_u32 {sT1}, {sT1}, {WS_ROWG}""")
    A(f"buffer_load_dword v{vG0}, off, {sWS}, {sT0} sc1")
    A(f"buffer_load_dword v{vG1}, off, {sWS}, {sT1} sc1")

    if O["rot"]:
        A(f"""s_mul_i32 {sT0}, {sRB}, 3
              s_add_u32 {sT0}, {sT0}, {sCB}
              s_mul_i32 {sT1}, {sT0}, 6554
              s_lshr_b32 {sT1}, {sT1}, 16
              s_mul_i32 {sT1}, {sT1}, 10
              s_sub_u32 {sROT}, {sT0}, {sT1}""")
    else:
        A(f"s_mov_b32 {sROT}, 0")
    vX0, vX1 = 36, 37
    A(f"""v_lshrrev_b32 v26, 3, {vr(vLANE)}
          v_lshrrev_b32 v27, 4, {vr(vLANE)}
          v_and_b32 v38, 7, {vr(vLANE)}
          v_xor_b32 v39, v38, v27
          s_movk_i32 {sT0}, 1280
          s_mul_i32 {sT1}, {sW}, 20480
          v_lshlrev_b32 v39, 4, v39
          v_mad_u32_u24 v{vX0}, v26, {sT0}, v39
          v_add_u32 v{vX0}, {sT1}, v{vX0}
          v_xor_b32 v{vX1}, 64, v{vX0}
          v_add_u32 v{vX1}, {8*1280-1024}, v{vX1}
          s_mul_i32 {sT2}, {sRB}, 81920
          s_lshl_b32 {sT3}, {sROT}, 7
          s_add_u32 {sT3}, {sT3}, {sT2}
          s_add_u32 {sT2}, {sT2}, 1280""")
    for j in range(10):
        A(f"s_add_u32 m0, {sW2K}, {8192*j}")
        if j:
            A(f"""s_add_u32 {sT3}, {sT3}, 128
                  s_cmp_ge_u32 {sT3}, {sT2}
                  s_cselect_b32 {sT0}, 1280, 0
                  s_sub_u32 {sT3}, {sT3}, {sT0}""")
        A(f"buffer_load_dwordx4 v{vX0}, {sQ}, {sT3} offen {NTX} lds", "x")
        A(f"buffer_load_dwordx4 v{vX1}, {sQ}, {sT3} offen offset:1024 {NTX} lds", "x")
    A(f"""v_and_b32 v27, 1, v27
          v_lshlrev_b32 v27, 2, v27
          v_xor_b32 v39, v38, v27
          v_lshlrev_b32 v39, 4, v39
          s_movk_i32 {sT0}, 3072
          s_mul_i32 {sT1}, {sW}, 49152
          v_mad_u32_u24 v{vW1[0]}, v26, {sT0}, v39
          v_add_u32 v{vW1[0]}, {sT1}, v{vW1[0]}
          v_add_u32 v{vW1[1]}, {8*3072-1024}, v{vW1[0]}
          v_add_u32 v{vW1[2]}, 128, v{vW1[0]}
          v_add_u32 v{vW1[3]}, 128, v{vW1[1]}
          v_add_u32 v{vW1[4]}, 256, v{vW1[0]}
          v_add_u32 v{vW1[5]}, 256, v{vW1[1]}
          s_mul_i32 {sT0}, {sCB}, 384
          s_mul_i32 {sJ[0]}, {sROT}, 196608
          s_add_u32 {sJ[0]}, {sJ[0]}, {sT0}""")
    for j in range(1, 10):
        A(f"""s_add_u32 {sJ[j]}, {sJ[j-1]}, 196608
              s_cmp_ge_u32 {sJ[j]}, 1966080
              s_cselect_b32 {sT0}, 1966080, 0
              s_sub_u32 {sJ[j]}, {sJ[j]}, {sT0}""")

    def slot(b):
        p, j = divmod(b, 10)
        return (0 if p == 1 else L_S) + 8192 * j

    def w1_items(b):
        p, j = divmod(b, 10)
        return [f"s_add_u32 m0, {sW2K}, {slot(b)}",
                (f"buffer_load_dwordx4 v{vW1[2*p]}, {sW1}, {sJ[j]} offen lds", f"w1_{b}"),
                (f"buffer_load_dwordx4 v{vW1[2*p+1]}, {sW1}, {sJ[j]} offen offset:1024 lds", f"w1_{b}")]

    vGW = 40
    A(f"""v_bfe_u32 v52, {vr(vLANE)}, 3, 2
          v_add_u32 v53, {sROT}, v52""")
    for n in range(3):
        A(f"""v_add_u32 v54, {4*n}, v53
              v_subrev_u32 v55, 10, v54
              v_min_u32 v54, v54, v55
              v_lshlrev_b32 v54, 7, v54
              v_lshl_add_u32 v54, v38, 4, v54""")
        if n == 2:
            A(f"""v_lshrrev_b32 v55, 1, v52
                  v_lshl_add_u32 v54, v55, 16, v54""")
        A(f"buffer_load_dwordx4 v[{vGW+4*n}:{vGW+4*n+3}], v54, {sGW}, 0 offen")
    for b in range(O["early_w1"]):
        for it in w1_items(b):
            put_item(A, it)
    stamp("issued")

    vKA, vBW, vBR, vRA, vRB_ = 56, 57, 58, 59, 60
    A(f"""v_lshrrev_b32 v26, 2, v{vI16}
          v_add_u32 v26, v26, v{vR}
          v_mul_u32_u24 v26, 160, v26
          v_and_b32 v27, 3, v0
          v_lshl_add_u32 v26, v27, 3, v26
          v_lshl_add_u32 v26, v{vCT}, 5, v26
          v_add_u32 v{vKA}, {L_K}, v26
          v_mul_u32_u24 v26, 144, v{vCHL}
          v_lshl_add_u32 v26, v{vR}, 1, v26
          v_add_u32 v{vBW}, {L_BO}, v26
          v_lshrrev_b32 v26, 3, v0
          v_mul_u32_u24 v54, 144, v26
          v_lshl_add_u32 v54, v38, 4, v54
          v_add_u32 v{vBR}, {L_BO}, v54
          v_mul_u32_u24 v54, {TP}, v26
          v_lshl_add_u32 {vr(vT)}, v38, 4, v54""")
    A(f"""v_lshrrev_b32 v26, 5, {vr(vLANE)}
          v_lshlrev_b32 v26, 4, v26
          v_bfe_u32 v54, {vr(vLANE)}, 2, 3
          v_add_u32 v26, v26, v54
          v_mul_u32_u24 v26, 160, v26
          s_and_b32 {sT0}, {sW}, 1
          s_mul_i32 {sT0}, {sT0}, 5120
          s_add_u32 {sT0}, {sT0}, {L_W2}
          s_lshr_b32 {sT1}, {sW}, 1
          s_lshl_b32 {sT1}, {sT1}, 6
          v_add_u32 v26, {sT0}, v26
          v_lshl_add_u32 v{vRB_}, v27, 3, v26
          v_lshl_add_u32 v{vRA}, v27, 4, v26
          v_add_u32 v{vRA}, {sT1}, v{vRA}""")
    A(f"""v_lshrrev_b32 v26, 5, {vr(vLANE)}
          v_lshlrev_b32 v26, 10, v26
          v_bfe_u32 v54, {vr(vLANE)}, 2, 2
          v_lshl_add_u32 v26, v54, 7, v26
          v_bfe_u32 v54, {vr(vLANE)}, 3, 1
          v_lshlrev_b32 v54, 6, v54
          v_xor_b32 v54, {sT1}, v54
          v_add_u32 v26, v26, v54
          v_bfe_u32 v54, {vr(vLANE)}, 4, 1
          v_lshl_add_u32 v26, v54, 5, v26
          v_lshl_add_u32 v{vTR[0]}, v27, 3, v26
          v_add_u32 v{vTR[1]}, 65536, v{vTR[0]}
          v_add_u32 v{vTR[2]}, 131072, v{vTR[0]}""")
    A(f"""v_lshrrev_b32 v26, 5, {vr(vLANE)}
          v_lshlrev_b32 v26, 8, v26
          v_lshl_add_u32 v26, v{vI16}, 4, v26
          v_mul_u32_u24 v54, 49152, v54
          v_add_u32 v{vHS}, v26, v54
          s_mul_i32 {sHB[0]}, {sRB}, 196608
          s_and_b32 {sT0}, {sW}, 1
          s_mul_i32 {sT0}, {sT0}, 98304
          s_add_u32 {sHB[0]}, {sHB[0]}, {sT0}
          s_mul_i32 {sT0}, {sCB}, 6144
          s_add_u32 {sHB[0]}, {sHB[0]}, {sT0}
          s_lshl_b32 {sT1}, {sT1}, 4
          s_add_u32 {sHB[0]}, {sHB[0]}, {sT1}
          s_add_u32 {sHB[0]}, {sHB[0]}, {WS_H}
          s_add_u32 {sHB[1]}, {sHB[0]}, 2048
          s_add_u32 {sHB[2]}, {sHB[0]}, 4096
          s_mul_i32 {sKVO}, {sCB}, {80*TP}
          s_lshl_b32 {sT0}, {sRB}, 7
          s_add_u32 {sKVO}, {sKVO}, {sT0}
          s_mul_i32 {sCH}, {sCB}, 80
          s_lshl_b32 {sT0}, {sRB}, 2
          s_add_u32 {sCH}, {sCH}, {sT0}
          s_add_u32 {sCH}, {sCH}, {sW}
          s_cmp_lt_u32 {sRB}, 20
          s_cselect_b32 {sCH}, {sCH}, 0x4000
          s_mov_b32 s62, 0xbfb8aa3b
          s_mov_b32 s63, 0xbfb8aa3b
          s_mov_b32 {sSPIN}, {O["spin"]}""")
    A(f"""v_cmp_eq_u32 vcc, 0, {vr(vLANE)}
          v_mov_b32 v26, 0x7ff00000
          v_cndmask_b32 v{vFL}, v26, {vr(vLANE)}, vcc""")
    vXA = 61
    A(f"""v_and_b32 v26, 31, {vr(vLANE)}
          v_lshlrev_b32 v26, 7, v26
          v_lshrrev_b32 v54, 5, {vr(vLANE)}
          v_lshrrev_b32 v55, 1, v{vI16}
          v_xor_b32 v54, v54, v55
          v_lshl_add_u32 v26, v54, 4, v26
          s_and_b32 {sT0}, {sW}, 1
          s_lshl_b32 {sT0}, {sT0}, 12
          v_add_u32 v{vXA}, {sT0}, v26""")
    for ks in range(1, 4):
        A(f"v_xor_b32 v{vXA+ks}, {ks<<5}, v{vXA}")
    for ks in range(4):
        A(f"v_add_u32 v{vXA+4+ks}, 65536, v{vXA+ks}")
    vQA = 69
    A(f"""v_lshrrev_b32 v26, 4, {vr(vLANE)}
          s_mul_i32 {sT0}, {sCB}, 10
          v_lshlrev_b32 v72, 7, v{vI16}
          v_add_u32 v72, {sW2K}, v72""")
    for n in range(3):
        if n < 2:
            A(f"""s_add_u32 {sT1}, {sT0}, {4*n}
                  v_add_u32 v54, {sT1}, v26""")
        else:
            A(f"""s_add_u32 {sT1}, {sT0}, 8
                  v_lshrrev_b32 v54, 1, v26
                  v_add_u32 v54, {sT1}, v54""")
        A(f"""v_lshrrev_b32 v73, 3, v54
              v_subrev_u32 v73, {sROT}, v73
              v_add_u32 v74, 10, v73
              v_min_u32 v73, v73, v74
              v_and_b32 v54, 7, v54
              v_xor_b32 v54, v54, v55
              v_lshl_add_u32 v54, v54, 4, v72
              v_lshl_add_u32 v{vQA+n}, v73, 13, v54""")
    A(f"""v_and_b32 v26, 1, v26
          v_lshl_add_u32 v{vQA+2}, v26, 3, v{vQA+2}""")
    vGA = 75
    A(f"""s_lshl_b32 {sT0}, {sCB}, 2
          s_add_u32 {sT0}, {sT0}, {sW}
          s_and_b32 {sT1}, {sT0}, 7
          s_lshl_b32 {sT0}, {sT0}, 8
          v_xor_b32 v26, {sT1}, v38
          v_lshlrev_b32 v26, 4, v26
          v_lshrrev_b32 v54, 5, {vr(vLANE)}
          v_lshl_add_u32 v26, v54, 7, v26
          v_add_u32 v26, {sT0}, v26
          v_lshl_add_u32 v{vGA}, v52, 13, v26
          v_and_b32 v54, 1, v52
          v_lshl_add_u32 v26, v54, 13, v26
          v_add_u32 v{vGA+1}, 65536, v26""")
    vWa, vWb, vWc, vWd, vWe = 77, 78, 79, 80, 81
    A(f"""s_mov_b32 {sT0}, 0xffff
          v_and_b32 v{vWa}, 0xffff, v{vSH}
          v_bfi_b32 v{vWb}, {sT0}, v{vSH+1}, v{vSH}
          v_and_b32 v{vWc}, 0xffff0000, v{vSH+1}
          v_alignbit_b32 v{vWd}, v{vSH}, v{vSH}, 16
          v_alignbit_b32 v{vWe}, v{vSH+1}, v{vSH+1}, 16""")
    A(f"""v_readfirstlane_b32 {sTAGC}, v{vG0}
          v_readfirstlane_b32 {sTAGR}, v{vG1}
          s_mul_i32 {sTAGC}, {sTAGC}, 0x2C9277B5
          s_mul_i32 {sTAGR}, {sTAGR}, 0x2C9277B5
          s_add_u32 {sTAGC}, {sTAGC}, 0xAC564B05
          s_add_u32 {sTAGR}, {sTAGR}, 0xAC564B05""")

    A.wait("p0in")
    A("s_barrier")
    stamp("p0in")
    vWT = 84
    vP = 96
    vVV = 110
    vO = 122
    vE = 134
    for i, (va, off) in enumerate(((vRA, 0), (vRA, 8), (vRB_, 128))):
        A(f"ds_read_b64_tr_b16 v[{vWT+4*i}:{vWT+4*i+1}], v{va} offset:{off}")
        A(f"ds_read_b64_tr_b16 v[{vWT+4*i+2}:{vWT+4*i+3}], v{va} offset:{off+1280}")
    for m in range(7):
        A(f"ds_read_b64_tr_b16 v[{vP+2*m}:{vP+2*m+1}], v{vKA} offset:{640*m}")
        if m < 6:
            A(f"ds_read_b64_tr_b16 v[{vVV+2*m}:{vVV+2*m+1}], v{vKA} offset:{640*m + L_V - L_K}")
    A(f"""s_mul_i32 {sT0}, {sCB}, 48
          s_lshl_b32 {sT1}, {sRB}, 1
          s_add_u32 {sT0}, {sT0}, {sT1}
          s_and_b32 {sT1}, {sW}, 1
          s_add_u32 {sT0}, {sT0}, {sT1}
          s_mul_i32 {sT0}, {sT0}, 5120
          s_add_u32 {sT0}, {sT0}, {WS_W2P}
          s_cmp_lt_u32 {sRB}, 24
          s_cselect_b32 {sT0}, {sT0}, 0x7f000000
          s_and_b32 {sT1}, {sW}, 2
          s_lshl_b32 {sT1}, {sT1}, 10
          s_add_u32 {sT1}, {sT1}, {sT0}
          s_add_u32 {sT0}, {sT0}, 4096""")
    A(f"buffer_store_dwordx4 v[{vWT}:{vWT+3}], {vr(vL16)}, {sWS}, {sT1} offen sc1", "p0out")
    A(f"buffer_store_dwordx4 v[{vWT+4}:{vWT+7}], {vr(vL16)}, {sWS}, {sT1} offen offset:1024 sc1", "p0out")
    A(f"buffer_store_dwordx4 v[{vWT+8}:{vWT+11}], {vr(vL16)}, {sWS}, {sT0} offen sc1", "p0out")
    for o in range(13):
        e = vE + 4 * (o & 1) * 2
        if o < 12:
            A(f"""v_dot2_f32_bf16 v{e}, v{vP+o+2}, v{vWa}, 0
                  v_dot2_f32_bf16 v{e+1}, v{vP+o+2}, v{vWd}, 0
                  v_dot2_f32_bf16 v{e}, v{vP+o+1}, v{vWb}, v{e}
                  v_dot2_f32_bf16 v{e+1}, v{vP+o+1}, v{vWe}, v{e+1}
                  v_dot2_f32_bf16 v{e}, v{vP+o}, v{vWc}, v{e}
                  v_lshlrev_b32 v{e+2}, 16, v{vVV+o}
                  v_and_b32 v{e+3}, 0xffff0000, v{vVV+o}""")
        if o > 0:
            e = vE + 4 * ((o - 1) & 1) * 2
            A(f"""v_pk_mul_f32 v[{e}:{e+1}], v[{e}:{e+1}], v[{e+2}:{e+3}]
                  v_cvt_pk_bf16_f32 v{vO+o-1}, v{e}, v{e+1}""")
    A("s_barrier")
    for i in range(3):
        A(f"ds_write_b128 v{vBW}, v[{vO+4*i}:{vO+4*i+3}] offset:{16*i}", "bo")
    A.wait("bo")
    A("s_barrier")
    for n in range(3):
        A(f"ds_read_b128 v[{vP+4*n}:{vP+4*n+3}], v{vBR} offset:{4608*n}")
    A(f"""s_add_u32 {sT0}, {sKVO}, {WS_KVT}
          s_add_u32 {sT1}, {sKVO}, {WS_KVT + 32*TP}
          s_add_u32 {sT2}, {sKVO}, {WS_KVT + 64*TP}
          s_cmp_lt_u32 {sW}, 2
          s_cselect_b32 {sT2}, {sT2}, 0x7f000000""")
    for n, s in enumerate((sT0, sT1, sT2)):
        A(f"buffer_store_dwordx4 v[{vP+4*n}:{vP+4*n+3}], {vr(vT)}, {sWS}, {s} offen sc1", "p0out")
    stamp("p0done")
    A.wait("x")
    A("s_barrier")
    stamp("xin")
    for b in range(O["early_w1"], 10):
        for it in w1_items(b):
            put_item(A, it)
    vGX = 84
    A(f"ds_read_b128 v[{vGX}:{vGX+3}], v{vGA}")
    A(f"ds_read_b128 v[{vGX+4}:{vGX+7}], v{vGA} offset:32768")
    A(f"ds_read_b128 v[{vGX+8}:{vGX+11}], v{vGA+1}")
    xr = []
    for j in range(10):
        for ks in range(4):
            va, off = (vXA + ks, 8192 * j) if j < 8 else (vXA + 4 + ks, 8192 * (j - 8))
            xr.append(f"ds_read_b128 {ar(16*j+4*ks,4)}, v{va} offset:{off}")
    xr.append(f"ds_read_b128 a[240:243], v{vQA}")
    xr.append(f"ds_read_b128 a[244:247], v{vQA+1}")
    xr.append(f"ds_read_b64 a[248:249], v{vQA+2}")
    gops = []
    for i in range(12):
        gops.append(f"v_dot2_f32_bf16 v96, v{vGX+i}, v{vGW+i}, " + ("0" if i == 0 else "v96"))
    for m in ("quad_perm:[1,0,3,2]", "quad_perm:[2,3,0,1]", "row_half_mirror", "row_mirror"):
        gops.append(f"v_add_f32_dpp v96, v96, v96 {m} row_mask:0xf bank_mask:0xf")
    gops.append("v_add_f32_dpp v96, v96, v96 row_bcast:15 row_mask:0xa bank_mask:0xf")
    gops += ["v_mul_f32 v96, s62, v96", "v_exp_f32 v96, v96", "v_add_f32 v96, 1.0, v96", "v_rcp_f32 v96, v96"]
    gops += [f"v_and_b32 v97, 31, {vr(vLANE)}", "v_cmp_eq_u32 vcc, 31, v97", f"v_lshrrev_b32 v97, 5, {vr(vLANE)}",
             "v_lshlrev_b32 v97, 2, v97", "v_mov_b32 v98, 0x7ff00000", "v_cndmask_b32 v97, v98, v97, vcc",
             f"s_lshl_b32 {sT0}, {sRB}, 8", f"s_lshl_b32 {sT1}, {sCB}, 5", f"s_add_u32 {sT0}, {sT0}, {sT1}",
             f"s_lshl_b32 {sT1}, {sW}, 3", f"s_add_u32 {sT0}, {sT0}, {sT1}", f"s_add_u32 {sT0}, {sT0}, {WS_G}",
             (f"buffer_store_dword v96, v97, {sWS}, {sT0} offen sc1", "hout")]
    for i in range(8):
        A(xr[i])
    gi = 0
    for i in range(8, len(xr)):
        A(xr[i])
        if gi < len(gops):
            put_item(A, gops[gi]); gi += 1
    for g in gops[gi:]:
        put_item(A, g)
    A.waitall(vm=False)

    vACC = [16, 32]
    NB = 8
    vFR = 48
    vS = 80
    vHO = 96
    vPO = 104
    vPA = 106
    vZ = 107
    vDD = 108
    vGAD, vHAD, vUAD, vYW = 109, 110, 111, 112

    def fr_reads(n):
        b, ks = divmod(n, 4)
        a = slot(b) + 2048 * ks
        base, off = vTR[a >> 16], a & 0xffff
        f = vFR + 4 * (n % NB)
        return [f"ds_read_b64_tr_b16 v[{f}:{f+1}], v{base} offset:{off}",
                f"ds_read_b64_tr_b16 v[{f+2}:{f+3}], v{base} offset:{off+512}"]

    def group_sync(g):
        def f():
            tags = [f"w1_{b}" for b in range(GS * g, GS * g + GS)]
            if g == O["p0flag"]:
                tags.append("p0out")
            A.wait(*tags)
            A("s_barrier")
            if g == O["p0flag"]:
                A(f"""s_lshl_b32 {sT0}, {sCB}, 8
                      s_lshl_b32 {sT1}, {sRB}, 2
                      s_add_u32 {sT0}, {sT0}, {sT1}
                      s_cmp_eq_u32 {sW}, 0
                      s_cselect_b32 {sT0}, {sT0}, 0x7f000000
                      v_mov_b32 v{vZ}, {sTAGC}""")
                A(f"buffer_store_dword v{vZ}, v{vFL}, {sWS}, {sT0} offen sc1")
        return f

    def silu_ops(p):
        ac = vACC[p & 1]
        ops = []
        for h in range(0, 8, 2):
            t0, t1 = vS + 4 * ((h >> 1) & 1), vS + 4 * ((h >> 1) & 1) + 2
            z0, z1 = ac + 2 * h, ac + 2 * h + 2
            ops += [(1, f"v_pk_mul_f32 v[{t0}:{t0+1}], v[{z0}:{z0+1}], {sNL2E}"),
                    (1, f"v_pk_mul_f32 v[{t1}:{t1+1}], v[{z1}:{z1+1}], {sNL2E}"),
                    (2, f"v_exp_f32 v{t0}, v{t0}"), (2, f"v_exp_f32 v{t0+1}, v{t0+1}"),
                    (2, f"v_exp_f32 v{t1}, v{t1}"), (2, f"v_exp_f32 v{t1+1}, v{t1+1}"),
                    (1, f"v_pk_add_f32 v[{t0}:{t0+1}], v[{t0}:{t0+1}], 1.0 op_sel_hi:[1,0]"),
                    (1, f"v_pk_add_f32 v[{t1}:{t1+1}], v[{t1}:{t1+1}], 1.0 op_sel_hi:[1,0]"),
                    (2, f"v_rcp_f32 v{t0}, v{t0}"), (2, f"v_rcp_f32 v{t0+1}, v{t0+1}"),
                    (2, f"v_rcp_f32 v{t1}, v{t1}"), (2, f"v_rcp_f32 v{t1+1}, v{t1+1}"),
                    (1, f"v_pk_mul_f32 v[{t0}:{t0+1}], v[{t0}:{t0+1}], v[{z0}:{z0+1}]"),
                    (1, f"v_pk_mul_f32 v[{t1}:{t1+1}], v[{t1}:{t1+1}], v[{z1}:{z1+1}]"),
                    (1, f"v_cvt_pk_bf16_f32 v{vHO+h}, v{t0}, v{t0+1}"),
                    (1, f"v_cvt_pk_bf16_f32 v{vHO+h+1}, v{t1}, v{t1+1}")]
            if h in (2, 6):
                r = h >> 2
                ops.append((1, (f"buffer_store_dwordx4 v[{vHO+4*r}:{vHO+4*r+3}], v{vHS}, {sWS}, {sHB[p]} offen offset:{512*r} sc1", "hout")))
        return ops

    def w2reg(i):
        return (4 * i + 160) % 240

    def w2_items(i):
        it = []
        if i % 4 == 0 and i:
            it.append(f"s_add_u32 {sW2L}, {sW2L}, 4096")
        it.append(f"buffer_load_dwordx4 {ar(w2reg(i),4)}, {vr(vL16)}, {sWS}, {sW2L} offen offset:{1024*(i%4)} sc1")
        return it

    group_sync(0)()
    stamp("g1start")
    synced = {0}
    for n in range(DIST):
        g = (n // 4) // GS
        if g not in synced:
            group_sync(g)(); synced.add(g)
        for r in fr_reads(n):
            A(r)
    anchors = []
    sync_at = {}
    for n in range(120):
        p, k = divmod(n, 40)
        ac = vACC[p & 1]
        f = vFR + 4 * (n % NB)
        grp = [f"v_mfma_f32_32x32x16_bf16 v[{ac}:{ac+15}], v[{f}:{f+3}], {ar(4*k,4)}, " + ("0" if k == 0 else f"v[{ac}:{ac+15}]")]
        m = n + DIST
        if m < 120:
            g = (m // 4) // GS
            if g not in synced:
                grp.append(group_sync(g)); synced.add(g); sync_at[g] = n
            grp += fr_reads(m)
        anchors.append(grp)
    free_at = lambda b: sync_at[b // GS + 2] if (b // GS + 2) in sync_at else None
    dma = []
    for b in range(10, 30):
        e = -1 if b < 20 else free_at(b - 20)
        lat = sync_at[b // GS]
        for it in w1_items(b):
            dma.append(dict(e=max(e, 0), l=lat, it=it))
    pi = O["poll_i"]
    pos = next(i for i, d in enumerate(dma) if d["e"] >= pi) if any(d["e"] >= pi for d in dma) else len(dma)
    pos -= pos % 3
    pl = [f"v_and_b32 v{vPA}, 31, {vr(vLANE)}", f"v_lshlrev_b32 v{vPA}, 2, v{vPA}", f"s_lshl_b32 {sHL}, {sCB}, 8",
          lambda: poll(vPA, sTAGC, sHL, vPO, check=False)]
    dma[pos:pos] = [dict(e=pi, it=x) for x in pl]
    e_h, e_u = free_at(12), free_at(14)
    misc = [f"s_mul_i32 {sT2}, {sW}, {HBP}", f"v_min_u32 v{vGAD}, 23, {vr(vLANE)}",
            f"v_lshlrev_b32 v{vGAD}, 2, v{vGAD}", f"v_mov_b32 v{vZ}, 0", f"v_add_u32 v{vGAD}, {sT2}, v{vGAD}",
            f"v_mov_b32 v{vDD}, 0",
            (f"ds_write_b32 v{vGAD}, v{vZ} offset:{L_HB}", "pad"),
            f"s_add_u32 m0, {sT2}, {L_HB+96}", f"s_lshl_b32 {sT3}, {sCH}, 12"]
    misc += [(f"buffer_load_dwordx4 {vr(vL16)}, {sSK}, {sT3} offen offset:{1024*i} {NT} lds", "hin") for i in range(4)]
    misc += [f"s_lshl_b32 {sT3}, {sCH}, 1", f"buffer_load_short_d16_hi v{vDD}, off, {sD}, {sT3}"]
    misc += [f"v_and_b32 v{vGAD}, 3, {vr(vLANE)}", f"v_lshrrev_b32 v{vHAD}, 4, {vr(vLANE)}",
             f"v_bfe_u32 v{vUAD}, {vr(vLANE)}, 2, 2", f"v_add_u32 v{vYW}, v{vGAD}, v{vHAD}",
             f"v_lshlrev_b32 v{vYW}, 5, v{vYW}", f"v_lshl_add_u32 v{vYW}, v{vUAD}, 3, v{vYW}",
             f"v_sub_u32 v{vGAD}, v{vGAD}, v{vUAD}", f"v_lshlrev_b32 v{vHAD}, 2, v{vHAD}",
             f"v_sub_u32 v{vHAD}, v{vGAD}, v{vHAD}", f"v_add_u32 v{vGAD}, {sT2}, v{vYW}",
             f"s_mul_i32 {sT2}, {sW}, {UBP}", f"s_add_u32 {sT3}, {sT2}, {L_UB+128}",
             f"v_lshlrev_b32 v{vHAD}, 3, v{vHAD}", f"v_add_u32 v{vHAD}, {sT3}, v{vHAD}",
             f"v_lshlrev_b32 v{vYW}, 1, {vr(vLANE)}", f"s_add_u32 {sT3}, {sT2}, {L_UB+32}",
             f"v_add_u32 v{vUAD}, {sT3}, v{vYW}", f"s_lshl_b32 {sT3}, {sW}, 12",
             f"s_add_u32 {sT3}, {sT3}, {L_YS}", f"v_add_u32 v{vYW}, {sT3}, v{vYW}"]
    for x in misc:
        dma.append(dict(e=e_h, it=x))
    pc = max(O["poll_c"], e_u)

    def col_ok():
        poll(vPA, sTAGC, sHL, vPO, issue=False)
        A(f"""s_add_u32 {sT0}, {sHL}, {WS_COLG}
              s_or_b32 {sT1}, {sRB}, {sW}
              s_cmp_eq_u32 {sT1}, 0
              s_cselect_b32 {sT0}, {sT0}, 0x7f000000
              v_mov_b32 v{vPO}, {sTAGC}""")
        A(f"buffer_store_dword v{vPO}, v{vFL}, {sWS}, {sT0} offen sc1")
    misc2 = [col_ok, f"v_and_b32 v{vPA}, 7, {vr(vLANE)}", f"s_mul_i32 {sT2}, {sW}, {UBP}",
             f"v_lshlrev_b32 v{vPA}, 2, v{vPA}", f"v_add_u32 v{vPA}, {sT2}, v{vPA}",
             (f"ds_write_b32 v{vPA}, v{vZ} offset:{L_UB}", "pad"),
             f"s_add_u32 m0, {sT2}, {L_UB+32}", f"s_mul_i32 {sT3}, {sCH}, {TP}", f"s_add_u32 {sT3}, {sT3}, {WS_KVT}"]
    misc2 += [(f"buffer_load_dwordx4 {vr(vL16)}, {sWS}, {sT3} offen offset:{1024*i} sc1 lds", "uin") for i in range(4)]
    misc2 += [f"s_mul_i32 {sW2L}, {sCB}, {48*5120}", f"s_mul_i32 {sT3}, {sW}, {12*5120}",
              f"s_add_u32 {sW2L}, {sW2L}, {sT3}", f"s_add_u32 {sW2L}, {sW2L}, {WS_W2P}"]
    for x in misc2:
        dma.append(dict(e=pc, it=x))
    NW2_G1 = O.get("w2g1", 12)
    for i in range(NW2_G1):
        for x in w2_items(i):
            dma.append(dict(e=min(pc + 8 + 2 * i, 119), it=x))
    sil = []
    for p in range(2):
        for c, x in silu_ops(p):
            sil.append(dict(e=40 * (p + 1) + 2, l=40 * (p + 2), c=c, it=x))
    left = weave2(A, anchors, [dma, sil], O.get("cap1", 3))
    drain(A, left)
    stamp("g1end")

    vG = 114
    vH = 178
    NA = 8
    vCA = 16
    vP2 = [244, 245, 246]
    vP1 = [247, 248, 249]
    vY = [250, 251]
    vU = [252, 253, 254]
    vYO = 96
    vCV = 255
    Hreg = lambda b: vH + 2 * (31 - b)
    rd = []
    for n in range(32):
        rd.append((n, f"ds_read_b64_tr_b16 v[{Hreg(n)}:{Hreg(n)+1}], v{vHAD} offset:{128*n}"))
        if n % 2 == 0:
            for x in (n, n + 1):
                rd.append((n, f"ds_read_b64_tr_b16 v[{vG+2*x}:{vG+2*x+1}], v{vGAD} offset:{L_HB+128*x}"))
    A.wait("hin", "uin", "pad")
    so = silu_ops(2)
    NPRE = 24
    ri = 0
    for i, (c, x) in enumerate(so):
        put_item(A, x)
        if i >= 8 and i % 2 == 0 and ri < NPRE:
            A(rd[ri][1]); ri += 1
    for r in (Hreg(-1), Hreg(-1) + 1, vP2[2], vP1[2], vU[0], vU[1], vU[2], vZ):
        A(f"v_mov_b32 v{r}, 0")
    stamp("silu2")

    vHF = 48
    vL16b, vL16c = 4, 5

    def hload(ph, kk, dst):
        vo = (vL16, vL16b, vL16c)[kk // 4]
        return f"buffer_load_dwordx4 v[{dst}:{dst+3}], v{vo}, {sWS}, {sHL} offen offset:{1024*(kk%4)} sc1"

    def hbase(ph):
        return [f"s_add_u32 {sT0}, {sW}, {1+ph}", f"s_and_b32 {sT0}, {sT0}, 3", f"s_mul_i32 {sT0}, {sT0}, 49152",
                f"s_add_u32 {sHL}, {sT0}, {sHB[0]}"]

    def h_flag():
        A.wait("hout")
        A(f"""s_lshl_b32 {sT0}, {sRB}, 8
              s_lshl_b32 {sT1}, {sCB}, 4
              s_add_u32 {sT0}, {sT0}, {WS_ROWH}
              s_add_u32 {sT1}, {sT1}, {sT0}
              s_lshl_b32 {sT2}, {sW}, 2
              s_add_u32 {sT1}, {sT1}, {sT2}
              v_mov_b32 v{vPO}, {sTAGR}""")
        A(f"buffer_store_dword v{vPO}, v{vFL}, {sWS}, {sT1} offen sc1")

    def row_poll_issue():
        A(f"""v_and_b32 v{vPA}, 31, {vr(vLANE)}
              s_lshl_b32 {sHB[1]}, {sRB}, 8
              v_lshlrev_b32 v{vPA}, 2, v{vPA}
              s_add_u32 {sHB[1]}, {sHB[1]}, {WS_ROWH}""")
        poll(vPA, sTAGR, sHB[1], vPO, check=False)

    vGT = 6
    def row_ok():
        poll(vPA, sTAGR, sHB[1], vPO, issue=False)
        A(f"""s_add_u32 {sT0}, {sHB[1]}, {WS_ROWG - WS_ROWH}
              s_or_b32 {sT1}, {sCB}, {sW}
              s_cmp_eq_u32 {sT1}, 0
              s_cselect_b32 {sT0}, {sT0}, 0x7f000000
              v_mov_b32 v{vPO}, {sTAGR}
              v_add_u32 v{vL16b}, 4096, {vr(vL16)}
              v_add_u32 v{vL16c}, 8192, {vr(vL16)}""")
        A(f"buffer_store_dword v{vPO}, v{vFL}, {sWS}, {sT0} offen sc1")
        A(f"""s_mul_i32 {sHB[0]}, {sRB}, 196608
              s_mul_i32 {sT0}, {sW}, 12288
              s_add_u32 {sHB[0]}, {sHB[0]}, {sT0}
              s_add_u32 {sHB[0]}, {sHB[0]}, {WS_H}
              v_and_b32 v{vPA}, 15, {vr(vLANE)}
              s_lshl_b32 {sT0}, {sRB}, 8
              s_lshl_b32 {sT1}, {sW}, 6
              v_lshlrev_b32 v{vPA}, 2, v{vPA}
              s_add_u32 {sT0}, {sT0}, {sT1}
              s_add_u32 {sT0}, {sT0}, {WS_G}""")
        A(f"buffer_load_dword v{vGT}, v{vPA}, {sWS}, {sT0} offen sc1")
        for x in hbase(0):
            A(x)

    PACE = O["w2pace"]
    common = []
    t = 4
    for i in range(NW2_G1, 60):
        if i == NW2_G1 + O.get("hflag_after", 8):
            common.append(dict(e=t, it=h_flag))
        if i == O.get("rowpoll_at", 52):
            common.append(dict(e=t, it=row_poll_issue))
        for x in w2_items(i):
            common.append(dict(e=t, it=x))
        t += PACE
    t += O.get("rowok_gap", 16)
    common.append(dict(e=t, it=row_ok))
    for kk in range(O["hpre"]):
        t += PACE
        common.append(dict(e=min(t, 270), it=hload(0, kk, vHF + 4 * kk)))

    snapshot_out = len(A.out)
    A(f"s_cmp_ge_u32 {sRB}, 20")
    A.settle()
    A("s_cbranch_scc1 Lnoconv")
    import copy
    saved = (copy.deepcopy(A.q), dict(A.pend), A.nid)
    A.nopt += 1
    A.opt = A.nopt
    A._hidden = []
    optid = A.opt

    def as_common(it):
        def f():
            n0 = {qn: len(A.q[qn]) for qn in A.q}
            ids0 = A.nid
            put_item(A, it)
            for qn in A.q:
                for e in A.q[qn]:
                    if e["id"] > ids0:
                        e["opt"] = 0
        return f

    anchors, last = [], {}
    first = {}
    for n in range(32):
        ac = vCA + 4 * ((n + 4) % NA)
        first[n] = len(anchors)
        for q in range(n // 2 + 1):
            b = n - 2 * q
            anchors.append([f"v_mfma_f32_16x16x32_bf16 v[{ac}:{ac+3}], v[{vG+4*q}:{vG+4*q+3}], v[{Hreg(b)}:{Hreg(b)+3}], " +
                            ("0" if q == 0 else f"v[{ac}:{ac+3}]")])
        last[n] = len(anchors) - 1
    NAN = len(anchors)
    rds = [dict(e=-1, l=first[n], it=x) for n, x in rd[ri:]]
    for d in rds:
        d["e"] = 0 if d["l"] > 0 else -1
    acc = lambda n, r: vCA + 4 * ((n + 4) % NA) + r
    DP = "row_mask:0xf bank_mask:0xf"
    comb = []
    uread = lambda n: f"ds_read_u16_d16_hi v{vU[n%3]}, v{vUAD} offset:{128*n}"
    comb.append(dict(e=0, it=uread(0)))
    comb.append(dict(e=0, it=uread(1)))
    for s in range(32 + 3):
        a, b, c = s, s - 1, s - 2
        e = min(last[min(s, 31)] + 3, NAN + 5)
        l = first[c + NA] if 0 <= c + NA < 32 and c >= 0 else 1 << 30
        it = []
        d3p = (lambda n: acc(n - 1, 3) if n > 0 else vZ)
        if a < 32:
            it.append(f"v_add_f32_dpp v{vP2[a%3]}, v{d3p(a)}, v{acc(a,2)} wave_ror:1 {DP}")
        if 0 <= b < 32:
            it.append(f"v_add_f32_dpp v{vP1[b%3]}, v{vP2[(b-1)%3]}, v{acc(b,1)} wave_ror:1 {DP}")
        if 0 <= c < 32:
            it.append(f"v_add_f32_dpp v{vY[c%2]}, v{vP1[(c-1)%3]}, v{acc(c,0)} wave_ror:1 {DP}")
        if a < 32:
            it.append(f"v_add_f32_dpp v{vP2[a%3]}, v{acc(a,3)}, v{acc(a,2)} wave_shr:1 {DP}")
        if 0 <= b < 32:
            it.append(f"v_add_f32_dpp v{vP1[b%3]}, v{vP2[b%3]}, v{acc(b,1)} wave_shr:1 {DP}")
        if 0 <= c < 32:
            it.append(f"v_add_f32_dpp v{vY[c%2]}, v{vP1[c%3]}, v{acc(c,0)} wave_shr:1 {DP}")
        if a < 32:
            it.append(f"v_fmac_f32 v{acc(a,0)}, v{vU[a%3]}, v{vDD}")
        if a + 2 < 32:
            it.append(uread(a + 2))
        if 0 <= c < 32 and c % 2 == 1:
            it.append(f"v_cvt_pk_bf16_f32 v{vCV}, v{vY[0]}, v{vY[1]}")
            it.append((f"ds_write_b16 v{vYW}, v{vCV} offset:{128*(c-1)}", "ys"))
            it.append((f"ds_write_b16_d16_hi v{vYW}, v{vCV} offset:{128*c}", "ys"))
            if c % 8 == 7:
                i = c // 8
                if i == 0:
                    it += [f"s_lshl_b32 {sT3}, {sW}, 12", f"v_add_u32 v113, {sT3}, {vr(vL16)}",
                           f"s_mul_i32 {sCH}, {sCH}, {TP}", f"s_add_u32 {sCH}, {sCH}, {WS_YT}"]
                it.append(f"ds_read_b128 v[{vYO+4*(i&1)}:{vYO+4*(i&1)+3}], v113 offset:{L_YS+1024*i}")
        dd = s - 3
        if 0 <= dd < 32 and dd % 8 == 7:
            i = dd // 8
            it.append((f"buffer_store_dwordx4 v[{vYO+4*(i&1)}:{vYO+4*(i&1)+3}], {vr(vL16)}, {sWS}, {sCH} offen offset:{1024*i} sc1", "yout"))
        for x in it:
            comb.append(dict(e=e, l=l, it=x))
    com2 = [dict(e=d["e"], it=as_common(d["it"])) for d in common]
    left = weave2(A, anchors, [com2, rds, comb], 2)
    drain(A, [left[1], left[2], left[0]])
    A.wait("yout")
    A(f"""s_lshl_b32 {sT0}, {sCB}, 9
          s_lshl_b32 {sT1}, {sRB}, 4
          s_add_u32 {sT0}, {sT0}, {sT1}
          s_lshl_b32 {sT1}, {sW}, 2
          s_add_u32 {sT0}, {sT0}, {sT1}
          s_add_u32 {sT0}, {sT0}, {WS_COLCV}
          v_mov_b32 v{vPO}, {sTAGC}""")
    A(f"buffer_store_dword v{vPO}, v{vFL}, {sWS}, {sT0} offen sc1")
    A.settle()
    A("s_branch Ljoin")
    for qn in A.q:
        back = [h for h in A._hidden if h[0] == qn]
        A.q[qn] = [h[1] for h in back] + A.q[qn]
        for h in back:
            for r, v in h[2].items():
                A.pend.setdefault(r, v)
    A.opt = 0
    stateA = (A.q, A.pend, A.nid)
    A.label("Lnoconv")
    A.q, A.pend, A.nid = saved[0], saved[1], stateA[2]
    for d in common:
        put_item(A, d["it"])
    A.settle()
    seqB = [e["text"] for e in A.q["vm"]]
    seqA = [e["text"] for e in stateA[0]["vm"] if e["opt"] == 0]
    assert seqA[-len(seqB):] == seqB, (seqA, seqB)
    nid = A.nid
    A.q, A.pend, A.nid = stateA[0], stateA[1], nid
    A.label("Ljoin")
    stamp("conv")

    HF = [48, 114, 162, 210 - 0]
    HF = [48, 112, 160, 208]
    vA2 = [8, 28]
    vFL2, vRW = 7, 96
    vGQ = 48
    vOMG = 68
    vYR = 70
    vTM = 80
    vRD = 112
    vYA, vOA, vOB, vRR = 97, 98, 99, 100
    anchors = []
    for ph in range(4):
        for kk in range(12):
            for nt in range(5):
                ac = vA2[ph & 1] + 4 * nt
                anchors.append([f"v_mfma_f32_16x16x32_bf16 v[{ac}:{ac+3}], {ar(w2reg(kk*5+nt),4)}, v[{HF[ph]+4*kk}:{HF[ph]+4*kk+3}], " +
                                ("0" if kk == 0 else f"v[{ac}:{ac+3}]")])
    pre = []
    for kk in range(O["hpre"], 12):
        pre.append(hload(0, kk, HF[0] + 4 * kk))
    for x in pre:
        A(x)
    ld = []
    t = -1
    H0 = O.get("hburst", 12)
    cnt = 0
    for ph in range(1, 4):
        for x in hbase(ph):
            ld.append(dict(e=t, it=x))
        for kk in range(12):
            ld.append(dict(e=t, l=60 * ph + 5 * kk, it=hload(ph, kk, HF[ph] + 4 * kk)))
            cnt += 1
            if cnt >= H0:
                t += O.get("hpace", 4)
    while ld and ld[0]["e"] < 0:
        put_item(A, ld.pop(0)["it"])
    ty = max(t, 0) + 2

    def y_issue():
        A(f"""v_min_u32 v{vPA}, 39, {vr(vLANE)}
              s_lshl_b32 {sHB[1]}, {sCB}, 9
              v_lshlrev_b32 v{vPA}, 3, v{vPA}
              s_add_u32 {sHB[1]}, {sHB[1]}, {WS_COLCV}""")
        poll(vPA, sTAGC, sHB[1], vPO, n=2, check=False)

    def y_dma():
        poll(vPA, sTAGC, sHB[1], vPO, n=2, issue=False)
        A(f"""s_add_u32 {sT0}, {sKVO}, {WS_YT}
              s_add_u32 m0, {sW1K}, {L_YT}
              s_add_u32 {sT1}, {sKVO}, {WS_YT + 32*TP}""")
        A(f"buffer_load_dwordx4 {vr(vT)}, {sWS}, {sT0} offen sc1 lds", "yin")
        A(f"""s_add_u32 m0, {sW1K}, {L_YT+4096}
              s_add_u32 {sT0}, {sKVO}, {WS_YT + 64*TP}""")
        A(f"buffer_load_dwordx4 {vr(vT)}, {sWS}, {sT1} offen sc1 lds", "yin")
        A(f"s_add_u32 m0, {sW1K}, {L_YT+8192}")
        A(f"s_cmp_ge_u32 {sW}, 2")
        A.begin_opt("s_cbranch_scc1", settle=False)
        A(f"buffer_load_dwordx4 {vr(vT)}, {sWS}, {sT0} offen sc1 lds", "yin")
        A.end_opt()
    ld.append(dict(e=O.get("ypoll_i", ty), it=y_issue))
    ld.append(dict(e=O.get("ypoll_c", 150), it=y_dma))

    red = []
    for ph in range(3):
        e = 60 * (ph + 1) + 2
        its = [f"s_add_u32 {sT2}, {sW}, {1+ph}", f"s_and_b32 {sT2}, {sT2}, 3", f"s_mul_i32 {sT2}, {sT2}, 15360",
               f"s_add_u32 {sT2}, {sT2}, {L_RED + 5120*ph}", f"v_add_u32 v{vRW}, {sT2}, {vr(vL16)}"]
        for x in its:
            red.append(dict(e=e - 8, l=60 * (ph + 2), it=x))
        for nt in range(5):
            ac = vA2[ph & 1] + 4 * nt
            red.append(dict(e=e, l=60 * (ph + 2), it=(f"ds_write_b128 v{vRW}, v[{ac}:{ac+3}] offset:{1024*nt}", "red")))
        if ph == 0:
            its = [f"v_sub_f32 v{vOMG}, 1.0, v{vGT}"]
            for i in range(10):
                its += [f"v_accvgpr_read_b32 v{vTM}, a{240+i}", f"v_lshlrev_b32 v{vGQ+2*i}, 16, v{vTM}",
                        f"v_and_b32 v{vGQ+2*i+1}, 0xffff0000, v{vTM}",
                        f"v_pk_mul_f32 v[{vGQ+2*i}:{vGQ+2*i+1}], v[{vGQ+2*i}:{vGQ+2*i+1}], v[{vGT}:{vGT+1}] op_sel_hi:[1,0]"]
            its += [f"v_lshrrev_b32 v{vTM}, 4, {vr(vLANE)}", f"v_bfe_u32 v{vTM+1}, {vr(vLANE)}, 2, 2",
                    f"v_and_b32 v{vTM+2}, 3, {vr(vLANE)}", f"v_lshlrev_b32 v{vTM+1}, 7, v{vTM+1}",
                    f"v_lshl_add_u32 v{vTM+1}, v{vTM+2}, 3, v{vTM+1}", f"s_lshl_b32 {sT3}, {sW}, 5",
                    f"s_add_u32 {sT3}, {sT3}, {L_YT}", f"v_add_u32 v{vTM+1}, {sT3}, v{vTM+1}",
                    f"v_lshl_add_u32 v{vYA}, v{vTM}, 10, v{vTM+1}", f"v_lshl_add_u32 v101, v{vTM}, 9, v{vTM+1}",
                    f"v_and_b32 v{vTM+2}, 15, {vr(vLANE)}", f"v_mul_u32_u24 v{vTM+2}, 1280, v{vTM+2}",
                    f"v_lshl_add_u32 v{vOA}, v{vTM}, 4, v{vTM+2}", f"v_lshl_add_u32 v{vOB}, v{vTM}, 3, v{vTM+2}",
                    f"s_mul_i32 {sT3}, {sW}, 20480", f"s_add_u32 {sROWOFF}, {sROWOFF}, {sT3}",
                    f"s_mul_i32 {sT3}, {sW}, 15360", f"s_add_u32 {sT3}, {sT3}, {L_RED}",
                    f"v_add_u32 v{vRR}, {sT3}, {vr(vL16)}"]
            for x in its:
                red.append(dict(e=e, it=x))

    def sync2():
        A.wait("red", "yin")
        A("s_barrier")
    e = O.get("sync2", 190)
    red.append(dict(e=e, it=sync2))
    for nt, (va, off) in enumerate(((vYA, 0), (vYA, 512), (vYA, 4096), (vYA, 4608), (101, 8192))):
        red.append(dict(e=e, it=f"ds_read_b64_tr_b16 v[{vYR+2*nt}:{vYR+2*nt+1}], v{va} offset:{off}"))
    for nt in range(5):
        for p in range(3):
            d = vRD + 20 * p + 4 * nt
            red.append(dict(e=e, it=f"ds_read_b128 v[{d}:{d+3}], v{vRR} offset:{5120*p+1024*nt}"))
    for i in range(10):
        t0 = vTM + 2 * (i & 1)
        g, r = vGQ + 2 * i, vRD + 2 * i
        for x in (f"v_lshlrev_b32 v{t0}, 16, v{vYR+i}", f"v_and_b32 v{t0+1}, 0xffff0000, v{vYR+i}",
                  f"v_pk_add_f32 v[{r}:{r+1}], v[{r}:{r+1}], v[{r+20}:{r+21}]",
                  f"v_pk_mul_f32 v[{g}:{g+1}], v[{g}:{g+1}], v[{t0}:{t0+1}]",
                  f"v_pk_add_f32 v[{r}:{r+1}], v[{r}:{r+1}], v[{r+40}:{r+41}]",
                  f"v_pk_fma_f32 v[{g}:{g+1}], v[{r}:{r+1}], v[{vOMG}:{vOMG+1}], v[{g}:{g+1}] op_sel_hi:[1,0,1]"):
            red.append(dict(e=e, it=x))
    left = weave2(A, anchors, [ld, red], 2)
    drain(A, left)
    for i in range(10):
        g, a = vGQ + 2 * i, vA2[1] + 2 * i
        A(f"v_pk_fma_f32 v[{g}:{g+1}], v[{a}:{a+1}], v[{vOMG}:{vOMG+1}], v[{g}:{g+1}] op_sel_hi:[1,0,1]")
        A(f"v_cvt_pk_bf16_f32 v{vYR+i}, v{g}, v{g+1}")
        if i == 3:
            A(f"buffer_store_dwordx4 v[{vYR}:{vYR+3}], v{vOA}, {sOUT}, {sROWOFF} offen")
        if i == 7:
            A(f"buffer_store_dwordx4 v[{vYR+4}:{vYR+7}], v{vOA}, {sOUT}, {sROWOFF} offen offset:64")
    A(f"buffer_store_dwordx2 v[{vYR+8}:{vYR+9}], v{vOB}, {sOUT}, {sROWOFF} offen offset:128")
    if O["stamps"]:
        A.waitall()
        stamp("end")
        A("s_memrealtime s[52:53]")
        A("s_waitcnt lgkmcnt(0)")
        A("v_mov_b32 v8, 0")
        for k in range(nst[0]):
            A(f"v_writelane_b32 v8, s{STR[k]}, {k}")
        A(f"v_writelane_b32 v8, {sRB}, 12")
        A("v_writelane_b32 v8, s100, 13")
        A("v_writelane_b32 v8, s52, 14")
        A(f"v_writelane_b32 v8, {sSPIN}, 15")
        A.raw("; STAMPS " + " ".join(names))
        A(f"""s_lshl_b32 s54, s2, 2
              s_add_u32 s54, s54, {sW}
              s_lshl_b32 s54, s54, 6
              s_add_u32 s54, s54, {WS_DBG}
              v_lshlrev_b32 v9, 2, {vr(vLANE)}
              v_cmp_gt_u32 vcc, 16, {vr(vLANE)}
              v_mov_b32 v10, 0x7ff00000
              v_cndmask_b32 v9, v10, v9, vcc""")
        A(f"buffer_store_dword v8, v9, {sWS}, s54 offen")
    if O.get("dbg", 0):
        A("s_load_dwordx2 s[8:9], s[0:1], 88")
        A("s_mov_b32 s10, 256")
        A("s_mov_b32 s11, 0x20000")
        A("s_getreg_b32 s55, hwreg(HW_REG_XCC_ID)")
        A("s_waitcnt lgkmcnt(0)")
        A("s_not_b32 s100, s100")
        A("v_mov_b32 v10, s100")
        A("v_mov_b32 v11, s52")
        A("v_mov_b32 v12, 0")
        A("s_mov_b64 exec, 1")
        A("buffer_atomic_umax v10, v12, s[8:11], 0 offen sc1")
        A("buffer_atomic_umax v11, v12, s[8:11], 0 offen offset:4 sc1")
        for k in range(1, nst[0]):
            A(f"s_sub_u32 s54, s{STR[k]}, s{STR[0]}")
            A(f"v_mov_b32 v{12+k}, s54")
            A(f"buffer_atomic_umax v{12+k}, v12, s[8:11], 0 offen offset:{4+4*k} sc1")
        A("s_and_b32 s55, s55, 15")
        A("s_lshl_b32 s54, s2, 2")
        A("s_lshl_b32 s53, s55, s54")
        A("s_cmp_lt_u32 s2, 8")
        A("s_cselect_b32 s53, s53, 0")
        A("v_mov_b32 v30, s53")
        A("buffer_atomic_or v30, v12, s[8:11], 0 offen offset:56 sc1")
        A("s_lshr_b32 s54, s2, 1")
        A("s_lshl_b32 s53, s55, s54")
        A("s_and_b32 s54, s2, 0xc7")
        A("s_cmp_eq_u32 s54, 0")
        A("s_cselect_b32 s53, s53, 0")
        A("v_mov_b32 v31, s53")
        A("buffer_atomic_or v31, v12, s[8:11], 0 offen offset:60 sc1")
    A.label("Lend")
    A("s_endpgm")

    head = f"""; Fused gated mix: one persistent launch, 256 workgroups (32 row blocks x 8 column blocks).
; @launch grid=(256,1,1) block=(256,1,1) lds={LDS}
.amdgcn_target "amdgcn-amd-amdhsa--gfx950"
.text
.globl {KN}_kernel
.p2align 8
.type {KN}_kernel,@function
{KN}_kernel:
"""
    tail = f"""
.section .rodata,"a"
.p2align 6
.amdhsa_kernel {KN}_kernel
  .amdhsa_next_free_vgpr 512
  .amdhsa_next_free_sgpr 102
  .amdhsa_accum_offset 256
  .amdhsa_group_segment_fixed_size 0
  .amdhsa_kernarg_size 104
  .amdhsa_user_sgpr_count 2
  .amdhsa_user_sgpr_kernarg_segment_ptr 1
  .amdhsa_system_sgpr_workgroup_id_x 1
.end_amdhsa_kernel
"""
    return head + A.text() + tail, A.stats


if __name__ == "__main__":
    out = sys.argv[1]
    kw = {}
    for a in sys.argv[2:]:
        k, v = a.split("=")
        kw[k] = int(v) if v.lstrip("-").isdigit() else v
    s, st = gen(**kw)
    open(out, "w").write(s)
    print(out, st)
```

```python
import sys, os
sys.path.insert(0, os.path.dirname(os.path.abspath(__file__)))
from asmlib import *

KN = "gated_mix__ssm_conv_h3__dense_activation_silu__prompt"

DEF = dict(stamps=0, mapping="A", rot=1, gs=2, dist=5, p0flag=3, poll_i=20, poll_c=80, w2pace=4, hpre=12,
           spin=200000, early_w1=6)


def gen(**kw):
    O = dict(DEF)
    O.update(kw)
    A = Asm()
    GS, DIST = O["gs"], O["dist"]
    NT = "nt" if O.get("nt", 0) else ""
    NTX = "nt" if O.get("ntx", 0) else ""

    WS_COLP0, WS_COLCV, WS_COLG, WS_ROWH, WS_ROWG, WS_G = 0x0000, 0x1000, 0x2000, 0x3000, 0x5000, 0x8000
    WS_DBG = 0x20000
    WS_KVT, WS_YT, WS_W2P, WS_H = 0x100000, 0x400000, 0x700000, 0x900000
    WS_SIZE = 0x1000000
    TP = 4224
    L_S = 81920
    L_K, L_V, L_W2 = 131072, 142336, 152576
    L_BO = 131072
    L_HB, L_UB, L_YT, L_YS, L_RED = 0, 16896, 33792, 45056, 69632
    HBP, UBP = 4224, 4128
    LDS = 163840
    sQ, sK, sV, sSH, sSK, sD, sW1, sW2, sGW, sOUT, sWS = [f"s[{8+4*i}:{11+4*i}]" for i in range(11)]
    srd = lambda n: int(n[2:].split(":")[0])
    sW, sRB, sCB, sROT = "s3", "s4", "s5", "s6"
    sT0, sT1, sT2, sT3 = "s52", "s53", "s54", "s55"
    sROWOFF = "s56"
    sW1K = "s57"
    sW2K = "s58"
    sTAGC, sTAGR = "s59", "s60"
    sCH = "s61"
    sNL2E = "s[62:63]"
    sJ = [f"s{64+i}" for i in range(10)]
    sHB = ["s74", "s75", "s76"]
    sKVO = "s77"
    sW2L = "s78"
    sSPIN = "s79"
    sHL = "s80"
    sSTAMP = 82

    nst = [0]
    names = []
    STR = [82, 84, 86, 88, 90, 92, 94, 96, 98, 64, 66, 68]

    def stamp(name):
        if O.get("padat", "") == name:
            A("s_memrealtime s[100:101]")
        if O["stamps"]:
            r = STR[nst[0]]
            A(f"s_memtime s[{r}:{r+1}]")
            nst[0] += 1
            names.append(name)

    def vr(a, n=1):
        return f"v{a}" if n == 1 else f"v[{a}:{a+n-1}]"

    def ar(a, n=1):
        return f"a{a}" if n == 1 else f"a[{a}:{a+n-1}]"

    vTID, vLANE, vL16, vT = 0, 1, 2, 3
    vW1 = [4, 5, 6, 7, 8, 9]
    vTR = [10, 11, 12]
    vHS = 13
    vFL = 14
    vPO = 15

    def poll(voff, tag, soff, vres=None, n=1, issue=True, check=True):
        ld = (f"buffer_load_dword {vr(vres)}, {vr(voff)}, {sWS}, {soff} offen sc1" if n == 1 else
              f"buffer_load_dwordx2 {vr(vres,2)}, {vr(voff)}, {sWS}, {soff} offen sc1")
        if issue:
            A(ld)
        if check:
            lo, dn = A.newlabel("Lpoll"), A.newlabel("Lgot")

            def cmp():
                A(f"v_cmp_ne_u32 vcc, {tag}, {vr(vres)}")
                if n == 2:
                    A(f"v_cmp_ne_u32 s[52:53], {tag}, {vr(vres+1)}")
                    A("s_or_b64 vcc, vcc, s[52:53]")
            cmp()
            A(f"s_cbranch_vccz {dn}" if n == 1 else f"s_cbranch_scc0 {dn}")
            A.label(lo)
            A.raw("  s_sleep 1")
            A.raw("  " + ld)
            A.raw("  s_waitcnt vmcnt(0)")
            A.raw(f"  s_sub_u32 {sSPIN}, {sSPIN}, 1")
            A.raw(f"  s_cbranch_scc1 Lend")
            A.raw(f"  v_cmp_ne_u32 vcc, {tag}, {vr(vres)}")
            if n == 2:
                A.raw(f"  v_cmp_ne_u32 s[52:53], {tag}, {vr(vres+1)}")
                A.raw("  s_or_b64 vcc, vcc, s[52:53]")
            A.raw(f"  s_cbranch_vccnz {lo}" if n == 1 else f"  s_cbranch_scc1 {lo}")
            A.label(dn)

    A("s_cmp_ge_u32 s2, 256")
    A("s_cbranch_scc1 Lend")
    for s, off in ((sW2, 64), (sK, 8), (sV, 16), (sQ, 0), (sWS, 96), (sW1, 56), (sSH, 24), (sGW, 72), (sSK, 32),
                   (sD, 40), (sOUT, 80)):
        A(f"s_load_dwordx2 s[{srd(s)}:{srd(s)+1}], s[0:1], {off}")
    if O["stamps"] or O.get("padto", 0):
        A("s_memrealtime s[100:101]")
    stamp("start")
    A(f"v_lshrrev_b32 v20, 6, v0")
    A(f"v_and_b32 {vr(vLANE)}, 63, v0")
    A(f"v_readfirstlane_b32 {sW}, v20")
    if O["mapping"] == "A":
        A(f"""s_lshr_b32 {sT0}, s2, 3
              s_and_b32 {sCB}, {sT0}, 7
              s_lshr_b32 {sT0}, {sT0}, 3
              s_and_b32 {sRB}, s2, 7
              s_lshl_b32 {sRB}, {sRB}, 2
              s_add_u32 {sRB}, {sRB}, {sT0}""")
    else:
        A(f"""s_lshr_b32 {sT0}, s2, 3
              s_and_b32 {sCB}, {sT0}, 3
              s_and_b32 {sT1}, s2, 1
              s_lshl_b32 {sT1}, {sT1}, 2
              s_add_u32 {sCB}, {sCB}, {sT1}
              s_lshr_b32 {sT0}, {sT0}, 2
              s_bfe_u32 {sRB}, s2, 0x20001
              s_lshl_b32 {sRB}, {sRB}, 3
              s_add_u32 {sRB}, {sRB}, {sT0}""")
    for s, size in ((sQ, 2621440), (sK, 2621440), (sV, 2621440), (sSH, 5120), (sSK, 2621440), (sD, 1280),
                    (sW1, 1966080), (sW2, 1966080), (sGW, 1280), (sOUT, 2621440), (sWS, WS_SIZE)):
        A(f"s_mov_b32 s{srd(s)+2}, {size}")
        A(f"s_mov_b32 s{srd(s)+3}, 0x20000")
    A(f"""s_mul_i32 {sROWOFF}, {sRB}, 81920
          s_mul_i32 {sT0}, {sCB}, 160
          s_add_u32 {sROWOFF}, {sROWOFF}, {sT0}
          s_lshl_b32 {sW1K}, {sW}, 10
          s_lshl_b32 {sW2K}, {sW}, 11
          s_movk_i32 {sT1}, 6554
          s_movk_i32 {sT2}, 1120
          s_sub_u32 {sT3}, {sROWOFF}, 5120""")
    for n in range(3):
        A(f"v_add_u32 v26, {256*n}, v0") if n else A("v_mov_b32 v26, v0")
        A(f"""v_mul_u32_u24 v27, {sT1}, v26
              v_lshrrev_b32 v27, 16, v27
              v_lshlrev_b32 v26, 4, v26
              v_mad_u32_u24 v{20+n}, v27, {sT2}, v26
              v_add_u32 v{23+n}, {sT3}, v{20+n}""")
    A(f"v_lshlrev_b32 {vr(vL16)}, 4, {vr(vLANE)}")
    A("s_waitcnt lgkmcnt(0)")

    def tile_dma(n, which):
        for s, reg, vo, so in which:
            A(f"s_add_u32 m0, {sW1K}, {reg + 4096*n}")
            A(f"buffer_load_dwordx4 v{vo+n}, {s}, {so} offen {NT} lds", "p0in")
    W2T, KT, VT = (sW2, L_W2, 20, sROWOFF), (sK, L_K, 23, "0"), (sV, L_V, 20, sROWOFF)
    tile_dma(0, [W2T, KT, VT])
    tile_dma(1, [W2T, KT, VT])
    A(f"s_cmp_ge_u32 {sW}, 3")
    A.begin_opt("s_cbranch_scc1", settle=False)
    tile_dma(2, [KT])
    A.end_opt()
    A(f"s_cmp_ge_u32 {sW}, 2")
    A.begin_opt("s_cbranch_scc1", settle=False)
    tile_dma(2, [W2T, VT])
    A.end_opt()

    vCT, vI16, vR, vCHL = 28, 29, 30, 31
    A(f"""v_lshrrev_b32 v26, 4, v0
          v_mul_u32_u24 v27, 52, v26
          v_lshrrev_b32 v27, 8, v27
          v_mul_u32_u24 v{vR}, 5, v27
          v_sub_u32 v{vCT}, v26, v{vR}
          v_mul_u32_u24 v{vR}, 24, v27
          v_min_u32 v{vR}, 40, v{vR}
          v_and_b32 v{vI16}, 15, v0
          v_lshl_add_u32 v{vCHL}, v{vCT}, 4, v{vI16}
          v_lshlrev_b32 v26, 3, v{vCHL}
          s_mul_i32 {sT0}, {sCB}, 640""")
    vSH = 32
    A(f"buffer_load_dwordx2 v[{vSH}:{vSH+1}], v26, {sSH}, {sT0} offen")
    vG0, vG1 = 34, 35
    A(f"""s_lshl_b32 {sT0}, {sCB}, 8
          s_lshl_b32 {sT1}, {sRB}, 8
          s_add_u32 {sT0}, {sT0}, {WS_COLG}
          s_add_u32 {sT1}, {sT1}, {WS_ROWG}""")
    A(f"buffer_load_dword v{vG0}, off, {sWS}, {sT0} sc1")
    A(f"buffer_load_dword v{vG1}, off, {sWS}, {sT1} sc1")

    if O["rot"]:
        A(f"""s_mul_i32 {sT0}, {sRB}, 3
              s_add_u32 {sT0}, {sT0}, {sCB}
              s_mul_i32 {sT1}, {sT0}, 6554
              s_lshr_b32 {sT1}, {sT1}, 16
              s_mul_i32 {sT1}, {sT1}, 10
              s_sub_u32 {sROT}, {sT0}, {sT1}""")
    else:
        A(f"s_mov_b32 {sROT}, 0")
    vX0, vX1 = 36, 37
    A(f"""v_lshrrev_b32 v26, 3, {vr(vLANE)}
          v_lshrrev_b32 v27, 4, {vr(vLANE)}
          v_and_b32 v38, 7, {vr(vLANE)}
          v_xor_b32 v39, v38, v27
          s_movk_i32 {sT0}, 1280
          s_mul_i32 {sT1}, {sW}, 20480
          v_lshlrev_b32 v39, 4, v39
          v_mad_u32_u24 v{vX0}, v26, {sT0}, v39
          v_add_u32 v{vX0}, {sT1}, v{vX0}
          v_xor_b32 v{vX1}, 64, v{vX0}
          v_add_u32 v{vX1}, {8*1280-1024}, v{vX1}
          s_mul_i32 {sT2}, {sRB}, 81920
          s_lshl_b32 {sT3}, {sROT}, 7
          s_add_u32 {sT3}, {sT3}, {sT2}
          s_add_u32 {sT2}, {sT2}, 1280""")
    for j in range(10):
        A(f"s_add_u32 m0, {sW2K}, {8192*j}")
        if j:
            A(f"""s_add_u32 {sT3}, {sT3}, 128
                  s_cmp_ge_u32 {sT3}, {sT2}
                  s_cselect_b32 {sT0}, 1280, 0
                  s_sub_u32 {sT3}, {sT3}, {sT0}""")
        A(f"buffer_load_dwordx4 v{vX0}, {sQ}, {sT3} offen {NTX} lds", "x")
        A(f"buffer_load_dwordx4 v{vX1}, {sQ}, {sT3} offen offset:1024 {NTX} lds", "x")
    A(f"""v_and_b32 v27, 1, v27
          v_lshlrev_b32 v27, 2, v27
          v_xor_b32 v39, v38, v27
          v_lshlrev_b32 v39, 4, v39
          s_movk_i32 {sT0}, 3072
          s_mul_i32 {sT1}, {sW}, 49152
          v_mad_u32_u24 v{vW1[0]}, v26, {sT0}, v39
          v_add_u32 v{vW1[0]}, {sT1}, v{vW1[0]}
          v_add_u32 v{vW1[1]}, {8*3072-1024}, v{vW1[0]}
          v_add_u32 v{vW1[2]}, 128, v{vW1[0]}
          v_add_u32 v{vW1[3]}, 128, v{vW1[1]}
          v_add_u32 v{vW1[4]}, 256, v{vW1[0]}
          v_add_u32 v{vW1[5]}, 256, v{vW1[1]}
          s_mul_i32 {sT0}, {sCB}, 384
          s_mul_i32 {sJ[0]}, {sROT}, 196608
          s_add_u32 {sJ[0]}, {sJ[0]}, {sT0}""")
    for j in range(1, 10):
        A(f"""s_add_u32 {sJ[j]}, {sJ[j-1]}, 196608
              s_cmp_ge_u32 {sJ[j]}, 1966080
              s_cselect_b32 {sT0}, 1966080, 0
              s_sub_u32 {sJ[j]}, {sJ[j]}, {sT0}""")

    def slot(b):
        p, j = divmod(b, 10)
        return (0 if p == 1 else L_S) + 8192 * j

    def w1_items(b):
        p, j = divmod(b, 10)
        return [f"s_add_u32 m0, {sW2K}, {slot(b)}",
                (f"buffer_load_dwordx4 v{vW1[2*p]}, {sW1}, {sJ[j]} offen lds", f"w1_{b}"),
                (f"buffer_load_dwordx4 v{vW1[2*p+1]}, {sW1}, {sJ[j]} offen offset:1024 lds", f"w1_{b}")]

    vGW = 40
    A(f"""v_bfe_u32 v52, {vr(vLANE)}, 3, 2
          v_add_u32 v53, {sROT}, v52""")
    for n in range(3):
        A(f"""v_add_u32 v54, {4*n}, v53
              v_subrev_u32 v55, 10, v54
              v_min_u32 v54, v54, v55
              v_lshlrev_b32 v54, 7, v54
              v_lshl_add_u32 v54, v38, 4, v54""")
        if n == 2:
            A(f"""v_lshrrev_b32 v55, 1, v52
                  v_lshl_add_u32 v54, v55, 16, v54""")
        A(f"buffer_load_dwordx4 v[{vGW+4*n}:{vGW+4*n+3}], v54, {sGW}, 0 offen")
    for b in range(O["early_w1"]):
        for it in w1_items(b):
            put_item(A, it)
    stamp("issued")

    vKA, vBW, vBR, vRA, vRB_ = 56, 57, 58, 59, 60
    A(f"""v_lshrrev_b32 v26, 2, v{vI16}
          v_add_u32 v26, v26, v{vR}
          v_mul_u32_u24 v26, 160, v26
          v_and_b32 v27, 3, v0
          v_lshl_add_u32 v26, v27, 3, v26
          v_lshl_add_u32 v26, v{vCT}, 5, v26
          v_add_u32 v{vKA}, {L_K}, v26
          v_mul_u32_u24 v26, 144, v{vCHL}
          v_lshl_add_u32 v26, v{vR}, 1, v26
          v_add_u32 v{vBW}, {L_BO}, v26
          v_lshrrev_b32 v26, 3, v0
          v_mul_u32_u24 v54, 144, v26
          v_lshl_add_u32 v54, v38, 4, v54
          v_add_u32 v{vBR}, {L_BO}, v54
          v_mul_u32_u24 v54, {TP}, v26
          v_lshl_add_u32 {vr(vT)}, v38, 4, v54""")
    A(f"""v_lshrrev_b32 v26, 5, {vr(vLANE)}
          v_lshlrev_b32 v26, 4, v26
          v_bfe_u32 v54, {vr(vLANE)}, 2, 3
          v_add_u32 v26, v26, v54
          v_mul_u32_u24 v26, 160, v26
          s_and_b32 {sT0}, {sW}, 1
          s_mul_i32 {sT0}, {sT0}, 5120
          s_add_u32 {sT0}, {sT0}, {L_W2}
          s_lshr_b32 {sT1}, {sW}, 1
          s_lshl_b32 {sT1}, {sT1}, 6
          v_add_u32 v26, {sT0}, v26
          v_lshl_add_u32 v{vRB_}, v27, 3, v26
          v_lshl_add_u32 v{vRA}, v27, 4, v26
          v_add_u32 v{vRA}, {sT1}, v{vRA}""")
    A(f"""v_lshrrev_b32 v26, 5, {vr(vLANE)}
          v_lshlrev_b32 v26, 10, v26
          v_bfe_u32 v54, {vr(vLANE)}, 2, 2
          v_lshl_add_u32 v26, v54, 7, v26
          v_bfe_u32 v54, {vr(vLANE)}, 3, 1
          v_lshlrev_b32 v54, 6, v54
          v_xor_b32 v54, {sT1}, v54
          v_add_u32 v26, v26, v54
          v_bfe_u32 v54, {vr(vLANE)}, 4, 1
          v_lshl_add_u32 v26, v54, 5, v26
          v_lshl_add_u32 v{vTR[0]}, v27, 3, v26
          v_add_u32 v{vTR[1]}, 65536, v{vTR[0]}
          v_add_u32 v{vTR[2]}, 131072, v{vTR[0]}""")
    A(f"""v_lshrrev_b32 v26, 5, {vr(vLANE)}
          v_lshlrev_b32 v26, 8, v26
          v_lshl_add_u32 v26, v{vI16}, 4, v26
          v_mul_u32_u24 v54, 49152, v54
          v_add_u32 v{vHS}, v26, v54
          s_mul_i32 {sHB[0]}, {sRB}, 196608
          s_and_b32 {sT0}, {sW}, 1
          s_mul_i32 {sT0}, {sT0}, 98304
          s_add_u32 {sHB[0]}, {sHB[0]}, {sT0}
          s_mul_i32 {sT0}, {sCB}, 6144
          s_add_u32 {sHB[0]}, {sHB[0]}, {sT0}
          s_lshl_b32 {sT1}, {sT1}, 4
          s_add_u32 {sHB[0]}, {sHB[0]}, {sT1}
          s_add_u32 {sHB[0]}, {sHB[0]}, {WS_H}
          s_add_u32 {sHB[1]}, {sHB[0]}, 2048
          s_add_u32 {sHB[2]}, {sHB[0]}, 4096
          s_mul_i32 {sKVO}, {sCB}, {80*TP}
          s_lshl_b32 {sT0}, {sRB}, 7
          s_add_u32 {sKVO}, {sKVO}, {sT0}
          s_mul_i32 {sCH}, {sCB}, 80
          s_lshl_b32 {sT0}, {sRB}, 2
          s_add_u32 {sCH}, {sCH}, {sT0}
          s_add_u32 {sCH}, {sCH}, {sW}
          s_cmp_lt_u32 {sRB}, 20
          s_cselect_b32 {sCH}, {sCH}, 0x4000
          s_mov_b32 s62, 0xbfb8aa3b
          s_mov_b32 s63, 0xbfb8aa3b
          s_mov_b32 {sSPIN}, {O["spin"]}""")
    A(f"""v_cmp_eq_u32 vcc, 0, {vr(vLANE)}
          v_mov_b32 v26, 0x7ff00000
          v_cndmask_b32 v{vFL}, v26, {vr(vLANE)}, vcc""")
    vXA = 61
    A(f"""v_and_b32 v26, 31, {vr(vLANE)}
          v_lshlrev_b32 v26, 7, v26
          v_lshrrev_b32 v54, 5, {vr(vLANE)}
          v_lshrrev_b32 v55, 1, v{vI16}
          v_xor_b32 v54, v54, v55
          v_lshl_add_u32 v26, v54, 4, v26
          s_and_b32 {sT0}, {sW}, 1
          s_lshl_b32 {sT0}, {sT0}, 12
          v_add_u32 v{vXA}, {sT0}, v26""")
    for ks in range(1, 4):
        A(f"v_xor_b32 v{vXA+ks}, {ks<<5}, v{vXA}")
    for ks in range(4):
        A(f"v_add_u32 v{vXA+4+ks}, 65536, v{vXA+ks}")
    vQA = 69
    A(f"""v_lshrrev_b32 v26, 4, {vr(vLANE)}
          s_mul_i32 {sT0}, {sCB}, 10
          v_lshlrev_b32 v72, 7, v{vI16}
          v_add_u32 v72, {sW2K}, v72""")
    for n in range(3):
        if n < 2:
            A(f"""s_add_u32 {sT1}, {sT0}, {4*n}
                  v_add_u32 v54, {sT1}, v26""")
        else:
            A(f"""s_add_u32 {sT1}, {sT0}, 8
                  v_lshrrev_b32 v54, 1, v26
                  v_add_u32 v54, {sT1}, v54""")
        A(f"""v_lshrrev_b32 v73, 3, v54
              v_subrev_u32 v73, {sROT}, v73
              v_add_u32 v74, 10, v73
              v_min_u32 v73, v73, v74
              v_and_b32 v54, 7, v54
              v_xor_b32 v54, v54, v55
              v_lshl_add_u32 v54, v54, 4, v72
              v_lshl_add_u32 v{vQA+n}, v73, 13, v54""")
    A(f"""v_and_b32 v26, 1, v26
          v_lshl_add_u32 v{vQA+2}, v26, 3, v{vQA+2}""")
    vGA = 75
    A(f"""s_lshl_b32 {sT0}, {sCB}, 2
          s_add_u32 {sT0}, {sT0}, {sW}
          s_and_b32 {sT1}, {sT0}, 7
          s_lshl_b32 {sT0}, {sT0}, 8
          v_xor_b32 v26, {sT1}, v38
          v_lshlrev_b32 v26, 4, v26
          v_lshrrev_b32 v54, 5, {vr(vLANE)}
          v_lshl_add_u32 v26, v54, 7, v26
          v_add_u32 v26, {sT0}, v26
          v_lshl_add_u32 v{vGA}, v52, 13, v26
          v_and_b32 v54, 1, v52
          v_lshl_add_u32 v26, v54, 13, v26
          v_add_u32 v{vGA+1}, 65536, v26""")
    vWa, vWb, vWc, vWd, vWe = 77, 78, 79, 80, 81
    A(f"""s_mov_b32 {sT0}, 0xffff
          v_and_b32 v{vWa}, 0xffff, v{vSH}
          v_bfi_b32 v{vWb}, {sT0}, v{vSH+1}, v{vSH}
          v_and_b32 v{vWc}, 0xffff0000, v{vSH+1}
          v_alignbit_b32 v{vWd}, v{vSH}, v{vSH}, 16
          v_alignbit_b32 v{vWe}, v{vSH+1}, v{vSH+1}, 16""")
    A(f"""v_readfirstlane_b32 {sTAGC}, v{vG0}
          v_readfirstlane_b32 {sTAGR}, v{vG1}
          s_mul_i32 {sTAGC}, {sTAGC}, 0x2C9277B5
          s_mul_i32 {sTAGR}, {sTAGR}, 0x2C9277B5
          s_add_u32 {sTAGC}, {sTAGC}, 0xAC564B05
          s_add_u32 {sTAGR}, {sTAGR}, 0xAC564B05""")

    A.wait("p0in")
    A("s_barrier")
    stamp("p0in")
    vWT = 84
    vP = 96
    vVV = 110
    vO = 122
    vE = 134
    for i, (va, off) in enumerate(((vRA, 0), (vRA, 8), (vRB_, 128))):
        A(f"ds_read_b64_tr_b16 v[{vWT+4*i}:{vWT+4*i+1}], v{va} offset:{off}")
        A(f"ds_read_b64_tr_b16 v[{vWT+4*i+2}:{vWT+4*i+3}], v{va} offset:{off+1280}")
    for m in range(7):
        A(f"ds_read_b64_tr_b16 v[{vP+2*m}:{vP+2*m+1}], v{vKA} offset:{640*m}")
        if m < 6:
            A(f"ds_read_b64_tr_b16 v[{vVV+2*m}:{vVV+2*m+1}], v{vKA} offset:{640*m + L_V - L_K}")
    A(f"""s_mul_i32 {sT0}, {sCB}, 48
          s_lshl_b32 {sT1}, {sRB}, 1
          s_add_u32 {sT0}, {sT0}, {sT1}
          s_and_b32 {sT1}, {sW}, 1
          s_add_u32 {sT0}, {sT0}, {sT1}
          s_mul_i32 {sT0}, {sT0}, 5120
          s_add_u32 {sT0}, {sT0}, {WS_W2P}
          s_cmp_lt_u32 {sRB}, 24
          s_cselect_b32 {sT0}, {sT0}, 0x7f000000
          s_and_b32 {sT1}, {sW}, 2
          s_lshl_b32 {sT1}, {sT1}, 10
          s_add_u32 {sT1}, {sT1}, {sT0}
          s_add_u32 {sT0}, {sT0}, 4096""")
    A(f"buffer_store_dwordx4 v[{vWT}:{vWT+3}], {vr(vL16)}, {sWS}, {sT1} offen sc1", "p0out")
    A(f"buffer_store_dwordx4 v[{vWT+4}:{vWT+7}], {vr(vL16)}, {sWS}, {sT1} offen offset:1024 sc1", "p0out")
    A(f"buffer_store_dwordx4 v[{vWT+8}:{vWT+11}], {vr(vL16)}, {sWS}, {sT0} offen sc1", "p0out")
    for o in range(13):
        e = vE + 4 * (o & 1) * 2
        if o < 12:
            A(f"""v_dot2_f32_bf16 v{e}, v{vP+o+2}, v{vWa}, 0
                  v_dot2_f32_bf16 v{e+1}, v{vP+o+2}, v{vWd}, 0
                  v_dot2_f32_bf16 v{e}, v{vP+o+1}, v{vWb}, v{e}
                  v_dot2_f32_bf16 v{e+1}, v{vP+o+1}, v{vWe}, v{e+1}
                  v_dot2_f32_bf16 v{e}, v{vP+o}, v{vWc}, v{e}
                  v_lshlrev_b32 v{e+2}, 16, v{vVV+o}
                  v_and_b32 v{e+3}, 0xffff0000, v{vVV+o}""")
        if o > 0:
            e = vE + 4 * ((o - 1) & 1) * 2
            A(f"""v_pk_mul_f32 v[{e}:{e+1}], v[{e}:{e+1}], v[{e+2}:{e+3}]
                  v_cvt_pk_bf16_f32 v{vO+o-1}, v{e}, v{e+1}""")
    A("s_barrier")
    for i in range(3):
        A(f"ds_write_b128 v{vBW}, v[{vO+4*i}:{vO+4*i+3}] offset:{16*i}", "bo")
    A.wait("bo")
    A("s_barrier")
    for n in range(3):
        A(f"ds_read_b128 v[{vP+4*n}:{vP+4*n+3}], v{vBR} offset:{4608*n}")
    A(f"""s_add_u32 {sT0}, {sKVO}, {WS_KVT}
          s_add_u32 {sT1}, {sKVO}, {WS_KVT + 32*TP}
          s_add_u32 {sT2}, {sKVO}, {WS_KVT + 64*TP}
          s_cmp_lt_u32 {sW}, 2
          s_cselect_b32 {sT2}, {sT2}, 0x7f000000""")
    for n, s in enumerate((sT0, sT1, sT2)):
        A(f"buffer_store_dwordx4 v[{vP+4*n}:{vP+4*n+3}], {vr(vT)}, {sWS}, {s} offen sc1", "p0out")
    stamp("p0done")
    A.wait("x")
    A("s_barrier")
    stamp("xin")
    for b in range(O["early_w1"], 10):
        for it in w1_items(b):
            put_item(A, it)
    vGX = 84
    A(f"ds_read_b128 v[{vGX}:{vGX+3}], v{vGA}")
    A(f"ds_read_b128 v[{vGX+4}:{vGX+7}], v{vGA} offset:32768")
    A(f"ds_read_b128 v[{vGX+8}:{vGX+11}], v{vGA+1}")
    xr = []
    for j in range(10):
        for ks in range(4):
            va, off = (vXA + ks, 8192 * j) if j < 8 else (vXA + 4 + ks, 8192 * (j - 8))
            xr.append(f"ds_read_b128 {ar(16*j+4*ks,4)}, v{va} offset:{off}")
    xr.append(f"ds_read_b128 a[240:243], v{vQA}")
    xr.append(f"ds_read_b128 a[244:247], v{vQA+1}")
    xr.append(f"ds_read_b64 a[248:249], v{vQA+2}")
    gops = []
    for i in range(12):
        gops.append(f"v_dot2_f32_bf16 v96, v{vGX+i}, v{vGW+i}, " + ("0" if i == 0 else "v96"))
    for m in ("quad_perm:[1,0,3,2]", "quad_perm:[2,3,0,1]", "row_half_mirror", "row_mirror"):
        gops.append(f"v_add_f32_dpp v96, v96, v96 {m} row_mask:0xf bank_mask:0xf")
    gops.append("v_add_f32_dpp v96, v96, v96 row_bcast:15 row_mask:0xa bank_mask:0xf")
    gops += ["v_mul_f32 v96, s62, v96", "v_exp_f32 v96, v96", "v_add_f32 v96, 1.0, v96", "v_rcp_f32 v96, v96"]
    gops += [f"v_and_b32 v97, 31, {vr(vLANE)}", "v_cmp_eq_u32 vcc, 31, v97", f"v_lshrrev_b32 v97, 5, {vr(vLANE)}",
             "v_lshlrev_b32 v97, 2, v97", "v_mov_b32 v98, 0x7ff00000", "v_cndmask_b32 v97, v98, v97, vcc",
             f"s_lshl_b32 {sT0}, {sRB}, 8", f"s_lshl_b32 {sT1}, {sCB}, 5", f"s_add_u32 {sT0}, {sT0}, {sT1}",
             f"s_lshl_b32 {sT1}, {sW}, 3", f"s_add_u32 {sT0}, {sT0}, {sT1}", f"s_add_u32 {sT0}, {sT0}, {WS_G}",
             (f"buffer_store_dword v96, v97, {sWS}, {sT0} offen sc1", "hout")]
    for i in range(8):
        A(xr[i])
    gi = 0
    for i in range(8, len(xr)):
        A(xr[i])
        if gi < len(gops):
            put_item(A, gops[gi]); gi += 1
    for g in gops[gi:]:
        put_item(A, g)
    A.waitall(vm=False)

    vACC = [16, 32]
    NB = 8
    vFR = 48
    vS = 80
    vHO = 96
    vPO = 104
    vPA = 106
    vZ = 107
    vDD = 108
    vGAD, vHAD, vUAD, vYW = 109, 110, 111, 112

    def fr_reads(n):
        b, ks = divmod(n, 4)
        a = slot(b) + 2048 * ks
        base, off = vTR[a >> 16], a & 0xffff
        f = vFR + 4 * (n % NB)
        return [f"ds_read_b64_tr_b16 v[{f}:{f+1}], v{base} offset:{off}",
                f"ds_read_b64_tr_b16 v[{f+2}:{f+3}], v{base} offset:{off+512}"]

    def group_sync(g):
        def f():
            tags = [f"w1_{b}" for b in range(GS * g, GS * g + GS)]
            if g == O["p0flag"]:
                tags.append("p0out")
            A.wait(*tags)
            A("s_barrier")
            if g == O["p0flag"]:
                A(f"""s_lshl_b32 {sT0}, {sCB}, 8
                      s_lshl_b32 {sT1}, {sRB}, 2
                      s_add_u32 {sT0}, {sT0}, {sT1}
                      s_cmp_eq_u32 {sW}, 0
                      s_cselect_b32 {sT0}, {sT0}, 0x7f000000
                      v_mov_b32 v{vZ}, {sTAGC}""")
                A(f"buffer_store_dword v{vZ}, v{vFL}, {sWS}, {sT0} offen sc1")
        return f

    def silu_ops(p):
        ac = vACC[p & 1]
        ops = []
        for h in range(0, 8, 2):
            t0, t1 = vS + 4 * ((h >> 1) & 1), vS + 4 * ((h >> 1) & 1) + 2
            z0, z1 = ac + 2 * h, ac + 2 * h + 2
            ops += [(1, f"v_pk_mul_f32 v[{t0}:{t0+1}], v[{z0}:{z0+1}], {sNL2E}"),
                    (1, f"v_pk_mul_f32 v[{t1}:{t1+1}], v[{z1}:{z1+1}], {sNL2E}"),
                    (2, f"v_exp_f32 v{t0}, v{t0}"), (2, f"v_exp_f32 v{t0+1}, v{t0+1}"),
                    (2, f"v_exp_f32 v{t1}, v{t1}"), (2, f"v_exp_f32 v{t1+1}, v{t1+1}"),
                    (1, f"v_pk_add_f32 v[{t0}:{t0+1}], v[{t0}:{t0+1}], 1.0 op_sel_hi:[1,0]"),
                    (1, f"v_pk_add_f32 v[{t1}:{t1+1}], v[{t1}:{t1+1}], 1.0 op_sel_hi:[1,0]"),
                    (2, f"v_rcp_f32 v{t0}, v{t0}"), (2, f"v_rcp_f32 v{t0+1}, v{t0+1}"),
                    (2, f"v_rcp_f32 v{t1}, v{t1}"), (2, f"v_rcp_f32 v{t1+1}, v{t1+1}"),
                    (1, f"v_pk_mul_f32 v[{t0}:{t0+1}], v[{t0}:{t0+1}], v[{z0}:{z0+1}]"),
                    (1, f"v_pk_mul_f32 v[{t1}:{t1+1}], v[{t1}:{t1+1}], v[{z1}:{z1+1}]"),
                    (1, f"v_cvt_pk_bf16_f32 v{vHO+h}, v{t0}, v{t0+1}"),
                    (1, f"v_cvt_pk_bf16_f32 v{vHO+h+1}, v{t1}, v{t1+1}")]
            if h in (2, 6):
                r = h >> 2
                ops.append((1, (f"buffer_store_dwordx4 v[{vHO+4*r}:{vHO+4*r+3}], v{vHS}, {sWS}, {sHB[p]} offen offset:{512*r} sc1", "hout")))
        return ops

    def w2reg(i):
        return (4 * i + 160) % 240

    def w2_items(i):
        it = []
        if i % 4 == 0 and i:
            it.append(f"s_add_u32 {sW2L}, {sW2L}, 4096")
        it.append(f"buffer_load_dwordx4 {ar(w2reg(i),4)}, {vr(vL16)}, {sWS}, {sW2L} offen offset:{1024*(i%4)} sc1")
        return it

    group_sync(0)()
    stamp("g1start")
    synced = {0}
    for n in range(DIST):
        g = (n // 4) // GS
        if g not in synced:
            group_sync(g)(); synced.add(g)
        for r in fr_reads(n):
            A(r)
    anchors = []
    sync_at = {}
    for n in range(120):
        p, k = divmod(n, 40)
        ac = vACC[p & 1]
        f = vFR + 4 * (n % NB)
        grp = [f"v_mfma_f32_32x32x16_bf16 v[{ac}:{ac+15}], v[{f}:{f+3}], {ar(4*k,4)}, " + ("0" if k == 0 else f"v[{ac}:{ac+15}]")]
        m = n + DIST
        if m < 120:
            g = (m // 4) // GS
            if g not in synced:
                grp.append(group_sync(g)); synced.add(g); sync_at[g] = n
            grp += fr_reads(m)
        anchors.append(grp)
    free_at = lambda b: sync_at[b // GS + 2] if (b // GS + 2) in sync_at else None
    dma = []
    for b in range(10, 30):
        e = -1 if b < 20 else free_at(b - 20)
        lat = sync_at[b // GS]
        for it in w1_items(b):
            dma.append(dict(e=max(e, 0), l=lat, it=it))
    pi = O["poll_i"]
    pos = next(i for i, d in enumerate(dma) if d["e"] >= pi) if any(d["e"] >= pi for d in dma) else len(dma)
    pos -= pos % 3
    pl = [f"v_and_b32 v{vPA}, 31, {vr(vLANE)}", f"v_lshlrev_b32 v{vPA}, 2, v{vPA}", f"s_lshl_b32 {sHL}, {sCB}, 8",
          lambda: poll(vPA, sTAGC, sHL, vPO, check=False)]
    dma[pos:pos] = [dict(e=pi, it=x) for x in pl]
    e_h, e_u = free_at(12), free_at(14)
    misc = [f"s_mul_i32 {sT2}, {sW}, {HBP}", f"v_min_u32 v{vGAD}, 23, {vr(vLANE)}",
            f"v_lshlrev_b32 v{vGAD}, 2, v{vGAD}", f"v_mov_b32 v{vZ}, 0", f"v_add_u32 v{vGAD}, {sT2}, v{vGAD}",
            f"v_mov_b32 v{vDD}, 0",
            (f"ds_write_b32 v{vGAD}, v{vZ} offset:{L_HB}", "pad"),
            f"s_add_u32 m0, {sT2}, {L_HB+96}", f"s_lshl_b32 {sT3}, {sCH}, 12"]
    misc += [(f"buffer_load_dwordx4 {vr(vL16)}, {sSK}, {sT3} offen offset:{1024*i} {NT} lds", "hin") for i in range(4)]
    misc += [f"s_lshl_b32 {sT3}, {sCH}, 1", f"buffer_load_short_d16_hi v{vDD}, off, {sD}, {sT3}"]
    misc += [f"v_and_b32 v{vGAD}, 3, {vr(vLANE)}", f"v_lshrrev_b32 v{vHAD}, 4, {vr(vLANE)}",
             f"v_bfe_u32 v{vUAD}, {vr(vLANE)}, 2, 2", f"v_add_u32 v{vYW}, v{vGAD}, v{vHAD}",
             f"v_lshlrev_b32 v{vYW}, 5, v{vYW}", f"v_lshl_add_u32 v{vYW}, v{vUAD}, 3, v{vYW}",
             f"v_sub_u32 v{vGAD}, v{vGAD}, v{vUAD}", f"v_lshlrev_b32 v{vHAD}, 2, v{vHAD}",
             f"v_sub_u32 v{vHAD}, v{vGAD}, v{vHAD}", f"v_add_u32 v{vGAD}, {sT2}, v{vYW}",
             f"s_mul_i32 {sT2}, {sW}, {UBP}", f"s_add_u32 {sT3}, {sT2}, {L_UB+128}",
             f"v_lshlrev_b32 v{vHAD}, 3, v{vHAD}", f"v_add_u32 v{vHAD}, {sT3}, v{vHAD}",
             f"v_lshlrev_b32 v{vYW}, 1, {vr(vLANE)}", f"s_add_u32 {sT3}, {sT2}, {L_UB+32}",
             f"v_add_u32 v{vUAD}, {sT3}, v{vYW}", f"s_lshl_b32 {sT3}, {sW}, 12",
             f"s_add_u32 {sT3}, {sT3}, {L_YS}", f"v_add_u32 v{vYW}, {sT3}, v{vYW}"]
    for x in misc:
        dma.append(dict(e=e_h, it=x))
    pc = max(O["poll_c"], e_u)

    def col_ok():
        poll(vPA, sTAGC, sHL, vPO, issue=False)
        A(f"""s_add_u32 {sT0}, {sHL}, {WS_COLG}
              s_or_b32 {sT1}, {sRB}, {sW}
              s_cmp_eq_u32 {sT1}, 0
              s_cselect_b32 {sT0}, {sT0}, 0x7f000000
              v_mov_b32 v{vPO}, {sTAGC}""")
        A(f"buffer_store_dword v{vPO}, v{vFL}, {sWS}, {sT0} offen sc1")
    misc2 = [col_ok, f"v_and_b32 v{vPA}, 7, {vr(vLANE)}", f"s_mul_i32 {sT2}, {sW}, {UBP}",
             f"v_lshlrev_b32 v{vPA}, 2, v{vPA}", f"v_add_u32 v{vPA}, {sT2}, v{vPA}",
             (f"ds_write_b32 v{vPA}, v{vZ} offset:{L_UB}", "pad"),
             f"s_add_u32 m0, {sT2}, {L_UB+32}", f"s_mul_i32 {sT3}, {sCH}, {TP}", f"s_add_u32 {sT3}, {sT3}, {WS_KVT}"]
    misc2 += [(f"buffer_load_dwordx4 {vr(vL16)}, {sWS}, {sT3} offen offset:{1024*i} sc1 lds", "uin") for i in range(4)]
    misc2 += [f"s_mul_i32 {sW2L}, {sCB}, {48*5120}", f"s_mul_i32 {sT3}, {sW}, {12*5120}",
              f"s_add_u32 {sW2L}, {sW2L}, {sT3}", f"s_add_u32 {sW2L}, {sW2L}, {WS_W2P}"]
    for x in misc2:
        dma.append(dict(e=pc, it=x))
    NW2_G1 = O.get("w2g1", 12)
    for i in range(NW2_G1):
        for x in w2_items(i):
            dma.append(dict(e=min(pc + 8 + 2 * i, 119), it=x))
    sil = []
    for p in range(2):
        for c, x in silu_ops(p):
            sil.append(dict(e=40 * (p + 1) + 2, l=40 * (p + 2), c=c, it=x))
    left = weave2(A, anchors, [dma, sil], O.get("cap1", 3))
    drain(A, left)
    stamp("g1end")

    vG = 114
    vH = 178
    NA = 8
    vCA = 16
    vP2 = [244, 245, 246]
    vP1 = [247, 248, 249]
    vY = [250, 251]
    vU = [252, 253, 254]
    vYO = 96
    vCV = 255
    Hreg = lambda b: vH + 2 * (31 - b)
    rd = []
    for n in range(32):
        rd.append((n, f"ds_read_b64_tr_b16 v[{Hreg(n)}:{Hreg(n)+1}], v{vHAD} offset:{128*n}"))
        if n % 2 == 0:
            for x in (n, n + 1):
                rd.append((n, f"ds_read_b64_tr_b16 v[{vG+2*x}:{vG+2*x+1}], v{vGAD} offset:{L_HB+128*x}"))
    A.wait("hin", "uin", "pad")
    so = silu_ops(2)
    NPRE = 24
    ri = 0
    for i, (c, x) in enumerate(so):
        put_item(A, x)
        if i >= 8 and i % 2 == 0 and ri < NPRE:
            A(rd[ri][1]); ri += 1
    for r in (Hreg(-1), Hreg(-1) + 1, vP2[2], vP1[2], vU[0], vU[1], vU[2], vZ):
        A(f"v_mov_b32 v{r}, 0")
    stamp("silu2")

    vHF = 48
    vL16b, vL16c = 4, 5

    def hload(ph, kk, dst):
        vo = (vL16, vL16b, vL16c)[kk // 4]
        return f"buffer_load_dwordx4 v[{dst}:{dst+3}], v{vo}, {sWS}, {sHL} offen offset:{1024*(kk%4)} sc1"

    def hbase(ph):
        return [f"s_add_u32 {sT0}, {sW}, {1+ph}", f"s_and_b32 {sT0}, {sT0}, 3", f"s_mul_i32 {sT0}, {sT0}, 49152",
                f"s_add_u32 {sHL}, {sT0}, {sHB[0]}"]

    def h_flag():
        A.wait("hout")
        A(f"""s_lshl_b32 {sT0}, {sRB}, 8
              s_lshl_b32 {sT1}, {sCB}, 4
              s_add_u32 {sT0}, {sT0}, {WS_ROWH}
              s_add_u32 {sT1}, {sT1}, {sT0}
              s_lshl_b32 {sT2}, {sW}, 2
              s_add_u32 {sT1}, {sT1}, {sT2}
              v_mov_b32 v{vPO}, {sTAGR}""")
        A(f"buffer_store_dword v{vPO}, v{vFL}, {sWS}, {sT1} offen sc1")

    def row_poll_issue():
        A(f"""v_and_b32 v{vPA}, 31, {vr(vLANE)}
              s_lshl_b32 {sHB[1]}, {sRB}, 8
              v_lshlrev_b32 v{vPA}, 2, v{vPA}
              s_add_u32 {sHB[1]}, {sHB[1]}, {WS_ROWH}""")
        poll(vPA, sTAGR, sHB[1], vPO, check=False)

    vGT = 6
    def row_ok():
        poll(vPA, sTAGR, sHB[1], vPO, issue=False)
        A(f"""s_add_u32 {sT0}, {sHB[1]}, {WS_ROWG - WS_ROWH}
              s_or_b32 {sT1}, {sCB}, {sW}
              s_cmp_eq_u32 {sT1}, 0
              s_cselect_b32 {sT0}, {sT0}, 0x7f000000
              v_mov_b32 v{vPO}, {sTAGR}
              v_add_u32 v{vL16b}, 4096, {vr(vL16)}
              v_add_u32 v{vL16c}, 8192, {vr(vL16)}""")
        A(f"buffer_store_dword v{vPO}, v{vFL}, {sWS}, {sT0} offen sc1")
        A(f"""s_mul_i32 {sHB[0]}, {sRB}, 196608
              s_mul_i32 {sT0}, {sW}, 12288
              s_add_u32 {sHB[0]}, {sHB[0]}, {sT0}
              s_add_u32 {sHB[0]}, {sHB[0]}, {WS_H}
              v_and_b32 v{vPA}, 15, {vr(vLANE)}
              s_lshl_b32 {sT0}, {sRB}, 8
              s_lshl_b32 {sT1}, {sW}, 6
              v_lshlrev_b32 v{vPA}, 2, v{vPA}
              s_add_u32 {sT0}, {sT0}, {sT1}
              s_add_u32 {sT0}, {sT0}, {WS_G}""")
        A(f"buffer_load_dword v{vGT}, v{vPA}, {sWS}, {sT0} offen sc1")
        for x in hbase(0):
            A(x)

    PACE = O["w2pace"]
    common = []
    t = 4
    for i in range(NW2_G1, 60):
        if i == NW2_G1 + O.get("hflag_after", 8):
            common.append(dict(e=t, it=h_flag))
        if i == O.get("rowpoll_at", 52):
            common.append(dict(e=t, it=row_poll_issue))
        for x in w2_items(i):
            common.append(dict(e=t, it=x))
        t += PACE
    t += O.get("rowok_gap", 16)
    common.append(dict(e=t, it=row_ok))
    for kk in range(O["hpre"]):
        t += PACE
        common.append(dict(e=min(t, 270), it=hload(0, kk, vHF + 4 * kk)))

    snapshot_out = len(A.out)
    A(f"s_cmp_ge_u32 {sRB}, 20")
    A.settle()
    A("s_cbranch_scc1 Lnoconv")
    import copy
    saved = (copy.deepcopy(A.q), dict(A.pend), A.nid)
    A.nopt += 1
    A.opt = A.nopt
    A._hidden = []
    optid = A.opt

    def as_common(it):
        def f():
            n0 = {qn: len(A.q[qn]) for qn in A.q}
            ids0 = A.nid
            put_item(A, it)
            for qn in A.q:
                for e in A.q[qn]:
                    if e["id"] > ids0:
                        e["opt"] = 0
        return f

    anchors, last = [], {}
    first = {}
    for n in range(32):
        ac = vCA + 4 * ((n + 4) % NA)
        first[n] = len(anchors)
        for q in range(n // 2 + 1):
            b = n - 2 * q
            anchors.append([f"v_mfma_f32_16x16x32_bf16 v[{ac}:{ac+3}], v[{vG+4*q}:{vG+4*q+3}], v[{Hreg(b)}:{Hreg(b)+3}], " +
                            ("0" if q == 0 else f"v[{ac}:{ac+3}]")])
        last[n] = len(anchors) - 1
    NAN = len(anchors)
    rds = [dict(e=-1, l=first[n], it=x) for n, x in rd[ri:]]
    for d in rds:
        d["e"] = 0 if d["l"] > 0 else -1
    acc = lambda n, r: vCA + 4 * ((n + 4) % NA) + r
    DP = "row_mask:0xf bank_mask:0xf"
    comb = []
    uread = lambda n: f"ds_read_u16_d16_hi v{vU[n%3]}, v{vUAD} offset:{128*n}"
    comb.append(dict(e=0, it=uread(0)))
    comb.append(dict(e=0, it=uread(1)))
    for s in range(32 + 3):
        a, b, c = s, s - 1, s - 2
        e = min(last[min(s, 31)] + 3, NAN + 5)
        l = first[c + NA] if 0 <= c + NA < 32 and c >= 0 else 1 << 30
        it = []
        d3p = (lambda n: acc(n - 1, 3) if n > 0 else vZ)
        if a < 32:
            it.append(f"v_add_f32_dpp v{vP2[a%3]}, v{d3p(a)}, v{acc(a,2)} wave_ror:1 {DP}")
        if 0 <= b < 32:
            it.append(f"v_add_f32_dpp v{vP1[b%3]}, v{vP2[(b-1)%3]}, v{acc(b,1)} wave_ror:1 {DP}")
        if 0 <= c < 32:
            it.append(f"v_add_f32_dpp v{vY[c%2]}, v{vP1[(c-1)%3]}, v{acc(c,0)} wave_ror:1 {DP}")
        if a < 32:
            it.append(f"v_add_f32_dpp v{vP2[a%3]}, v{acc(a,3)}, v{acc(a,2)} wave_shr:1 {DP}")
        if 0 <= b < 32:
            it.append(f"v_add_f32_dpp v{vP1[b%3]}, v{vP2[b%3]}, v{acc(b,1)} wave_shr:1 {DP}")
        if 0 <= c < 32:
            it.append(f"v_add_f32_dpp v{vY[c%2]}, v{vP1[c%3]}, v{acc(c,0)} wave_shr:1 {DP}")
        if a < 32:
            it.append(f"v_fmac_f32 v{acc(a,0)}, v{vU[a%3]}, v{vDD}")
        if a + 2 < 32:
            it.append(uread(a + 2))
        if 0 <= c < 32 and c % 2 == 1:
            it.append(f"v_cvt_pk_bf16_f32 v{vCV}, v{vY[0]}, v{vY[1]}")
            it.append((f"ds_write_b16 v{vYW}, v{vCV} offset:{128*(c-1)}", "ys"))
            it.append((f"ds_write_b16_d16_hi v{vYW}, v{vCV} offset:{128*c}", "ys"))
            if c % 8 == 7:
                i = c // 8
                if i == 0:
                    it += [f"s_lshl_b32 {sT3}, {sW}, 12", f"v_add_u32 v113, {sT3}, {vr(vL16)}",
                           f"s_mul_i32 {sCH}, {sCH}, {TP}", f"s_add_u32 {sCH}, {sCH}, {WS_YT}"]
                it.append(f"ds_read_b128 v[{vYO+4*(i&1)}:{vYO+4*(i&1)+3}], v113 offset:{L_YS+1024*i}")
        dd = s - 3
        if 0 <= dd < 32 and dd % 8 == 7:
            i = dd // 8
            it.append((f"buffer_store_dwordx4 v[{vYO+4*(i&1)}:{vYO+4*(i&1)+3}], {vr(vL16)}, {sWS}, {sCH} offen offset:{1024*i} sc1", "yout"))
        for x in it:
            comb.append(dict(e=e, l=l, it=x))
    com2 = [dict(e=d["e"], it=as_common(d["it"])) for d in common]
    left = weave2(A, anchors, [com2, rds, comb], 2)
    drain(A, [left[1], left[2], left[0]])
    A.wait("yout")
    A(f"""s_lshl_b32 {sT0}, {sCB}, 9
          s_lshl_b32 {sT1}, {sRB}, 4
          s_add_u32 {sT0}, {sT0}, {sT1}
          s_lshl_b32 {sT1}, {sW}, 2
          s_add_u32 {sT0}, {sT0}, {sT1}
          s_add_u32 {sT0}, {sT0}, {WS_COLCV}
          v_mov_b32 v{vPO}, {sTAGC}""")
    A(f"buffer_store_dword v{vPO}, v{vFL}, {sWS}, {sT0} offen sc1")
    A.settle()
    A("s_branch Ljoin")
    for qn in A.q:
        back = [h for h in A._hidden if h[0] == qn]
        A.q[qn] = [h[1] for h in back] + A.q[qn]
        for h in back:
            for r, v in h[2].items():
                A.pend.setdefault(r, v)
    A.opt = 0
    stateA = (A.q, A.pend, A.nid)
    A.label("Lnoconv")
    A.q, A.pend, A.nid = saved[0], saved[1], stateA[2]
    for d in common:
        put_item(A, d["it"])
    A.settle()
    seqB = [e["text"] for e in A.q["vm"]]
    seqA = [e["text"] for e in stateA[0]["vm"] if e["opt"] == 0]
    assert seqA[-len(seqB):] == seqB, (seqA, seqB)
    nid = A.nid
    A.q, A.pend, A.nid = stateA[0], stateA[1], nid
    A.label("Ljoin")
    stamp("conv")

    HF = [48, 114, 162, 210 - 0]
    HF = [48, 112, 160, 208]
    vA2 = [8, 28]
    vFL2, vRW = 7, 96
    vGQ = 48
    vOMG = 68
    vYR = 70
    vTM = 80
    vRD = 112
    vYA, vOA, vOB, vRR = 97, 98, 99, 100
    anchors = []
    for ph in range(4):
        for kk in range(12):
            for nt in range(5):
                ac = vA2[ph & 1] + 4 * nt
                anchors.append([f"v_mfma_f32_16x16x32_bf16 v[{ac}:{ac+3}], {ar(w2reg(kk*5+nt),4)}, v[{HF[ph]+4*kk}:{HF[ph]+4*kk+3}], " +
                                ("0" if kk == 0 else f"v[{ac}:{ac+3}]")])
    pre = []
    for kk in range(O["hpre"], 12):
        pre.append(hload(0, kk, HF[0] + 4 * kk))
    for x in pre:
        A(x)
    ld = []
    t = -1
    H0 = O.get("hburst", 12)
    cnt = 0
    for ph in range(1, 4):
        for x in hbase(ph):
            ld.append(dict(e=t, it=x))
        for kk in range(12):
            ld.append(dict(e=t, l=60 * ph + 5 * kk, it=hload(ph, kk, HF[ph] + 4 * kk)))
            cnt += 1
            if cnt >= H0:
                t += O.get("hpace", 4)
    while ld and ld[0]["e"] < 0:
        put_item(A, ld.pop(0)["it"])
    ty = max(t, 0) + 2

    def y_issue():
        A(f"""v_min_u32 v{vPA}, 39, {vr(vLANE)}
              s_lshl_b32 {sHB[1]}, {sCB}, 9
              v_lshlrev_b32 v{vPA}, 3, v{vPA}
              s_add_u32 {sHB[1]}, {sHB[1]}, {WS_COLCV}""")
        poll(vPA, sTAGC, sHB[1], vPO, n=2, check=False)

    def y_dma():
        poll(vPA, sTAGC, sHB[1], vPO, n=2, issue=False)
        A(f"""s_add_u32 {sT0}, {sKVO}, {WS_YT}
              s_add_u32 m0, {sW1K}, {L_YT}
              s_add_u32 {sT1}, {sKVO}, {WS_YT + 32*TP}""")
        A(f"buffer_load_dwordx4 {vr(vT)}, {sWS}, {sT0} offen sc1 lds", "yin")
        A(f"""s_add_u32 m0, {sW1K}, {L_YT+4096}
              s_add_u32 {sT0}, {sKVO}, {WS_YT + 64*TP}""")
        A(f"buffer_load_dwordx4 {vr(vT)}, {sWS}, {sT1} offen sc1 lds", "yin")
        A(f"s_add_u32 m0, {sW1K}, {L_YT+8192}")
        A(f"s_cmp_ge_u32 {sW}, 2")
        A.begin_opt("s_cbranch_scc1", settle=False)
        A(f"buffer_load_dwordx4 {vr(vT)}, {sWS}, {sT0} offen sc1 lds", "yin")
        A.end_opt()
    ld.append(dict(e=O.get("ypoll_i", ty), it=y_issue))
    ld.append(dict(e=O.get("ypoll_c", 150), it=y_dma))

    red = []
    for ph in range(3):
        e = 60 * (ph + 1) + 2
        its = [f"s_add_u32 {sT2}, {sW}, {1+ph}", f"s_and_b32 {sT2}, {sT2}, 3", f"s_mul_i32 {sT2}, {sT2}, 15360",
               f"s_add_u32 {sT2}, {sT2}, {L_RED + 5120*ph}", f"v_add_u32 v{vRW}, {sT2}, {vr(vL16)}"]
        for x in its:
            red.append(dict(e=e - 8, l=60 * (ph + 2), it=x))
        for nt in range(5):
            ac = vA2[ph & 1] + 4 * nt
            red.append(dict(e=e, l=60 * (ph + 2), it=(f"ds_write_b128 v{vRW}, v[{ac}:{ac+3}] offset:{1024*nt}", "red")))
        if ph == 0:
            its = [f"v_sub_f32 v{vOMG}, 1.0, v{vGT}"]
            for i in range(10):
                its += [f"v_accvgpr_read_b32 v{vTM}, a{240+i}", f"v_lshlrev_b32 v{vGQ+2*i}, 16, v{vTM}",
                        f"v_and_b32 v{vGQ+2*i+1}, 0xffff0000, v{vTM}",
                        f"v_pk_mul_f32 v[{vGQ+2*i}:{vGQ+2*i+1}], v[{vGQ+2*i}:{vGQ+2*i+1}], v[{vGT}:{vGT+1}] op_sel_hi:[1,0]"]
            its += [f"v_lshrrev_b32 v{vTM}, 4, {vr(vLANE)}", f"v_bfe_u32 v{vTM+1}, {vr(vLANE)}, 2, 2",
                    f"v_and_b32 v{vTM+2}, 3, {vr(vLANE)}", f"v_lshlrev_b32 v{vTM+1}, 7, v{vTM+1}",
                    f"v_lshl_add_u32 v{vTM+1}, v{vTM+2}, 3, v{vTM+1}", f"s_lshl_b32 {sT3}, {sW}, 5",
                    f"s_add_u32 {sT3}, {sT3}, {L_YT}", f"v_add_u32 v{vTM+1}, {sT3}, v{vTM+1}",
                    f"v_lshl_add_u32 v{vYA}, v{vTM}, 10, v{vTM+1}", f"v_lshl_add_u32 v101, v{vTM}, 9, v{vTM+1}",
                    f"v_and_b32 v{vTM+2}, 15, {vr(vLANE)}", f"v_mul_u32_u24 v{vTM+2}, 1280, v{vTM+2}",
                    f"v_lshl_add_u32 v{vOA}, v{vTM}, 4, v{vTM+2}", f"v_lshl_add_u32 v{vOB}, v{vTM}, 3, v{vTM+2}",
                    f"s_mul_i32 {sT3}, {sW}, 20480", f"s_add_u32 {sROWOFF}, {sROWOFF}, {sT3}",
                    f"s_mul_i32 {sT3}, {sW}, 15360", f"s_add_u32 {sT3}, {sT3}, {L_RED}",
                    f"v_add_u32 v{vRR}, {sT3}, {vr(vL16)}"]
            for x in its:
                red.append(dict(e=e, it=x))

    def sync2():
        A.wait("red", "yin")
        A("s_barrier")
    e = O.get("sync2", 190)
    red.append(dict(e=e, it=sync2))
    for nt, (va, off) in enumerate(((vYA, 0), (vYA, 512), (vYA, 4096), (vYA, 4608), (101, 8192))):
        red.append(dict(e=e, it=f"ds_read_b64_tr_b16 v[{vYR+2*nt}:{vYR+2*nt+1}], v{va} offset:{off}"))
    for nt in range(5):
        for p in range(3):
            d = vRD + 20 * p + 4 * nt
            red.append(dict(e=e, it=f"ds_read_b128 v[{d}:{d+3}], v{vRR} offset:{5120*p+1024*nt}"))
    for i in range(10):
        t0 = vTM + 2 * (i & 1)
        g, r = vGQ + 2 * i, vRD + 2 * i
        for x in (f"v_lshlrev_b32 v{t0}, 16, v{vYR+i}", f"v_and_b32 v{t0+1}, 0xffff0000, v{vYR+i}",
                  f"v_pk_add_f32 v[{r}:{r+1}], v[{r}:{r+1}], v[{r+20}:{r+21}]",
                  f"v_pk_mul_f32 v[{g}:{g+1}], v[{g}:{g+1}], v[{t0}:{t0+1}]",
                  f"v_pk_add_f32 v[{r}:{r+1}], v[{r}:{r+1}], v[{r+40}:{r+41}]",
                  f"v_pk_fma_f32 v[{g}:{g+1}], v[{r}:{r+1}], v[{vOMG}:{vOMG+1}], v[{g}:{g+1}] op_sel_hi:[1,0,1]"):
            red.append(dict(e=e, it=x))
    left = weave2(A, anchors, [ld, red], 2)
    drain(A, left)
    for i in range(10):
        g, a = vGQ + 2 * i, vA2[1] + 2 * i
        A(f"v_pk_fma_f32 v[{g}:{g+1}], v[{a}:{a+1}], v[{vOMG}:{vOMG+1}], v[{g}:{g+1}] op_sel_hi:[1,0,1]")
        A(f"v_cvt_pk_bf16_f32 v{vYR+i}, v{g}, v{g+1}")
        if i == 3:
            A(f"buffer_store_dwordx4 v[{vYR}:{vYR+3}], v{vOA}, {sOUT}, {sROWOFF} offen")
        if i == 7:
            A(f"buffer_store_dwordx4 v[{vYR+4}:{vYR+7}], v{vOA}, {sOUT}, {sROWOFF} offen offset:64")
    A(f"buffer_store_dwordx2 v[{vYR+8}:{vYR+9}], v{vOB}, {sOUT}, {sROWOFF} offen offset:128")
    if O["stamps"]:
        A.waitall()
        stamp("end")
        A("s_memrealtime s[52:53]")
        A("s_waitcnt lgkmcnt(0)")
        A("v_mov_b32 v8, 0")
        for k in range(nst[0]):
            A(f"v_writelane_b32 v8, s{STR[k]}, {k}")
        A(f"v_writelane_b32 v8, {sRB}, 12")
        A("v_writelane_b32 v8, s100, 13")
        A("v_writelane_b32 v8, s52, 14")
        A(f"v_writelane_b32 v8, {sSPIN}, 15")
        A.raw("; STAMPS " + " ".join(names))
        A(f"""s_lshl_b32 s54, s2, 2
              s_add_u32 s54, s54, {sW}
              s_lshl_b32 s54, s54, 6
              s_add_u32 s54, s54, {WS_DBG}
              v_lshlrev_b32 v9, 2, {vr(vLANE)}
              v_cmp_gt_u32 vcc, 16, {vr(vLANE)}
              v_mov_b32 v10, 0x7ff00000
              v_cndmask_b32 v9, v10, v9, vcc""")
        A(f"buffer_store_dword v8, v9, {sWS}, s54 offen")
    if O.get("dbg", 0):
        A("s_load_dwordx2 s[8:9], s[0:1], 88")
        A("s_mov_b32 s10, 256")
        A("s_mov_b32 s11, 0x20000")
        A("s_getreg_b32 s55, hwreg(HW_REG_XCC_ID)")
        A("s_waitcnt lgkmcnt(0)")
        A("s_not_b32 s100, s100")
        A("v_mov_b32 v10, s100")
        A("v_mov_b32 v11, s52")
        A("v_mov_b32 v12, 0")
        A("s_mov_b64 exec, 1")
        A("buffer_atomic_umax v10, v12, s[8:11], 0 offen sc1")
        A("buffer_atomic_umax v11, v12, s[8:11], 0 offen offset:4 sc1")
        for k in range(1, nst[0]):
            A(f"s_sub_u32 s54, s{STR[k]}, s{STR[0]}")
            A(f"v_mov_b32 v{12+k}, s54")
            A(f"buffer_atomic_umax v{12+k}, v12, s[8:11], 0 offen offset:{4+4*k} sc1")
        A("s_and_b32 s55, s55, 15")
        A("s_lshl_b32 s54, s2, 2")
        A("s_lshl_b32 s53, s55, s54")
        A("s_cmp_lt_u32 s2, 8")
        A("s_cselect_b32 s53, s53, 0")
        A("v_mov_b32 v30, s53")
        A("buffer_atomic_or v30, v12, s[8:11], 0 offen offset:56 sc1")
        A("s_lshr_b32 s54, s2, 1")
        A("s_lshl_b32 s53, s55, s54")
        A("s_and_b32 s54, s2, 0xc7")
        A("s_cmp_eq_u32 s54, 0")
        A("s_cselect_b32 s53, s53, 0")
        A("v_mov_b32 v31, s53")
        A("buffer_atomic_or v31, v12, s[8:11], 0 offen offset:60 sc1")
    if O.get("padto", 0):
        A.waitall()
        A.label("Lpad")
        A.raw("  s_memrealtime s[52:53]")
        A.raw("  s_waitcnt lgkmcnt(0)")
        A.raw("  s_sub_u32 s52, s52, s100")
        A.raw(f"  s_cmp_lt_u32 s52, {O['padto']}")
        A.raw("  s_cbranch_scc1 Lpad")
    A.label("Lend")
    A("s_endpgm")

    head = f"""; Fused gated mix: one persistent launch, 256 workgroups (32 row blocks x 8 column blocks).
; @launch grid=(256,1,1) block=(256,1,1) lds={LDS}
.amdgcn_target "amdgcn-amd-amdhsa--gfx950"
.text
.globl {KN}_kernel
.p2align 8
.type {KN}_kernel,@function
{KN}_kernel:
"""
    tail = f"""
.section .rodata,"a"
.p2align 6
.amdhsa_kernel {KN}_kernel
  .amdhsa_next_free_vgpr 512
  .amdhsa_next_free_sgpr 102
  .amdhsa_accum_offset 256
  .amdhsa_group_segment_fixed_size 0
  .amdhsa_kernarg_size 104
  .amdhsa_user_sgpr_count 2
  .amdhsa_user_sgpr_kernarg_segment_ptr 1
  .amdhsa_system_sgpr_workgroup_id_x 1
.end_amdhsa_kernel
"""
    return head + A.text() + tail, A.stats


if __name__ == "__main__":
    out = sys.argv[1]
    kw = {}
    for a in sys.argv[2:]:
        k, v = a.split("=")
        kw[k] = int(v) if v.lstrip("-").isdigit() else v
    s, st = gen(**kw)
    open(out, "w").write(s)
    print(out, st)
```

```python
import sys, os
sys.path.insert(0, os.path.dirname(os.path.abspath(__file__)))
from asmlib import *

KN = "gated_mix__ssm_conv_h3__dense_activation_silu__prompt"

DEF = dict(stamps=0, mapping="B", rot=0, gs=2, dist=5, p0flag=8, poll_i=60, poll_c=76, w2pace=4, hpre=12,
           spin=200000, early_w1=6)


def gen(**kw):
    O = dict(DEF)
    O.update(kw)
    A = Asm()
    GS, DIST = O["gs"], O["dist"]
    NT = "nt" if O.get("nt", 0) else ""
    NTX = "nt" if O.get("ntx", 0) else ""

    WS_COLP0, WS_COLCV, WS_COLG, WS_ROWH, WS_ROWG, WS_G = 0x0000, 0x1000, 0x2000, 0x3000, 0x5000, 0x8000
    WS_DBG = 0x20000
    WS_KVT, WS_YT, WS_W2P, WS_H = 0x100000, 0x400000, 0x700000, 0x900000
    WS_SIZE = 0x1000000
    TP = 4224
    L_S = 81920
    L_K, L_V, L_W2 = 131072, 142336, 152576
    L_BO = 65536
    L_HB, L_UB, L_YT, L_YS, L_RED = 0, 16896, 33792, 45056, 69632
    HBP, UBP = 4224, 4128
    LDS = 163840
    sQ, sK, sV, sSH, sSK, sD, sW1, sW2, sGW, sOUT, sWS = [f"s[{8+4*i}:{11+4*i}]" for i in range(11)]
    srd = lambda n: int(n[2:].split(":")[0])
    sW, sRB, sCB, sROT = "s3", "s4", "s5", "s6"
    sT0, sT1, sT2, sT3 = "s52", "s53", "s54", "s55"
    sROWOFF = "s56"
    sW1K = "s57"
    sW2K = "s58"
    sTAGC, sTAGR = "s59", "s60"
    sCH = "s61"
    sNL2E = "s[62:63]"
    sJ = [f"s{64+i}" for i in range(10)]
    sHB = ["s74", "s75", "s76"]
    sKVO = "s77"
    sW2L = "s78"
    sSPIN = "s79"
    sHL = "s80"
    sSTAMP = 82

    nst = [0]
    names = []
    STR = [82, 84, 86, 88, 90, 92, 94, 96, 98, 64, 66, 68]
    SKIPST = O.get('nostamp', 'iss0+pre+karg+tiles').split('+')

    def stamp(name):
        if O.get("skfrom", "") == name:
            A.skip = O["skip"]
        if O.get("skto", "") == name:
            A.skip = None
        if O.get("padat", "") == name:
            A("s_memrealtime s[100:101]")
        if O["stamps"] and name not in SKIPST:
            r = STR[nst[0]]
            A(f"s_memtime s[{r}:{r+1}]")
            nst[0] += 1
            names.append(name)

    def vr(a, n=1):
        return f"v{a}" if n == 1 else f"v[{a}:{a+n-1}]"

    def ar(a, n=1):
        return f"a{a}" if n == 1 else f"a[{a}:{a+n-1}]"

    vTID, vLANE, vL16, vT = 0, 1, 2, 3
    vW1 = [4, 5, 6, 7, 8, 9]
    vTR = [10, 11, 12]
    vHS = 13
    vFL = 14
    vPO = 15

    def poll(voff, tag, soff, vres=None, n=1, issue=True, check=True):
        ld = (f"buffer_load_dword {vr(vres)}, {vr(voff)}, {sWS}, {soff} offen sc1" if n == 1 else
              f"buffer_load_dwordx2 {vr(vres,2)}, {vr(voff)}, {sWS}, {soff} offen sc1")
        if issue:
            A(ld)
        if check:
            lo, dn = A.newlabel("Lpoll"), A.newlabel("Lgot")

            def cmp():
                A(f"v_cmp_ne_u32 vcc, {tag}, {vr(vres)}")
                if n == 2:
                    A(f"v_cmp_ne_u32 s[52:53], {tag}, {vr(vres+1)}")
                    A("s_or_b64 vcc, vcc, s[52:53]")
            cmp()
            A(f"s_cbranch_vccz {dn}" if n == 1 else f"s_cbranch_scc0 {dn}")
            A.label(lo)
            A.raw("  s_sleep 1")
            A.raw("  " + ld)
            A.raw("  s_waitcnt vmcnt(0)")
            A.raw(f"  s_sub_u32 {sSPIN}, {sSPIN}, 1")
            A.raw(f"  s_cbranch_scc1 Lend")
            A.raw(f"  v_cmp_ne_u32 vcc, {tag}, {vr(vres)}")
            if n == 2:
                A.raw(f"  v_cmp_ne_u32 s[52:53], {tag}, {vr(vres+1)}")
                A.raw("  s_or_b64 vcc, vcc, s[52:53]")
            A.raw(f"  s_cbranch_vccnz {lo}" if n == 1 else f"  s_cbranch_scc1 {lo}")
            A.label(dn)

    A("s_cmp_ge_u32 s2, 256")
    A("s_cbranch_scc1 Lend")
    for s, off in ((sW2, 64), (sK, 8), (sV, 16), (sQ, 0), (sW1, 56), (sWS, 96), (sSH, 24), (sGW, 72), (sSK, 32),
                   (sD, 40), (sOUT, 80)):
        A(f"s_load_dwordx2 s[{srd(s)}:{srd(s)+1}], s[0:1], {off}")
    if O["stamps"] or O.get("padto", 0):
        A("s_memrealtime s[100:101]")
    stamp("start")
    A(f"v_lshrrev_b32 v20, 6, v0")
    A(f"v_and_b32 {vr(vLANE)}, 63, v0")
    A(f"v_readfirstlane_b32 {sW}, v20")
    if O["mapping"] == "A":
        A(f"""s_lshr_b32 {sT0}, s2, 3
              s_and_b32 {sCB}, {sT0}, 7
              s_lshr_b32 {sT0}, {sT0}, 3
              s_and_b32 {sRB}, s2, 7
              s_lshl_b32 {sRB}, {sRB}, 2
              s_add_u32 {sRB}, {sRB}, {sT0}""")
    else:
        A(f"""s_lshr_b32 {sT0}, s2, 3
              s_and_b32 {sCB}, {sT0}, 3
              s_and_b32 {sT1}, s2, 1
              s_lshl_b32 {sT1}, {sT1}, 2
              s_add_u32 {sCB}, {sCB}, {sT1}
              s_bfe_u32 {sRB}, s2, 0x20001""")
        if O.get("rbint", 1):
            A(f"""s_and_b32 {sT0}, {sT0}, 28
                  s_add_u32 {sRB}, {sRB}, {sT0}""")
        else:
            A(f"""s_lshr_b32 {sT0}, {sT0}, 2
                  s_lshl_b32 {sRB}, {sRB}, 3
                  s_add_u32 {sRB}, {sRB}, {sT0}""")
    for s, size in ((sQ, 2621440), (sK, 2621440), (sV, 2621440), (sSH, 5120), (sSK, 2621440), (sD, 1280),
                    (sW1, 1966080), (sW2, 1966080), (sGW, 1280), (sOUT, 2621440), (sWS, WS_SIZE)):
        A(f"s_mov_b32 s{srd(s)+2}, {size}")
        A(f"s_mov_b32 s{srd(s)+3}, 0x20000")
    A(f"""s_mul_i32 {sROWOFF}, {sRB}, 81920
          s_mul_i32 {sT0}, {sCB}, 160
          s_add_u32 {sROWOFF}, {sROWOFF}, {sT0}
          s_lshl_b32 {sW1K}, {sW}, 10
          s_lshl_b32 {sW2K}, {sW}, 11
          s_movk_i32 {sT1}, 6554
          s_movk_i32 {sT2}, 1120
          s_sub_u32 {sT3}, {sROWOFF}, 5120""")
    for n in range(3):
        A(f"v_add_u32 v26, {256*n}, v0") if n else A("v_mov_b32 v26, v0")
        A(f"""v_mul_u32_u24 v27, {sT1}, v26
              v_lshrrev_b32 v27, 16, v27
              v_lshlrev_b32 v26, 4, v26
              v_mad_u32_u24 v{20+n}, v27, {sT2}, v26
              v_add_u32 v{23+n}, {sT3}, v{20+n}""")
    A(f"v_lshlrev_b32 {vr(vL16)}, 4, {vr(vLANE)}")
    R = O["rot"]
    if R == 1:
        A(f"""s_mul_i32 {sT0}, {sRB}, 3
              s_add_u32 {sT0}, {sT0}, {sCB}""")
    elif R == 2:
        A(f"s_lshr_b32 {sT0}, s2, 5")
    elif R == 3:
        A(f"s_and_b32 {sT0}, s2, 7")
    elif R == 4:
        A(f"""s_lshr_b32 {sT0}, s2, 5
              s_and_b32 {sT1}, s2, 7
              s_add_u32 {sT0}, {sT0}, {sT1}""")
    elif R == 5:
        A(f"""s_bfe_u32 {sT0}, s2, 0x10005
              s_mul_i32 {sT0}, {sT0}, 5""")
    if R:
        A(f"""s_mul_i32 {sT1}, {sT0}, 6554
              s_lshr_b32 {sT1}, {sT1}, 16
              s_mul_i32 {sT1}, {sT1}, 10
              s_sub_u32 {sROT}, {sT0}, {sT1}""")
    else:
        A(f"s_mov_b32 {sROT}, 0")
    vX0, vX1 = 114, 115
    sXO, sXE = "s81", "s7"
    A(f"""v_lshrrev_b32 v26, 3, {vr(vLANE)}
          v_lshrrev_b32 v27, 4, {vr(vLANE)}
          v_and_b32 v38, 7, {vr(vLANE)}
          v_xor_b32 v39, v38, v27
          s_movk_i32 {sT0}, 1280
          s_mul_i32 {sT1}, {sW}, 20480
          v_lshlrev_b32 v39, 4, v39
          v_mad_u32_u24 v{vX0}, v26, {sT0}, v39
          v_add_u32 v{vX0}, {sT1}, v{vX0}
          v_xor_b32 v{vX1}, 64, v{vX0}
          v_add_u32 v{vX1}, {8*1280-1024}, v{vX1}
          s_mul_i32 {sXE}, {sRB}, 81920
          s_lshl_b32 {sXO}, {sROT}, 7
          s_add_u32 {sXO}, {sXO}, {sXE}
          s_add_u32 {sXE}, {sXE}, 1280""")
    A(f"""v_and_b32 v27, 1, v27
          v_lshlrev_b32 v27, 2, v27
          v_xor_b32 v39, v38, v27
          v_lshlrev_b32 v39, 4, v39
          s_movk_i32 {sT0}, 3072
          s_mul_i32 {sT1}, {sW}, 49152
          v_mad_u32_u24 v{vW1[0]}, v26, {sT0}, v39
          v_add_u32 v{vW1[0]}, {sT1}, v{vW1[0]}
          v_add_u32 v{vW1[1]}, {8*3072-1024}, v{vW1[0]}
          s_mul_i32 {sT0}, {sCB}, 384
          s_mul_i32 {sJ[0]}, {sROT}, 196608
          s_add_u32 {sJ[0]}, {sJ[0]}, {sT0}""")
    stamp("pre")
    A("s_waitcnt lgkmcnt(0)")
    stamp("karg")

    def slot(b):
        return L_S + 8192 * (b % 10)

    def w1_items(b):
        p, j = divmod(b, 10)
        return [f"s_add_u32 m0, {sW2K}, {slot(b)}",
                (f"buffer_load_dwordx4 v{vW1[2*p]}, {sW1}, {sJ[j]} offen lds", f"w1_{b}"),
                (f"buffer_load_dwordx4 v{vW1[2*p+1]}, {sW1}, {sJ[j]} offen offset:1024 lds", f"w1_{b}")]

    def x_items(j):
        it = [f"s_add_u32 m0, {sW2K}, {8192*j}"]
        if j:
            it = [f"s_add_u32 {sXO}, {sXO}, 128", f"s_cmp_ge_u32 {sXO}, {sXE}", f"s_cselect_b32 m0, 1280, 0",
                  f"s_sub_u32 {sXO}, {sXO}, m0"] + it
        it = ["\n".join(it)]
        it += [(f"buffer_load_dwordx4 v{vX0}, {sQ}, {sXO} offen {NTX} lds", f"w1_{j}"),
               (f"buffer_load_dwordx4 v{vX1}, {sQ}, {sXO} offen offset:1024 {NTX} lds", f"w1_{j}")]
        return it

    def pair(j):
        for it in x_items(j) + w1_items(j):
            put_item(A, it)

    def tile_dma(n, which):
        for s, reg, vo, so in which:
            A(f"s_add_u32 m0, {sW1K}, {reg + 4096*n}")
            A(f"buffer_load_dwordx4 v{vo+n}, {s}, {so} offen {NT} lds", "p0in")
    W2T, KT, VT = (sW2, L_W2, 20, sROWOFF), (sK, L_K, 23, "0"), (sV, L_V, 20, sROWOFF)
    PF = O.get("pairfirst", 0)
    if PF:
        pair(0)
    tile_dma(0, [W2T, KT, VT])
    tile_dma(1, [W2T, KT, VT])
    A(f"s_cmp_ge_u32 {sW}, 3")
    A.begin_opt("s_cbranch_scc1", settle=False)
    tile_dma(2, [KT])
    A.end_opt()
    A(f"s_cmp_ge_u32 {sW}, 2")
    A.begin_opt("s_cbranch_scc1", settle=False)
    tile_dma(2, [W2T, VT])
    A.end_opt()

    stamp("tiles")
    vCT, vI16, vR, vCHL = 28, 29, 30, 31
    A(f"""v_lshrrev_b32 v26, 4, v0
          v_mul_u32_u24 v27, 52, v26
          v_lshrrev_b32 v27, 8, v27
          v_mul_u32_u24 v{vR}, 5, v27
          v_sub_u32 v{vCT}, v26, v{vR}
          v_mul_u32_u24 v{vR}, 24, v27
          v_min_u32 v{vR}, 40, v{vR}
          v_and_b32 v{vI16}, 15, v0
          v_lshl_add_u32 v{vCHL}, v{vCT}, 4, v{vI16}
          v_lshlrev_b32 v26, 3, v{vCHL}
          s_mul_i32 {sT0}, {sCB}, 640""")
    vSH = 168
    A(f"buffer_load_dwordx2 v[{vSH}:{vSH+1}], v26, {sSH}, {sT0} offen", "p0in")
    if not PF:
        pair(0)
    stamp("iss0")

    A(f"""v_add_u32 v{vW1[2]}, 128, v{vW1[0]}
          v_add_u32 v{vW1[3]}, 128, v{vW1[1]}
          v_add_u32 v{vW1[4]}, 256, v{vW1[0]}
          v_add_u32 v{vW1[5]}, 256, v{vW1[1]}""")
    for j in range(1, 10):
        A(f"""s_add_u32 {sJ[j]}, {sJ[j-1]}, 196608
              s_cmp_ge_u32 {sJ[j]}, 1966080
              s_cselect_b32 {sT0}, 1966080, 0
              s_sub_u32 {sJ[j]}, {sJ[j]}, {sT0}""")
    vGW = 130
    vGWA = 154
    A(f"""v_bfe_u32 v52, {vr(vLANE)}, 3, 2
          v_add_u32 v53, {sROT}, v52""")
    for n in range(3):
        A(f"""v_add_u32 v54, {4*n}, v53
              v_subrev_u32 v55, 10, v54
              v_min_u32 v54, v54, v55
              v_lshlrev_b32 v54, 7, v54
              v_lshl_add_u32 v{vGWA+n}, v38, 4, v54""")
        if n == 2:
            A(f"""v_lshrrev_b32 v55, 1, v52
                  v_lshl_add_u32 v{vGWA+n}, v55, 16, v{vGWA+n}""")
    vKA, vBW, vBR, vRA, vRB_ = 158, 159, 160, 161, 162
    A(f"""v_lshrrev_b32 v26, 2, v{vI16}
          v_add_u32 v26, v26, v{vR}
          v_mul_u32_u24 v26, 160, v26
          v_and_b32 v27, 3, v0
          v_lshl_add_u32 v26, v27, 3, v26
          v_lshl_add_u32 v26, v{vCT}, 5, v26
          v_add_u32 v{vKA}, {L_K}, v26
          v_mul_u32_u24 v26, 144, v{vCHL}
          v_lshl_add_u32 v26, v{vR}, 1, v26
          v_add_u32 v{vBW}, {L_BO}, v26
          v_lshrrev_b32 v26, 3, v0
          v_mul_u32_u24 v54, 144, v26
          v_lshl_add_u32 v54, v38, 4, v54
          v_add_u32 v{vBR}, {L_BO}, v54
          v_mul_u32_u24 v54, {TP}, v26
          v_lshl_add_u32 {vr(vT)}, v38, 4, v54""")
    A(f"""v_lshrrev_b32 v26, 5, {vr(vLANE)}
          v_lshlrev_b32 v26, 4, v26
          v_bfe_u32 v54, {vr(vLANE)}, 2, 3
          v_add_u32 v26, v26, v54
          v_mul_u32_u24 v26, 160, v26
          s_and_b32 {sT0}, {sW}, 1
          s_mul_i32 {sT0}, {sT0}, 5120
          s_add_u32 {sT0}, {sT0}, {L_W2}
          s_lshr_b32 {sT1}, {sW}, 1
          s_lshl_b32 {sT1}, {sT1}, 6
          v_add_u32 v26, {sT0}, v26
          v_lshl_add_u32 v{vRB_}, v27, 3, v26
          v_lshl_add_u32 v{vRA}, v27, 4, v26
          v_add_u32 v{vRA}, {sT1}, v{vRA}""")
    A(f"""v_lshrrev_b32 v26, 5, {vr(vLANE)}
          v_lshlrev_b32 v26, 10, v26
          v_bfe_u32 v54, {vr(vLANE)}, 2, 2
          v_lshl_add_u32 v26, v54, 7, v26
          v_bfe_u32 v54, {vr(vLANE)}, 3, 1
          v_lshlrev_b32 v54, 6, v54
          v_xor_b32 v54, {sT1}, v54
          v_add_u32 v26, v26, v54
          v_bfe_u32 v54, {vr(vLANE)}, 4, 1
          v_lshl_add_u32 v26, v54, 5, v26
          v_lshl_add_u32 v26, v27, 3, v26
          v_add_u32 v{vTR[1]}, 65536, v26
          v_add_u32 v{vTR[2]}, 131072, v26""")
    A(f"""v_lshrrev_b32 v26, 5, {vr(vLANE)}
          v_lshlrev_b32 v26, 8, v26
          v_lshl_add_u32 v26, v{vI16}, 4, v26
          v_mul_u32_u24 v54, 49152, v54
          v_add_u32 v{vHS}, v26, v54
          s_mul_i32 {sHB[0]}, {sRB}, 196608
          s_and_b32 {sT0}, {sW}, 1
          s_mul_i32 {sT0}, {sT0}, 98304
          s_add_u32 {sHB[0]}, {sHB[0]}, {sT0}
          s_mul_i32 {sT0}, {sCB}, 6144
          s_add_u32 {sHB[0]}, {sHB[0]}, {sT0}
          s_lshl_b32 {sT1}, {sT1}, 4
          s_add_u32 {sHB[0]}, {sHB[0]}, {sT1}
          s_add_u32 {sHB[0]}, {sHB[0]}, {WS_H}
          s_add_u32 {sHB[1]}, {sHB[0]}, 2048
          s_add_u32 {sHB[2]}, {sHB[0]}, 4096
          s_mul_i32 {sKVO}, {sCB}, {80*TP}
          s_lshl_b32 {sT0}, {sRB}, 7
          s_add_u32 {sKVO}, {sKVO}, {sT0}
          s_mul_i32 {sCH}, {sCB}, 80
          s_lshl_b32 {sT0}, {sRB}, 2
          s_add_u32 {sCH}, {sCH}, {sT0}
          s_add_u32 {sCH}, {sCH}, {sW}
          s_cmp_lt_u32 {sRB}, 20
          s_cselect_b32 {sCH}, {sCH}, 0x4000
          s_mov_b32 s62, 0xbfb8aa3b
          s_mov_b32 s63, 0xbfb8aa3b
          s_mov_b32 {sSPIN}, {O["spin"]}""")
    A(f"""v_cmp_eq_u32 vcc, 0, {vr(vLANE)}
          v_mov_b32 v26, 0x7ff00000
          v_cndmask_b32 v{vFL}, v26, {vr(vLANE)}, vcc""")
    vXA = 116
    A(f"""v_and_b32 v26, 31, {vr(vLANE)}
          v_lshlrev_b32 v26, 7, v26
          v_lshrrev_b32 v54, 5, {vr(vLANE)}
          v_lshrrev_b32 v55, 1, v{vI16}
          v_xor_b32 v54, v54, v55
          v_lshl_add_u32 v26, v54, 4, v26
          s_and_b32 {sT0}, {sW}, 1
          s_lshl_b32 {sT0}, {sT0}, 12
          v_add_u32 v{vXA}, {sT0}, v26""")
    for ks in range(1, 4):
        A(f"v_xor_b32 v{vXA+ks}, {ks<<5}, v{vXA}")
    for ks in range(4):
        A(f"v_add_u32 v{vXA+4+ks}, 65536, v{vXA+ks}")
    vQA = 124
    A(f"""v_lshrrev_b32 v26, 4, {vr(vLANE)}
          s_mul_i32 {sT0}, {sCB}, 10
          v_lshlrev_b32 v72, 7, v{vI16}
          v_add_u32 v72, {sW2K}, v72""")
    for n in range(3):
        if n < 2:
            A(f"""s_add_u32 {sT1}, {sT0}, {4*n}
                  v_add_u32 v54, {sT1}, v26""")
        else:
            A(f"""s_add_u32 {sT1}, {sT0}, 8
                  v_lshrrev_b32 v54, 1, v26
                  v_add_u32 v54, {sT1}, v54""")
        A(f"""v_lshrrev_b32 v73, 3, v54
              v_subrev_u32 v73, {sROT}, v73
              v_add_u32 v74, 10, v73
              v_min_u32 v73, v73, v74
              v_and_b32 v54, 7, v54
              v_xor_b32 v54, v54, v55
              v_lshl_add_u32 v54, v54, 4, v72
              v_lshl_add_u32 v{vQA+n}, v73, 13, v54""")
    A(f"""v_and_b32 v26, 1, v26
          v_lshl_add_u32 v{vQA+2}, v26, 3, v{vQA+2}""")
    vGA = 127
    A(f"""s_lshl_b32 {sT0}, {sCB}, 2
          s_add_u32 {sT0}, {sT0}, {sW}
          s_and_b32 {sT1}, {sT0}, 7
          s_lshl_b32 {sT0}, {sT0}, 8
          v_xor_b32 v26, {sT1}, v38
          v_lshlrev_b32 v26, 4, v26
          v_lshrrev_b32 v54, 5, {vr(vLANE)}
          v_lshl_add_u32 v26, v54, 7, v26
          v_add_u32 v26, {sT0}, v26
          v_lshl_add_u32 v{vGA}, v52, 13, v26
          v_and_b32 v54, 1, v52
          v_lshl_add_u32 v26, v54, 13, v26
          v_add_u32 v{vGA+1}, 65536, v26""")
    sWA, sWB = sW2L, sHL
    A(f"""s_mul_i32 {sT0}, {sCB}, 48
          s_lshl_b32 {sT1}, {sRB}, 1
          s_add_u32 {sT0}, {sT0}, {sT1}
          s_and_b32 {sT1}, {sW}, 1
          s_add_u32 {sT0}, {sT0}, {sT1}
          s_mul_i32 {sT0}, {sT0}, 5120
          s_add_u32 {sT0}, {sT0}, {WS_W2P}
          s_cmp_lt_u32 {sRB}, 24
          s_cselect_b32 {sT0}, {sT0}, 0x7f000000
          s_and_b32 {sT1}, {sW}, 2
          s_lshl_b32 {sWA}, {sT1}, 10
          s_add_u32 {sWA}, {sWA}, {sT0}
          s_add_u32 {sWB}, {sT0}, 4096
          s_cmp_eq_u32 {sT1}, 0
          s_cselect_b32 {sWB}, {sWB}, 0x7f000000""")
    stamp("calc")
    NPRE_P = O.get("prepairs", 3)
    for j in range(1, NPRE_P):
        pair(j)
    vG0, vG1 = 170, 171
    A(f"""s_lshl_b32 {sT0}, {sCB}, 8
          s_lshl_b32 {sT1}, {sRB}, 8
          s_add_u32 {sT0}, {sT0}, {WS_COLG}
          s_add_u32 {sT1}, {sT1}, {WS_ROWG}""")
    A(f"buffer_load_dword v{vG0}, off, {sWS}, {sT0} sc1")
    A(f"buffer_load_dword v{vG1}, off, {sWS}, {sT1} sc1")
    stamp("issued")

    A.wait("p0in")
    A("s_barrier")
    stamp("p0in")
    vWT = 172
    vP = 184
    vVV = 198
    vO = 210
    vE = 222
    for m in range(7):
        A(f"ds_read_b64_tr_b16 v[{vP+2*m}:{vP+2*m+1}], v{vKA} offset:{640*m}")
        if m < 6:
            A(f"ds_read_b64_tr_b16 v[{vVV+2*m}:{vVV+2*m+1}], v{vKA} offset:{640*m + L_V - L_K}")
    for i, (va, off) in enumerate(((vRA, 0), (vRA, 8), (vRB_, 128))):
        A(f"ds_read_b64_tr_b16 v[{vWT+4*i}:{vWT+4*i+1}], v{va} offset:{off}")
        A(f"ds_read_b64_tr_b16 v[{vWT+4*i+2}:{vWT+4*i+3}], v{va} offset:{off+1280}")
    vWa, vWb, vWc, vWd, vWe = 163, 164, 165, 166, 167
    A(f"""s_mov_b32 {sT0}, 0xffff
          v_and_b32 v{vWa}, 0xffff, v{vSH}
          v_bfi_b32 v{vWb}, {sT0}, v{vSH+1}, v{vSH}
          v_and_b32 v{vWc}, 0xffff0000, v{vSH+1}
          v_alignbit_b32 v{vWd}, v{vSH}, v{vSH}, 16
          v_alignbit_b32 v{vWe}, v{vSH+1}, v{vSH+1}, 16""")
    w2st = [(f"buffer_store_dwordx4 v[{vWT}:{vWT+3}], {vr(vL16)}, {sWS}, {sWA} offen sc1", "p0out"),
            (f"buffer_store_dwordx4 v[{vWT+4}:{vWT+7}], {vr(vL16)}, {sWS}, {sWA} offen offset:1024 sc1", "p0out"),
            (f"buffer_store_dwordx4 v[{vWT+8}:{vWT+11}], {vr(vL16)}, {sWS}, {sWB} offen sc1", "p0out")]
    NP0_P = O.get("p0pairs", 6)
    mem = []
    for j in range(NPRE_P, NP0_P):
        mem += [x_items(j), w1_items(j)]
    if O.get("w2st_early", 0):
        mem = [[x] for x in w2st] + mem
        w2st = []
    for o in range(13):
        e = vE + 4 * (o & 1) * 2
        if o < 12:
            A(f"""v_dot2_f32_bf16 v{e}, v{vP+o+2}, v{vWa}, 0
                  v_dot2_f32_bf16 v{e+1}, v{vP+o+2}, v{vWd}, 0
                  v_dot2_f32_bf16 v{e}, v{vP+o+1}, v{vWb}, v{e}
                  v_dot2_f32_bf16 v{e+1}, v{vP+o+1}, v{vWe}, v{e+1}
                  v_dot2_f32_bf16 v{e}, v{vP+o}, v{vWc}, v{e}
                  v_lshlrev_b32 v{e+2}, 16, v{vVV+o}
                  v_and_b32 v{e+3}, 0xffff0000, v{vVV+o}""")
        if o > 0:
            e = vE + 4 * ((o - 1) & 1) * 2
            A(f"""v_pk_mul_f32 v[{e}:{e+1}], v[{e}:{e+1}], v[{e+2}:{e+3}]
                  v_cvt_pk_bf16_f32 v{vO+o-1}, v{e}, v{e+1}""")
            if o % 4 == 0:
                i = o // 4 - 1
                A(f"ds_write_b128 v{vBW}, v[{vO+4*i}:{vO+4*i+3}] offset:{16*i}", "bo")
        k = -(-len(mem) // (13 - o))
        if o % 2 == 1 or len(mem) >= 13 - o:
            for _ in range(min(k, len(mem))):
                for it in mem.pop(0):
                    put_item(A, it)
    stamp("p0done")

    def bo_reads():
        for n in range(3):
            A(f"ds_read_b128 v[{vP+4*n}:{vP+4*n+3}], v{vBR} offset:{4608*n}")

    sKA = [sT0, sT1, sT2]
    kvst = [f"s_add_u32 {sT3}, {sKVO}, {WS_KVT}",
            (f"buffer_store_dwordx4 v[{vP}:{vP+3}], {vr(vT)}, {sWS}, {sT3} offen sc1", "p0out"),
            f"s_add_u32 {sT3}, {sKVO}, {WS_KVT + 32*TP}",
            (f"buffer_store_dwordx4 v[{vP+4}:{vP+7}], {vr(vT)}, {sWS}, {sT3} offen sc1", "p0out"),
            f"s_add_u32 {sT3}, {sKVO}, {WS_KVT + 64*TP}\ns_cmp_lt_u32 {sW}, 2\ns_cselect_b32 {sT3}, {sT3}, 0x7f000000",
            (f"buffer_store_dwordx4 v[{vP+8}:{vP+11}], {vr(vT)}, {sWS}, {sT3} offen sc1", "p0out")]

    vGX = 142
    gw_ld = [f"buffer_load_dwordx4 v[{vGW+4*n}:{vGW+4*n+3}], v{vGWA+n}, {sGW}, 0 offen" for n in range(3)]
    qg = [(f"ds_read_b128 v[{vGX}:{vGX+3}], v{vGA}", "xrd"),
          (f"ds_read_b128 v[{vGX+4}:{vGX+7}], v{vGA} offset:32768", "xrd"),
          (f"ds_read_b128 v[{vGX+8}:{vGX+11}], v{vGA+1}", "xrd"),
          (f"ds_read_b128 a[240:243], v{vQA}", "xrd"),
          (f"ds_read_b128 a[244:247], v{vQA+1}", "xrd"),
          (f"ds_read_b64 a[248:249], v{vQA+2}", "xrd")]
    gops = []
    g0, g1, g2 = 154, 155, 156
    for i in range(12):
        gops.append(f"v_dot2_f32_bf16 v{g0}, v{vGX+i}, v{vGW+i}, " + ("0" if i == 0 else f"v{g0}"))
    for m in ("quad_perm:[1,0,3,2]", "quad_perm:[2,3,0,1]", "row_half_mirror", "row_mirror"):
        gops.append(f"v_add_f32_dpp v{g0}, v{g0}, v{g0} {m} row_mask:0xf bank_mask:0xf")
    gops.append(f"v_add_f32_dpp v{g0}, v{g0}, v{g0} row_bcast:15 row_mask:0xa bank_mask:0xf")
    gops += [f"v_mul_f32 v{g0}, s62, v{g0}", f"v_exp_f32 v{g0}, v{g0}", f"v_add_f32 v{g0}, 1.0, v{g0}", f"v_rcp_f32 v{g0}, v{g0}"]
    sGO = sXE
    gops += [f"v_and_b32 v{g1}, 31, {vr(vLANE)}", f"v_mov_b32 v{g2}, 0x7ff00000\nv_cmp_eq_u32 vcc, 31, v{g1}\nv_lshrrev_b32 v{g1}, 5, {vr(vLANE)}\n"
             f"v_lshlrev_b32 v{g1}, 2, v{g1}\nv_cndmask_b32 v{g1}, v{g2}, v{g1}, vcc",
             f"s_lshl_b32 {sGO}, {sRB}, 8\ns_lshl_b32 {sXO}, {sCB}, 5\ns_add_u32 {sGO}, {sGO}, {sXO}",
             f"s_lshl_b32 {sXO}, {sW}, 3\ns_add_u32 {sGO}, {sGO}, {sXO}\ns_add_u32 {sGO}, {sGO}, {WS_G}",
             (f"buffer_store_dword v{g0}, v{g1}, {sWS}, {sGO} offen sc1", "hout")]

    vACC = [16, 32]
    NB = 8
    vFR = 48
    vS = 80
    vHO = 96
    vPO = 104
    vPA = 106
    vZ = 107
    vDD = 108
    vGAD, vHAD, vUAD, vYW = 109, 110, 111, 112

    def fr_reads(n):
        b, ks = divmod(n, 4)
        a = slot(b) + 2048 * ks
        base, off = vTR[a >> 16], a & 0xffff
        f = vFR + 4 * (n % NB)
        r = [f"ds_read_b64_tr_b16 v[{f}:{f+1}], v{base} offset:{off}",
             f"ds_read_b64_tr_b16 v[{f+2}:{f+3}], v{base} offset:{off+512}"]
        if n < 40:
            va, off = (vXA + ks, 8192 * b) if b < 8 else (vXA + 4 + ks, 8192 * (b - 8))
            r.append(f"ds_read_b128 {ar(4*n,4)}, v{va} offset:{off}")
        return r

    GS0 = O.get("gs0", 1)
    starts = list(range(0, 10, GS0)) + list(range(10, 30, GS))
    grp_of = {}
    for gi_, st_ in enumerate(starts):
        en_ = starts[gi_ + 1] if gi_ + 1 < len(starts) else 30
        for b_ in range(st_, en_):
            grp_of[b_] = gi_
    extra_tags = {}

    def group_sync(g):
        def f():
            tags = [f"w1_{b}" for b in range(30) if grp_of[b] == g] + extra_tags.get(g, [])
            if g == grp_of[O["p0flag"]]:
                tags.append("p0out")
            A.wait(*tags)
            A("s_barrier")
            if g == grp_of[O["p0flag"]]:
                A(f"""v_readfirstlane_b32 {sTAGC}, v{vG0}
                      v_readfirstlane_b32 {sTAGR}, v{vG1}
                      s_mul_i32 {sTAGC}, {sTAGC}, 0x2C9277B5
                      s_mul_i32 {sTAGR}, {sTAGR}, 0x2C9277B5
                      s_add_u32 {sTAGC}, {sTAGC}, 0xAC564B05
                      s_add_u32 {sTAGR}, {sTAGR}, 0xAC564B05
                      s_lshl_b32 {sT0}, {sCB}, 8
                      s_lshl_b32 {sT1}, {sRB}, 2
                      s_add_u32 {sT0}, {sT0}, {sT1}
                      s_cmp_eq_u32 {sW}, 0
                      s_cselect_b32 {sT0}, {sT0}, 0x7f000000
                      v_mov_b32 v{vZ}, {sTAGC}""")
                A(f"buffer_store_dword v{vZ}, v{vFL}, {sWS}, {sT0} offen sc1")
        return f

    def silu_ops(p):
        ac = vACC[p & 1]
        ops = []
        for h in range(0, 8, 2):
            t0, t1 = vS + 4 * ((h >> 1) & 1), vS + 4 * ((h >> 1) & 1) + 2
            z0, z1 = ac + 2 * h, ac + 2 * h + 2
            ops += [(1, f"v_pk_mul_f32 v[{t0}:{t0+1}], v[{z0}:{z0+1}], {sNL2E}"),
                    (1, f"v_pk_mul_f32 v[{t1}:{t1+1}], v[{z1}:{z1+1}], {sNL2E}"),
                    (2, f"v_exp_f32 v{t0}, v{t0}"), (2, f"v_exp_f32 v{t0+1}, v{t0+1}"),
                    (2, f"v_exp_f32 v{t1}, v{t1}"), (2, f"v_exp_f32 v{t1+1}, v{t1+1}"),
                    (1, f"v_pk_add_f32 v[{t0}:{t0+1}], v[{t0}:{t0+1}], 1.0 op_sel_hi:[1,0]"),
                    (1, f"v_pk_add_f32 v[{t1}:{t1+1}], v[{t1}:{t1+1}], 1.0 op_sel_hi:[1,0]"),
                    (2, f"v_rcp_f32 v{t0}, v{t0}"), (2, f"v_rcp_f32 v{t0+1}, v{t0+1}"),
                    (2, f"v_rcp_f32 v{t1}, v{t1}"), (2, f"v_rcp_f32 v{t1+1}, v{t1+1}"),
                    (1, f"v_pk_mul_f32 v[{t0}:{t0+1}], v[{t0}:{t0+1}], v[{z0}:{z0+1}]"),
                    (1, f"v_pk_mul_f32 v[{t1}:{t1+1}], v[{t1}:{t1+1}], v[{z1}:{z1+1}]"),
                    (1, f"v_cvt_pk_bf16_f32 v{vHO+h}, v{t0}, v{t0+1}"),
                    (1, f"v_cvt_pk_bf16_f32 v{vHO+h+1}, v{t1}, v{t1+1}")]
            if h in (2, 6):
                r = h >> 2
                ops.append((1, (f"buffer_store_dwordx4 v[{vHO+4*r}:{vHO+4*r+3}], v{vHS}, {sWS}, {sHB[p]} offen offset:{512*r} sc1", "hout")))
        return ops

    def w2reg(i):
        return (4 * i + 160) % 240

    def w2_items(i):
        it = []
        if i % 4 == 0 and i:
            it.append(f"s_add_u32 {sW2L}, {sW2L}, 4096")
        it.append(f"buffer_load_dwordx4 {ar(w2reg(i),4)}, {vr(vL16)}, {sWS}, {sW2L} offen offset:{1024*(i%4)} sc1")
        return it

    extra_tags[0] = ["bo"]
    group_sync(0)()
    stamp("g1start")
    bo_reads()
    synced = {0}
    sync_at = {0: -2}
    for n in range(DIST):
        g = grp_of[n // 4]
        if g not in synced:
            A.waitall(vm=False)
            group_sync(g)(); synced.add(g); sync_at[g] = -1
        for r in fr_reads(n):
            A(r)
    anchors = []
    for n in range(120):
        p, k = divmod(n, 40)
        ac = vACC[p & 1]
        f = vFR + 4 * (n % NB)
        grp = [f"v_mfma_f32_32x32x16_bf16 v[{ac}:{ac+15}], v[{f}:{f+3}], {ar(4*k,4)}, " + ("0" if k == 0 else f"v[{ac}:{ac+15}]")]
        m = n + DIST
        if m < 120:
            g = grp_of[m // 4]
            if g not in synced:
                grp.append(group_sync(g)); synced.add(g); sync_at[g] = n
            grp += fr_reads(m)
        if n in (39, 79) and O.get("pstamp", 0):
            grp.append((lambda nm: (lambda: stamp(nm)))(f"pass{n//40}"))
        anchors.append(grp)
    sync_after = lambda n: min(v for v in sync_at.values() if v >= n)
    free_at = lambda b: sync_after(4 * b + 3)
    dma = []
    LA = O.get("la", 40)
    st_list = [[x] for x in w2st] + [kvst[0:2], kvst[2:4], kvst[4:6]]
    SP = O.get("stpace", 0)
    for b in range(NP0_P, 30):
        lat = sync_at[grp_of[b]]
        e = 0 if b < 10 else free_at(b - 10)
        e = max(e, lat - LA)
        its = w1_items(b)
        if b < 10:
            its = x_items(b) + its
            if b >= 8:
                e = max(e, sync_after(0))
        for it in its:
            dma.append(dict(e=e, l=lat, it=it))
        if b == 9:
            for it in gw_ld:
                dma.append(dict(e=e, l=lat, it=it))
        if b + 1 >= O.get("st_at", 6):
            for _ in range(O.get("st_n", 6)):
                if st_list:
                    for it in st_list.pop(0):
                        dma.append(dict(e=e, l=sync_at[grp_of[O["p0flag"]]], it=it))
    if O.get("st_at", 6) <= NP0_P:
        pass
    e_q = sync_at[grp_of[9]]
    qs = [dict(e=e_q, it=x) for x in qg]
    g_free = min(g for g in sync_at if sync_at[g] >= e_q + 8)
    extra_tags[g_free] = ["xrd"]
    for d in qs:
        d["l"] = sync_at[g_free]
    qs += [dict(e=e_q + 3, it=x) for x in gops]
    x_free = max(sync_at[g_free], free_at(9))
    pi = O["poll_i"]

    def ins_at(e, items):
        pos = next((i for i, d in enumerate(dma) if d["e"] > e), len(dma))
        dma[pos:pos] = [dict(e=e, it=x) for x in items]
    pl = [f"v_and_b32 v{vPA}, 31, {vr(vLANE)}", f"v_lshlrev_b32 v{vPA}, 2, v{vPA}", f"s_lshl_b32 {sHL}, {sCB}, 8",
          lambda: poll(vPA, sTAGC, sHL, vPO, check=False)]
    ins_at(pi, pl)
    e_h = max(x_free, O.get('hin_at', 50))
    e_u = x_free
    misc = [f"s_mul_i32 {sT2}, {sW}, {HBP}", f"v_min_u32 v{vGAD}, 23, {vr(vLANE)}",
            f"v_lshlrev_b32 v{vGAD}, 2, v{vGAD}", f"v_mov_b32 v{vZ}, 0", f"v_add_u32 v{vGAD}, {sT2}, v{vGAD}",
            f"v_mov_b32 v{vDD}, 0",
            (f"ds_write_b32 v{vGAD}, v{vZ} offset:{L_HB}", "pad"),
            f"s_add_u32 m0, {sT2}, {L_HB+96}", f"s_lshl_b32 {sT3}, {sCH}, 12"]
    misc += [(f"buffer_load_dwordx4 {vr(vL16)}, {sSK}, {sT3} offen offset:{1024*i} {NT} lds", "hin") for i in range(4)]
    misc += [f"s_lshl_b32 {sT3}, {sCH}, 1", f"buffer_load_short_d16_hi v{vDD}, off, {sD}, {sT3}"]
    misc += [f"v_and_b32 v{vGAD}, 3, {vr(vLANE)}", f"v_lshrrev_b32 v{vHAD}, 4, {vr(vLANE)}",
             f"v_bfe_u32 v{vUAD}, {vr(vLANE)}, 2, 2", f"v_add_u32 v{vYW}, v{vGAD}, v{vHAD}",
             f"v_lshlrev_b32 v{vYW}, 5, v{vYW}", f"v_lshl_add_u32 v{vYW}, v{vUAD}, 3, v{vYW}",
             f"v_sub_u32 v{vGAD}, v{vGAD}, v{vUAD}", f"v_lshlrev_b32 v{vHAD}, 2, v{vHAD}",
             f"v_sub_u32 v{vHAD}, v{vGAD}, v{vHAD}", f"v_add_u32 v{vGAD}, {sT2}, v{vYW}",
             f"s_mul_i32 {sT2}, {sW}, {UBP}", f"s_add_u32 {sT3}, {sT2}, {L_UB+128}",
             f"v_lshlrev_b32 v{vHAD}, 3, v{vHAD}", f"v_add_u32 v{vHAD}, {sT3}, v{vHAD}",
             f"v_lshlrev_b32 v{vYW}, 1, {vr(vLANE)}", f"s_add_u32 {sT3}, {sT2}, {L_UB+32}",
             f"v_add_u32 v{vUAD}, {sT3}, v{vYW}", f"s_lshl_b32 {sT3}, {sW}, 12",
             f"s_add_u32 {sT3}, {sT3}, {L_YS}", f"v_add_u32 v{vYW}, {sT3}, v{vYW}"]
    ins_at(e_h, misc)
    pc = max(O["poll_c"], e_u, e_h)

    def col_ok():
        poll(vPA, sTAGC, sHL, vPO, issue=False)
        A(f"""s_add_u32 {sT0}, {sHL}, {WS_COLG}
              s_or_b32 {sT1}, {sRB}, {sW}
              s_cmp_eq_u32 {sT1}, 0
              s_cselect_b32 {sT0}, {sT0}, 0x7f000000
              v_mov_b32 v{vPO}, {sTAGC}""")
        A(f"buffer_store_dword v{vPO}, v{vFL}, {sWS}, {sT0} offen sc1")
    misc2 = [col_ok, f"v_and_b32 v{vPA}, 7, {vr(vLANE)}", f"s_mul_i32 {sT2}, {sW}, {UBP}",
             f"v_lshlrev_b32 v{vPA}, 2, v{vPA}", f"v_add_u32 v{vPA}, {sT2}, v{vPA}",
             (f"ds_write_b32 v{vPA}, v{vZ} offset:{L_UB}", "pad"),
             f"s_add_u32 m0, {sT2}, {L_UB+32}", f"s_mul_i32 {sT3}, {sCH}, {TP}", f"s_add_u32 {sT3}, {sT3}, {WS_KVT}"]
    misc2 += [(f"buffer_load_dwordx4 {vr(vL16)}, {sWS}, {sT3} offen offset:{1024*i} sc1 lds", "uin") for i in range(4)]
    misc2 += [f"s_mul_i32 {sW2L}, {sCB}, {48*5120}", f"s_mul_i32 {sT3}, {sW}, {12*5120}",
              f"s_add_u32 {sW2L}, {sW2L}, {sT3}", f"s_add_u32 {sW2L}, {sW2L}, {WS_W2P}"]
    ins_at(pc, misc2)
    NW2_G1 = O.get("w2g1", 12)
    w2s = max(pc + 2, max(d["e"] for d in dma), O.get("w2start", 0))
    for i in range(NW2_G1):
        for x in w2_items(i):
            e = w2s + (i * O.get("w2p1", 5)) // 2
            if i >= 20:
                e = max(e, 80 + i - 20 + 1)
            dma.append(dict(e=min(e, 119), it=x))
    sil = []
    for p in range(2):
        for c, x in silu_ops(p):
            sil.append(dict(e=40 * (p + 1) + 2, l=40 * (p + 2), c=c, it=x))
    left = weave2(A, anchors, [dma, qs, sil], O.get("cap1", 3))
    drain(A, left)
    stamp("g1end")

    vG = 114
    vH = 178
    NA = 8
    vCA = 16
    vP2 = [244, 245, 246]
    vP1 = [247, 248, 249]
    vY = [250, 251]
    vU = [252, 253, 254]
    vYO = 96
    vCV = 255
    Hreg = lambda b: vH + 2 * (31 - b)
    rd = []
    for n in range(32):
        rd.append((n, f"ds_read_b64_tr_b16 v[{Hreg(n)}:{Hreg(n)+1}], v{vHAD} offset:{128*n}"))
        if n % 2 == 0:
            for x in (n, n + 1):
                rd.append((n, f"ds_read_b64_tr_b16 v[{vG+2*x}:{vG+2*x+1}], v{vGAD} offset:{L_HB+128*x}"))
    A.wait("hin", "uin", "pad")
    so = silu_ops(2)
    NPRE = 24
    ri = 0
    for i, (c, x) in enumerate(so):
        put_item(A, x)
        if i >= 8 and i % 2 == 0 and ri < NPRE:
            A(rd[ri][1]); ri += 1
    for r in (Hreg(-1), Hreg(-1) + 1, vP2[2], vP1[2], vU[0], vU[1], vU[2], vZ):
        A(f"v_mov_b32 v{r}, 0")
    stamp("silu2")

    vHF = 48
    vL16b, vL16c = 4, 5

    def hload(ph, kk, dst):
        vo = (vL16, vL16b, vL16c)[kk // 4]
        return f"buffer_load_dwordx4 v[{dst}:{dst+3}], v{vo}, {sWS}, {sHL} offen offset:{1024*(kk%4)} sc1"

    def hbase(ph):
        return [f"s_add_u32 {sT0}, {sW}, {1+ph}", f"s_and_b32 {sT0}, {sT0}, 3", f"s_mul_i32 {sT0}, {sT0}, 49152",
                f"s_add_u32 {sHL}, {sT0}, {sHB[0]}"]

    def h_flag():
        A.wait("hout")
        A(f"""s_lshl_b32 {sT0}, {sRB}, 8
              s_lshl_b32 {sT1}, {sCB}, 4
              s_add_u32 {sT0}, {sT0}, {WS_ROWH}
              s_add_u32 {sT1}, {sT1}, {sT0}
              s_lshl_b32 {sT2}, {sW}, 2
              s_add_u32 {sT1}, {sT1}, {sT2}
              v_mov_b32 v{vPO}, {sTAGR}""")
        A(f"buffer_store_dword v{vPO}, v{vFL}, {sWS}, {sT1} offen sc1")

    def row_poll_issue():
        A(f"""v_and_b32 v{vPA}, 31, {vr(vLANE)}
              s_lshl_b32 {sHB[1]}, {sRB}, 8
              v_lshlrev_b32 v{vPA}, 2, v{vPA}
              s_add_u32 {sHB[1]}, {sHB[1]}, {WS_ROWH}""")
        poll(vPA, sTAGR, sHB[1], vPO, check=False)

    vGT = 6
    def row_ok():
        poll(vPA, sTAGR, sHB[1], vPO, issue=False)
        A(f"""s_add_u32 {sT0}, {sHB[1]}, {WS_ROWG - WS_ROWH}
              s_or_b32 {sT1}, {sCB}, {sW}
              s_cmp_eq_u32 {sT1}, 0
              s_cselect_b32 {sT0}, {sT0}, 0x7f000000
              v_mov_b32 v{vPO}, {sTAGR}
              v_add_u32 v{vL16b}, 4096, {vr(vL16)}
              v_add_u32 v{vL16c}, 8192, {vr(vL16)}""")
        A(f"buffer_store_dword v{vPO}, v{vFL}, {sWS}, {sT0} offen sc1")
        A(f"""s_mul_i32 {sHB[0]}, {sRB}, 196608
              s_mul_i32 {sT0}, {sW}, 12288
              s_add_u32 {sHB[0]}, {sHB[0]}, {sT0}
              s_add_u32 {sHB[0]}, {sHB[0]}, {WS_H}
              v_and_b32 v{vPA}, 15, {vr(vLANE)}
              s_lshl_b32 {sT0}, {sRB}, 8
              s_lshl_b32 {sT1}, {sW}, 6
              v_lshlrev_b32 v{vPA}, 2, v{vPA}
              s_add_u32 {sT0}, {sT0}, {sT1}
              s_add_u32 {sT0}, {sT0}, {WS_G}""")
        A(f"buffer_load_dword v{vGT}, v{vPA}, {sWS}, {sT0} offen sc1")
        for x in hbase(0):
            A(x)

    PACE = O["w2pace"]
    common = []
    t = 4
    for i in range(NW2_G1, 60):
        if i == NW2_G1 + O.get("hflag_after", 8):
            common.append(dict(e=t, it=h_flag))
        if i == O.get("rowpoll_at", 52):
            common.append(dict(e=t, it=row_poll_issue))
        for x in w2_items(i):
            common.append(dict(e=t, it=x))
        t += PACE
    t += O.get("rowok_gap", 16)
    common.append(dict(e=t, it=row_ok))
    for kk in range(O["hpre"]):
        t += PACE
        common.append(dict(e=min(t, 270), it=hload(0, kk, vHF + 4 * kk)))

    snapshot_out = len(A.out)
    A(f"s_cmp_ge_u32 {sRB}, 20")
    A.settle()
    A("s_cbranch_scc1 Lnoconv")
    import copy
    saved = (copy.deepcopy(A.q), dict(A.pend), A.nid)
    A.nopt += 1
    A.opt = A.nopt
    A._hidden = []
    optid = A.opt

    def as_common(it):
        def f():
            n0 = {qn: len(A.q[qn]) for qn in A.q}
            ids0 = A.nid
            put_item(A, it)
            for qn in A.q:
                for e in A.q[qn]:
                    if e["id"] > ids0:
                        e["opt"] = 0
        return f

    anchors, last = [], {}
    first = {}
    for n in range(32):
        ac = vCA + 4 * ((n + 4) % NA)
        first[n] = len(anchors)
        for q in range(n // 2 + 1):
            b = n - 2 * q
            anchors.append([f"v_mfma_f32_16x16x32_bf16 v[{ac}:{ac+3}], v[{vG+4*q}:{vG+4*q+3}], v[{Hreg(b)}:{Hreg(b)+3}], " +
                            ("0" if q == 0 else f"v[{ac}:{ac+3}]")])
        last[n] = len(anchors) - 1
    NAN = len(anchors)
    rds = [dict(e=-1, l=first[n], it=x) for n, x in rd[ri:]]
    for d in rds:
        d["e"] = 0 if d["l"] > 0 else -1
    acc = lambda n, r: vCA + 4 * ((n + 4) % NA) + r
    DP = "row_mask:0xf bank_mask:0xf"
    comb = []
    uread = lambda n: f"ds_read_u16_d16_hi v{vU[n%3]}, v{vUAD} offset:{128*n}"
    comb.append(dict(e=0, it=uread(0)))
    comb.append(dict(e=0, it=uread(1)))
    for s in range(32 + 3):
        a, b, c = s, s - 1, s - 2
        e = min(last[min(s, 31)] + 3, NAN + 5)
        l = first[c + NA] if 0 <= c + NA < 32 and c >= 0 else 1 << 30
        it = []
        d3p = (lambda n: acc(n - 1, 3) if n > 0 else vZ)
        if a < 32:
            it.append(f"v_add_f32_dpp v{vP2[a%3]}, v{d3p(a)}, v{acc(a,2)} wave_ror:1 {DP}")
        if 0 <= b < 32:
            it.append(f"v_add_f32_dpp v{vP1[b%3]}, v{vP2[(b-1)%3]}, v{acc(b,1)} wave_ror:1 {DP}")
        if 0 <= c < 32:
            it.append(f"v_add_f32_dpp v{vY[c%2]}, v{vP1[(c-1)%3]}, v{acc(c,0)} wave_ror:1 {DP}")
        if a < 32:
            it.append(f"v_add_f32_dpp v{vP2[a%3]}, v{acc(a,3)}, v{acc(a,2)} wave_shr:1 {DP}")
        if 0 <= b < 32:
            it.append(f"v_add_f32_dpp v{vP1[b%3]}, v{vP2[b%3]}, v{acc(b,1)} wave_shr:1 {DP}")
        if 0 <= c < 32:
            it.append(f"v_add_f32_dpp v{vY[c%2]}, v{vP1[c%3]}, v{acc(c,0)} wave_shr:1 {DP}")
        if a < 32:
            it.append(f"v_fmac_f32 v{acc(a,0)}, v{vU[a%3]}, v{vDD}")
        if a + 2 < 32:
            it.append(uread(a + 2))
        if 0 <= c < 32 and c % 2 == 1:
            it.append(f"v_cvt_pk_bf16_f32 v{vCV}, v{vY[0]}, v{vY[1]}")
            it.append((f"ds_write_b16 v{vYW}, v{vCV} offset:{128*(c-1)}", "ys"))
            it.append((f"ds_write_b16_d16_hi v{vYW}, v{vCV} offset:{128*c}", "ys"))
            if c % 8 == 7:
                i = c // 8
                if i == 0:
                    it += [f"s_lshl_b32 {sT3}, {sW}, 12", f"v_add_u32 v113, {sT3}, {vr(vL16)}",
                           f"s_mul_i32 {sCH}, {sCH}, {TP}", f"s_add_u32 {sCH}, {sCH}, {WS_YT}"]
                it.append(f"ds_read_b128 v[{vYO+4*(i&1)}:{vYO+4*(i&1)+3}], v113 offset:{L_YS+1024*i}")
        dd = s - 3
        if 0 <= dd < 32 and dd % 8 == 7:
            i = dd // 8
            it.append((f"buffer_store_dwordx4 v[{vYO+4*(i&1)}:{vYO+4*(i&1)+3}], {vr(vL16)}, {sWS}, {sCH} offen offset:{1024*i} sc1", "yout"))
        for x in it:
            comb.append(dict(e=e, l=l, it=x))
    com2 = [dict(e=d["e"], it=as_common(d["it"])) for d in common]
    left = weave2(A, anchors, [com2, rds, comb], 2)
    drain(A, [left[1], left[2], left[0]])
    A.wait("yout")
    A(f"""s_lshl_b32 {sT0}, {sCB}, 9
          s_lshl_b32 {sT1}, {sRB}, 4
          s_add_u32 {sT0}, {sT0}, {sT1}
          s_lshl_b32 {sT1}, {sW}, 2
          s_add_u32 {sT0}, {sT0}, {sT1}
          s_add_u32 {sT0}, {sT0}, {WS_COLCV}
          v_mov_b32 v{vPO}, {sTAGC}""")
    A(f"buffer_store_dword v{vPO}, v{vFL}, {sWS}, {sT0} offen sc1")
    A.settle()
    A("s_branch Ljoin")
    for qn in A.q:
        back = [h for h in A._hidden if h[0] == qn]
        A.q[qn] = [h[1] for h in back] + A.q[qn]
        for h in back:
            for r, v in h[2].items():
                A.pend.setdefault(r, v)
    A.opt = 0
    stateA = (A.q, A.pend, A.nid)
    A.label("Lnoconv")
    A.q, A.pend, A.nid = saved[0], saved[1], stateA[2]
    for d in common:
        put_item(A, d["it"])
    A.settle()
    seqB = [e["text"] for e in A.q["vm"]]
    seqA = [e["text"] for e in stateA[0]["vm"] if e["opt"] == 0]
    assert seqA[-len(seqB):] == seqB, (seqA, seqB)
    nid = A.nid
    A.q, A.pend, A.nid = stateA[0], stateA[1], nid
    A.label("Ljoin")
    stamp("conv")

    HF = [48, 114, 162, 210 - 0]
    HF = [48, 112, 160, 208]
    vA2 = [8, 28]
    vFL2, vRW = 7, 96
    vGQ = 48
    vOMG = 68
    vYR = 70
    vTM = 80
    vRD = 112
    vYA, vOA, vOB, vRR = 97, 98, 99, 100
    anchors = []
    for ph in range(4):
        for kk in range(12):
            for nt in range(5):
                ac = vA2[ph & 1] + 4 * nt
                anchors.append([f"v_mfma_f32_16x16x32_bf16 v[{ac}:{ac+3}], {ar(w2reg(kk*5+nt),4)}, v[{HF[ph]+4*kk}:{HF[ph]+4*kk+3}], " +
                                ("0" if kk == 0 else f"v[{ac}:{ac+3}]")])
    pre = []
    for kk in range(O["hpre"], 12):
        pre.append(hload(0, kk, HF[0] + 4 * kk))
    for x in pre:
        A(x)
    ld = []
    t = -1
    H0 = O.get("hburst", 12)
    cnt = 0
    for ph in range(1, 4):
        for x in hbase(ph):
            ld.append(dict(e=t, it=x))
        for kk in range(12):
            ld.append(dict(e=t, l=60 * ph + 5 * kk, it=hload(ph, kk, HF[ph] + 4 * kk)))
            cnt += 1
            if cnt >= H0:
                t += O.get("hpace", 4)
    while ld and ld[0]["e"] < 0:
        put_item(A, ld.pop(0)["it"])
    ty = max(t, 0) + 2

    def y_issue():
        A(f"""v_min_u32 v{vPA}, 39, {vr(vLANE)}
              s_lshl_b32 {sHB[1]}, {sCB}, 9
              v_lshlrev_b32 v{vPA}, 3, v{vPA}
              s_add_u32 {sHB[1]}, {sHB[1]}, {WS_COLCV}""")
        poll(vPA, sTAGC, sHB[1], vPO, n=2, check=False)

    def y_dma():
        poll(vPA, sTAGC, sHB[1], vPO, n=2, issue=False)
        A(f"""s_add_u32 {sT0}, {sKVO}, {WS_YT}
              s_add_u32 m0, {sW1K}, {L_YT}
              s_add_u32 {sT1}, {sKVO}, {WS_YT + 32*TP}""")
        A(f"buffer_load_dwordx4 {vr(vT)}, {sWS}, {sT0} offen sc1 lds", "yin")
        A(f"""s_add_u32 m0, {sW1K}, {L_YT+4096}
              s_add_u32 {sT0}, {sKVO}, {WS_YT + 64*TP}""")
        A(f"buffer_load_dwordx4 {vr(vT)}, {sWS}, {sT1} offen sc1 lds", "yin")
        A(f"s_add_u32 m0, {sW1K}, {L_YT+8192}")
        A(f"s_cmp_ge_u32 {sW}, 2")
        A.begin_opt("s_cbranch_scc1", settle=False)
        A(f"buffer_load_dwordx4 {vr(vT)}, {sWS}, {sT0} offen sc1 lds", "yin")
        A.end_opt()
    ld.append(dict(e=O.get("ypoll_i", ty), it=y_issue))
    ld.append(dict(e=O.get("ypoll_c", 150), it=y_dma))

    red = []
    for ph in range(3):
        e = 60 * (ph + 1) + 2
        its = [f"s_add_u32 {sT2}, {sW}, {1+ph}", f"s_and_b32 {sT2}, {sT2}, 3", f"s_mul_i32 {sT2}, {sT2}, 15360",
               f"s_add_u32 {sT2}, {sT2}, {L_RED + 5120*ph}", f"v_add_u32 v{vRW}, {sT2}, {vr(vL16)}"]
        for x in its:
            red.append(dict(e=e - 8, l=60 * (ph + 2), it=x))
        for nt in range(5):
            ac = vA2[ph & 1] + 4 * nt
            red.append(dict(e=e, l=60 * (ph + 2), it=(f"ds_write_b128 v{vRW}, v[{ac}:{ac+3}] offset:{1024*nt}", "red")))
        if ph == 0:
            its = [f"v_sub_f32 v{vOMG}, 1.0, v{vGT}"]
            for i in range(10):
                its += [f"v_accvgpr_read_b32 v{vTM}, a{240+i}", f"v_lshlrev_b32 v{vGQ+2*i}, 16, v{vTM}",
                        f"v_and_b32 v{vGQ+2*i+1}, 0xffff0000, v{vTM}",
                        f"v_pk_mul_f32 v[{vGQ+2*i}:{vGQ+2*i+1}], v[{vGQ+2*i}:{vGQ+2*i+1}], v[{vGT}:{vGT+1}] op_sel_hi:[1,0]"]
            its += [f"v_lshrrev_b32 v{vTM}, 4, {vr(vLANE)}", f"v_bfe_u32 v{vTM+1}, {vr(vLANE)}, 2, 2",
                    f"v_and_b32 v{vTM+2}, 3, {vr(vLANE)}", f"v_lshlrev_b32 v{vTM+1}, 7, v{vTM+1}",
                    f"v_lshl_add_u32 v{vTM+1}, v{vTM+2}, 3, v{vTM+1}", f"s_lshl_b32 {sT3}, {sW}, 5",
                    f"s_add_u32 {sT3}, {sT3}, {L_YT}", f"v_add_u32 v{vTM+1}, {sT3}, v{vTM+1}",
                    f"v_lshl_add_u32 v{vYA}, v{vTM}, 10, v{vTM+1}", f"v_lshl_add_u32 v101, v{vTM}, 9, v{vTM+1}",
                    f"v_and_b32 v{vTM+2}, 15, {vr(vLANE)}", f"v_mul_u32_u24 v{vTM+2}, 1280, v{vTM+2}",
                    f"v_lshl_add_u32 v{vOA}, v{vTM}, 4, v{vTM+2}", f"v_lshl_add_u32 v{vOB}, v{vTM}, 3, v{vTM+2}",
                    f"s_mul_i32 {sT3}, {sW}, 20480", f"s_add_u32 {sROWOFF}, {sROWOFF}, {sT3}",
                    f"s_mul_i32 {sT3}, {sW}, 15360", f"s_add_u32 {sT3}, {sT3}, {L_RED}",
                    f"v_add_u32 v{vRR}, {sT3}, {vr(vL16)}"]
            for x in its:
                red.append(dict(e=e, it=x))

    def sync2():
        A.wait("red", "yin")
        A("s_barrier")
    e = O.get("sync2", 190)
    red.append(dict(e=e, it=sync2))
    for nt, (va, off) in enumerate(((vYA, 0), (vYA, 512), (vYA, 4096), (vYA, 4608), (101, 8192))):
        red.append(dict(e=e, it=f"ds_read_b64_tr_b16 v[{vYR+2*nt}:{vYR+2*nt+1}], v{va} offset:{off}"))
    for nt in range(5):
        for p in range(3):
            d = vRD + 20 * p + 4 * nt
            red.append(dict(e=e, it=f"ds_read_b128 v[{d}:{d+3}], v{vRR} offset:{5120*p+1024*nt}"))
    for i in range(10):
        t0 = vTM + 2 * (i & 1)
        g, r = vGQ + 2 * i, vRD + 2 * i
        for x in (f"v_lshlrev_b32 v{t0}, 16, v{vYR+i}", f"v_and_b32 v{t0+1}, 0xffff0000, v{vYR+i}",
                  f"v_pk_add_f32 v[{r}:{r+1}], v[{r}:{r+1}], v[{r+20}:{r+21}]",
                  f"v_pk_mul_f32 v[{g}:{g+1}], v[{g}:{g+1}], v[{t0}:{t0+1}]",
                  f"v_pk_add_f32 v[{r}:{r+1}], v[{r}:{r+1}], v[{r+40}:{r+41}]",
                  f"v_pk_fma_f32 v[{g}:{g+1}], v[{r}:{r+1}], v[{vOMG}:{vOMG+1}], v[{g}:{g+1}] op_sel_hi:[1,0,1]"):
            red.append(dict(e=e, it=x))
    left = weave2(A, anchors, [ld, red], 2)
    drain(A, left)
    for i in range(10):
        g, a = vGQ + 2 * i, vA2[1] + 2 * i
        A(f"v_pk_fma_f32 v[{g}:{g+1}], v[{a}:{a+1}], v[{vOMG}:{vOMG+1}], v[{g}:{g+1}] op_sel_hi:[1,0,1]")
        A(f"v_cvt_pk_bf16_f32 v{vYR+i}, v{g}, v{g+1}")
        if i == 3:
            A(f"buffer_store_dwordx4 v[{vYR}:{vYR+3}], v{vOA}, {sOUT}, {sROWOFF} offen")
        if i == 7:
            A(f"buffer_store_dwordx4 v[{vYR+4}:{vYR+7}], v{vOA}, {sOUT}, {sROWOFF} offen offset:64")
    A(f"buffer_store_dwordx2 v[{vYR+8}:{vYR+9}], v{vOB}, {sOUT}, {sROWOFF} offen offset:128")
    if O["stamps"]:
        A.waitall()
        stamp("end")
        A("s_memrealtime s[52:53]")
        A("s_waitcnt lgkmcnt(0)")
        A("v_mov_b32 v8, 0")
        for k in range(nst[0]):
            A(f"v_writelane_b32 v8, s{STR[k]}, {k}")
        A(f"v_writelane_b32 v8, {sRB}, 12")
        A("v_writelane_b32 v8, s100, 13")
        A("v_writelane_b32 v8, s52, 14")
        A(f"v_writelane_b32 v8, {sSPIN}, 15")
        A.raw("; STAMPS " + " ".join(names))
        A(f"""s_lshl_b32 s54, s2, 2
              s_add_u32 s54, s54, {sW}
              s_lshl_b32 s54, s54, 6
              s_add_u32 s54, s54, {WS_DBG}
              v_lshlrev_b32 v9, 2, {vr(vLANE)}
              v_cmp_gt_u32 vcc, 16, {vr(vLANE)}
              v_mov_b32 v10, 0x7ff00000
              v_cndmask_b32 v9, v10, v9, vcc""")
        A(f"buffer_store_dword v8, v9, {sWS}, s54 offen")
    if O.get("dbg", 0):
        A("s_load_dwordx2 s[8:9], s[0:1], 88")
        A("s_mov_b32 s10, 256")
        A("s_mov_b32 s11, 0x20000")
        A("s_getreg_b32 s55, hwreg(HW_REG_XCC_ID)")
        A("s_waitcnt lgkmcnt(0)")
        A("s_not_b32 s100, s100")
        A("v_mov_b32 v10, s100")
        A("v_mov_b32 v11, s52")
        A("v_mov_b32 v12, 0")
        A("s_mov_b64 exec, 1")
        A("buffer_atomic_umax v10, v12, s[8:11], 0 offen sc1")
        A("buffer_atomic_umax v11, v12, s[8:11], 0 offen offset:4 sc1")
        for k in range(1, nst[0]):
            A(f"s_sub_u32 s54, s{STR[k]}, s{STR[0]}")
            A(f"v_mov_b32 v{12+k}, s54")
            A(f"buffer_atomic_umax v{12+k}, v12, s[8:11], 0 offen offset:{4+4*k} sc1")
        A("s_and_b32 s55, s55, 15")
        A("s_lshl_b32 s54, s2, 2")
        A("s_lshl_b32 s53, s55, s54")
        A("s_cmp_lt_u32 s2, 8")
        A("s_cselect_b32 s53, s53, 0")
        A("v_mov_b32 v30, s53")
        A("buffer_atomic_or v30, v12, s[8:11], 0 offen offset:56 sc1")
        A("s_lshr_b32 s54, s2, 1")
        A("s_lshl_b32 s53, s55, s54")
        A("s_and_b32 s54, s2, 0xc7")
        A("s_cmp_eq_u32 s54, 0")
        A("s_cselect_b32 s53, s53, 0")
        A("v_mov_b32 v31, s53")
        A("buffer_atomic_or v31, v12, s[8:11], 0 offen offset:60 sc1")
    if O.get("padto", 0):
        A.waitall()
        A.label("Lpad")
        A.raw("  s_memrealtime s[52:53]")
        A.raw("  s_waitcnt lgkmcnt(0)")
        A.raw("  s_sub_u32 s52, s52, s100")
        A.raw(f"  s_cmp_lt_u32 s52, {O['padto']}")
        A.raw("  s_cbranch_scc1 Lpad")
    A.label("Lend")
    A("s_endpgm")

    head = f"""; Fused gated mix: one persistent launch, 256 workgroups (32 row blocks x 8 column blocks).
; @launch grid=(256,1,1) block=(256,1,1) lds={LDS}
.amdgcn_target "amdgcn-amd-amdhsa--gfx950"
.text
.globl {KN}_kernel
.p2align 8
.type {KN}_kernel,@function
{KN}_kernel:
"""
    tail = f"""
.section .rodata,"a"
.p2align 6
.amdhsa_kernel {KN}_kernel
  .amdhsa_next_free_vgpr 512
  .amdhsa_next_free_sgpr 102
  .amdhsa_accum_offset 256
  .amdhsa_group_segment_fixed_size 0
  .amdhsa_kernarg_size 104
  .amdhsa_user_sgpr_count 2
  .amdhsa_user_sgpr_kernarg_segment_ptr 1
  .amdhsa_system_sgpr_workgroup_id_x 1
.end_amdhsa_kernel
"""
    return head + A.text() + tail, A.stats


if __name__ == "__main__":
    out = sys.argv[1]
    kw = {}
    for a in sys.argv[2:]:
        k, v = a.split("=")
        kw[k] = int(v) if v.lstrip("-").isdigit() else v
    s, st = gen(**kw)
    open(out, "w").write(s)
    print(out, st)
```

```python
import sys, os
sys.path.insert(0, os.path.dirname(os.path.abspath(__file__)))
from asmlib import *

KN = "gated_mix__ssm_conv_h3__dense_activation_silu__prompt"

DEF = dict(stamps=0, mapping="B", rot=0, gs=2, dist=5, p0flag=8, poll_i=60, poll_c=76, w2pace=4, hpre=12,
           spin=200000, early_w1=6)


def gen(**kw):
    O = dict(DEF)
    O.update(kw)
    A = Asm()
    GS, DIST = O["gs"], O["dist"]
    NT = "nt" if O.get("nt", 0) else ""
    NTX = "nt" if O.get("ntx", 0) else ""
    OF = O.get("of", "").replace("+", " ")

    WS_COLP0, WS_COLCV, WS_COLG, WS_ROWH, WS_ROWG, WS_G = 0x0000, 0x1000, 0x2000, 0x3000, 0x5000, 0x8000
    WS_DBG = 0x20000
    WS_KVT, WS_YT, WS_W2P, WS_H = 0x100000, 0x400000, 0x700000, 0x900000
    WS_SIZE = 0x1000000
    TP = 4224
    L_S = 81920
    L_K, L_V, L_W2 = 131072, 142336, 152576
    L_BO = 65536
    L_HB, L_UB, L_YT, L_YS, L_RED = 0, 16896, 33792, 45056, 69632
    HBP, UBP = 4224, 4128
    LDS = 163840
    sQ, sK, sV, sSH, sSK, sD, sW1, sW2, sGW, sOUT, sWS = [f"s[{8+4*i}:{11+4*i}]" for i in range(11)]
    srd = lambda n: int(n[2:].split(":")[0])
    sW, sRB, sCB, sROT = "s3", "s4", "s5", "s6"
    sT0, sT1, sT2, sT3 = "s52", "s53", "s54", "s55"
    sROWOFF = "s56"
    sW1K = "s57"
    sW2K = "s58"
    sTAGC, sTAGR = "s59", "s60"
    sCH = "s61"
    sNL2E = "s[62:63]"
    sJ = [f"s{64+i}" for i in range(10)]
    sHB = ["s74", "s75", "s76"]
    sKVO = "s77"
    sW2L = "s78"
    sSPIN = "s79"
    sHL = "s80"
    sSTAMP = 82

    nst = [0]
    names = []
    STR = [82, 84, 86, 88, 90, 92, 94, 96, 98, 64, 66, 68]
    SKIPST = O.get('nostamp', 'iss0+pre+karg+tiles').split('+')

    def stamp(name):
        if O.get("skfrom", "") == name:
            A.skip = O["skip"]
        if O.get("skto", "") == name:
            A.skip = None
        if O.get("padat", "") == name:
            A("s_memrealtime s[100:101]")
        if O["stamps"] and name not in SKIPST:
            r = STR[nst[0]]
            A(f"s_memtime s[{r}:{r+1}]")
            nst[0] += 1
            names.append(name)

    def vr(a, n=1):
        return f"v{a}" if n == 1 else f"v[{a}:{a+n-1}]"

    def ar(a, n=1):
        return f"a{a}" if n == 1 else f"a[{a}:{a+n-1}]"

    vTID, vLANE, vL16, vT = 0, 1, 2, 3
    vW1 = [4, 5, 6, 7, 8, 9]
    vTR = [10, 11, 12]
    vHS = 13
    vFL = 14
    vPO = 15

    def poll(voff, tag, soff, vres=None, n=1, issue=True, check=True):
        ld = (f"buffer_load_dword {vr(vres)}, {vr(voff)}, {sWS}, {soff} offen sc1" if n == 1 else
              f"buffer_load_dwordx2 {vr(vres,2)}, {vr(voff)}, {sWS}, {soff} offen sc1")
        if issue:
            A(ld)
        if check:
            lo, dn = A.newlabel("Lpoll"), A.newlabel("Lgot")

            def cmp():
                A(f"v_cmp_ne_u32 vcc, {tag}, {vr(vres)}")
                if n == 2:
                    A(f"v_cmp_ne_u32 s[52:53], {tag}, {vr(vres+1)}")
                    A("s_or_b64 vcc, vcc, s[52:53]")
            cmp()
            A(f"s_cbranch_vccz {dn}" if n == 1 else f"s_cbranch_scc0 {dn}")
            A.label(lo)
            A.raw("  s_sleep 1")
            A.raw("  " + ld)
            A.raw("  s_waitcnt vmcnt(0)")
            A.raw(f"  s_sub_u32 {sSPIN}, {sSPIN}, 1")
            A.raw(f"  s_cbranch_scc1 Lend")
            A.raw(f"  v_cmp_ne_u32 vcc, {tag}, {vr(vres)}")
            if n == 2:
                A.raw(f"  v_cmp_ne_u32 s[52:53], {tag}, {vr(vres+1)}")
                A.raw("  s_or_b64 vcc, vcc, s[52:53]")
            A.raw(f"  s_cbranch_vccnz {lo}" if n == 1 else f"  s_cbranch_scc1 {lo}")
            A.label(dn)

    A("s_cmp_ge_u32 s2, 256")
    A("s_cbranch_scc1 Lend")
    for s, off in ((sW2, 64), (sK, 8), (sV, 16), (sQ, 0), (sW1, 56), (sWS, 96), (sSH, 24), (sGW, 72), (sSK, 32),
                   (sD, 40), (sOUT, 80)):
        A(f"s_load_dwordx2 s[{srd(s)}:{srd(s)+1}], s[0:1], {off}")
    if O["stamps"] or O.get("padto", 0):
        A("s_memrealtime s[100:101]")
    stamp("start")
    A(f"v_lshrrev_b32 v20, 6, v0")
    A(f"v_and_b32 {vr(vLANE)}, 63, v0")
    A(f"v_readfirstlane_b32 {sW}, v20")
    if O["mapping"] == "A":
        A(f"""s_lshr_b32 {sT0}, s2, 3
              s_and_b32 {sCB}, {sT0}, 7
              s_lshr_b32 {sT0}, {sT0}, 3
              s_and_b32 {sRB}, s2, 7
              s_lshl_b32 {sRB}, {sRB}, 2
              s_add_u32 {sRB}, {sRB}, {sT0}""")
    else:
        A(f"""s_lshr_b32 {sT0}, s2, 3
              s_and_b32 {sCB}, {sT0}, 3
              s_and_b32 {sT1}, s2, 1
              s_lshl_b32 {sT1}, {sT1}, 2
              s_add_u32 {sCB}, {sCB}, {sT1}
              s_bfe_u32 {sRB}, s2, 0x20001""")
        if O.get("rbint", 1):
            A(f"""s_and_b32 {sT0}, {sT0}, 28
                  s_add_u32 {sRB}, {sRB}, {sT0}""")
        else:
            A(f"""s_lshr_b32 {sT0}, {sT0}, 2
                  s_lshl_b32 {sRB}, {sRB}, 3
                  s_add_u32 {sRB}, {sRB}, {sT0}""")
    for s, size in ((sQ, 2621440), (sK, 2621440), (sV, 2621440), (sSH, 5120), (sSK, 2621440), (sD, 1280),
                    (sW1, 1966080), (sW2, 1966080), (sGW, 1280), (sOUT, 2621440), (sWS, WS_SIZE)):
        A(f"s_mov_b32 s{srd(s)+2}, {size}")
        A(f"s_mov_b32 s{srd(s)+3}, 0x20000")
    A(f"""s_mul_i32 {sROWOFF}, {sRB}, 81920
          s_mul_i32 {sT0}, {sCB}, 160
          s_add_u32 {sROWOFF}, {sROWOFF}, {sT0}
          s_lshl_b32 {sW1K}, {sW}, 10
          s_lshl_b32 {sW2K}, {sW}, 11
          s_movk_i32 {sT1}, 6554
          s_movk_i32 {sT2}, 1120
          s_sub_u32 {sT3}, {sROWOFF}, 5120""")
    for n in range(3):
        A(f"v_add_u32 v26, {256*n}, v0") if n else A("v_mov_b32 v26, v0")
        A(f"""v_mul_u32_u24 v27, {sT1}, v26
              v_lshrrev_b32 v27, 16, v27
              v_lshlrev_b32 v26, 4, v26
              v_mad_u32_u24 v{20+n}, v27, {sT2}, v26
              v_add_u32 v{23+n}, {sT3}, v{20+n}""")
    A(f"v_lshlrev_b32 {vr(vL16)}, 4, {vr(vLANE)}")
    R = O["rot"]
    if R == 1:
        A(f"""s_mul_i32 {sT0}, {sRB}, 3
              s_add_u32 {sT0}, {sT0}, {sCB}""")
    elif R == 2:
        A(f"s_lshr_b32 {sT0}, s2, 5")
    elif R == 3:
        A(f"s_and_b32 {sT0}, s2, 7")
    elif R == 4:
        A(f"""s_lshr_b32 {sT0}, s2, 5
              s_and_b32 {sT1}, s2, 7
              s_add_u32 {sT0}, {sT0}, {sT1}""")
    elif R == 5:
        A(f"""s_bfe_u32 {sT0}, s2, 0x10005
              s_mul_i32 {sT0}, {sT0}, 5""")
    if R:
        A(f"""s_mul_i32 {sT1}, {sT0}, 6554
              s_lshr_b32 {sT1}, {sT1}, 16
              s_mul_i32 {sT1}, {sT1}, 10
              s_sub_u32 {sROT}, {sT0}, {sT1}""")
    else:
        A(f"s_mov_b32 {sROT}, 0")
    vX0, vX1 = 114, 115
    sXO, sXE = "s81", "s7"
    A(f"""v_lshrrev_b32 v26, 3, {vr(vLANE)}
          v_lshrrev_b32 v27, 4, {vr(vLANE)}
          v_and_b32 v38, 7, {vr(vLANE)}
          v_xor_b32 v39, v38, v27
          s_movk_i32 {sT0}, 1280
          s_mul_i32 {sT1}, {sW}, 20480
          v_lshlrev_b32 v39, 4, v39
          v_mad_u32_u24 v{vX0}, v26, {sT0}, v39
          v_add_u32 v{vX0}, {sT1}, v{vX0}
          v_xor_b32 v{vX1}, 64, v{vX0}
          v_add_u32 v{vX1}, {8*1280-1024}, v{vX1}
          s_mul_i32 {sXE}, {sRB}, 81920
          s_lshl_b32 {sXO}, {sROT}, 7
          s_add_u32 {sXO}, {sXO}, {sXE}
          s_add_u32 {sXE}, {sXE}, 1280""")
    A(f"""v_and_b32 v27, 1, v27
          v_lshlrev_b32 v27, 2, v27
          v_xor_b32 v39, v38, v27
          v_lshlrev_b32 v39, 4, v39
          s_movk_i32 {sT0}, 3072
          s_mul_i32 {sT1}, {sW}, 49152
          v_mad_u32_u24 v{vW1[0]}, v26, {sT0}, v39
          v_add_u32 v{vW1[0]}, {sT1}, v{vW1[0]}
          v_add_u32 v{vW1[1]}, {8*3072-1024}, v{vW1[0]}
          s_mul_i32 {sT0}, {sCB}, 384
          s_mul_i32 {sJ[0]}, {sROT}, 196608
          s_add_u32 {sJ[0]}, {sJ[0]}, {sT0}""")
    stamp("pre")
    A("s_waitcnt lgkmcnt(0)")
    stamp("karg")

    def slot(b):
        return L_S + 8192 * (b % 10)

    def w1_items(b):
        p, j = divmod(b, 10)
        return [f"s_add_u32 m0, {sW2K}, {slot(b)}",
                (f"buffer_load_dwordx4 v{vW1[2*p]}, {sW1}, {sJ[j]} offen lds", f"w1_{b}"),
                (f"buffer_load_dwordx4 v{vW1[2*p+1]}, {sW1}, {sJ[j]} offen offset:1024 lds", f"w1_{b}")]

    def x_items(j):
        it = [f"s_add_u32 m0, {sW2K}, {8192*j}"]
        if j:
            it = [f"s_add_u32 {sXO}, {sXO}, 128", f"s_cmp_ge_u32 {sXO}, {sXE}", f"s_cselect_b32 m0, 1280, 0",
                  f"s_sub_u32 {sXO}, {sXO}, m0"] + it
        it = ["\n".join(it)]
        it += [(f"buffer_load_dwordx4 v{vX0}, {sQ}, {sXO} offen {NTX} lds", f"w1_{j}"),
               (f"buffer_load_dwordx4 v{vX1}, {sQ}, {sXO} offen offset:1024 {NTX} lds", f"w1_{j}")]
        return it

    def pair(j):
        for it in x_items(j) + w1_items(j):
            put_item(A, it)

    def tile_dma(n, which):
        for s, reg, vo, so in which:
            A(f"s_add_u32 m0, {sW1K}, {reg + 4096*n}")
            A(f"buffer_load_dwordx4 v{vo+n}, {s}, {so} offen {NT} lds", "p0in")
    W2T, KT, VT = (sW2, L_W2, 20, sROWOFF), (sK, L_K, 23, "0"), (sV, L_V, 20, sROWOFF)
    PF = O.get("pairfirst", 0)
    if PF:
        pair(0)
    tile_dma(0, [W2T, KT, VT])
    tile_dma(1, [W2T, KT, VT])
    A(f"s_cmp_ge_u32 {sW}, 3")
    A.begin_opt("s_cbranch_scc1", settle=False)
    tile_dma(2, [KT])
    A.end_opt()
    A(f"s_cmp_ge_u32 {sW}, 2")
    A.begin_opt("s_cbranch_scc1", settle=False)
    tile_dma(2, [W2T, VT])
    A.end_opt()

    stamp("tiles")
    vCT, vI16, vR, vCHL = 28, 29, 30, 31
    A(f"""v_lshrrev_b32 v26, 4, v0
          v_mul_u32_u24 v27, 52, v26
          v_lshrrev_b32 v27, 8, v27
          v_mul_u32_u24 v{vR}, 5, v27
          v_sub_u32 v{vCT}, v26, v{vR}
          v_mul_u32_u24 v{vR}, 24, v27
          v_min_u32 v{vR}, 40, v{vR}
          v_and_b32 v{vI16}, 15, v0
          v_lshl_add_u32 v{vCHL}, v{vCT}, 4, v{vI16}
          v_lshlrev_b32 v26, 3, v{vCHL}
          s_mul_i32 {sT0}, {sCB}, 640""")
    vSH = 168
    A(f"buffer_load_dwordx2 v[{vSH}:{vSH+1}], v26, {sSH}, {sT0} offen", "p0in")
    if not PF:
        pair(0)
    stamp("iss0")

    A(f"""v_add_u32 v{vW1[2]}, 128, v{vW1[0]}
          v_add_u32 v{vW1[3]}, 128, v{vW1[1]}
          v_add_u32 v{vW1[4]}, 256, v{vW1[0]}
          v_add_u32 v{vW1[5]}, 256, v{vW1[1]}""")
    for j in range(1, 10):
        A(f"""s_add_u32 {sJ[j]}, {sJ[j-1]}, 196608
              s_cmp_ge_u32 {sJ[j]}, 1966080
              s_cselect_b32 {sT0}, 1966080, 0
              s_sub_u32 {sJ[j]}, {sJ[j]}, {sT0}""")
    vGW = 130
    vGWA = 154
    A(f"""v_bfe_u32 v52, {vr(vLANE)}, 3, 2
          v_add_u32 v53, {sROT}, v52""")
    for n in range(3):
        A(f"""v_add_u32 v54, {4*n}, v53
              v_subrev_u32 v55, 10, v54
              v_min_u32 v54, v54, v55
              v_lshlrev_b32 v54, 7, v54
              v_lshl_add_u32 v{vGWA+n}, v38, 4, v54""")
        if n == 2:
            A(f"""v_lshrrev_b32 v55, 1, v52
                  v_lshl_add_u32 v{vGWA+n}, v55, 16, v{vGWA+n}""")
    vKA, vBW, vBR, vRA, vRB_ = 158, 159, 160, 161, 162
    A(f"""v_lshrrev_b32 v26, 2, v{vI16}
          v_add_u32 v26, v26, v{vR}
          v_mul_u32_u24 v26, 160, v26
          v_and_b32 v27, 3, v0
          v_lshl_add_u32 v26, v27, 3, v26
          v_lshl_add_u32 v26, v{vCT}, 5, v26
          v_add_u32 v{vKA}, {L_K}, v26
          v_mul_u32_u24 v26, 144, v{vCHL}
          v_lshl_add_u32 v26, v{vR}, 1, v26
          v_add_u32 v{vBW}, {L_BO}, v26
          v_lshrrev_b32 v26, 3, v0
          v_mul_u32_u24 v54, 144, v26
          v_lshl_add_u32 v54, v38, 4, v54
          v_add_u32 v{vBR}, {L_BO}, v54
          v_mul_u32_u24 v54, {TP}, v26
          v_lshl_add_u32 {vr(vT)}, v38, 4, v54""")
    A(f"""v_lshrrev_b32 v26, 5, {vr(vLANE)}
          v_lshlrev_b32 v26, 4, v26
          v_bfe_u32 v54, {vr(vLANE)}, 2, 3
          v_add_u32 v26, v26, v54
          v_mul_u32_u24 v26, 160, v26
          s_and_b32 {sT0}, {sW}, 1
          s_mul_i32 {sT0}, {sT0}, 5120
          s_add_u32 {sT0}, {sT0}, {L_W2}
          s_lshr_b32 {sT1}, {sW}, 1
          s_lshl_b32 {sT1}, {sT1}, 6
          v_add_u32 v26, {sT0}, v26
          v_lshl_add_u32 v{vRB_}, v27, 3, v26
          v_lshl_add_u32 v{vRA}, v27, 4, v26
          v_add_u32 v{vRA}, {sT1}, v{vRA}""")
    A(f"""v_lshrrev_b32 v26, 5, {vr(vLANE)}
          v_lshlrev_b32 v26, 10, v26
          v_bfe_u32 v54, {vr(vLANE)}, 2, 2
          v_lshl_add_u32 v26, v54, 7, v26
          v_bfe_u32 v54, {vr(vLANE)}, 3, 1
          v_lshlrev_b32 v54, 6, v54
          v_xor_b32 v54, {sT1}, v54
          v_add_u32 v26, v26, v54
          v_bfe_u32 v54, {vr(vLANE)}, 4, 1
          v_lshl_add_u32 v26, v54, 5, v26
          v_lshl_add_u32 v26, v27, 3, v26
          v_add_u32 v{vTR[1]}, 65536, v26
          v_add_u32 v{vTR[2]}, 131072, v26""")
    A(f"""v_lshrrev_b32 v26, 5, {vr(vLANE)}
          v_lshlrev_b32 v26, 8, v26
          v_lshl_add_u32 v26, v{vI16}, 4, v26
          v_mul_u32_u24 v54, 49152, v54
          v_add_u32 v{vHS}, v26, v54
          s_mul_i32 {sHB[0]}, {sRB}, 196608
          s_and_b32 {sT0}, {sW}, 1
          s_mul_i32 {sT0}, {sT0}, 98304
          s_add_u32 {sHB[0]}, {sHB[0]}, {sT0}
          s_mul_i32 {sT0}, {sCB}, 6144
          s_add_u32 {sHB[0]}, {sHB[0]}, {sT0}
          s_lshl_b32 {sT1}, {sT1}, 4
          s_add_u32 {sHB[0]}, {sHB[0]}, {sT1}
          s_add_u32 {sHB[0]}, {sHB[0]}, {WS_H}
          s_add_u32 {sHB[1]}, {sHB[0]}, 2048
          s_add_u32 {sHB[2]}, {sHB[0]}, 4096
          s_mul_i32 {sKVO}, {sCB}, {80*TP}
          s_lshl_b32 {sT0}, {sRB}, 7
          s_add_u32 {sKVO}, {sKVO}, {sT0}
          s_mul_i32 {sCH}, {sCB}, 80
          s_lshl_b32 {sT0}, {sRB}, 2
          s_add_u32 {sCH}, {sCH}, {sT0}
          s_add_u32 {sCH}, {sCH}, {sW}
          s_cmp_lt_u32 {sRB}, 20
          s_cselect_b32 {sCH}, {sCH}, 0x4000
          s_mov_b32 s62, 0xbfb8aa3b
          s_mov_b32 s63, 0xbfb8aa3b
          s_mov_b32 {sSPIN}, {O["spin"]}""")
    A(f"""v_cmp_eq_u32 vcc, 0, {vr(vLANE)}
          v_mov_b32 v26, 0x7ff00000
          v_cndmask_b32 v{vFL}, v26, {vr(vLANE)}, vcc""")
    vXA = 116
    A(f"""v_and_b32 v26, 31, {vr(vLANE)}
          v_lshlrev_b32 v26, 7, v26
          v_lshrrev_b32 v54, 5, {vr(vLANE)}
          v_lshrrev_b32 v55, 1, v{vI16}
          v_xor_b32 v54, v54, v55
          v_lshl_add_u32 v26, v54, 4, v26
          s_and_b32 {sT0}, {sW}, 1
          s_lshl_b32 {sT0}, {sT0}, 12
          v_add_u32 v{vXA}, {sT0}, v26""")
    for ks in range(1, 4):
        A(f"v_xor_b32 v{vXA+ks}, {ks<<5}, v{vXA}")
    for ks in range(4):
        A(f"v_add_u32 v{vXA+4+ks}, 65536, v{vXA+ks}")
    vQA = 124
    A(f"""v_lshrrev_b32 v26, 4, {vr(vLANE)}
          s_mul_i32 {sT0}, {sCB}, 10
          v_lshlrev_b32 v72, 7, v{vI16}
          v_add_u32 v72, {sW2K}, v72""")
    for n in range(3):
        if n < 2:
            A(f"""s_add_u32 {sT1}, {sT0}, {4*n}
                  v_add_u32 v54, {sT1}, v26""")
        else:
            A(f"""s_add_u32 {sT1}, {sT0}, 8
                  v_lshrrev_b32 v54, 1, v26
                  v_add_u32 v54, {sT1}, v54""")
        A(f"""v_lshrrev_b32 v73, 3, v54
              v_subrev_u32 v73, {sROT}, v73
              v_add_u32 v74, 10, v73
              v_min_u32 v73, v73, v74
              v_and_b32 v54, 7, v54
              v_xor_b32 v54, v54, v55
              v_lshl_add_u32 v54, v54, 4, v72
              v_lshl_add_u32 v{vQA+n}, v73, 13, v54""")
    A(f"""v_and_b32 v26, 1, v26
          v_lshl_add_u32 v{vQA+2}, v26, 3, v{vQA+2}""")
    vGA = 127
    A(f"""s_lshl_b32 {sT0}, {sCB}, 2
          s_add_u32 {sT0}, {sT0}, {sW}
          s_and_b32 {sT1}, {sT0}, 7
          s_lshl_b32 {sT0}, {sT0}, 8
          v_xor_b32 v26, {sT1}, v38
          v_lshlrev_b32 v26, 4, v26
          v_lshrrev_b32 v54, 5, {vr(vLANE)}
          v_lshl_add_u32 v26, v54, 7, v26
          v_add_u32 v26, {sT0}, v26
          v_lshl_add_u32 v{vGA}, v52, 13, v26
          v_and_b32 v54, 1, v52
          v_lshl_add_u32 v26, v54, 13, v26
          v_add_u32 v{vGA+1}, 65536, v26""")
    sWA, sWB = sW2L, sHL
    A(f"""s_mul_i32 {sT0}, {sCB}, 48
          s_lshl_b32 {sT1}, {sRB}, 1
          s_add_u32 {sT0}, {sT0}, {sT1}
          s_and_b32 {sT1}, {sW}, 1
          s_add_u32 {sT0}, {sT0}, {sT1}
          s_mul_i32 {sT0}, {sT0}, 5120
          s_add_u32 {sT0}, {sT0}, {WS_W2P}
          s_cmp_lt_u32 {sRB}, 24
          s_cselect_b32 {sT0}, {sT0}, 0x7f000000
          s_and_b32 {sT1}, {sW}, 2
          s_lshl_b32 {sWA}, {sT1}, 10
          s_add_u32 {sWA}, {sWA}, {sT0}
          s_add_u32 {sWB}, {sT0}, 4096
          s_cmp_eq_u32 {sT1}, 0
          s_cselect_b32 {sWB}, {sWB}, 0x7f000000""")
    stamp("calc")
    NPRE_P = O.get("prepairs", 3)
    for j in range(1, NPRE_P):
        pair(j)
    vG0, vG1 = 170, 171
    A(f"""s_lshl_b32 {sT0}, {sCB}, 8
          s_lshl_b32 {sT1}, {sRB}, 8
          s_add_u32 {sT0}, {sT0}, {WS_COLG}
          s_add_u32 {sT1}, {sT1}, {WS_ROWG}""")
    A(f"buffer_load_dword v{vG0}, off, {sWS}, {sT0} sc1")
    A(f"buffer_load_dword v{vG1}, off, {sWS}, {sT1} sc1")
    stamp("issued")

    A.wait("p0in")
    A("s_barrier")
    stamp("p0in")
    vWT = 172
    vP = 184
    vVV = 198
    vO = 210
    vE = 222
    for m in range(7):
        A(f"ds_read_b64_tr_b16 v[{vP+2*m}:{vP+2*m+1}], v{vKA} offset:{640*m}")
        if m < 6:
            A(f"ds_read_b64_tr_b16 v[{vVV+2*m}:{vVV+2*m+1}], v{vKA} offset:{640*m + L_V - L_K}")
    for i, (va, off) in enumerate(((vRA, 0), (vRA, 8), (vRB_, 128))):
        A(f"ds_read_b64_tr_b16 v[{vWT+4*i}:{vWT+4*i+1}], v{va} offset:{off}")
        A(f"ds_read_b64_tr_b16 v[{vWT+4*i+2}:{vWT+4*i+3}], v{va} offset:{off+1280}")
    vWa, vWb, vWc, vWd, vWe = 163, 164, 165, 166, 167
    A(f"""s_mov_b32 {sT0}, 0xffff
          v_and_b32 v{vWa}, 0xffff, v{vSH}
          v_bfi_b32 v{vWb}, {sT0}, v{vSH+1}, v{vSH}
          v_and_b32 v{vWc}, 0xffff0000, v{vSH+1}
          v_alignbit_b32 v{vWd}, v{vSH}, v{vSH}, 16
          v_alignbit_b32 v{vWe}, v{vSH+1}, v{vSH+1}, 16""")
    w2st = [(f"buffer_store_dwordx4 v[{vWT}:{vWT+3}], {vr(vL16)}, {sWS}, {sWA} offen sc1", "p0out"),
            (f"buffer_store_dwordx4 v[{vWT+4}:{vWT+7}], {vr(vL16)}, {sWS}, {sWA} offen offset:1024 sc1", "p0out"),
            (f"buffer_store_dwordx4 v[{vWT+8}:{vWT+11}], {vr(vL16)}, {sWS}, {sWB} offen sc1", "p0out")]
    NP0_P = O.get("p0pairs", 6)
    mem = []
    for j in range(NPRE_P, NP0_P):
        mem += [x_items(j), w1_items(j)]
    if O.get("w2st_early", 0):
        mem = [[x] for x in w2st] + mem
        w2st = []
    for o in range(13):
        e = vE + 4 * (o & 1) * 2
        if o < 12:
            A(f"""v_dot2_f32_bf16 v{e}, v{vP+o+2}, v{vWa}, 0
                  v_dot2_f32_bf16 v{e+1}, v{vP+o+2}, v{vWd}, 0
                  v_dot2_f32_bf16 v{e}, v{vP+o+1}, v{vWb}, v{e}
                  v_dot2_f32_bf16 v{e+1}, v{vP+o+1}, v{vWe}, v{e+1}
                  v_dot2_f32_bf16 v{e}, v{vP+o}, v{vWc}, v{e}
                  v_lshlrev_b32 v{e+2}, 16, v{vVV+o}
                  v_and_b32 v{e+3}, 0xffff0000, v{vVV+o}""")
        if o > 0:
            e = vE + 4 * ((o - 1) & 1) * 2
            A(f"""v_pk_mul_f32 v[{e}:{e+1}], v[{e}:{e+1}], v[{e+2}:{e+3}]
                  v_cvt_pk_bf16_f32 v{vO+o-1}, v{e}, v{e+1}""")
            if o % 4 == 0:
                i = o // 4 - 1
                A(f"ds_write_b128 v{vBW}, v[{vO+4*i}:{vO+4*i+3}] offset:{16*i}", "bo")
        k = -(-len(mem) // (13 - o))
        if o % 2 == 1 or len(mem) >= 13 - o:
            for _ in range(min(k, len(mem))):
                for it in mem.pop(0):
                    put_item(A, it)
    stamp("p0done")

    def bo_reads():
        for n in range(3):
            A(f"ds_read_b128 v[{vP+4*n}:{vP+4*n+3}], v{vBR} offset:{4608*n}")

    sKA = [sT0, sT1, sT2]
    kvst = [f"s_add_u32 {sT3}, {sKVO}, {WS_KVT}",
            (f"buffer_store_dwordx4 v[{vP}:{vP+3}], {vr(vT)}, {sWS}, {sT3} offen sc1", "p0out"),
            f"s_add_u32 {sT3}, {sKVO}, {WS_KVT + 32*TP}",
            (f"buffer_store_dwordx4 v[{vP+4}:{vP+7}], {vr(vT)}, {sWS}, {sT3} offen sc1", "p0out"),
            f"s_add_u32 {sT3}, {sKVO}, {WS_KVT + 64*TP}\ns_cmp_lt_u32 {sW}, 2\ns_cselect_b32 {sT3}, {sT3}, 0x7f000000",
            (f"buffer_store_dwordx4 v[{vP+8}:{vP+11}], {vr(vT)}, {sWS}, {sT3} offen sc1", "p0out")]

    vGX = 142
    gw_ld = [f"buffer_load_dwordx4 v[{vGW+4*n}:{vGW+4*n+3}], v{vGWA+n}, {sGW}, 0 offen" for n in range(3)]
    qg = [(f"ds_read_b128 v[{vGX}:{vGX+3}], v{vGA}", "xrd"),
          (f"ds_read_b128 v[{vGX+4}:{vGX+7}], v{vGA} offset:32768", "xrd"),
          (f"ds_read_b128 v[{vGX+8}:{vGX+11}], v{vGA+1}", "xrd"),
          (f"ds_read_b128 a[240:243], v{vQA}", "xrd"),
          (f"ds_read_b128 a[244:247], v{vQA+1}", "xrd"),
          (f"ds_read_b64 a[248:249], v{vQA+2}", "xrd")]
    gops = []
    g0, g1, g2 = 154, 155, 156
    for i in range(12):
        gops.append(f"v_dot2_f32_bf16 v{g0}, v{vGX+i}, v{vGW+i}, " + ("0" if i == 0 else f"v{g0}"))
    for m in ("quad_perm:[1,0,3,2]", "quad_perm:[2,3,0,1]", "row_half_mirror", "row_mirror"):
        gops.append(f"v_add_f32_dpp v{g0}, v{g0}, v{g0} {m} row_mask:0xf bank_mask:0xf")
    gops.append(f"v_add_f32_dpp v{g0}, v{g0}, v{g0} row_bcast:15 row_mask:0xa bank_mask:0xf")
    gops += [f"v_mul_f32 v{g0}, s62, v{g0}", f"v_exp_f32 v{g0}, v{g0}", f"v_add_f32 v{g0}, 1.0, v{g0}", f"v_rcp_f32 v{g0}, v{g0}"]
    sGO = sXE
    gops += [f"v_and_b32 v{g1}, 31, {vr(vLANE)}", f"v_mov_b32 v{g2}, 0x7ff00000\nv_cmp_eq_u32 vcc, 31, v{g1}\nv_lshrrev_b32 v{g1}, 5, {vr(vLANE)}\n"
             f"v_lshlrev_b32 v{g1}, 2, v{g1}\nv_cndmask_b32 v{g1}, v{g2}, v{g1}, vcc",
             f"s_lshl_b32 {sGO}, {sRB}, 8\ns_lshl_b32 {sXO}, {sCB}, 5\ns_add_u32 {sGO}, {sGO}, {sXO}",
             f"s_lshl_b32 {sXO}, {sW}, 3\ns_add_u32 {sGO}, {sGO}, {sXO}\ns_add_u32 {sGO}, {sGO}, {WS_G}",
             (f"buffer_store_dword v{g0}, v{g1}, {sWS}, {sGO} offen sc1", "hout")]

    vACC = [16, 32]
    NB = 8
    vFR = 48
    vS = 80
    vHO = 96
    vPO = 104
    vPA = 106
    vZ = 107
    vDD = 108
    vGAD, vHAD, vUAD, vYW = 109, 110, 111, 112

    def fr_reads(n):
        b, ks = divmod(n, 4)
        a = slot(b) + 2048 * ks
        base, off = vTR[a >> 16], a & 0xffff
        f = vFR + 4 * (n % NB)
        r = [f"ds_read_b64_tr_b16 v[{f}:{f+1}], v{base} offset:{off}",
             f"ds_read_b64_tr_b16 v[{f+2}:{f+3}], v{base} offset:{off+512}"]
        if n < 40:
            va, off = (vXA + ks, 8192 * b) if b < 8 else (vXA + 4 + ks, 8192 * (b - 8))
            r.append(f"ds_read_b128 {ar(4*n,4)}, v{va} offset:{off}")
        return r

    GS0 = O.get("gs0", 1)
    starts = list(range(0, 10, GS0)) + list(range(10, 30, GS))
    grp_of = {}
    for gi_, st_ in enumerate(starts):
        en_ = starts[gi_ + 1] if gi_ + 1 < len(starts) else 30
        for b_ in range(st_, en_):
            grp_of[b_] = gi_
    extra_tags = {}

    def group_sync(g):
        def f():
            tags = [f"w1_{b}" for b in range(30) if grp_of[b] == g] + extra_tags.get(g, [])
            if g == grp_of[O["p0flag"]]:
                tags.append("p0out")
            A.wait(*tags)
            A("s_barrier")
            if g == grp_of[O["p0flag"]]:
                A(f"""v_readfirstlane_b32 {sTAGC}, v{vG0}
                      v_readfirstlane_b32 {sTAGR}, v{vG1}
                      s_mul_i32 {sTAGC}, {sTAGC}, 0x2C9277B5
                      s_mul_i32 {sTAGR}, {sTAGR}, 0x2C9277B5
                      s_add_u32 {sTAGC}, {sTAGC}, 0xAC564B05
                      s_add_u32 {sTAGR}, {sTAGR}, 0xAC564B05
                      s_lshl_b32 {sT0}, {sCB}, 8
                      s_lshl_b32 {sT1}, {sRB}, 2
                      s_add_u32 {sT0}, {sT0}, {sT1}
                      s_cmp_eq_u32 {sW}, 0
                      s_cselect_b32 {sT0}, {sT0}, 0x7f000000
                      v_mov_b32 v{vZ}, {sTAGC}""")
                A(f"buffer_store_dword v{vZ}, v{vFL}, {sWS}, {sT0} offen sc1")
        return f

    def silu_ops(p):
        ac = vACC[p & 1]
        ops = []
        for h in range(0, 8, 2):
            t0, t1 = vS + 4 * ((h >> 1) & 1), vS + 4 * ((h >> 1) & 1) + 2
            z0, z1 = ac + 2 * h, ac + 2 * h + 2
            ops += [(1, f"v_pk_mul_f32 v[{t0}:{t0+1}], v[{z0}:{z0+1}], {sNL2E}"),
                    (1, f"v_pk_mul_f32 v[{t1}:{t1+1}], v[{z1}:{z1+1}], {sNL2E}"),
                    (2, f"v_exp_f32 v{t0}, v{t0}"), (2, f"v_exp_f32 v{t0+1}, v{t0+1}"),
                    (2, f"v_exp_f32 v{t1}, v{t1}"), (2, f"v_exp_f32 v{t1+1}, v{t1+1}"),
                    (1, f"v_pk_add_f32 v[{t0}:{t0+1}], v[{t0}:{t0+1}], 1.0 op_sel_hi:[1,0]"),
                    (1, f"v_pk_add_f32 v[{t1}:{t1+1}], v[{t1}:{t1+1}], 1.0 op_sel_hi:[1,0]"),
                    (2, f"v_rcp_f32 v{t0}, v{t0}"), (2, f"v_rcp_f32 v{t0+1}, v{t0+1}"),
                    (2, f"v_rcp_f32 v{t1}, v{t1}"), (2, f"v_rcp_f32 v{t1+1}, v{t1+1}"),
                    (1, f"v_pk_mul_f32 v[{t0}:{t0+1}], v[{t0}:{t0+1}], v[{z0}:{z0+1}]"),
                    (1, f"v_pk_mul_f32 v[{t1}:{t1+1}], v[{t1}:{t1+1}], v[{z1}:{z1+1}]"),
                    (1, f"v_cvt_pk_bf16_f32 v{vHO+h}, v{t0}, v{t0+1}"),
                    (1, f"v_cvt_pk_bf16_f32 v{vHO+h+1}, v{t1}, v{t1+1}")]
            if h in (2, 6):
                r = h >> 2
                ops.append((1, (f"buffer_store_dwordx4 v[{vHO+4*r}:{vHO+4*r+3}], v{vHS}, {sWS}, {sHB[p]} offen offset:{512*r} sc1", "hout")))
        return ops

    def w2reg(i):
        return (4 * i + 160) % 240

    def w2_items(i):
        it = []
        if i % 4 == 0 and i:
            it.append(f"s_add_u32 {sW2L}, {sW2L}, 4096")
        it.append(f"buffer_load_dwordx4 {ar(w2reg(i),4)}, {vr(vL16)}, {sWS}, {sW2L} offen offset:{1024*(i%4)} sc1")
        return it

    extra_tags[0] = ["bo"]
    group_sync(0)()
    stamp("g1start")
    bo_reads()
    synced = {0}
    sync_at = {0: -2}
    for n in range(DIST):
        g = grp_of[n // 4]
        if g not in synced:
            A.waitall(vm=False)
            group_sync(g)(); synced.add(g); sync_at[g] = -1
        for r in fr_reads(n):
            A(r)
    anchors = []
    for n in range(120):
        p, k = divmod(n, 40)
        ac = vACC[p & 1]
        f = vFR + 4 * (n % NB)
        grp = [f"v_mfma_f32_32x32x16_bf16 v[{ac}:{ac+15}], v[{f}:{f+3}], {ar(4*k,4)}, " + ("0" if k == 0 else f"v[{ac}:{ac+15}]")]
        m = n + DIST
        if m < 120:
            g = grp_of[m // 4]
            if g not in synced:
                grp.append(group_sync(g)); synced.add(g); sync_at[g] = n
            grp += fr_reads(m)
        if n in (39, 79) and O.get("pstamp", 0):
            grp.append((lambda nm: (lambda: stamp(nm)))(f"pass{n//40}"))
        anchors.append(grp)
    sync_after = lambda n: min(v for v in sync_at.values() if v >= n)
    free_at = lambda b: sync_after(4 * b + 3)
    dma = []
    LA = O.get("la", 40)
    st_list = [[x] for x in w2st] + [kvst[0:2], kvst[2:4], kvst[4:6]]
    SP = O.get("stpace", 0)
    for b in range(NP0_P, 30):
        lat = sync_at[grp_of[b]]
        e = 0 if b < 10 else free_at(b - 10)
        e = max(e, lat - LA)
        its = w1_items(b)
        if b < 10:
            its = x_items(b) + its
            if b >= 8:
                e = max(e, sync_after(0))
        for it in its:
            dma.append(dict(e=e, l=lat, it=it))
        if b == 9:
            for it in gw_ld:
                dma.append(dict(e=e, l=lat, it=it))
        if b + 1 >= O.get("st_at", 6):
            for _ in range(O.get("st_n", 6)):
                if st_list:
                    for it in st_list.pop(0):
                        dma.append(dict(e=e, l=sync_at[grp_of[O["p0flag"]]], it=it))
    if O.get("st_at", 6) <= NP0_P:
        pass
    e_q = sync_at[grp_of[9]]
    qs = [dict(e=e_q, it=x) for x in qg]
    g_free = min(g for g in sync_at if sync_at[g] >= e_q + 8)
    extra_tags[g_free] = ["xrd"]
    for d in qs:
        d["l"] = sync_at[g_free]
    qs += [dict(e=e_q + 3, it=x) for x in gops]
    x_free = max(sync_at[g_free], free_at(9))
    pi = O["poll_i"]

    def ins_at(e, items):
        pos = next((i for i, d in enumerate(dma) if d["e"] > e), len(dma))
        dma[pos:pos] = [dict(e=e, it=x) for x in items]
    pl = [f"v_and_b32 v{vPA}, 31, {vr(vLANE)}", f"v_lshlrev_b32 v{vPA}, 2, v{vPA}", f"s_lshl_b32 {sHL}, {sCB}, 8",
          lambda: poll(vPA, sTAGC, sHL, vPO, check=False)]
    ins_at(pi, pl)
    e_h = max(x_free, O.get('hin_at', 50))
    e_u = x_free
    misc = [f"s_mul_i32 {sT2}, {sW}, {HBP}", f"v_min_u32 v{vGAD}, 23, {vr(vLANE)}",
            f"v_lshlrev_b32 v{vGAD}, 2, v{vGAD}", f"v_mov_b32 v{vZ}, 0", f"v_add_u32 v{vGAD}, {sT2}, v{vGAD}",
            f"v_mov_b32 v{vDD}, 0",
            (f"ds_write_b32 v{vGAD}, v{vZ} offset:{L_HB}", "pad"),
            f"s_add_u32 m0, {sT2}, {L_HB+96}", f"s_lshl_b32 {sT3}, {sCH}, 12"]
    misc += [(f"buffer_load_dwordx4 {vr(vL16)}, {sSK}, {sT3} offen offset:{1024*i} {NT} lds", "hin") for i in range(4)]
    misc += [f"s_lshl_b32 {sT3}, {sCH}, 1", f"buffer_load_short_d16_hi v{vDD}, off, {sD}, {sT3}"]
    misc += [f"v_and_b32 v{vGAD}, 3, {vr(vLANE)}", f"v_lshrrev_b32 v{vHAD}, 4, {vr(vLANE)}",
             f"v_bfe_u32 v{vUAD}, {vr(vLANE)}, 2, 2", f"v_add_u32 v{vYW}, v{vGAD}, v{vHAD}",
             f"v_lshlrev_b32 v{vYW}, 5, v{vYW}", f"v_lshl_add_u32 v{vYW}, v{vUAD}, 3, v{vYW}",
             f"v_sub_u32 v{vGAD}, v{vGAD}, v{vUAD}", f"v_lshlrev_b32 v{vHAD}, 2, v{vHAD}",
             f"v_sub_u32 v{vHAD}, v{vGAD}, v{vHAD}", f"v_add_u32 v{vGAD}, {sT2}, v{vYW}",
             f"s_mul_i32 {sT2}, {sW}, {UBP}", f"s_add_u32 {sT3}, {sT2}, {L_UB+128}",
             f"v_lshlrev_b32 v{vHAD}, 3, v{vHAD}", f"v_add_u32 v{vHAD}, {sT3}, v{vHAD}",
             f"v_lshlrev_b32 v{vYW}, 1, {vr(vLANE)}", f"s_add_u32 {sT3}, {sT2}, {L_UB+32}",
             f"v_add_u32 v{vUAD}, {sT3}, v{vYW}", f"s_lshl_b32 {sT3}, {sW}, 12",
             f"s_add_u32 {sT3}, {sT3}, {L_YS}", f"v_add_u32 v{vYW}, {sT3}, v{vYW}"]
    ins_at(e_h, misc)
    pc = max(O["poll_c"], e_u, e_h)

    def col_ok():
        poll(vPA, sTAGC, sHL, vPO, issue=False)
        A(f"""s_add_u32 {sT0}, {sHL}, {WS_COLG}
              s_or_b32 {sT1}, {sRB}, {sW}
              s_cmp_eq_u32 {sT1}, 0
              s_cselect_b32 {sT0}, {sT0}, 0x7f000000
              v_mov_b32 v{vPO}, {sTAGC}""")
        A(f"buffer_store_dword v{vPO}, v{vFL}, {sWS}, {sT0} offen sc1")
    misc2 = [col_ok, f"v_and_b32 v{vPA}, 7, {vr(vLANE)}", f"s_mul_i32 {sT2}, {sW}, {UBP}",
             f"v_lshlrev_b32 v{vPA}, 2, v{vPA}", f"v_add_u32 v{vPA}, {sT2}, v{vPA}",
             (f"ds_write_b32 v{vPA}, v{vZ} offset:{L_UB}", "pad"),
             f"s_add_u32 m0, {sT2}, {L_UB+32}", f"s_mul_i32 {sT3}, {sCH}, {TP}", f"s_add_u32 {sT3}, {sT3}, {WS_KVT}"]
    misc2 += [(f"buffer_load_dwordx4 {vr(vL16)}, {sWS}, {sT3} offen offset:{1024*i} sc1 lds", "uin") for i in range(4)]
    misc2 += [f"s_mul_i32 {sW2L}, {sCB}, {48*5120}", f"s_mul_i32 {sT3}, {sW}, {12*5120}",
              f"s_add_u32 {sW2L}, {sW2L}, {sT3}", f"s_add_u32 {sW2L}, {sW2L}, {WS_W2P}"]
    ins_at(pc, misc2)
    NW2_G1 = O.get("w2g1", 12)
    w2s = max(pc + 2, max(d["e"] for d in dma), O.get("w2start", 0))
    for i in range(NW2_G1):
        for x in w2_items(i):
            e = w2s + (i * O.get("w2p1", 5)) // 2
            if i >= 20:
                e = max(e, 80 + i - 20 + 1)
            dma.append(dict(e=min(e, 119), it=x))
    sil = []
    for p in range(2):
        for c, x in silu_ops(p):
            sil.append(dict(e=40 * (p + 1) + 2, l=40 * (p + 2), c=c, it=x))
    left = weave2(A, anchors, [dma, qs, sil], O.get("cap1", 3))
    drain(A, left)
    stamp("g1end")

    vG = 114
    vH = 178
    NA = 8
    vCA = 16
    vP2 = [244, 245, 246]
    vP1 = [247, 248, 249]
    vY = [250, 251]
    vU = [252, 253, 254]
    vYO = 96
    vCV = 255
    Hreg = lambda b: vH + 2 * (31 - b)
    rd = []
    for n in range(32):
        rd.append((n, f"ds_read_b64_tr_b16 v[{Hreg(n)}:{Hreg(n)+1}], v{vHAD} offset:{128*n}"))
        if n % 2 == 0:
            for x in (n, n + 1):
                rd.append((n, f"ds_read_b64_tr_b16 v[{vG+2*x}:{vG+2*x+1}], v{vGAD} offset:{L_HB+128*x}"))
    A.wait("hin", "uin", "pad")
    so = silu_ops(2)
    NPRE = 24
    ri = 0
    for i, (c, x) in enumerate(so):
        put_item(A, x)
        if i >= 8 and i % 2 == 0 and ri < NPRE:
            A(rd[ri][1]); ri += 1
    for r in (Hreg(-1), Hreg(-1) + 1, vP2[2], vP1[2], vU[0], vU[1], vU[2], vZ):
        A(f"v_mov_b32 v{r}, 0")
    stamp("silu2")

    vHF = 48
    vL16b, vL16c = 4, 5

    def hload(ph, kk, dst):
        vo = (vL16, vL16b, vL16c)[kk // 4]
        return f"buffer_load_dwordx4 v[{dst}:{dst+3}], v{vo}, {sWS}, {sHL} offen offset:{1024*(kk%4)} sc1"

    def hbase(ph):
        return [f"s_add_u32 {sT0}, {sW}, {1+ph}", f"s_and_b32 {sT0}, {sT0}, 3", f"s_mul_i32 {sT0}, {sT0}, 49152",
                f"s_add_u32 {sHL}, {sT0}, {sHB[0]}"]

    def h_flag():
        A.wait("hout")
        A(f"""s_lshl_b32 {sT0}, {sRB}, 8
              s_lshl_b32 {sT1}, {sCB}, 4
              s_add_u32 {sT0}, {sT0}, {WS_ROWH}
              s_add_u32 {sT1}, {sT1}, {sT0}
              s_lshl_b32 {sT2}, {sW}, 2
              s_add_u32 {sT1}, {sT1}, {sT2}
              v_mov_b32 v{vPO}, {sTAGR}""")
        A(f"buffer_store_dword v{vPO}, v{vFL}, {sWS}, {sT1} offen sc1")

    def row_poll_issue():
        A(f"""v_and_b32 v{vPA}, 31, {vr(vLANE)}
              s_lshl_b32 {sHB[1]}, {sRB}, 8
              v_lshlrev_b32 v{vPA}, 2, v{vPA}
              s_add_u32 {sHB[1]}, {sHB[1]}, {WS_ROWH}""")
        poll(vPA, sTAGR, sHB[1], vPO, check=False)

    vGT = 6
    def row_ok():
        poll(vPA, sTAGR, sHB[1], vPO, issue=False)
        A(f"""s_add_u32 {sT0}, {sHB[1]}, {WS_ROWG - WS_ROWH}
              s_or_b32 {sT1}, {sCB}, {sW}
              s_cmp_eq_u32 {sT1}, 0
              s_cselect_b32 {sT0}, {sT0}, 0x7f000000
              v_mov_b32 v{vPO}, {sTAGR}
              v_add_u32 v{vL16b}, 4096, {vr(vL16)}
              v_add_u32 v{vL16c}, 8192, {vr(vL16)}""")
        A(f"buffer_store_dword v{vPO}, v{vFL}, {sWS}, {sT0} offen sc1")
        A(f"""s_mul_i32 {sHB[0]}, {sRB}, 196608
              s_mul_i32 {sT0}, {sW}, 12288
              s_add_u32 {sHB[0]}, {sHB[0]}, {sT0}
              s_add_u32 {sHB[0]}, {sHB[0]}, {WS_H}
              v_and_b32 v{vPA}, 15, {vr(vLANE)}
              s_lshl_b32 {sT0}, {sRB}, 8
              s_lshl_b32 {sT1}, {sW}, 6
              v_lshlrev_b32 v{vPA}, 2, v{vPA}
              s_add_u32 {sT0}, {sT0}, {sT1}
              s_add_u32 {sT0}, {sT0}, {WS_G}""")
        A(f"buffer_load_dword v{vGT}, v{vPA}, {sWS}, {sT0} offen sc1")
        for x in hbase(0):
            A(x)

    PACE = O["w2pace"]
    common = []
    t = 4
    for i in range(NW2_G1, 60):
        if i == NW2_G1 + O.get("hflag_after", 8):
            common.append(dict(e=t, it=h_flag))
        if i == O.get("rowpoll_at", 52):
            common.append(dict(e=t, it=row_poll_issue))
        for x in w2_items(i):
            common.append(dict(e=t, it=x))
        t += PACE
    t += O.get("rowok_gap", 16)
    common.append(dict(e=t, it=row_ok))
    for kk in range(O["hpre"]):
        t += PACE
        common.append(dict(e=min(t, 270), it=hload(0, kk, vHF + 4 * kk)))

    snapshot_out = len(A.out)
    A(f"s_cmp_ge_u32 {sRB}, 20")
    A.settle()
    A("s_cbranch_scc1 Lnoconv")
    import copy
    saved = (copy.deepcopy(A.q), dict(A.pend), A.nid)
    A.nopt += 1
    A.opt = A.nopt
    A._hidden = []
    optid = A.opt

    def as_common(it):
        def f():
            n0 = {qn: len(A.q[qn]) for qn in A.q}
            ids0 = A.nid
            put_item(A, it)
            for qn in A.q:
                for e in A.q[qn]:
                    if e["id"] > ids0:
                        e["opt"] = 0
        return f

    anchors, last = [], {}
    first = {}
    for n in range(32):
        ac = vCA + 4 * ((n + 4) % NA)
        first[n] = len(anchors)
        for q in range(n // 2 + 1):
            b = n - 2 * q
            anchors.append([f"v_mfma_f32_16x16x32_bf16 v[{ac}:{ac+3}], v[{vG+4*q}:{vG+4*q+3}], v[{Hreg(b)}:{Hreg(b)+3}], " +
                            ("0" if q == 0 else f"v[{ac}:{ac+3}]")])
        last[n] = len(anchors) - 1
    NAN = len(anchors)
    rds = [dict(e=-1, l=first[n], it=x) for n, x in rd[ri:]]
    for d in rds:
        d["e"] = 0 if d["l"] > 0 else -1
    acc = lambda n, r: vCA + 4 * ((n + 4) % NA) + r
    DP = "row_mask:0xf bank_mask:0xf"
    comb = []
    uread = lambda n: f"ds_read_u16_d16_hi v{vU[n%3]}, v{vUAD} offset:{128*n}"
    comb.append(dict(e=0, it=uread(0)))
    comb.append(dict(e=0, it=uread(1)))
    for s in range(32 + 3):
        a, b, c = s, s - 1, s - 2
        e = min(last[min(s, 31)] + 3, NAN + 5)
        l = first[c + NA] if 0 <= c + NA < 32 and c >= 0 else 1 << 30
        it = []
        d3p = (lambda n: acc(n - 1, 3) if n > 0 else vZ)
        if a < 32:
            it.append(f"v_add_f32_dpp v{vP2[a%3]}, v{d3p(a)}, v{acc(a,2)} wave_ror:1 {DP}")
        if 0 <= b < 32:
            it.append(f"v_add_f32_dpp v{vP1[b%3]}, v{vP2[(b-1)%3]}, v{acc(b,1)} wave_ror:1 {DP}")
        if 0 <= c < 32:
            it.append(f"v_add_f32_dpp v{vY[c%2]}, v{vP1[(c-1)%3]}, v{acc(c,0)} wave_ror:1 {DP}")
        if a < 32:
            it.append(f"v_add_f32_dpp v{vP2[a%3]}, v{acc(a,3)}, v{acc(a,2)} wave_shr:1 {DP}")
        if 0 <= b < 32:
            it.append(f"v_add_f32_dpp v{vP1[b%3]}, v{vP2[b%3]}, v{acc(b,1)} wave_shr:1 {DP}")
        if 0 <= c < 32:
            it.append(f"v_add_f32_dpp v{vY[c%2]}, v{vP1[c%3]}, v{acc(c,0)} wave_shr:1 {DP}")
        if a < 32:
            it.append(f"v_fmac_f32 v{acc(a,0)}, v{vU[a%3]}, v{vDD}")
        if a + 2 < 32:
            it.append(uread(a + 2))
        if 0 <= c < 32 and c % 2 == 1:
            it.append(f"v_cvt_pk_bf16_f32 v{vCV}, v{vY[0]}, v{vY[1]}")
            it.append((f"ds_write_b16 v{vYW}, v{vCV} offset:{128*(c-1)}", "ys"))
            it.append((f"ds_write_b16_d16_hi v{vYW}, v{vCV} offset:{128*c}", "ys"))
            if c % 8 == 7:
                i = c // 8
                if i == 0:
                    it += [f"s_lshl_b32 {sT3}, {sW}, 12", f"v_add_u32 v113, {sT3}, {vr(vL16)}",
                           f"s_mul_i32 {sCH}, {sCH}, {TP}", f"s_add_u32 {sCH}, {sCH}, {WS_YT}"]
                it.append(f"ds_read_b128 v[{vYO+4*(i&1)}:{vYO+4*(i&1)+3}], v113 offset:{L_YS+1024*i}")
        dd = s - 3
        if 0 <= dd < 32 and dd % 8 == 7:
            i = dd // 8
            it.append((f"buffer_store_dwordx4 v[{vYO+4*(i&1)}:{vYO+4*(i&1)+3}], {vr(vL16)}, {sWS}, {sCH} offen offset:{1024*i} sc1", "yout"))
        for x in it:
            comb.append(dict(e=e, l=l, it=x))
    com2 = [dict(e=d["e"], it=as_common(d["it"])) for d in common]
    left = weave2(A, anchors, [com2, rds, comb], 2)
    drain(A, [left[1], left[2], left[0]])
    A.wait("yout")
    A(f"""s_lshl_b32 {sT0}, {sCB}, 9
          s_lshl_b32 {sT1}, {sRB}, 4
          s_add_u32 {sT0}, {sT0}, {sT1}
          s_lshl_b32 {sT1}, {sW}, 2
          s_add_u32 {sT0}, {sT0}, {sT1}
          s_add_u32 {sT0}, {sT0}, {WS_COLCV}
          v_mov_b32 v{vPO}, {sTAGC}""")
    A(f"buffer_store_dword v{vPO}, v{vFL}, {sWS}, {sT0} offen sc1")
    A.settle()
    A("s_branch Ljoin")
    for qn in A.q:
        back = [h for h in A._hidden if h[0] == qn]
        A.q[qn] = [h[1] for h in back] + A.q[qn]
        for h in back:
            for r, v in h[2].items():
                A.pend.setdefault(r, v)
    A.opt = 0
    stateA = (A.q, A.pend, A.nid)
    A.label("Lnoconv")
    A.q, A.pend, A.nid = saved[0], saved[1], stateA[2]
    for d in common:
        put_item(A, d["it"])
    A.settle()
    seqB = [e["text"] for e in A.q["vm"]]
    seqA = [e["text"] for e in stateA[0]["vm"] if e["opt"] == 0]
    assert seqA[-len(seqB):] == seqB, (seqA, seqB)
    nid = A.nid
    A.q, A.pend, A.nid = stateA[0], stateA[1], nid
    A.label("Ljoin")
    stamp("conv")

    HF = [48, 114, 162, 210 - 0]
    HF = [48, 112, 160, 208]
    vA2 = [8, 28]
    vFL2, vRW = 7, 96
    vGQ = 48
    vOMG = 68
    vYR = 70
    vTM = 80
    vRD = 112
    vYA, vOA, vOB, vRR = 97, 98, 99, 100
    anchors = []
    for ph in range(4):
        for kk in range(12):
            for nt in range(5):
                ac = vA2[ph & 1] + 4 * nt
                anchors.append([f"v_mfma_f32_16x16x32_bf16 v[{ac}:{ac+3}], {ar(w2reg(kk*5+nt),4)}, v[{HF[ph]+4*kk}:{HF[ph]+4*kk+3}], " +
                                ("0" if kk == 0 else f"v[{ac}:{ac+3}]")])
    pre = []
    for kk in range(O["hpre"], 12):
        pre.append(hload(0, kk, HF[0] + 4 * kk))
    for x in pre:
        A(x)
    ld = []
    t = -1
    H0 = O.get("hburst", 12)
    cnt = 0
    for ph in range(1, 4):
        for x in hbase(ph):
            ld.append(dict(e=t, it=x))
        for kk in range(12):
            ld.append(dict(e=t, l=60 * ph + 5 * kk, it=hload(ph, kk, HF[ph] + 4 * kk)))
            cnt += 1
            if cnt >= H0:
                t += O.get("hpace", 4)
    while ld and ld[0]["e"] < 0:
        put_item(A, ld.pop(0)["it"])
    ty = max(t, 0) + 2

    def y_issue():
        A(f"""v_min_u32 v{vPA}, 39, {vr(vLANE)}
              s_lshl_b32 {sHB[1]}, {sCB}, 9
              v_lshlrev_b32 v{vPA}, 3, v{vPA}
              s_add_u32 {sHB[1]}, {sHB[1]}, {WS_COLCV}""")
        poll(vPA, sTAGC, sHB[1], vPO, n=2, check=False)

    def y_dma():
        poll(vPA, sTAGC, sHB[1], vPO, n=2, issue=False)
        A(f"""s_add_u32 {sT0}, {sKVO}, {WS_YT}
              s_add_u32 m0, {sW1K}, {L_YT}
              s_add_u32 {sT1}, {sKVO}, {WS_YT + 32*TP}""")
        A(f"buffer_load_dwordx4 {vr(vT)}, {sWS}, {sT0} offen sc1 lds", "yin")
        A(f"""s_add_u32 m0, {sW1K}, {L_YT+4096}
              s_add_u32 {sT0}, {sKVO}, {WS_YT + 64*TP}""")
        A(f"buffer_load_dwordx4 {vr(vT)}, {sWS}, {sT1} offen sc1 lds", "yin")
        A(f"s_add_u32 m0, {sW1K}, {L_YT+8192}")
        A(f"s_cmp_ge_u32 {sW}, 2")
        A.begin_opt("s_cbranch_scc1", settle=False)
        A(f"buffer_load_dwordx4 {vr(vT)}, {sWS}, {sT0} offen sc1 lds", "yin")
        A.end_opt()
    ld.append(dict(e=O.get("ypoll_i", ty), it=y_issue))
    ld.append(dict(e=O.get("ypoll_c", 150), it=y_dma))

    red = []
    for ph in range(3):
        e = 60 * (ph + 1) + 2
        its = [f"s_add_u32 {sT2}, {sW}, {1+ph}", f"s_and_b32 {sT2}, {sT2}, 3", f"s_mul_i32 {sT2}, {sT2}, 15360",
               f"s_add_u32 {sT2}, {sT2}, {L_RED + 5120*ph}", f"v_add_u32 v{vRW}, {sT2}, {vr(vL16)}"]
        for x in its:
            red.append(dict(e=e - 8, l=60 * (ph + 2), it=x))
        for nt in range(5):
            ac = vA2[ph & 1] + 4 * nt
            red.append(dict(e=e, l=60 * (ph + 2), it=(f"ds_write_b128 v{vRW}, v[{ac}:{ac+3}] offset:{1024*nt}", "red")))
        if ph == 0:
            its = [f"v_sub_f32 v{vOMG}, 1.0, v{vGT}"]
            for i in range(10):
                its += [f"v_accvgpr_read_b32 v{vTM}, a{240+i}", f"v_lshlrev_b32 v{vGQ+2*i}, 16, v{vTM}",
                        f"v_and_b32 v{vGQ+2*i+1}, 0xffff0000, v{vTM}",
                        f"v_pk_mul_f32 v[{vGQ+2*i}:{vGQ+2*i+1}], v[{vGQ+2*i}:{vGQ+2*i+1}], v[{vGT}:{vGT+1}] op_sel_hi:[1,0]"]
            its += [f"v_lshrrev_b32 v{vTM}, 4, {vr(vLANE)}", f"v_bfe_u32 v{vTM+1}, {vr(vLANE)}, 2, 2",
                    f"v_and_b32 v{vTM+2}, 3, {vr(vLANE)}", f"v_lshlrev_b32 v{vTM+1}, 7, v{vTM+1}",
                    f"v_lshl_add_u32 v{vTM+1}, v{vTM+2}, 3, v{vTM+1}", f"s_lshl_b32 {sT3}, {sW}, 5",
                    f"s_add_u32 {sT3}, {sT3}, {L_YT}", f"v_add_u32 v{vTM+1}, {sT3}, v{vTM+1}",
                    f"v_lshl_add_u32 v{vYA}, v{vTM}, 10, v{vTM+1}", f"v_lshl_add_u32 v101, v{vTM}, 9, v{vTM+1}",
                    f"v_and_b32 v{vTM+2}, 15, {vr(vLANE)}", f"v_mul_u32_u24 v{vTM+2}, 1280, v{vTM+2}",
                    f"v_lshl_add_u32 v{vOA}, v{vTM}, 4, v{vTM+2}", f"v_lshl_add_u32 v{vOB}, v{vTM}, 3, v{vTM+2}",
                    f"s_mul_i32 {sT3}, {sW}, 20480", f"s_add_u32 {sROWOFF}, {sROWOFF}, {sT3}",
                    f"s_mul_i32 {sT3}, {sW}, 15360", f"s_add_u32 {sT3}, {sT3}, {L_RED}",
                    f"v_add_u32 v{vRR}, {sT3}, {vr(vL16)}"]
            for x in its:
                red.append(dict(e=e, it=x))

    def sync2():
        A.wait("red", "yin")
        A("s_barrier")
    e = O.get("sync2", 190)
    red.append(dict(e=e, it=sync2))
    for nt, (va, off) in enumerate(((vYA, 0), (vYA, 512), (vYA, 4096), (vYA, 4608), (101, 8192))):
        red.append(dict(e=e, it=f"ds_read_b64_tr_b16 v[{vYR+2*nt}:{vYR+2*nt+1}], v{va} offset:{off}"))
    for nt in range(5):
        for p in range(3):
            d = vRD + 20 * p + 4 * nt
            red.append(dict(e=e, it=f"ds_read_b128 v[{d}:{d+3}], v{vRR} offset:{5120*p+1024*nt}"))
    for i in range(10):
        t0 = vTM + 2 * (i & 1)
        g, r = vGQ + 2 * i, vRD + 2 * i
        for x in (f"v_lshlrev_b32 v{t0}, 16, v{vYR+i}", f"v_and_b32 v{t0+1}, 0xffff0000, v{vYR+i}",
                  f"v_pk_add_f32 v[{r}:{r+1}], v[{r}:{r+1}], v[{r+20}:{r+21}]",
                  f"v_pk_mul_f32 v[{g}:{g+1}], v[{g}:{g+1}], v[{t0}:{t0+1}]",
                  f"v_pk_add_f32 v[{r}:{r+1}], v[{r}:{r+1}], v[{r+40}:{r+41}]",
                  f"v_pk_fma_f32 v[{g}:{g+1}], v[{r}:{r+1}], v[{vOMG}:{vOMG+1}], v[{g}:{g+1}] op_sel_hi:[1,0,1]"):
            red.append(dict(e=e, it=x))
    left = weave2(A, anchors, [ld, red], 2)
    drain(A, left)
    for i in range(10):
        g, a = vGQ + 2 * i, vA2[1] + 2 * i
        A(f"v_pk_fma_f32 v[{g}:{g+1}], v[{a}:{a+1}], v[{vOMG}:{vOMG+1}], v[{g}:{g+1}] op_sel_hi:[1,0,1]")
        A(f"v_cvt_pk_bf16_f32 v{vYR+i}, v{g}, v{g+1}")
        if i == 3:
            A(f"buffer_store_dwordx4 v[{vYR}:{vYR+3}], v{vOA}, {sOUT}, {sROWOFF} offen {OF}")
        if i == 7:
            A(f"buffer_store_dwordx4 v[{vYR+4}:{vYR+7}], v{vOA}, {sOUT}, {sROWOFF} offen offset:64 {OF}")
    A(f"buffer_store_dwordx2 v[{vYR+8}:{vYR+9}], v{vOB}, {sOUT}, {sROWOFF} offen offset:128 {OF}")
    if O["stamps"]:
        A.waitall()
        stamp("end")
        A("s_memrealtime s[52:53]")
        A("s_waitcnt lgkmcnt(0)")
        A("v_mov_b32 v8, 0")
        for k in range(nst[0]):
            A(f"v_writelane_b32 v8, s{STR[k]}, {k}")
        A(f"v_writelane_b32 v8, {sRB}, 12")
        A("v_writelane_b32 v8, s100, 13")
        A("v_writelane_b32 v8, s52, 14")
        A(f"v_writelane_b32 v8, {sSPIN}, 15")
        A.raw("; STAMPS " + " ".join(names))
        A(f"""s_lshl_b32 s54, s2, 2
              s_add_u32 s54, s54, {sW}
              s_lshl_b32 s54, s54, 6
              s_add_u32 s54, s54, {WS_DBG}
              v_lshlrev_b32 v9, 2, {vr(vLANE)}
              v_cmp_gt_u32 vcc, 16, {vr(vLANE)}
              v_mov_b32 v10, 0x7ff00000
              v_cndmask_b32 v9, v10, v9, vcc""")
        A(f"buffer_store_dword v8, v9, {sWS}, s54 offen")
    if O.get("dbg", 0):
        A("s_load_dwordx2 s[8:9], s[0:1], 88")
        A("s_mov_b32 s10, 256")
        A("s_mov_b32 s11, 0x20000")
        A("s_getreg_b32 s55, hwreg(HW_REG_XCC_ID)")
        A("s_waitcnt lgkmcnt(0)")
        A("s_not_b32 s100, s100")
        A("v_mov_b32 v10, s100")
        A("v_mov_b32 v11, s52")
        A("v_mov_b32 v12, 0")
        A("s_mov_b64 exec, 1")
        A("buffer_atomic_umax v10, v12, s[8:11], 0 offen sc1")
        A("buffer_atomic_umax v11, v12, s[8:11], 0 offen offset:4 sc1")
        for k in range(1, nst[0]):
            A(f"s_sub_u32 s54, s{STR[k]}, s{STR[0]}")
            A(f"v_mov_b32 v{12+k}, s54")
            A(f"buffer_atomic_umax v{12+k}, v12, s[8:11], 0 offen offset:{4+4*k} sc1")
        A("s_and_b32 s55, s55, 15")
        A("s_lshl_b32 s54, s2, 2")
        A("s_lshl_b32 s53, s55, s54")
        A("s_cmp_lt_u32 s2, 8")
        A("s_cselect_b32 s53, s53, 0")
        A("v_mov_b32 v30, s53")
        A("buffer_atomic_or v30, v12, s[8:11], 0 offen offset:56 sc1")
        A("s_lshr_b32 s54, s2, 1")
        A("s_lshl_b32 s53, s55, s54")
        A("s_and_b32 s54, s2, 0xc7")
        A("s_cmp_eq_u32 s54, 0")
        A("s_cselect_b32 s53, s53, 0")
        A("v_mov_b32 v31, s53")
        A("buffer_atomic_or v31, v12, s[8:11], 0 offen offset:60 sc1")
    if O.get("padto", 0):
        A.waitall()
        A.label("Lpad")
        A.raw("  s_memrealtime s[52:53]")
        A.raw("  s_waitcnt lgkmcnt(0)")
        A.raw("  s_sub_u32 s52, s52, s100")
        A.raw(f"  s_cmp_lt_u32 s52, {O['padto']}")
        A.raw("  s_cbranch_scc1 Lpad")
    A.label("Lend")
    A("s_endpgm")

    head = f"""; Fused gated mix: one persistent launch, 256 workgroups (32 row blocks x 8 column blocks).
; @launch grid=(256,1,1) block=(256,1,1) lds={LDS}
.amdgcn_target "amdgcn-amd-amdhsa--gfx950"
.text
.globl {KN}_kernel
.p2align 8
.type {KN}_kernel,@function
{KN}_kernel:
"""
    tail = f"""
.section .rodata,"a"
.p2align 6
.amdhsa_kernel {KN}_kernel
  .amdhsa_next_free_vgpr 512
  .amdhsa_next_free_sgpr 102
  .amdhsa_accum_offset 256
  .amdhsa_group_segment_fixed_size 0
  .amdhsa_kernarg_size 104
  .amdhsa_user_sgpr_count 2
  .amdhsa_user_sgpr_kernarg_segment_ptr 1
  .amdhsa_system_sgpr_workgroup_id_x 1
.end_amdhsa_kernel
"""
    return head + A.text() + tail, A.stats


if __name__ == "__main__":
    out = sys.argv[1]
    kw = {}
    for a in sys.argv[2:]:
        k, v = a.split("=")
        kw[k] = int(v) if v.lstrip("-").isdigit() else v
    s, st = gen(**kw)
    open(out, "w").write(s)
    print(out, st)
```

```python
import sys, os
sys.path.insert(0, os.path.dirname(os.path.abspath(__file__)))
from asmlib import *

KN = "gated_mix__ssm_conv_h3__dense_activation_silu__prompt"

DEF = dict(stamps=0, mapping="B", rot=0, gs=2, dist=5, p0flag=8, poll_i=60, poll_c=76, w2pace=4, hpre=12,
           spin=200000, early_w1=6)


def gen(**kw):
    O = dict(DEF)
    O.update(kw)
    A = Asm()
    GS, DIST = O["gs"], O["dist"]
    NT = "nt" if O.get("nt", 0) else ""
    NTX = "nt" if O.get("ntx", 0) else ""
    OF = O.get("of", "").replace("+", " ")

    WS_COLP0, WS_COLCV, WS_COLG, WS_ROWH, WS_ROWG, WS_G = 0x0000, 0x1000, 0x2000, 0x3000, 0x5000, 0x8000
    WS_DBG = 0x20000
    WS_KVT, WS_YT, WS_W2P, WS_H = 0x100000, 0x400000, 0x700000, 0x900000
    WS_SIZE = 0x1000000
    TP = 4224
    L_S = 81920
    L_K, L_V, L_W2 = 131072, 142336, 152576
    L_BO = 65536
    L_HB, L_UB, L_YT, L_YS, L_RED = 0, 16896, 33792, 45056, 69632
    HBP, UBP = 4224, 4128
    LDS = 163840
    sQ, sK, sV, sSH, sSK, sD, sW1, sW2, sGW, sOUT, sWS = [f"s[{8+4*i}:{11+4*i}]" for i in range(11)]
    srd = lambda n: int(n[2:].split(":")[0])
    sW, sRB, sCB, sROT = "s3", "s4", "s5", "s6"
    sT0, sT1, sT2, sT3 = "s52", "s53", "s54", "s55"
    sROWOFF = "s56"
    sW1K = "s57"
    sW2K = "s58"
    sTAGC, sTAGR = "s59", "s60"
    sCH = "s61"
    sNL2E = "s[62:63]"
    sJ = [f"s{64+i}" for i in range(10)]
    sHB = ["s74", "s75", "s76"]
    sKVO = "s77"
    sW2L = "s78"
    sSPIN = "s79"
    sHL = "s80"
    sSTAMP = 82

    nst = [0]
    names = []
    STR = [82, 84, 86, 88, 90, 92, 94, 96, 98, 64, 66, 68]
    SKIPST = O.get('nostamp', 'iss0+pre+karg+tiles').split('+')

    def stamp(name):
        if O.get("touch", "") == name:
            A.settle()
            A.raw("; @TOUCH")
        if O.get("skfrom", "") == name:
            A.skip = O["skip"]
        if O.get("skto", "") == name:
            A.skip = None
        if O.get("padat", "") == name:
            A("s_memrealtime s[100:101]")
        if O["stamps"] and name not in SKIPST:
            r = STR[nst[0]]
            A(f"s_memtime s[{r}:{r+1}]")
            nst[0] += 1
            names.append(name)

    def vr(a, n=1):
        return f"v{a}" if n == 1 else f"v[{a}:{a+n-1}]"

    def ar(a, n=1):
        return f"a{a}" if n == 1 else f"a[{a}:{a+n-1}]"

    vTID, vLANE, vL16, vT = 0, 1, 2, 3
    vW1 = [4, 5, 6, 7, 8, 9]
    vTR = [10, 11, 12]
    vHS = 13
    vFL = 14
    vPO = 15

    def poll(voff, tag, soff, vres=None, n=1, issue=True, check=True):
        ld = (f"buffer_load_dword {vr(vres)}, {vr(voff)}, {sWS}, {soff} offen sc1" if n == 1 else
              f"buffer_load_dwordx2 {vr(vres,2)}, {vr(voff)}, {sWS}, {soff} offen sc1")
        if issue:
            A(ld)
        if check:
            lo, dn = A.newlabel("Lpoll"), A.newlabel("Lgot")

            def cmp():
                A(f"v_cmp_ne_u32 vcc, {tag}, {vr(vres)}")
                if n == 2:
                    A(f"v_cmp_ne_u32 s[52:53], {tag}, {vr(vres+1)}")
                    A("s_or_b64 vcc, vcc, s[52:53]")
            cmp()
            A(f"s_cbranch_vccz {dn}" if n == 1 else f"s_cbranch_scc0 {dn}")
            A.label(lo)
            A.raw("  s_sleep 1")
            A.raw("  " + ld)
            A.raw("  s_waitcnt vmcnt(0)")
            A.raw(f"  s_sub_u32 {sSPIN}, {sSPIN}, 1")
            A.raw(f"  s_cbranch_scc1 Lend")
            A.raw(f"  v_cmp_ne_u32 vcc, {tag}, {vr(vres)}")
            if n == 2:
                A.raw(f"  v_cmp_ne_u32 s[52:53], {tag}, {vr(vres+1)}")
                A.raw("  s_or_b64 vcc, vcc, s[52:53]")
            A.raw(f"  s_cbranch_vccnz {lo}" if n == 1 else f"  s_cbranch_scc1 {lo}")
            A.label(dn)

    A("s_cmp_ge_u32 s2, 256")
    A("s_cbranch_scc1 Lend")
    for s, off in ((sW2, 64), (sK, 8), (sV, 16), (sQ, 0), (sW1, 56), (sWS, 96), (sSH, 24), (sGW, 72), (sSK, 32),
                   (sD, 40), (sOUT, 80)):
        A(f"s_load_dwordx2 s[{srd(s)}:{srd(s)+1}], s[0:1], {off}")
    if O["stamps"] or O.get("padto", 0):
        A("s_memrealtime s[100:101]")
    stamp("start")
    A(f"v_lshrrev_b32 v20, 6, v0")
    A(f"v_and_b32 {vr(vLANE)}, 63, v0")
    A(f"v_readfirstlane_b32 {sW}, v20")
    if O["mapping"] == "A":
        A(f"""s_lshr_b32 {sT0}, s2, 3
              s_and_b32 {sCB}, {sT0}, 7
              s_lshr_b32 {sT0}, {sT0}, 3
              s_and_b32 {sRB}, s2, 7
              s_lshl_b32 {sRB}, {sRB}, 2
              s_add_u32 {sRB}, {sRB}, {sT0}""")
    else:
        A(f"""s_lshr_b32 {sT0}, s2, 3
              s_and_b32 {sCB}, {sT0}, 3
              s_and_b32 {sT1}, s2, 1
              s_lshl_b32 {sT1}, {sT1}, 2
              s_add_u32 {sCB}, {sCB}, {sT1}
              s_bfe_u32 {sRB}, s2, 0x20001""")
        if O.get("rbint", 1):
            A(f"""s_and_b32 {sT0}, {sT0}, 28
                  s_add_u32 {sRB}, {sRB}, {sT0}""")
        else:
            A(f"""s_lshr_b32 {sT0}, {sT0}, 2
                  s_lshl_b32 {sRB}, {sRB}, 3
                  s_add_u32 {sRB}, {sRB}, {sT0}""")
    for s, size in ((sQ, 2621440), (sK, 2621440), (sV, 2621440), (sSH, 5120), (sSK, 2621440), (sD, 1280),
                    (sW1, 1966080), (sW2, 1966080), (sGW, 1280), (sOUT, 2621440), (sWS, WS_SIZE)):
        A(f"s_mov_b32 s{srd(s)+2}, {size}")
        A(f"s_mov_b32 s{srd(s)+3}, 0x20000")
    A(f"""s_mul_i32 {sROWOFF}, {sRB}, 81920
          s_mul_i32 {sT0}, {sCB}, 160
          s_add_u32 {sROWOFF}, {sROWOFF}, {sT0}
          s_lshl_b32 {sW1K}, {sW}, 10
          s_lshl_b32 {sW2K}, {sW}, 11
          s_movk_i32 {sT1}, 6554
          s_movk_i32 {sT2}, 1120
          s_sub_u32 {sT3}, {sROWOFF}, 5120""")
    for n in range(3):
        A(f"v_add_u32 v26, {256*n}, v0") if n else A("v_mov_b32 v26, v0")
        A(f"""v_mul_u32_u24 v27, {sT1}, v26
              v_lshrrev_b32 v27, 16, v27
              v_lshlrev_b32 v26, 4, v26
              v_mad_u32_u24 v{20+n}, v27, {sT2}, v26
              v_add_u32 v{23+n}, {sT3}, v{20+n}""")
    A(f"v_lshlrev_b32 {vr(vL16)}, 4, {vr(vLANE)}")
    R = O["rot"]
    if R == 1:
        A(f"""s_mul_i32 {sT0}, {sRB}, 3
              s_add_u32 {sT0}, {sT0}, {sCB}""")
    elif R == 2:
        A(f"s_lshr_b32 {sT0}, s2, 5")
    elif R == 3:
        A(f"s_and_b32 {sT0}, s2, 7")
    elif R == 4:
        A(f"""s_lshr_b32 {sT0}, s2, 5
              s_and_b32 {sT1}, s2, 7
              s_add_u32 {sT0}, {sT0}, {sT1}""")
    elif R == 5:
        A(f"""s_bfe_u32 {sT0}, s2, 0x10005
              s_mul_i32 {sT0}, {sT0}, 5""")
    if R:
        A(f"""s_mul_i32 {sT1}, {sT0}, 6554
              s_lshr_b32 {sT1}, {sT1}, 16
              s_mul_i32 {sT1}, {sT1}, 10
              s_sub_u32 {sROT}, {sT0}, {sT1}""")
    else:
        A(f"s_mov_b32 {sROT}, 0")
    vX0, vX1 = 114, 115
    sXO, sXE = "s81", "s7"
    A(f"""v_lshrrev_b32 v26, 3, {vr(vLANE)}
          v_lshrrev_b32 v27, 4, {vr(vLANE)}
          v_and_b32 v38, 7, {vr(vLANE)}
          v_xor_b32 v39, v38, v27
          s_movk_i32 {sT0}, 1280
          s_mul_i32 {sT1}, {sW}, 20480
          v_lshlrev_b32 v39, 4, v39
          v_mad_u32_u24 v{vX0}, v26, {sT0}, v39
          v_add_u32 v{vX0}, {sT1}, v{vX0}
          v_xor_b32 v{vX1}, 64, v{vX0}
          v_add_u32 v{vX1}, {8*1280-1024}, v{vX1}
          s_mul_i32 {sXE}, {sRB}, 81920
          s_lshl_b32 {sXO}, {sROT}, 7
          s_add_u32 {sXO}, {sXO}, {sXE}
          s_add_u32 {sXE}, {sXE}, 1280""")
    A(f"""v_and_b32 v27, 1, v27
          v_lshlrev_b32 v27, 2, v27
          v_xor_b32 v39, v38, v27
          v_lshlrev_b32 v39, 4, v39
          s_movk_i32 {sT0}, 3072
          s_mul_i32 {sT1}, {sW}, 49152
          v_mad_u32_u24 v{vW1[0]}, v26, {sT0}, v39
          v_add_u32 v{vW1[0]}, {sT1}, v{vW1[0]}
          v_add_u32 v{vW1[1]}, {8*3072-1024}, v{vW1[0]}
          s_mul_i32 {sT0}, {sCB}, 384
          s_mul_i32 {sJ[0]}, {sROT}, 196608
          s_add_u32 {sJ[0]}, {sJ[0]}, {sT0}""")
    stamp("pre")
    A("s_waitcnt lgkmcnt(0)")
    stamp("karg")

    def slot(b):
        return L_S + 8192 * (b % 10)

    def w1_items(b):
        p, j = divmod(b, 10)
        return [f"s_add_u32 m0, {sW2K}, {slot(b)}",
                (f"buffer_load_dwordx4 v{vW1[2*p]}, {sW1}, {sJ[j]} offen lds", f"w1_{b}"),
                (f"buffer_load_dwordx4 v{vW1[2*p+1]}, {sW1}, {sJ[j]} offen offset:1024 lds", f"w1_{b}")]

    def x_items(j):
        it = [f"s_add_u32 m0, {sW2K}, {8192*j}"]
        if j:
            it = [f"s_add_u32 {sXO}, {sXO}, 128", f"s_cmp_ge_u32 {sXO}, {sXE}", f"s_cselect_b32 m0, 1280, 0",
                  f"s_sub_u32 {sXO}, {sXO}, m0"] + it
        it = ["\n".join(it)]
        it += [(f"buffer_load_dwordx4 v{vX0}, {sQ}, {sXO} offen {NTX} lds", f"w1_{j}"),
               (f"buffer_load_dwordx4 v{vX1}, {sQ}, {sXO} offen offset:1024 {NTX} lds", f"w1_{j}")]
        return it

    def pair(j):
        for it in x_items(j) + w1_items(j):
            put_item(A, it)

    def tile_dma(n, which):
        for s, reg, vo, so in which:
            A(f"s_add_u32 m0, {sW1K}, {reg + 4096*n}")
            A(f"buffer_load_dwordx4 v{vo+n}, {s}, {so} offen {NT} lds", "p0in")
    W2T, KT, VT = (sW2, L_W2, 20, sROWOFF), (sK, L_K, 23, "0"), (sV, L_V, 20, sROWOFF)
    PF = O.get("pairfirst", 0)
    if PF:
        pair(0)
    tile_dma(0, [W2T, KT, VT])
    tile_dma(1, [W2T, KT, VT])
    A(f"s_cmp_ge_u32 {sW}, 3")
    A.begin_opt("s_cbranch_scc1", settle=False)
    tile_dma(2, [KT])
    A.end_opt()
    A(f"s_cmp_ge_u32 {sW}, 2")
    A.begin_opt("s_cbranch_scc1", settle=False)
    tile_dma(2, [W2T, VT])
    A.end_opt()

    stamp("tiles")
    vCT, vI16, vR, vCHL = 28, 29, 30, 31
    A(f"""v_lshrrev_b32 v26, 4, v0
          v_mul_u32_u24 v27, 52, v26
          v_lshrrev_b32 v27, 8, v27
          v_mul_u32_u24 v{vR}, 5, v27
          v_sub_u32 v{vCT}, v26, v{vR}
          v_mul_u32_u24 v{vR}, 24, v27
          v_min_u32 v{vR}, 40, v{vR}
          v_and_b32 v{vI16}, 15, v0
          v_lshl_add_u32 v{vCHL}, v{vCT}, 4, v{vI16}
          v_lshlrev_b32 v26, 3, v{vCHL}
          s_mul_i32 {sT0}, {sCB}, 640""")
    vSH = 168
    A(f"buffer_load_dwordx2 v[{vSH}:{vSH+1}], v26, {sSH}, {sT0} offen", "p0in")
    if not PF:
        pair(0)
    stamp("iss0")

    A(f"""v_add_u32 v{vW1[2]}, 128, v{vW1[0]}
          v_add_u32 v{vW1[3]}, 128, v{vW1[1]}
          v_add_u32 v{vW1[4]}, 256, v{vW1[0]}
          v_add_u32 v{vW1[5]}, 256, v{vW1[1]}""")
    for j in range(1, 10):
        A(f"""s_add_u32 {sJ[j]}, {sJ[j-1]}, 196608
              s_cmp_ge_u32 {sJ[j]}, 1966080
              s_cselect_b32 {sT0}, 1966080, 0
              s_sub_u32 {sJ[j]}, {sJ[j]}, {sT0}""")
    vGW = 130
    vGWA = 154
    A(f"""v_bfe_u32 v52, {vr(vLANE)}, 3, 2
          v_add_u32 v53, {sROT}, v52""")
    for n in range(3):
        A(f"""v_add_u32 v54, {4*n}, v53
              v_subrev_u32 v55, 10, v54
              v_min_u32 v54, v54, v55
              v_lshlrev_b32 v54, 7, v54
              v_lshl_add_u32 v{vGWA+n}, v38, 4, v54""")
        if n == 2:
            A(f"""v_lshrrev_b32 v55, 1, v52
                  v_lshl_add_u32 v{vGWA+n}, v55, 16, v{vGWA+n}""")
    vKA, vBW, vBR, vRA, vRB_ = 158, 159, 160, 161, 162
    A(f"""v_lshrrev_b32 v26, 2, v{vI16}
          v_add_u32 v26, v26, v{vR}
          v_mul_u32_u24 v26, 160, v26
          v_and_b32 v27, 3, v0
          v_lshl_add_u32 v26, v27, 3, v26
          v_lshl_add_u32 v26, v{vCT}, 5, v26
          v_add_u32 v{vKA}, {L_K}, v26
          v_mul_u32_u24 v26, 144, v{vCHL}
          v_lshl_add_u32 v26, v{vR}, 1, v26
          v_add_u32 v{vBW}, {L_BO}, v26
          v_lshrrev_b32 v26, 3, v0
          v_mul_u32_u24 v54, 144, v26
          v_lshl_add_u32 v54, v38, 4, v54
          v_add_u32 v{vBR}, {L_BO}, v54
          v_mul_u32_u24 v54, {TP}, v26
          v_lshl_add_u32 {vr(vT)}, v38, 4, v54""")
    A(f"""v_lshrrev_b32 v26, 5, {vr(vLANE)}
          v_lshlrev_b32 v26, 4, v26
          v_bfe_u32 v54, {vr(vLANE)}, 2, 3
          v_add_u32 v26, v26, v54
          v_mul_u32_u24 v26, 160, v26
          s_and_b32 {sT0}, {sW}, 1
          s_mul_i32 {sT0}, {sT0}, 5120
          s_add_u32 {sT0}, {sT0}, {L_W2}
          s_lshr_b32 {sT1}, {sW}, 1
          s_lshl_b32 {sT1}, {sT1}, 6
          v_add_u32 v26, {sT0}, v26
          v_lshl_add_u32 v{vRB_}, v27, 3, v26
          v_lshl_add_u32 v{vRA}, v27, 4, v26
          v_add_u32 v{vRA}, {sT1}, v{vRA}""")
    A(f"""v_lshrrev_b32 v26, 5, {vr(vLANE)}
          v_lshlrev_b32 v26, 10, v26
          v_bfe_u32 v54, {vr(vLANE)}, 2, 2
          v_lshl_add_u32 v26, v54, 7, v26
          v_bfe_u32 v54, {vr(vLANE)}, 3, 1
          v_lshlrev_b32 v54, 6, v54
          v_xor_b32 v54, {sT1}, v54
          v_add_u32 v26, v26, v54
          v_bfe_u32 v54, {vr(vLANE)}, 4, 1
          v_lshl_add_u32 v26, v54, 5, v26
          v_lshl_add_u32 v26, v27, 3, v26
          v_add_u32 v{vTR[1]}, 65536, v26
          v_add_u32 v{vTR[2]}, 131072, v26""")
    A(f"""v_lshrrev_b32 v26, 5, {vr(vLANE)}
          v_lshlrev_b32 v26, 8, v26
          v_lshl_add_u32 v26, v{vI16}, 4, v26
          v_mul_u32_u24 v54, 49152, v54
          v_add_u32 v{vHS}, v26, v54
          s_mul_i32 {sHB[0]}, {sRB}, 196608
          s_and_b32 {sT0}, {sW}, 1
          s_mul_i32 {sT0}, {sT0}, 98304
          s_add_u32 {sHB[0]}, {sHB[0]}, {sT0}
          s_mul_i32 {sT0}, {sCB}, 6144
          s_add_u32 {sHB[0]}, {sHB[0]}, {sT0}
          s_lshl_b32 {sT1}, {sT1}, 4
          s_add_u32 {sHB[0]}, {sHB[0]}, {sT1}
          s_add_u32 {sHB[0]}, {sHB[0]}, {WS_H}
          s_add_u32 {sHB[1]}, {sHB[0]}, 2048
          s_add_u32 {sHB[2]}, {sHB[0]}, 4096
          s_mul_i32 {sKVO}, {sCB}, {80*TP}
          s_lshl_b32 {sT0}, {sRB}, 7
          s_add_u32 {sKVO}, {sKVO}, {sT0}
          s_mul_i32 {sCH}, {sCB}, 80
          s_lshl_b32 {sT0}, {sRB}, 2
          s_add_u32 {sCH}, {sCH}, {sT0}
          s_add_u32 {sCH}, {sCH}, {sW}
          s_cmp_lt_u32 {sRB}, 20
          s_cselect_b32 {sCH}, {sCH}, 0x4000
          s_mov_b32 s62, 0xbfb8aa3b
          s_mov_b32 s63, 0xbfb8aa3b
          s_mov_b32 {sSPIN}, {O["spin"]}""")
    A(f"""v_cmp_eq_u32 vcc, 0, {vr(vLANE)}
          v_mov_b32 v26, 0x7ff00000
          v_cndmask_b32 v{vFL}, v26, {vr(vLANE)}, vcc""")
    vXA = 116
    A(f"""v_and_b32 v26, 31, {vr(vLANE)}
          v_lshlrev_b32 v26, 7, v26
          v_lshrrev_b32 v54, 5, {vr(vLANE)}
          v_lshrrev_b32 v55, 1, v{vI16}
          v_xor_b32 v54, v54, v55
          v_lshl_add_u32 v26, v54, 4, v26
          s_and_b32 {sT0}, {sW}, 1
          s_lshl_b32 {sT0}, {sT0}, 12
          v_add_u32 v{vXA}, {sT0}, v26""")
    for ks in range(1, 4):
        A(f"v_xor_b32 v{vXA+ks}, {ks<<5}, v{vXA}")
    for ks in range(4):
        A(f"v_add_u32 v{vXA+4+ks}, 65536, v{vXA+ks}")
    vQA = 124
    A(f"""v_lshrrev_b32 v26, 4, {vr(vLANE)}
          s_mul_i32 {sT0}, {sCB}, 10
          v_lshlrev_b32 v72, 7, v{vI16}
          v_add_u32 v72, {sW2K}, v72""")
    for n in range(3):
        if n < 2:
            A(f"""s_add_u32 {sT1}, {sT0}, {4*n}
                  v_add_u32 v54, {sT1}, v26""")
        else:
            A(f"""s_add_u32 {sT1}, {sT0}, 8
                  v_lshrrev_b32 v54, 1, v26
                  v_add_u32 v54, {sT1}, v54""")
        A(f"""v_lshrrev_b32 v73, 3, v54
              v_subrev_u32 v73, {sROT}, v73
              v_add_u32 v74, 10, v73
              v_min_u32 v73, v73, v74
              v_and_b32 v54, 7, v54
              v_xor_b32 v54, v54, v55
              v_lshl_add_u32 v54, v54, 4, v72
              v_lshl_add_u32 v{vQA+n}, v73, 13, v54""")
    A(f"""v_and_b32 v26, 1, v26
          v_lshl_add_u32 v{vQA+2}, v26, 3, v{vQA+2}""")
    vGA = 127
    A(f"""s_lshl_b32 {sT0}, {sCB}, 2
          s_add_u32 {sT0}, {sT0}, {sW}
          s_and_b32 {sT1}, {sT0}, 7
          s_lshl_b32 {sT0}, {sT0}, 8
          v_xor_b32 v26, {sT1}, v38
          v_lshlrev_b32 v26, 4, v26
          v_lshrrev_b32 v54, 5, {vr(vLANE)}
          v_lshl_add_u32 v26, v54, 7, v26
          v_add_u32 v26, {sT0}, v26
          v_lshl_add_u32 v{vGA}, v52, 13, v26
          v_and_b32 v54, 1, v52
          v_lshl_add_u32 v26, v54, 13, v26
          v_add_u32 v{vGA+1}, 65536, v26""")
    sWA, sWB = sW2L, sHL
    A(f"""s_mul_i32 {sT0}, {sCB}, 48
          s_lshl_b32 {sT1}, {sRB}, 1
          s_add_u32 {sT0}, {sT0}, {sT1}
          s_and_b32 {sT1}, {sW}, 1
          s_add_u32 {sT0}, {sT0}, {sT1}
          s_mul_i32 {sT0}, {sT0}, 5120
          s_add_u32 {sT0}, {sT0}, {WS_W2P}
          s_cmp_lt_u32 {sRB}, 24
          s_cselect_b32 {sT0}, {sT0}, 0x7f000000
          s_and_b32 {sT1}, {sW}, 2
          s_lshl_b32 {sWA}, {sT1}, 10
          s_add_u32 {sWA}, {sWA}, {sT0}
          s_add_u32 {sWB}, {sT0}, 4096
          s_cmp_eq_u32 {sT1}, 0
          s_cselect_b32 {sWB}, {sWB}, 0x7f000000""")
    stamp("calc")
    NPRE_P = O.get("prepairs", 3)
    for j in range(1, NPRE_P):
        pair(j)
    vG0, vG1 = 170, 171
    A(f"""s_lshl_b32 {sT0}, {sCB}, 8
          s_lshl_b32 {sT1}, {sRB}, 8
          s_add_u32 {sT0}, {sT0}, {WS_COLG}
          s_add_u32 {sT1}, {sT1}, {WS_ROWG}""")
    A(f"buffer_load_dword v{vG0}, off, {sWS}, {sT0} sc1")
    A(f"buffer_load_dword v{vG1}, off, {sWS}, {sT1} sc1")
    stamp("issued")

    A.wait("p0in")
    A("s_barrier")
    stamp("p0in")
    vWT = 172
    vP = 184
    vVV = 198
    vO = 210
    vE = 222
    for m in range(7):
        A(f"ds_read_b64_tr_b16 v[{vP+2*m}:{vP+2*m+1}], v{vKA} offset:{640*m}")
        if m < 6:
            A(f"ds_read_b64_tr_b16 v[{vVV+2*m}:{vVV+2*m+1}], v{vKA} offset:{640*m + L_V - L_K}")
    for i, (va, off) in enumerate(((vRA, 0), (vRA, 8), (vRB_, 128))):
        A(f"ds_read_b64_tr_b16 v[{vWT+4*i}:{vWT+4*i+1}], v{va} offset:{off}")
        A(f"ds_read_b64_tr_b16 v[{vWT+4*i+2}:{vWT+4*i+3}], v{va} offset:{off+1280}")
    vWa, vWb, vWc, vWd, vWe = 163, 164, 165, 166, 167
    A(f"""s_mov_b32 {sT0}, 0xffff
          v_and_b32 v{vWa}, 0xffff, v{vSH}
          v_bfi_b32 v{vWb}, {sT0}, v{vSH+1}, v{vSH}
          v_and_b32 v{vWc}, 0xffff0000, v{vSH+1}
          v_alignbit_b32 v{vWd}, v{vSH}, v{vSH}, 16
          v_alignbit_b32 v{vWe}, v{vSH+1}, v{vSH+1}, 16""")
    w2st = [(f"buffer_store_dwordx4 v[{vWT}:{vWT+3}], {vr(vL16)}, {sWS}, {sWA} offen sc1", "p0out"),
            (f"buffer_store_dwordx4 v[{vWT+4}:{vWT+7}], {vr(vL16)}, {sWS}, {sWA} offen offset:1024 sc1", "p0out"),
            (f"buffer_store_dwordx4 v[{vWT+8}:{vWT+11}], {vr(vL16)}, {sWS}, {sWB} offen sc1", "p0out")]
    NP0_P = O.get("p0pairs", 6)
    mem = []
    for j in range(NPRE_P, NP0_P):
        mem += [x_items(j), w1_items(j)]
    if O.get("w2st_early", 0):
        mem = [[x] for x in w2st] + mem
        w2st = []
    for o in range(13):
        e = vE + 4 * (o & 1) * 2
        if o < 12:
            A(f"""v_dot2_f32_bf16 v{e}, v{vP+o+2}, v{vWa}, 0
                  v_dot2_f32_bf16 v{e+1}, v{vP+o+2}, v{vWd}, 0
                  v_dot2_f32_bf16 v{e}, v{vP+o+1}, v{vWb}, v{e}
                  v_dot2_f32_bf16 v{e+1}, v{vP+o+1}, v{vWe}, v{e+1}
                  v_dot2_f32_bf16 v{e}, v{vP+o}, v{vWc}, v{e}
                  v_lshlrev_b32 v{e+2}, 16, v{vVV+o}
                  v_and_b32 v{e+3}, 0xffff0000, v{vVV+o}""")
        if o > 0:
            e = vE + 4 * ((o - 1) & 1) * 2
            A(f"""v_pk_mul_f32 v[{e}:{e+1}], v[{e}:{e+1}], v[{e+2}:{e+3}]
                  v_cvt_pk_bf16_f32 v{vO+o-1}, v{e}, v{e+1}""")
            if o % 4 == 0:
                i = o // 4 - 1
                A(f"ds_write_b128 v{vBW}, v[{vO+4*i}:{vO+4*i+3}] offset:{16*i}", "bo")
        k = -(-len(mem) // (13 - o))
        if o % 2 == 1 or len(mem) >= 13 - o:
            for _ in range(min(k, len(mem))):
                for it in mem.pop(0):
                    put_item(A, it)
    stamp("p0done")

    def bo_reads():
        for n in range(3):
            A(f"ds_read_b128 v[{vP+4*n}:{vP+4*n+3}], v{vBR} offset:{4608*n}")

    sKA = [sT0, sT1, sT2]
    kvst = [f"s_add_u32 {sT3}, {sKVO}, {WS_KVT}",
            (f"buffer_store_dwordx4 v[{vP}:{vP+3}], {vr(vT)}, {sWS}, {sT3} offen sc1", "p0out"),
            f"s_add_u32 {sT3}, {sKVO}, {WS_KVT + 32*TP}",
            (f"buffer_store_dwordx4 v[{vP+4}:{vP+7}], {vr(vT)}, {sWS}, {sT3} offen sc1", "p0out"),
            f"s_add_u32 {sT3}, {sKVO}, {WS_KVT + 64*TP}\ns_cmp_lt_u32 {sW}, 2\ns_cselect_b32 {sT3}, {sT3}, 0x7f000000",
            (f"buffer_store_dwordx4 v[{vP+8}:{vP+11}], {vr(vT)}, {sWS}, {sT3} offen sc1", "p0out")]

    vGX = 142
    gw_ld = [f"buffer_load_dwordx4 v[{vGW+4*n}:{vGW+4*n+3}], v{vGWA+n}, {sGW}, 0 offen" for n in range(3)]
    qg = [(f"ds_read_b128 v[{vGX}:{vGX+3}], v{vGA}", "xrd"),
          (f"ds_read_b128 v[{vGX+4}:{vGX+7}], v{vGA} offset:32768", "xrd"),
          (f"ds_read_b128 v[{vGX+8}:{vGX+11}], v{vGA+1}", "xrd"),
          (f"ds_read_b128 a[240:243], v{vQA}", "xrd"),
          (f"ds_read_b128 a[244:247], v{vQA+1}", "xrd"),
          (f"ds_read_b64 a[248:249], v{vQA+2}", "xrd")]
    gops = []
    g0, g1, g2 = 154, 155, 156
    for i in range(12):
        gops.append(f"v_dot2_f32_bf16 v{g0}, v{vGX+i}, v{vGW+i}, " + ("0" if i == 0 else f"v{g0}"))
    for m in ("quad_perm:[1,0,3,2]", "quad_perm:[2,3,0,1]", "row_half_mirror", "row_mirror"):
        gops.append(f"v_add_f32_dpp v{g0}, v{g0}, v{g0} {m} row_mask:0xf bank_mask:0xf")
    gops.append(f"v_add_f32_dpp v{g0}, v{g0}, v{g0} row_bcast:15 row_mask:0xa bank_mask:0xf")
    gops += [f"v_mul_f32 v{g0}, s62, v{g0}", f"v_exp_f32 v{g0}, v{g0}", f"v_add_f32 v{g0}, 1.0, v{g0}", f"v_rcp_f32 v{g0}, v{g0}"]
    sGO = sXE
    gops += [f"v_and_b32 v{g1}, 31, {vr(vLANE)}", f"v_mov_b32 v{g2}, 0x7ff00000\nv_cmp_eq_u32 vcc, 31, v{g1}\nv_lshrrev_b32 v{g1}, 5, {vr(vLANE)}\n"
             f"v_lshlrev_b32 v{g1}, 2, v{g1}\nv_cndmask_b32 v{g1}, v{g2}, v{g1}, vcc",
             f"s_lshl_b32 {sGO}, {sRB}, 8\ns_lshl_b32 {sXO}, {sCB}, 5\ns_add_u32 {sGO}, {sGO}, {sXO}",
             f"s_lshl_b32 {sXO}, {sW}, 3\ns_add_u32 {sGO}, {sGO}, {sXO}\ns_add_u32 {sGO}, {sGO}, {WS_G}",
             (f"buffer_store_dword v{g0}, v{g1}, {sWS}, {sGO} offen sc1", "hout")]

    vACC = [16, 32]
    NB = 8
    vFR = 48
    vS = 80
    vHO = 96
    vPO = 104
    vPA = 106
    vZ = 107
    vDD = 108
    vGAD, vHAD, vUAD, vYW = 109, 110, 111, 112

    def fr_reads(n):
        b, ks = divmod(n, 4)
        a = slot(b) + 2048 * ks
        base, off = vTR[a >> 16], a & 0xffff
        f = vFR + 4 * (n % NB)
        r = [f"ds_read_b64_tr_b16 v[{f}:{f+1}], v{base} offset:{off}",
             f"ds_read_b64_tr_b16 v[{f+2}:{f+3}], v{base} offset:{off+512}"]
        if n < 40:
            va, off = (vXA + ks, 8192 * b) if b < 8 else (vXA + 4 + ks, 8192 * (b - 8))
            r.append(f"ds_read_b128 {ar(4*n,4)}, v{va} offset:{off}")
        return r

    GS0 = O.get("gs0", 1)
    starts = list(range(0, 10, GS0)) + list(range(10, 30, GS))
    grp_of = {}
    for gi_, st_ in enumerate(starts):
        en_ = starts[gi_ + 1] if gi_ + 1 < len(starts) else 30
        for b_ in range(st_, en_):
            grp_of[b_] = gi_
    extra_tags = {}

    def group_sync(g):
        def f():
            tags = [f"w1_{b}" for b in range(30) if grp_of[b] == g] + extra_tags.get(g, [])
            if g == grp_of[O["p0flag"]]:
                tags.append("p0out")
            A.wait(*tags)
            A("s_barrier")
            if g == grp_of[O["p0flag"]]:
                A(f"""v_readfirstlane_b32 {sTAGC}, v{vG0}
                      v_readfirstlane_b32 {sTAGR}, v{vG1}
                      s_mul_i32 {sTAGC}, {sTAGC}, 0x2C9277B5
                      s_mul_i32 {sTAGR}, {sTAGR}, 0x2C9277B5
                      s_add_u32 {sTAGC}, {sTAGC}, 0xAC564B05
                      s_add_u32 {sTAGR}, {sTAGR}, 0xAC564B05
                      s_lshl_b32 {sT0}, {sCB}, 8
                      s_lshl_b32 {sT1}, {sRB}, 2
                      s_add_u32 {sT0}, {sT0}, {sT1}
                      s_cmp_eq_u32 {sW}, 0
                      s_cselect_b32 {sT0}, {sT0}, 0x7f000000
                      v_mov_b32 v{vZ}, {sTAGC}""")
                A(f"buffer_store_dword v{vZ}, v{vFL}, {sWS}, {sT0} offen sc1")
        return f

    def silu_ops(p):
        ac = vACC[p & 1]
        ops = []
        for h in range(0, 8, 2):
            t0, t1 = vS + 4 * ((h >> 1) & 1), vS + 4 * ((h >> 1) & 1) + 2
            z0, z1 = ac + 2 * h, ac + 2 * h + 2
            ops += [(1, f"v_pk_mul_f32 v[{t0}:{t0+1}], v[{z0}:{z0+1}], {sNL2E}"),
                    (1, f"v_pk_mul_f32 v[{t1}:{t1+1}], v[{z1}:{z1+1}], {sNL2E}"),
                    (2, f"v_exp_f32 v{t0}, v{t0}"), (2, f"v_exp_f32 v{t0+1}, v{t0+1}"),
                    (2, f"v_exp_f32 v{t1}, v{t1}"), (2, f"v_exp_f32 v{t1+1}, v{t1+1}"),
                    (1, f"v_pk_add_f32 v[{t0}:{t0+1}], v[{t0}:{t0+1}], 1.0 op_sel_hi:[1,0]"),
                    (1, f"v_pk_add_f32 v[{t1}:{t1+1}], v[{t1}:{t1+1}], 1.0 op_sel_hi:[1,0]"),
                    (2, f"v_rcp_f32 v{t0}, v{t0}"), (2, f"v_rcp_f32 v{t0+1}, v{t0+1}"),
                    (2, f"v_rcp_f32 v{t1}, v{t1}"), (2, f"v_rcp_f32 v{t1+1}, v{t1+1}"),
                    (1, f"v_pk_mul_f32 v[{t0}:{t0+1}], v[{t0}:{t0+1}], v[{z0}:{z0+1}]"),
                    (1, f"v_pk_mul_f32 v[{t1}:{t1+1}], v[{t1}:{t1+1}], v[{z1}:{z1+1}]"),
                    (1, f"v_cvt_pk_bf16_f32 v{vHO+h}, v{t0}, v{t0+1}"),
                    (1, f"v_cvt_pk_bf16_f32 v{vHO+h+1}, v{t1}, v{t1+1}")]
            if h in (2, 6):
                r = h >> 2
                ops.append((1, (f"buffer_store_dwordx4 v[{vHO+4*r}:{vHO+4*r+3}], v{vHS}, {sWS}, {sHB[p]} offen offset:{512*r} sc1", "hout")))
        return ops

    def w2reg(i):
        return (4 * i + 160) % 240

    def w2_items(i):
        it = []
        if i % 4 == 0 and i:
            it.append(f"s_add_u32 {sW2L}, {sW2L}, 4096")
        it.append(f"buffer_load_dwordx4 {ar(w2reg(i),4)}, {vr(vL16)}, {sWS}, {sW2L} offen offset:{1024*(i%4)} sc1")
        return it

    extra_tags[0] = ["bo"]
    group_sync(0)()
    stamp("g1start")
    bo_reads()
    synced = {0}
    sync_at = {0: -2}
    for n in range(DIST):
        g = grp_of[n // 4]
        if g not in synced:
            A.waitall(vm=False)
            group_sync(g)(); synced.add(g); sync_at[g] = -1
        for r in fr_reads(n):
            A(r)
    anchors = []
    for n in range(120):
        p, k = divmod(n, 40)
        ac = vACC[p & 1]
        f = vFR + 4 * (n % NB)
        grp = [f"v_mfma_f32_32x32x16_bf16 v[{ac}:{ac+15}], v[{f}:{f+3}], {ar(4*k,4)}, " + ("0" if k == 0 else f"v[{ac}:{ac+15}]")]
        m = n + DIST
        if m < 120:
            g = grp_of[m // 4]
            if g not in synced:
                grp.append(group_sync(g)); synced.add(g); sync_at[g] = n
            grp += fr_reads(m)
        if n in (39, 79) and O.get("pstamp", 0):
            grp.append((lambda nm: (lambda: stamp(nm)))(f"pass{n//40}"))
        anchors.append(grp)
    sync_after = lambda n: min(v for v in sync_at.values() if v >= n)
    free_at = lambda b: sync_after(4 * b + 3)
    dma = []
    LA = O.get("la", 40)
    st_list = [[x] for x in w2st] + [kvst[0:2], kvst[2:4], kvst[4:6]]
    SP = O.get("stpace", 0)
    for b in range(NP0_P, 30):
        lat = sync_at[grp_of[b]]
        e = 0 if b < 10 else free_at(b - 10)
        e = max(e, lat - LA)
        its = w1_items(b)
        if b < 10:
            its = x_items(b) + its
            if b >= 8:
                e = max(e, sync_after(0))
        for it in its:
            dma.append(dict(e=e, l=lat, it=it))
        if b == 9:
            for it in gw_ld:
                dma.append(dict(e=e, l=lat, it=it))
        if b + 1 >= O.get("st_at", 6):
            for _ in range(O.get("st_n", 6)):
                if st_list:
                    for it in st_list.pop(0):
                        dma.append(dict(e=e, l=sync_at[grp_of[O["p0flag"]]], it=it))
    if O.get("st_at", 6) <= NP0_P:
        pass
    e_q = sync_at[grp_of[9]]
    qs = [dict(e=e_q, it=x) for x in qg]
    g_free = min(g for g in sync_at if sync_at[g] >= e_q + 8)
    extra_tags[g_free] = ["xrd"]
    for d in qs:
        d["l"] = sync_at[g_free]
    qs += [dict(e=e_q + 3, it=x) for x in gops]
    x_free = max(sync_at[g_free], free_at(9))
    pi = O["poll_i"]

    def ins_at(e, items):
        pos = next((i for i, d in enumerate(dma) if d["e"] > e), len(dma))
        dma[pos:pos] = [dict(e=e, it=x) for x in items]
    pl = [f"v_and_b32 v{vPA}, 31, {vr(vLANE)}", f"v_lshlrev_b32 v{vPA}, 2, v{vPA}", f"s_lshl_b32 {sHL}, {sCB}, 8",
          lambda: poll(vPA, sTAGC, sHL, vPO, check=False)]
    ins_at(pi, pl)
    e_h = max(x_free, O.get('hin_at', 50))
    e_u = x_free
    misc = [f"s_mul_i32 {sT2}, {sW}, {HBP}", f"v_min_u32 v{vGAD}, 23, {vr(vLANE)}",
            f"v_lshlrev_b32 v{vGAD}, 2, v{vGAD}", f"v_mov_b32 v{vZ}, 0", f"v_add_u32 v{vGAD}, {sT2}, v{vGAD}",
            f"v_mov_b32 v{vDD}, 0",
            (f"ds_write_b32 v{vGAD}, v{vZ} offset:{L_HB}", "pad"),
            f"s_add_u32 m0, {sT2}, {L_HB+96}", f"s_lshl_b32 {sT3}, {sCH}, 12"]
    misc += [(f"buffer_load_dwordx4 {vr(vL16)}, {sSK}, {sT3} offen offset:{1024*i} {NT} lds", "hin") for i in range(4)]
    misc += [f"s_lshl_b32 {sT3}, {sCH}, 1", f"buffer_load_short_d16_hi v{vDD}, off, {sD}, {sT3}"]
    misc += [f"v_and_b32 v{vGAD}, 3, {vr(vLANE)}", f"v_lshrrev_b32 v{vHAD}, 4, {vr(vLANE)}",
             f"v_bfe_u32 v{vUAD}, {vr(vLANE)}, 2, 2", f"v_add_u32 v{vYW}, v{vGAD}, v{vHAD}",
             f"v_lshlrev_b32 v{vYW}, 5, v{vYW}", f"v_lshl_add_u32 v{vYW}, v{vUAD}, 3, v{vYW}",
             f"v_sub_u32 v{vGAD}, v{vGAD}, v{vUAD}", f"v_lshlrev_b32 v{vHAD}, 2, v{vHAD}",
             f"v_sub_u32 v{vHAD}, v{vGAD}, v{vHAD}", f"v_add_u32 v{vGAD}, {sT2}, v{vYW}",
             f"s_mul_i32 {sT2}, {sW}, {UBP}", f"s_add_u32 {sT3}, {sT2}, {L_UB+128}",
             f"v_lshlrev_b32 v{vHAD}, 3, v{vHAD}", f"v_add_u32 v{vHAD}, {sT3}, v{vHAD}",
             f"v_lshlrev_b32 v{vYW}, 1, {vr(vLANE)}", f"s_add_u32 {sT3}, {sT2}, {L_UB+32}",
             f"v_add_u32 v{vUAD}, {sT3}, v{vYW}", f"s_lshl_b32 {sT3}, {sW}, 12",
             f"s_add_u32 {sT3}, {sT3}, {L_YS}", f"v_add_u32 v{vYW}, {sT3}, v{vYW}"]
    ins_at(e_h, misc)
    pc = max(O["poll_c"], e_u, e_h)

    def col_ok():
        poll(vPA, sTAGC, sHL, vPO, issue=False)
        A(f"""s_add_u32 {sT0}, {sHL}, {WS_COLG}
              s_or_b32 {sT1}, {sRB}, {sW}
              s_cmp_eq_u32 {sT1}, 0
              s_cselect_b32 {sT0}, {sT0}, 0x7f000000
              v_mov_b32 v{vPO}, {sTAGC}""")
        A(f"buffer_store_dword v{vPO}, v{vFL}, {sWS}, {sT0} offen sc1")
    misc2 = [col_ok, f"v_and_b32 v{vPA}, 7, {vr(vLANE)}", f"s_mul_i32 {sT2}, {sW}, {UBP}",
             f"v_lshlrev_b32 v{vPA}, 2, v{vPA}", f"v_add_u32 v{vPA}, {sT2}, v{vPA}",
             (f"ds_write_b32 v{vPA}, v{vZ} offset:{L_UB}", "pad"),
             f"s_add_u32 m0, {sT2}, {L_UB+32}", f"s_mul_i32 {sT3}, {sCH}, {TP}", f"s_add_u32 {sT3}, {sT3}, {WS_KVT}"]
    misc2 += [(f"buffer_load_dwordx4 {vr(vL16)}, {sWS}, {sT3} offen offset:{1024*i} sc1 lds", "uin") for i in range(4)]
    misc2 += [f"s_mul_i32 {sW2L}, {sCB}, {48*5120}", f"s_mul_i32 {sT3}, {sW}, {12*5120}",
              f"s_add_u32 {sW2L}, {sW2L}, {sT3}", f"s_add_u32 {sW2L}, {sW2L}, {WS_W2P}"]
    ins_at(pc, misc2)
    NW2_G1 = O.get("w2g1", 12)
    w2s = max(pc + 2, max(d["e"] for d in dma), O.get("w2start", 0))
    for i in range(NW2_G1):
        for x in w2_items(i):
            e = w2s + (i * O.get("w2p1", 5)) // 2
            if i >= 20:
                e = max(e, 80 + i - 20 + 1)
            dma.append(dict(e=min(e, 119), it=x))
    sil = []
    for p in range(2):
        for c, x in silu_ops(p):
            sil.append(dict(e=40 * (p + 1) + 2, l=40 * (p + 2), c=c, it=x))
    left = weave2(A, anchors, [dma, qs, sil], O.get("cap1", 3))
    drain(A, left)
    stamp("g1end")

    vG = 114
    vH = 178
    NA = 8
    vCA = 16
    vP2 = [244, 245, 246]
    vP1 = [247, 248, 249]
    vY = [250, 251]
    vU = [252, 253, 254]
    vYO = 96
    vCV = 255
    Hreg = lambda b: vH + 2 * (31 - b)
    rd = []
    for n in range(32):
        rd.append((n, f"ds_read_b64_tr_b16 v[{Hreg(n)}:{Hreg(n)+1}], v{vHAD} offset:{128*n}"))
        if n % 2 == 0:
            for x in (n, n + 1):
                rd.append((n, f"ds_read_b64_tr_b16 v[{vG+2*x}:{vG+2*x+1}], v{vGAD} offset:{L_HB+128*x}"))
    A.wait("hin", "uin", "pad")
    so = silu_ops(2)
    NPRE = 24
    ri = 0
    for i, (c, x) in enumerate(so):
        put_item(A, x)
        if i >= 8 and i % 2 == 0 and ri < NPRE:
            A(rd[ri][1]); ri += 1
    for r in (Hreg(-1), Hreg(-1) + 1, vP2[2], vP1[2], vU[0], vU[1], vU[2], vZ):
        A(f"v_mov_b32 v{r}, 0")
    stamp("silu2")

    vHF = 48
    vL16b, vL16c = 4, 5

    def hload(ph, kk, dst):
        vo = (vL16, vL16b, vL16c)[kk // 4]
        return f"buffer_load_dwordx4 v[{dst}:{dst+3}], v{vo}, {sWS}, {sHL} offen offset:{1024*(kk%4)} sc1"

    def hbase(ph):
        return [f"s_add_u32 {sT0}, {sW}, {1+ph}", f"s_and_b32 {sT0}, {sT0}, 3", f"s_mul_i32 {sT0}, {sT0}, 49152",
                f"s_add_u32 {sHL}, {sT0}, {sHB[0]}"]

    def h_flag():
        A.wait("hout")
        A(f"""s_lshl_b32 {sT0}, {sRB}, 8
              s_lshl_b32 {sT1}, {sCB}, 4
              s_add_u32 {sT0}, {sT0}, {WS_ROWH}
              s_add_u32 {sT1}, {sT1}, {sT0}
              s_lshl_b32 {sT2}, {sW}, 2
              s_add_u32 {sT1}, {sT1}, {sT2}
              v_mov_b32 v{vPO}, {sTAGR}""")
        A(f"buffer_store_dword v{vPO}, v{vFL}, {sWS}, {sT1} offen sc1")

    def row_poll_issue():
        A(f"""v_and_b32 v{vPA}, 31, {vr(vLANE)}
              s_lshl_b32 {sHB[1]}, {sRB}, 8
              v_lshlrev_b32 v{vPA}, 2, v{vPA}
              s_add_u32 {sHB[1]}, {sHB[1]}, {WS_ROWH}""")
        poll(vPA, sTAGR, sHB[1], vPO, check=False)

    vGT = 6
    def row_ok():
        poll(vPA, sTAGR, sHB[1], vPO, issue=False)
        A(f"""s_add_u32 {sT0}, {sHB[1]}, {WS_ROWG - WS_ROWH}
              s_or_b32 {sT1}, {sCB}, {sW}
              s_cmp_eq_u32 {sT1}, 0
              s_cselect_b32 {sT0}, {sT0}, 0x7f000000
              v_mov_b32 v{vPO}, {sTAGR}
              v_add_u32 v{vL16b}, 4096, {vr(vL16)}
              v_add_u32 v{vL16c}, 8192, {vr(vL16)}""")
        A(f"buffer_store_dword v{vPO}, v{vFL}, {sWS}, {sT0} offen sc1")
        A(f"""s_mul_i32 {sHB[0]}, {sRB}, 196608
              s_mul_i32 {sT0}, {sW}, 12288
              s_add_u32 {sHB[0]}, {sHB[0]}, {sT0}
              s_add_u32 {sHB[0]}, {sHB[0]}, {WS_H}
              v_and_b32 v{vPA}, 15, {vr(vLANE)}
              s_lshl_b32 {sT0}, {sRB}, 8
              s_lshl_b32 {sT1}, {sW}, 6
              v_lshlrev_b32 v{vPA}, 2, v{vPA}
              s_add_u32 {sT0}, {sT0}, {sT1}
              s_add_u32 {sT0}, {sT0}, {WS_G}""")
        A(f"buffer_load_dword v{vGT}, v{vPA}, {sWS}, {sT0} offen sc1")
        for x in hbase(0):
            A(x)

    PACE = O["w2pace"]
    common = []
    t = 4
    for i in range(NW2_G1, 60):
        if i == NW2_G1 + O.get("hflag_after", 8):
            common.append(dict(e=t, it=h_flag))
        if i == O.get("rowpoll_at", 52):
            common.append(dict(e=t, it=row_poll_issue))
        for x in w2_items(i):
            common.append(dict(e=t, it=x))
        t += PACE
    t += O.get("rowok_gap", 16)
    common.append(dict(e=t, it=row_ok))
    for kk in range(O["hpre"]):
        t += PACE
        common.append(dict(e=min(t, 270), it=hload(0, kk, vHF + 4 * kk)))

    snapshot_out = len(A.out)
    A(f"s_cmp_ge_u32 {sRB}, 20")
    A.settle()
    A("s_cbranch_scc1 Lnoconv")
    import copy
    saved = (copy.deepcopy(A.q), dict(A.pend), A.nid)
    A.nopt += 1
    A.opt = A.nopt
    A._hidden = []
    optid = A.opt

    def as_common(it):
        def f():
            n0 = {qn: len(A.q[qn]) for qn in A.q}
            ids0 = A.nid
            put_item(A, it)
            for qn in A.q:
                for e in A.q[qn]:
                    if e["id"] > ids0:
                        e["opt"] = 0
        return f

    anchors, last = [], {}
    first = {}
    for n in range(32):
        ac = vCA + 4 * ((n + 4) % NA)
        first[n] = len(anchors)
        for q in range(n // 2 + 1):
            b = n - 2 * q
            anchors.append([f"v_mfma_f32_16x16x32_bf16 v[{ac}:{ac+3}], v[{vG+4*q}:{vG+4*q+3}], v[{Hreg(b)}:{Hreg(b)+3}], " +
                            ("0" if q == 0 else f"v[{ac}:{ac+3}]")])
        last[n] = len(anchors) - 1
    NAN = len(anchors)
    rds = [dict(e=-1, l=first[n], it=x) for n, x in rd[ri:]]
    for d in rds:
        d["e"] = 0 if d["l"] > 0 else -1
    acc = lambda n, r: vCA + 4 * ((n + 4) % NA) + r
    DP = "row_mask:0xf bank_mask:0xf"
    comb = []
    uread = lambda n: f"ds_read_u16_d16_hi v{vU[n%3]}, v{vUAD} offset:{128*n}"
    comb.append(dict(e=0, it=uread(0)))
    comb.append(dict(e=0, it=uread(1)))
    for s in range(32 + 3):
        a, b, c = s, s - 1, s - 2
        e = min(last[min(s, 31)] + 3, NAN + 5)
        l = first[c + NA] if 0 <= c + NA < 32 and c >= 0 else 1 << 30
        it = []
        d3p = (lambda n: acc(n - 1, 3) if n > 0 else vZ)
        if a < 32:
            it.append(f"v_add_f32_dpp v{vP2[a%3]}, v{d3p(a)}, v{acc(a,2)} wave_ror:1 {DP}")
        if 0 <= b < 32:
            it.append(f"v_add_f32_dpp v{vP1[b%3]}, v{vP2[(b-1)%3]}, v{acc(b,1)} wave_ror:1 {DP}")
        if 0 <= c < 32:
            it.append(f"v_add_f32_dpp v{vY[c%2]}, v{vP1[(c-1)%3]}, v{acc(c,0)} wave_ror:1 {DP}")
        if a < 32:
            it.append(f"v_add_f32_dpp v{vP2[a%3]}, v{acc(a,3)}, v{acc(a,2)} wave_shr:1 {DP}")
        if 0 <= b < 32:
            it.append(f"v_add_f32_dpp v{vP1[b%3]}, v{vP2[b%3]}, v{acc(b,1)} wave_shr:1 {DP}")
        if 0 <= c < 32:
            it.append(f"v_add_f32_dpp v{vY[c%2]}, v{vP1[c%3]}, v{acc(c,0)} wave_shr:1 {DP}")
        if a < 32:
            it.append(f"v_fmac_f32 v{acc(a,0)}, v{vU[a%3]}, v{vDD}")
        if a + 2 < 32:
            it.append(uread(a + 2))
        if 0 <= c < 32 and c % 2 == 1:
            it.append(f"v_cvt_pk_bf16_f32 v{vCV}, v{vY[0]}, v{vY[1]}")
            it.append((f"ds_write_b16 v{vYW}, v{vCV} offset:{128*(c-1)}", "ys"))
            it.append((f"ds_write_b16_d16_hi v{vYW}, v{vCV} offset:{128*c}", "ys"))
            if c % 8 == 7:
                i = c // 8
                if i == 0:
                    it += [f"s_lshl_b32 {sT3}, {sW}, 12", f"v_add_u32 v113, {sT3}, {vr(vL16)}",
                           f"s_mul_i32 {sCH}, {sCH}, {TP}", f"s_add_u32 {sCH}, {sCH}, {WS_YT}"]
                it.append(f"ds_read_b128 v[{vYO+4*(i&1)}:{vYO+4*(i&1)+3}], v113 offset:{L_YS+1024*i}")
        dd = s - 3
        if 0 <= dd < 32 and dd % 8 == 7:
            i = dd // 8
            it.append((f"buffer_store_dwordx4 v[{vYO+4*(i&1)}:{vYO+4*(i&1)+3}], {vr(vL16)}, {sWS}, {sCH} offen offset:{1024*i} sc1", "yout"))
        for x in it:
            comb.append(dict(e=e, l=l, it=x))
    com2 = [dict(e=d["e"], it=as_common(d["it"])) for d in common]
    left = weave2(A, anchors, [com2, rds, comb], 2)
    drain(A, [left[1], left[2], left[0]])
    A.wait("yout")
    A(f"""s_lshl_b32 {sT0}, {sCB}, 9
          s_lshl_b32 {sT1}, {sRB}, 4
          s_add_u32 {sT0}, {sT0}, {sT1}
          s_lshl_b32 {sT1}, {sW}, 2
          s_add_u32 {sT0}, {sT0}, {sT1}
          s_add_u32 {sT0}, {sT0}, {WS_COLCV}
          v_mov_b32 v{vPO}, {sTAGC}""")
    A(f"buffer_store_dword v{vPO}, v{vFL}, {sWS}, {sT0} offen sc1")
    A.settle()
    A("s_branch Ljoin")
    for qn in A.q:
        back = [h for h in A._hidden if h[0] == qn]
        A.q[qn] = [h[1] for h in back] + A.q[qn]
        for h in back:
            for r, v in h[2].items():
                A.pend.setdefault(r, v)
    A.opt = 0
    stateA = (A.q, A.pend, A.nid)
    A.label("Lnoconv")
    A.q, A.pend, A.nid = saved[0], saved[1], stateA[2]
    for d in common:
        put_item(A, d["it"])
    A.settle()
    seqB = [e["text"] for e in A.q["vm"]]
    seqA = [e["text"] for e in stateA[0]["vm"] if e["opt"] == 0]
    assert seqA[-len(seqB):] == seqB, (seqA, seqB)
    nid = A.nid
    A.q, A.pend, A.nid = stateA[0], stateA[1], nid
    A.label("Ljoin")
    stamp("conv")

    HF = [48, 114, 162, 210 - 0]
    HF = [48, 112, 160, 208]
    vA2 = [8, 28]
    vFL2, vRW = 7, 96
    vGQ = 48
    vOMG = 68
    vYR = 70
    vTM = 80
    vRD = 112
    vYA, vOA, vOB, vRR = 97, 98, 99, 100
    anchors = []
    for ph in range(4):
        for kk in range(12):
            for nt in range(5):
                ac = vA2[ph & 1] + 4 * nt
                anchors.append([f"v_mfma_f32_16x16x32_bf16 v[{ac}:{ac+3}], {ar(w2reg(kk*5+nt),4)}, v[{HF[ph]+4*kk}:{HF[ph]+4*kk+3}], " +
                                ("0" if kk == 0 else f"v[{ac}:{ac+3}]")])
    pre = []
    for kk in range(O["hpre"], 12):
        pre.append(hload(0, kk, HF[0] + 4 * kk))
    for x in pre:
        A(x)
    ld = []
    t = -1
    H0 = O.get("hburst", 12)
    cnt = 0
    for ph in range(1, 4):
        for x in hbase(ph):
            ld.append(dict(e=t, it=x))
        for kk in range(12):
            ld.append(dict(e=t, l=60 * ph + 5 * kk, it=hload(ph, kk, HF[ph] + 4 * kk)))
            cnt += 1
            if cnt >= H0:
                t += O.get("hpace", 4)
    while ld and ld[0]["e"] < 0:
        put_item(A, ld.pop(0)["it"])
    ty = max(t, 0) + 2

    def y_issue():
        A(f"""v_min_u32 v{vPA}, 39, {vr(vLANE)}
              s_lshl_b32 {sHB[1]}, {sCB}, 9
              v_lshlrev_b32 v{vPA}, 3, v{vPA}
              s_add_u32 {sHB[1]}, {sHB[1]}, {WS_COLCV}""")
        poll(vPA, sTAGC, sHB[1], vPO, n=2, check=False)

    def y_dma():
        poll(vPA, sTAGC, sHB[1], vPO, n=2, issue=False)
        A(f"""s_add_u32 {sT0}, {sKVO}, {WS_YT}
              s_add_u32 m0, {sW1K}, {L_YT}
              s_add_u32 {sT1}, {sKVO}, {WS_YT + 32*TP}""")
        A(f"buffer_load_dwordx4 {vr(vT)}, {sWS}, {sT0} offen sc1 lds", "yin")
        A(f"""s_add_u32 m0, {sW1K}, {L_YT+4096}
              s_add_u32 {sT0}, {sKVO}, {WS_YT + 64*TP}""")
        A(f"buffer_load_dwordx4 {vr(vT)}, {sWS}, {sT1} offen sc1 lds", "yin")
        A(f"s_add_u32 m0, {sW1K}, {L_YT+8192}")
        A(f"s_cmp_ge_u32 {sW}, 2")
        A.begin_opt("s_cbranch_scc1", settle=False)
        A(f"buffer_load_dwordx4 {vr(vT)}, {sWS}, {sT0} offen sc1 lds", "yin")
        A.end_opt()
    ld.append(dict(e=O.get("ypoll_i", ty), it=y_issue))
    ld.append(dict(e=O.get("ypoll_c", 150), it=y_dma))

    red = []
    for ph in range(3):
        e = 60 * (ph + 1) + 2
        its = [f"s_add_u32 {sT2}, {sW}, {1+ph}", f"s_and_b32 {sT2}, {sT2}, 3", f"s_mul_i32 {sT2}, {sT2}, 15360",
               f"s_add_u32 {sT2}, {sT2}, {L_RED + 5120*ph}", f"v_add_u32 v{vRW}, {sT2}, {vr(vL16)}"]
        for x in its:
            red.append(dict(e=e - 8, l=60 * (ph + 2), it=x))
        for nt in range(5):
            ac = vA2[ph & 1] + 4 * nt
            red.append(dict(e=e, l=60 * (ph + 2), it=(f"ds_write_b128 v{vRW}, v[{ac}:{ac+3}] offset:{1024*nt}", "red")))
        if ph == 0:
            its = [f"v_sub_f32 v{vOMG}, 1.0, v{vGT}"]
            for i in range(10):
                its += [f"v_accvgpr_read_b32 v{vTM}, a{240+i}", f"v_lshlrev_b32 v{vGQ+2*i}, 16, v{vTM}",
                        f"v_and_b32 v{vGQ+2*i+1}, 0xffff0000, v{vTM}",
                        f"v_pk_mul_f32 v[{vGQ+2*i}:{vGQ+2*i+1}], v[{vGQ+2*i}:{vGQ+2*i+1}], v[{vGT}:{vGT+1}] op_sel_hi:[1,0]"]
            its += [f"v_lshrrev_b32 v{vTM}, 4, {vr(vLANE)}", f"v_bfe_u32 v{vTM+1}, {vr(vLANE)}, 2, 2",
                    f"v_and_b32 v{vTM+2}, 3, {vr(vLANE)}", f"v_lshlrev_b32 v{vTM+1}, 7, v{vTM+1}",
                    f"v_lshl_add_u32 v{vTM+1}, v{vTM+2}, 3, v{vTM+1}", f"s_lshl_b32 {sT3}, {sW}, 5",
                    f"s_add_u32 {sT3}, {sT3}, {L_YT}", f"v_add_u32 v{vTM+1}, {sT3}, v{vTM+1}",
                    f"v_lshl_add_u32 v{vYA}, v{vTM}, 10, v{vTM+1}", f"v_lshl_add_u32 v101, v{vTM}, 9, v{vTM+1}",
                    f"v_and_b32 v{vTM+2}, 15, {vr(vLANE)}", f"v_mul_u32_u24 v{vTM+2}, 1280, v{vTM+2}",
                    f"v_lshl_add_u32 v{vOA}, v{vTM}, 4, v{vTM+2}", f"v_lshl_add_u32 v{vOB}, v{vTM}, 3, v{vTM+2}",
                    f"s_mul_i32 {sT3}, {sW}, 20480", f"s_add_u32 {sROWOFF}, {sROWOFF}, {sT3}",
                    f"s_mul_i32 {sT3}, {sW}, 15360", f"s_add_u32 {sT3}, {sT3}, {L_RED}",
                    f"v_add_u32 v{vRR}, {sT3}, {vr(vL16)}"]
            for x in its:
                red.append(dict(e=e, it=x))

    def sync2():
        A.wait("red", "yin")
        A("s_barrier")
    e = O.get("sync2", 190)
    red.append(dict(e=e, it=sync2))
    for nt, (va, off) in enumerate(((vYA, 0), (vYA, 512), (vYA, 4096), (vYA, 4608), (101, 8192))):
        red.append(dict(e=e, it=f"ds_read_b64_tr_b16 v[{vYR+2*nt}:{vYR+2*nt+1}], v{va} offset:{off}"))
    for nt in range(5):
        for p in range(3):
            d = vRD + 20 * p + 4 * nt
            red.append(dict(e=e, it=f"ds_read_b128 v[{d}:{d+3}], v{vRR} offset:{5120*p+1024*nt}"))
    for i in range(10):
        t0 = vTM + 2 * (i & 1)
        g, r = vGQ + 2 * i, vRD + 2 * i
        for x in (f"v_lshlrev_b32 v{t0}, 16, v{vYR+i}", f"v_and_b32 v{t0+1}, 0xffff0000, v{vYR+i}",
                  f"v_pk_add_f32 v[{r}:{r+1}], v[{r}:{r+1}], v[{r+20}:{r+21}]",
                  f"v_pk_mul_f32 v[{g}:{g+1}], v[{g}:{g+1}], v[{t0}:{t0+1}]",
                  f"v_pk_add_f32 v[{r}:{r+1}], v[{r}:{r+1}], v[{r+40}:{r+41}]",
                  f"v_pk_fma_f32 v[{g}:{g+1}], v[{r}:{r+1}], v[{vOMG}:{vOMG+1}], v[{g}:{g+1}] op_sel_hi:[1,0,1]"):
            red.append(dict(e=e, it=x))
    left = weave2(A, anchors, [ld, red], 2)
    drain(A, left)
    for i in range(10):
        g, a = vGQ + 2 * i, vA2[1] + 2 * i
        A(f"v_pk_fma_f32 v[{g}:{g+1}], v[{a}:{a+1}], v[{vOMG}:{vOMG+1}], v[{g}:{g+1}] op_sel_hi:[1,0,1]")
        A(f"v_cvt_pk_bf16_f32 v{vYR+i}, v{g}, v{g+1}")
        if i == 3:
            A(f"buffer_store_dwordx4 v[{vYR}:{vYR+3}], v{vOA}, {sOUT}, {sROWOFF} offen {OF}")
        if i == 7:
            A(f"buffer_store_dwordx4 v[{vYR+4}:{vYR+7}], v{vOA}, {sOUT}, {sROWOFF} offen offset:64 {OF}")
    A(f"buffer_store_dwordx2 v[{vYR+8}:{vYR+9}], v{vOB}, {sOUT}, {sROWOFF} offen offset:128 {OF}")
    if O["stamps"]:
        A.waitall()
        stamp("end")
        A("s_memrealtime s[52:53]")
        A("s_waitcnt lgkmcnt(0)")
        A("v_mov_b32 v8, 0")
        for k in range(nst[0]):
            A(f"v_writelane_b32 v8, s{STR[k]}, {k}")
        A(f"v_writelane_b32 v8, {sRB}, 12")
        A("v_writelane_b32 v8, s100, 13")
        A("v_writelane_b32 v8, s52, 14")
        A(f"v_writelane_b32 v8, {sSPIN}, 15")
        A.raw("; STAMPS " + " ".join(names))
        A(f"""s_lshl_b32 s54, s2, 2
              s_add_u32 s54, s54, {sW}
              s_lshl_b32 s54, s54, 6
              s_add_u32 s54, s54, {WS_DBG}
              v_lshlrev_b32 v9, 2, {vr(vLANE)}
              v_cmp_gt_u32 vcc, 16, {vr(vLANE)}
              v_mov_b32 v10, 0x7ff00000
              v_cndmask_b32 v9, v10, v9, vcc""")
        A(f"buffer_store_dword v8, v9, {sWS}, s54 offen")
    if O.get("dbg", 0):
        A("s_load_dwordx2 s[8:9], s[0:1], 88")
        A("s_mov_b32 s10, 256")
        A("s_mov_b32 s11, 0x20000")
        A("s_getreg_b32 s55, hwreg(HW_REG_XCC_ID)")
        A("s_waitcnt lgkmcnt(0)")
        A("s_not_b32 s100, s100")
        A("v_mov_b32 v10, s100")
        A("v_mov_b32 v11, s52")
        A("v_mov_b32 v12, 0")
        A("s_mov_b64 exec, 1")
        A("buffer_atomic_umax v10, v12, s[8:11], 0 offen sc1")
        A("buffer_atomic_umax v11, v12, s[8:11], 0 offen offset:4 sc1")
        for k in range(1, nst[0]):
            A(f"s_sub_u32 s54, s{STR[k]}, s{STR[0]}")
            A(f"v_mov_b32 v{12+k}, s54")
            A(f"buffer_atomic_umax v{12+k}, v12, s[8:11], 0 offen offset:{4+4*k} sc1")
        A("s_and_b32 s55, s55, 15")
        A("s_lshl_b32 s54, s2, 2")
        A("s_lshl_b32 s53, s55, s54")
        A("s_cmp_lt_u32 s2, 8")
        A("s_cselect_b32 s53, s53, 0")
        A("v_mov_b32 v30, s53")
        A("buffer_atomic_or v30, v12, s[8:11], 0 offen offset:56 sc1")
        A("s_lshr_b32 s54, s2, 1")
        A("s_lshl_b32 s53, s55, s54")
        A("s_and_b32 s54, s2, 0xc7")
        A("s_cmp_eq_u32 s54, 0")
        A("s_cselect_b32 s53, s53, 0")
        A("v_mov_b32 v31, s53")
        A("buffer_atomic_or v31, v12, s[8:11], 0 offen offset:60 sc1")
    if O.get("padto", 0):
        A.waitall()
        A.label("Lpad")
        A.raw("  s_memrealtime s[52:53]")
        A.raw("  s_waitcnt lgkmcnt(0)")
        A.raw("  s_sub_u32 s52, s52, s100")
        A.raw(f"  s_cmp_lt_u32 s52, {O['padto']}")
        A.raw("  s_cbranch_scc1 Lpad")
    A.label("Lend")
    A("s_endpgm")

    head = f"""; Fused gated mix: one persistent launch, 256 workgroups (32 row blocks x 8 column blocks).
; @launch grid=(256,1,1) block=(256,1,1) lds={LDS}
.amdgcn_target "amdgcn-amd-amdhsa--gfx950"
.text
.globl {KN}_kernel
.p2align {O.get("al", 8)}
.type {KN}_kernel,@function
{KN}_kernel:
"""
    tail = f"""
.section .rodata,"a"
.p2align 6
.amdhsa_kernel {KN}_kernel
  .amdhsa_next_free_vgpr 512
  .amdhsa_next_free_sgpr 102
  .amdhsa_accum_offset 256
  .amdhsa_group_segment_fixed_size 0
  .amdhsa_kernarg_size 104
  .amdhsa_user_sgpr_count 2
  .amdhsa_user_sgpr_kernarg_segment_ptr 1
  .amdhsa_system_sgpr_workgroup_id_x 1
.end_amdhsa_kernel
"""
    txt = head + A.text() + tail
    if O.get("touch", ""):
        import padlib
        txt = padlib.add_pads(txt, sW, O.get("tstep", 4096), [x for x in O.get("textra", "Lnoconv+Ljoin").split("+") if x])
    return txt, A.stats


if __name__ == "__main__":
    out = sys.argv[1]
    kw = {}
    for a in sys.argv[2:]:
        k, v = a.split("=")
        kw[k] = int(v) if v.lstrip("-").isdigit() else v
    s, st = gen(**kw)
    open(out, "w").write(s)
    print(out, st)
```

```python
import sys, os
sys.path.insert(0, os.path.dirname(os.path.abspath(__file__)))
from asmlib import *

KN = "gated_mix__ssm_conv_h3__dense_activation_silu__prompt"

DEF = dict(stamps=0, mapping="B", rot=0, gs=2, dist=5, p0flag=8, poll_i=60, poll_c=76, w2pace=4, hpre=12,
           spin=200000, early_w1=6)


def gen(**kw):
    O = dict(DEF)
    O.update(kw)
    A = Asm()
    GS, DIST = O["gs"], O["dist"]
    NT = "nt" if O.get("nt", 0) else ""
    NTX = "nt" if O.get("ntx", 0) else ""
    OF = O.get("of", "").replace("+", " ")

    WS_COLP0, WS_COLG, WS_ROWG, WS_ROWH, WS_YF = 0x0000, 0x8000, 0xA000, 0x40000, 0x60000
    FLW = O.get("flw", 32)
    WS_DBG = 0x20000
    WS_KVT, WS_YT, WS_W2P, WS_H = 0x100000, 0x400000, 0x700000, 0x900000
    WS_SIZE = 0x1000000
    TP = 4224
    L_S = 81920
    L_K, L_V, L_W2 = 131072, 142336, 152576
    L_BO = 65536
    L_HB, L_UB, L_YT, L_YS, L_RED = 0, 16896, 33792, 45056, 69632
    HBP, UBP = 4224, 4128
    LDS = 163840
    sQ, sK, sV, sSH, sSK, sD, sW1, sW2, sGW, sOUT, sWS = [f"s[{8+4*i}:{11+4*i}]" for i in range(11)]
    srd = lambda n: int(n[2:].split(":")[0])
    sW, sRB, sCB, sROT = "s3", "s4", "s5", "s6"
    sT0, sT1, sT2, sT3 = "s52", "s53", "s54", "s55"
    sROWOFF = "s56"
    sW1K = "s57"
    sW2K = "s58"
    sTAGC, sTAGR = "s59", "s60"
    sCH = "s61"
    sNL2E = "s[62:63]"
    sJ = [f"s{64+i}" for i in range(10)]
    sHB = ["s74", "s75", "s76"]
    sKVO = "s77"
    sW2L = "s78"
    sSPIN = "s79"
    sHL = "s80"
    sSTAMP = 82

    nst = [0]
    names = []
    STR = [82, 84, 86, 88, 90, 92, 94, 96, 98, 64, 66, 68]
    SKIPST = O.get('nostamp', 'iss0+pre+karg+tiles').split('+')
    ONLY = [x for x in O.get('only', '').split('+') if x]
    if ONLY:
        ONLY += ["start", "end"]
        SKIPST = []

    def stamp(name):
        if O.get("touch", "") == name:
            A.settle()
            A.raw("; @TOUCH")
        if O.get("skfrom", "") == name:
            A.skip = O["skip"]
        if O.get("skto", "") == name:
            A.skip = None
        if O.get("padat", "") == name:
            A("s_memrealtime s[100:101]")
        if O["stamps"] and name in names:
            r = STR[names.index(name)]
            A(f"s_memtime s[{r}:{r+1}]")
        elif O["stamps"] and name not in SKIPST and (not ONLY or name in ONLY):
            r = STR[nst[0]]
            A(f"s_memtime s[{r}:{r+1}]")
            nst[0] += 1
            names.append(name)

    def vr(a, n=1):
        return f"v{a}" if n == 1 else f"v[{a}:{a+n-1}]"

    def ar(a, n=1):
        return f"a{a}" if n == 1 else f"a[{a}:{a+n-1}]"

    vTID, vLANE, vL16, vT = 0, 1, 2, 3
    vW1 = [4, 5, 6, 7, 8, 9]
    vTR = [10, 11, 12]
    vHS = 13
    vFL = 14
    vPO = 15

    def poll(voff, tag, soff, vres=None, n=1, issue=True, check=True):
        ld = (f"buffer_load_dword {vr(vres)}, {vr(voff)}, {sWS}, {soff} offen sc1" if n == 1 else
              f"buffer_load_dwordx2 {vr(vres,2)}, {vr(voff)}, {sWS}, {soff} offen sc1")
        if issue:
            A(ld)
        if check:
            lo, dn = A.newlabel("Lpoll"), A.newlabel("Lgot")

            def cmp():
                A(f"v_cmp_ne_u32 vcc, {tag}, {vr(vres)}")
                if n == 2:
                    A(f"v_cmp_ne_u32 s[52:53], {tag}, {vr(vres+1)}")
                    A("s_or_b64 vcc, vcc, s[52:53]")
            cmp()
            A(f"s_cbranch_vccz {dn}" if n != 2 else f"s_cbranch_scc0 {dn}")
            A.label(lo)
            A.raw(f"  s_sleep {O.get('psleep', 1)}")
            A.raw("  " + ld)
            A.raw("  s_waitcnt vmcnt(0)")
            A.raw(f"  s_sub_u32 {sSPIN}, {sSPIN}, 1")
            A.raw(f"  s_cbranch_scc1 Lend")
            A.raw(f"  v_cmp_ne_u32 vcc, {tag}, {vr(vres)}")
            if n == 2:
                A.raw(f"  v_cmp_ne_u32 s[52:53], {tag}, {vr(vres+1)}")
                A.raw("  s_or_b64 vcc, vcc, s[52:53]")
            A.raw(f"  s_cbranch_vccnz {lo}" if n != 2 else f"  s_cbranch_scc1 {lo}")
            A.label(dn)

    A("s_cmp_ge_u32 s2, 256")
    A("s_cbranch_scc1 Lend")
    for s, off in ((sW2, 64), (sK, 8), (sV, 16), (sQ, 0), (sW1, 56), (sWS, 96), (sSH, 24), (sGW, 72), (sSK, 32),
                   (sD, 40), (sOUT, 80)):
        A(f"s_load_dwordx2 s[{srd(s)}:{srd(s)+1}], s[0:1], {off}")
    if O["stamps"] or O.get("padto", 0):
        A("s_memrealtime s[100:101]")
    stamp("start")
    A(f"v_lshrrev_b32 v20, 6, v0")
    A(f"v_and_b32 {vr(vLANE)}, 63, v0")
    A(f"v_readfirstlane_b32 {sW}, v20")
    if O["mapping"] == "A":
        A(f"""s_lshr_b32 {sT0}, s2, 3
              s_and_b32 {sCB}, {sT0}, 7
              s_lshr_b32 {sT0}, {sT0}, 3
              s_and_b32 {sRB}, s2, 7
              s_lshl_b32 {sRB}, {sRB}, 2
              s_add_u32 {sRB}, {sRB}, {sT0}""")
    else:
        A(f"""s_lshr_b32 {sT0}, s2, 3
              s_and_b32 {sCB}, {sT0}, 3
              s_and_b32 {sT1}, s2, 1
              s_lshl_b32 {sT1}, {sT1}, 2
              s_add_u32 {sCB}, {sCB}, {sT1}
              s_bfe_u32 {sRB}, s2, 0x20001""")
        if O.get("rbint", 1):
            A(f"""s_and_b32 {sT0}, {sT0}, 28
                  s_add_u32 {sRB}, {sRB}, {sT0}""")
        else:
            A(f"""s_lshr_b32 {sT0}, {sT0}, 2
                  s_lshl_b32 {sRB}, {sRB}, 3
                  s_add_u32 {sRB}, {sRB}, {sT0}""")
    for s, size in ((sQ, 2621440), (sK, 2621440), (sV, 2621440), (sSH, 5120), (sSK, 2621440), (sD, 1280),
                    (sW1, 1966080), (sW2, 1966080), (sGW, 1280), (sOUT, 2621440), (sWS, WS_SIZE)):
        A(f"s_mov_b32 s{srd(s)+2}, {size}")
        A(f"s_mov_b32 s{srd(s)+3}, 0x20000")
    A(f"""s_mul_i32 {sROWOFF}, {sRB}, 81920
          s_mul_i32 {sT0}, {sCB}, 160
          s_add_u32 {sROWOFF}, {sROWOFF}, {sT0}
          s_lshl_b32 {sW1K}, {sW}, 10
          s_lshl_b32 {sW2K}, {sW}, 11
          s_movk_i32 {sT1}, 6554
          s_movk_i32 {sT2}, 1120
          s_sub_u32 {sT3}, {sROWOFF}, 5120""")
    for n in range(3):
        A(f"v_add_u32 v26, {256*n}, v0") if n else A("v_mov_b32 v26, v0")
        A(f"""v_mul_u32_u24 v27, {sT1}, v26
              v_lshrrev_b32 v27, 16, v27
              v_lshlrev_b32 v26, 4, v26
              v_mad_u32_u24 v{20+n}, v27, {sT2}, v26
              v_add_u32 v{23+n}, {sT3}, v{20+n}""")
    A(f"v_lshlrev_b32 {vr(vL16)}, 4, {vr(vLANE)}")
    R = O["rot"]
    if R == 1:
        A(f"""s_mul_i32 {sT0}, {sRB}, 3
              s_add_u32 {sT0}, {sT0}, {sCB}""")
    elif R == 2:
        A(f"s_lshr_b32 {sT0}, s2, 5")
    elif R == 3:
        A(f"s_and_b32 {sT0}, s2, 7")
    elif R == 4:
        A(f"""s_lshr_b32 {sT0}, s2, 5
              s_and_b32 {sT1}, s2, 7
              s_add_u32 {sT0}, {sT0}, {sT1}""")
    elif R == 5:
        A(f"""s_bfe_u32 {sT0}, s2, 0x10005
              s_mul_i32 {sT0}, {sT0}, 5""")
    if R:
        A(f"""s_mul_i32 {sT1}, {sT0}, 6554
              s_lshr_b32 {sT1}, {sT1}, 16
              s_mul_i32 {sT1}, {sT1}, 10
              s_sub_u32 {sROT}, {sT0}, {sT1}""")
    else:
        A(f"s_mov_b32 {sROT}, 0")
    vX0, vX1 = 114, 115
    sXO, sXE = "s81", "s7"
    A(f"""v_lshrrev_b32 v26, 3, {vr(vLANE)}
          v_lshrrev_b32 v27, 4, {vr(vLANE)}
          v_and_b32 v38, 7, {vr(vLANE)}
          v_xor_b32 v39, v38, v27
          s_movk_i32 {sT0}, 1280
          s_mul_i32 {sT1}, {sW}, 20480
          v_lshlrev_b32 v39, 4, v39
          v_mad_u32_u24 v{vX0}, v26, {sT0}, v39
          v_add_u32 v{vX0}, {sT1}, v{vX0}
          v_xor_b32 v{vX1}, 64, v{vX0}
          v_add_u32 v{vX1}, {8*1280-1024}, v{vX1}
          s_mul_i32 {sXE}, {sRB}, 81920
          s_lshl_b32 {sXO}, {sROT}, 7
          s_add_u32 {sXO}, {sXO}, {sXE}
          s_add_u32 {sXE}, {sXE}, 1280""")
    A(f"""v_and_b32 v27, 1, v27
          v_lshlrev_b32 v27, 2, v27
          v_xor_b32 v39, v38, v27
          v_lshlrev_b32 v39, 4, v39
          s_movk_i32 {sT0}, 3072
          s_mul_i32 {sT1}, {sW}, 49152
          v_mad_u32_u24 v{vW1[0]}, v26, {sT0}, v39
          v_add_u32 v{vW1[0]}, {sT1}, v{vW1[0]}
          v_add_u32 v{vW1[1]}, {8*3072-1024}, v{vW1[0]}
          s_mul_i32 {sT0}, {sCB}, 384
          s_mul_i32 {sJ[0]}, {sROT}, 196608
          s_add_u32 {sJ[0]}, {sJ[0]}, {sT0}""")
    stamp("pre")
    A("s_waitcnt lgkmcnt(0)")
    stamp("karg")

    def slot(b):
        return L_S + 8192 * (b % 10)

    def w1_items(b):
        p, j = divmod(b, 10)
        return [f"s_add_u32 m0, {sW2K}, {slot(b)}",
                (f"buffer_load_dwordx4 v{vW1[2*p]}, {sW1}, {sJ[j]} offen lds", f"w1_{b}"),
                (f"buffer_load_dwordx4 v{vW1[2*p+1]}, {sW1}, {sJ[j]} offen offset:1024 lds", f"w1_{b}")]

    def x_items(j):
        it = [f"s_add_u32 m0, {sW2K}, {8192*j}"]
        if j:
            it = [f"s_add_u32 {sXO}, {sXO}, 128", f"s_cmp_ge_u32 {sXO}, {sXE}", f"s_cselect_b32 m0, 1280, 0",
                  f"s_sub_u32 {sXO}, {sXO}, m0"] + it
        it = ["\n".join(it)]
        it += [(f"buffer_load_dwordx4 v{vX0}, {sQ}, {sXO} offen {NTX} lds", f"w1_{j}"),
               (f"buffer_load_dwordx4 v{vX1}, {sQ}, {sXO} offen offset:1024 {NTX} lds", f"w1_{j}")]
        return it

    def pair(j):
        for it in x_items(j) + w1_items(j):
            put_item(A, it)

    def tile_dma(n, which):
        for s, reg, vo, so in which:
            A(f"s_add_u32 m0, {sW1K}, {reg + 4096*n}")
            A(f"buffer_load_dwordx4 v{vo+n}, {s}, {so} offen {NT} lds", "p0in")
    W2T, KT, VT = (sW2, L_W2, 20, sROWOFF), (sK, L_K, 23, "0"), (sV, L_V, 20, sROWOFF)
    PF = O.get("pairfirst", 0)
    if PF:
        pair(0)
    tile_dma(0, [W2T, KT, VT])
    tile_dma(1, [W2T, KT, VT])
    A(f"s_cmp_ge_u32 {sW}, 3")
    A.begin_opt("s_cbranch_scc1", settle=False)
    tile_dma(2, [KT])
    A.end_opt()
    A(f"s_cmp_ge_u32 {sW}, 2")
    A.begin_opt("s_cbranch_scc1", settle=False)
    tile_dma(2, [W2T, VT])
    A.end_opt()

    stamp("tiles")
    vCT, vI16, vR, vCHL = 28, 29, 30, 31
    A(f"""v_lshrrev_b32 v26, 4, v0
          v_mul_u32_u24 v27, 52, v26
          v_lshrrev_b32 v27, 8, v27
          v_mul_u32_u24 v{vR}, 5, v27
          v_sub_u32 v{vCT}, v26, v{vR}
          v_mul_u32_u24 v{vR}, 24, v27
          v_min_u32 v{vR}, 40, v{vR}
          v_and_b32 v{vI16}, 15, v0
          v_lshl_add_u32 v{vCHL}, v{vCT}, 4, v{vI16}
          v_lshlrev_b32 v26, 3, v{vCHL}
          s_mul_i32 {sT0}, {sCB}, 640""")
    vSH = 168
    A(f"buffer_load_dwordx2 v[{vSH}:{vSH+1}], v26, {sSH}, {sT0} offen", "p0in")
    if not PF:
        pair(0)
    stamp("iss0")

    A(f"""v_add_u32 v{vW1[2]}, 128, v{vW1[0]}
          v_add_u32 v{vW1[3]}, 128, v{vW1[1]}
          v_add_u32 v{vW1[4]}, 256, v{vW1[0]}
          v_add_u32 v{vW1[5]}, 256, v{vW1[1]}""")
    for j in range(1, 10):
        A(f"""s_add_u32 {sJ[j]}, {sJ[j-1]}, 196608
              s_cmp_ge_u32 {sJ[j]}, 1966080
              s_cselect_b32 {sT0}, 1966080, 0
              s_sub_u32 {sJ[j]}, {sJ[j]}, {sT0}""")
    vGW = 130
    vGWA = 154
    A(f"""v_bfe_u32 v52, {vr(vLANE)}, 3, 2
          v_add_u32 v53, {sROT}, v52""")
    for n in range(3):
        A(f"""v_add_u32 v54, {4*n}, v53
              v_subrev_u32 v55, 10, v54
              v_min_u32 v54, v54, v55
              v_lshlrev_b32 v54, 7, v54
              v_lshl_add_u32 v{vGWA+n}, v38, 4, v54""")
        if n == 2:
            A(f"""v_lshrrev_b32 v55, 1, v52
                  v_lshl_add_u32 v{vGWA+n}, v55, 16, v{vGWA+n}""")
    vKA, vBW, vBR, vRA, vRB_ = 158, 159, 160, 161, 162
    A(f"""v_lshrrev_b32 v26, 2, v{vI16}
          v_add_u32 v26, v26, v{vR}
          v_mul_u32_u24 v26, 160, v26
          v_and_b32 v27, 3, v0
          v_lshl_add_u32 v26, v27, 3, v26
          v_lshl_add_u32 v26, v{vCT}, 5, v26
          v_add_u32 v{vKA}, {L_K}, v26
          v_mul_u32_u24 v26, 144, v{vCHL}
          v_lshl_add_u32 v26, v{vR}, 1, v26
          v_add_u32 v{vBW}, {L_BO}, v26
          v_lshrrev_b32 v26, 3, v0
          v_mul_u32_u24 v54, 144, v26
          v_lshl_add_u32 v54, v38, 4, v54
          v_add_u32 v{vBR}, {L_BO}, v54
          v_mul_u32_u24 v54, {TP}, v26
          v_lshl_add_u32 {vr(vT)}, v38, 4, v54""")
    A(f"""v_lshrrev_b32 v26, 5, {vr(vLANE)}
          v_lshlrev_b32 v26, 4, v26
          v_bfe_u32 v54, {vr(vLANE)}, 2, 3
          v_add_u32 v26, v26, v54
          v_mul_u32_u24 v26, 160, v26
          s_and_b32 {sT0}, {sW}, 1
          s_mul_i32 {sT0}, {sT0}, 5120
          s_add_u32 {sT0}, {sT0}, {L_W2}
          s_lshr_b32 {sT1}, {sW}, 1
          s_lshl_b32 {sT1}, {sT1}, 6
          v_add_u32 v26, {sT0}, v26
          v_lshl_add_u32 v{vRB_}, v27, 3, v26
          v_lshl_add_u32 v{vRA}, v27, 4, v26
          v_add_u32 v{vRA}, {sT1}, v{vRA}""")
    A(f"""v_lshrrev_b32 v26, 5, {vr(vLANE)}
          v_lshlrev_b32 v26, 10, v26
          v_bfe_u32 v54, {vr(vLANE)}, 2, 2
          v_lshl_add_u32 v26, v54, 7, v26
          v_bfe_u32 v54, {vr(vLANE)}, 3, 1
          v_lshlrev_b32 v54, 6, v54
          v_xor_b32 v54, {sT1}, v54
          v_add_u32 v26, v26, v54
          v_bfe_u32 v54, {vr(vLANE)}, 4, 1
          v_lshl_add_u32 v26, v54, 5, v26
          v_lshl_add_u32 v26, v27, 3, v26
          v_add_u32 v{vTR[1]}, 65536, v26
          v_add_u32 v{vTR[2]}, 131072, v26""")
    A(f"""v_lshrrev_b32 v26, 5, {vr(vLANE)}
          v_lshlrev_b32 v26, 8, v26
          v_lshl_add_u32 v26, v{vI16}, 4, v26
          v_mul_u32_u24 v54, 49152, v54
          v_add_u32 v{vHS}, v26, v54
          s_mul_i32 {sHB[0]}, {sRB}, 196608
          s_and_b32 {sT0}, {sW}, 1
          s_mul_i32 {sT0}, {sT0}, 98304
          s_add_u32 {sHB[0]}, {sHB[0]}, {sT0}
          s_mul_i32 {sT0}, {sCB}, 6144
          s_add_u32 {sHB[0]}, {sHB[0]}, {sT0}
          s_lshl_b32 {sT1}, {sT1}, 4
          s_add_u32 {sHB[0]}, {sHB[0]}, {sT1}
          s_add_u32 {sHB[0]}, {sHB[0]}, {WS_H}
          s_add_u32 {sHB[1]}, {sHB[0]}, 2048
          s_add_u32 {sHB[2]}, {sHB[0]}, 4096
          s_mul_i32 {sKVO}, {sCB}, {80*TP}
          s_lshl_b32 {sT0}, {sRB}, 7
          s_add_u32 {sKVO}, {sKVO}, {sT0}
          s_mul_i32 {sCH}, {sCB}, 80
          s_lshl_b32 {sT0}, {sRB}, 2
          s_add_u32 {sCH}, {sCH}, {sT0}
          s_add_u32 {sCH}, {sCH}, {sW}
          s_cmp_lt_u32 {sRB}, 20
          s_cselect_b32 {sCH}, {sCH}, 0x4000
          s_mov_b32 s62, 0xbfb8aa3b
          s_mov_b32 s63, 0xbfb8aa3b
          s_mov_b32 {sSPIN}, {O["spin"]}""")
    A(f"""v_cmp_gt_u32 vcc, {FLW}, {vr(vLANE)}
          v_mov_b32 v26, 0x7ff00000
          v_lshlrev_b32 v54, 2, {vr(vLANE)}
          v_cndmask_b32 v{vFL}, v26, v54, vcc""")
    vXA = 116
    A(f"""v_and_b32 v26, 31, {vr(vLANE)}
          v_lshlrev_b32 v26, 7, v26
          v_lshrrev_b32 v54, 5, {vr(vLANE)}
          v_lshrrev_b32 v55, 1, v{vI16}
          v_xor_b32 v54, v54, v55
          v_lshl_add_u32 v26, v54, 4, v26
          s_and_b32 {sT0}, {sW}, 1
          s_lshl_b32 {sT0}, {sT0}, 12
          v_add_u32 v{vXA}, {sT0}, v26""")
    for ks in range(1, 4):
        A(f"v_xor_b32 v{vXA+ks}, {ks<<5}, v{vXA}")
    for ks in range(4):
        A(f"v_add_u32 v{vXA+4+ks}, 65536, v{vXA+ks}")
    vQA = 124
    A(f"""v_lshrrev_b32 v26, 4, {vr(vLANE)}
          s_mul_i32 {sT0}, {sCB}, 10
          v_lshlrev_b32 v72, 7, v{vI16}
          v_add_u32 v72, {sW2K}, v72""")
    for n in range(3):
        if n < 2:
            A(f"""s_add_u32 {sT1}, {sT0}, {4*n}
                  v_add_u32 v54, {sT1}, v26""")
        else:
            A(f"""s_add_u32 {sT1}, {sT0}, 8
                  v_lshrrev_b32 v54, 1, v26
                  v_add_u32 v54, {sT1}, v54""")
        A(f"""v_lshrrev_b32 v73, 3, v54
              v_subrev_u32 v73, {sROT}, v73
              v_add_u32 v74, 10, v73
              v_min_u32 v73, v73, v74
              v_and_b32 v54, 7, v54
              v_xor_b32 v54, v54, v55
              v_lshl_add_u32 v54, v54, 4, v72
              v_lshl_add_u32 v{vQA+n}, v73, 13, v54""")
    A(f"""v_and_b32 v26, 1, v26
          v_lshl_add_u32 v{vQA+2}, v26, 3, v{vQA+2}""")
    vGA = 127
    A(f"""s_lshl_b32 {sT0}, {sCB}, 2
          s_add_u32 {sT0}, {sT0}, {sW}
          s_and_b32 {sT1}, {sT0}, 7
          s_lshl_b32 {sT0}, {sT0}, 8
          v_xor_b32 v26, {sT1}, v38
          v_lshlrev_b32 v26, 4, v26
          v_lshrrev_b32 v54, 5, {vr(vLANE)}
          v_lshl_add_u32 v26, v54, 7, v26
          v_add_u32 v26, {sT0}, v26
          v_lshl_add_u32 v{vGA}, v52, 13, v26
          v_and_b32 v54, 1, v52
          v_lshl_add_u32 v26, v54, 13, v26
          v_add_u32 v{vGA+1}, 65536, v26""")
    sWA, sWB = sW2L, sHL
    A(f"""s_mul_i32 {sT0}, {sCB}, 48
          s_lshl_b32 {sT1}, {sRB}, 1
          s_add_u32 {sT0}, {sT0}, {sT1}
          s_and_b32 {sT1}, {sW}, 1
          s_add_u32 {sT0}, {sT0}, {sT1}
          s_mul_i32 {sT0}, {sT0}, 5120
          s_add_u32 {sT0}, {sT0}, {WS_W2P}
          s_cmp_lt_u32 {sRB}, 24
          s_cselect_b32 {sT0}, {sT0}, 0x7f000000
          s_and_b32 {sT1}, {sW}, 2
          s_lshl_b32 {sWA}, {sT1}, 10
          s_add_u32 {sWA}, {sWA}, {sT0}
          s_add_u32 {sWB}, {sT0}, 4096
          s_cmp_eq_u32 {sT1}, 0
          s_cselect_b32 {sWB}, {sWB}, 0x7f000000""")
    stamp("calc")
    NPRE_P = O.get("prepairs", 3)
    for j in range(1, NPRE_P):
        pair(j)
    vG0, vG1 = 170, 171
    A(f"""s_lshl_b32 {sT0}, {sCB}, 8
          s_lshl_b32 {sT1}, {sRB}, 8
          s_add_u32 {sT0}, {sT0}, {WS_COLG}
          s_add_u32 {sT1}, {sT1}, {WS_ROWG}""")
    A(f"buffer_load_dword v{vG0}, off, {sWS}, {sT0} sc1")
    A(f"buffer_load_dword v{vG1}, off, {sWS}, {sT1} sc1")
    stamp("issued")

    A.wait("p0in")
    A("s_barrier")
    stamp("p0in")
    vWT = 172
    vP = 184
    vVV = 198
    vO = 210
    vE = 222
    for m in range(7):
        A(f"ds_read_b64_tr_b16 v[{vP+2*m}:{vP+2*m+1}], v{vKA} offset:{640*m}")
        if m < 6:
            A(f"ds_read_b64_tr_b16 v[{vVV+2*m}:{vVV+2*m+1}], v{vKA} offset:{640*m + L_V - L_K}")
    for i, (va, off) in enumerate(((vRA, 0), (vRA, 8), (vRB_, 128))):
        A(f"ds_read_b64_tr_b16 v[{vWT+4*i}:{vWT+4*i+1}], v{va} offset:{off}")
        A(f"ds_read_b64_tr_b16 v[{vWT+4*i+2}:{vWT+4*i+3}], v{va} offset:{off+1280}")
    vWa, vWb, vWc, vWd, vWe = 163, 164, 165, 166, 167
    A(f"""s_mov_b32 {sT0}, 0xffff
          v_and_b32 v{vWa}, 0xffff, v{vSH}
          v_bfi_b32 v{vWb}, {sT0}, v{vSH+1}, v{vSH}
          v_and_b32 v{vWc}, 0xffff0000, v{vSH+1}
          v_alignbit_b32 v{vWd}, v{vSH}, v{vSH}, 16
          v_alignbit_b32 v{vWe}, v{vSH+1}, v{vSH+1}, 16""")
    w2st = [(f"buffer_store_dwordx4 v[{vWT}:{vWT+3}], {vr(vL16)}, {sWS}, {sWA} offen sc1", "p0out"),
            (f"buffer_store_dwordx4 v[{vWT+4}:{vWT+7}], {vr(vL16)}, {sWS}, {sWA} offen offset:1024 sc1", "p0out"),
            (f"buffer_store_dwordx4 v[{vWT+8}:{vWT+11}], {vr(vL16)}, {sWS}, {sWB} offen sc1", "p0out")]
    NP0_P = O.get("p0pairs", 6)
    mem = []
    for j in range(NPRE_P, NP0_P):
        mem += [x_items(j), w1_items(j)]
    if O.get("w2st_early", 0):
        mem = [[x] for x in w2st] + mem
        w2st = []
    for o in range(13):
        e = vE + 4 * (o & 1) * 2
        if o < 12:
            A(f"""v_dot2_f32_bf16 v{e}, v{vP+o+2}, v{vWa}, 0
                  v_dot2_f32_bf16 v{e+1}, v{vP+o+2}, v{vWd}, 0
                  v_dot2_f32_bf16 v{e}, v{vP+o+1}, v{vWb}, v{e}
                  v_dot2_f32_bf16 v{e+1}, v{vP+o+1}, v{vWe}, v{e+1}
                  v_dot2_f32_bf16 v{e}, v{vP+o}, v{vWc}, v{e}
                  v_lshlrev_b32 v{e+2}, 16, v{vVV+o}
                  v_and_b32 v{e+3}, 0xffff0000, v{vVV+o}""")
        if o > 0:
            e = vE + 4 * ((o - 1) & 1) * 2
            A(f"""v_pk_mul_f32 v[{e}:{e+1}], v[{e}:{e+1}], v[{e+2}:{e+3}]
                  v_cvt_pk_bf16_f32 v{vO+o-1}, v{e}, v{e+1}""")
            if o % 4 == 0:
                i = o // 4 - 1
                A(f"ds_write_b128 v{vBW}, v[{vO+4*i}:{vO+4*i+3}] offset:{16*i}", "bo")
        k = -(-len(mem) // (13 - o))
        if o % 2 == 1 or len(mem) >= 13 - o:
            for _ in range(min(k, len(mem))):
                for it in mem.pop(0):
                    put_item(A, it)
    stamp("p0done")

    def bo_reads():
        for n in range(3):
            A(f"ds_read_b128 v[{vP+4*n}:{vP+4*n+3}], v{vBR} offset:{4608*n}")

    sKA = [sT0, sT1, sT2]
    kvst = [f"s_add_u32 {sT3}, {sKVO}, {WS_KVT}",
            (f"buffer_store_dwordx4 v[{vP}:{vP+3}], {vr(vT)}, {sWS}, {sT3} offen sc1", "p0out"),
            f"s_add_u32 {sT3}, {sKVO}, {WS_KVT + 32*TP}",
            (f"buffer_store_dwordx4 v[{vP+4}:{vP+7}], {vr(vT)}, {sWS}, {sT3} offen sc1", "p0out"),
            f"s_add_u32 {sT3}, {sKVO}, {WS_KVT + 64*TP}\ns_cmp_lt_u32 {sW}, 2\ns_cselect_b32 {sT3}, {sT3}, 0x7f000000",
            (f"buffer_store_dwordx4 v[{vP+8}:{vP+11}], {vr(vT)}, {sWS}, {sT3} offen sc1", "p0out")]

    vGX = 142
    gw_ld = [f"buffer_load_dwordx4 v[{vGW+4*n}:{vGW+4*n+3}], v{vGWA+n}, {sGW}, 0 offen" for n in range(3)]
    qg = [(f"ds_read_b128 v[{vGX}:{vGX+3}], v{vGA}", "xrd"),
          (f"ds_read_b128 v[{vGX+4}:{vGX+7}], v{vGA} offset:32768", "xrd"),
          (f"ds_read_b128 v[{vGX+8}:{vGX+11}], v{vGA+1}", "xrd"),
          (f"ds_read_b128 a[240:243], v{vQA}", "xrd"),
          (f"ds_read_b128 a[244:247], v{vQA+1}", "xrd"),
          (f"ds_read_b64 a[248:249], v{vQA+2}", "xrd")]
    gops = []
    g0, g1, g2 = 154, 155, 156
    for i in range(12):
        gops.append(f"v_dot2_f32_bf16 v{g0}, v{vGX+i}, v{vGW+i}, " + ("0" if i == 0 else f"v{g0}"))
    for m in ("quad_perm:[1,0,3,2]", "quad_perm:[2,3,0,1]", "row_half_mirror", "row_mirror"):
        gops.append(f"v_add_f32_dpp v{g0}, v{g0}, v{g0} {m} row_mask:0xf bank_mask:0xf")
    gops.append(f"v_add_f32_dpp v{g0}, v{g0}, v{g0} row_bcast:15 row_mask:0xa bank_mask:0xf")
    gops += [f"v_mul_f32 v{g0}, s62, v{g0}", f"v_exp_f32 v{g0}, v{g0}", f"v_add_f32 v{g0}, 1.0, v{g0}", f"v_rcp_f32 v{g0}, v{g0}"]
    sG0, sG1 = sXE, sXO
    gops += [f"v_readlane_b32 {sG0}, v{g0}, 31", f"v_readlane_b32 {sG1}, v{g0}, 63"]

    vACC = [16, 32]
    NB = 8
    vFR = 48
    vS = 80
    vHO = 96
    vPO = 104
    vPA = 106
    vZ = 107
    vDD = 108
    vGAD, vHAD, vUAD, vYW = 109, 110, 111, 112

    def fr_reads(n):
        b, ks = divmod(n, 4)
        a = slot(b) + 2048 * ks
        base, off = vTR[a >> 16], a & 0xffff
        f = vFR + 4 * (n % NB)
        r = [f"ds_read_b64_tr_b16 v[{f}:{f+1}], v{base} offset:{off}",
             f"ds_read_b64_tr_b16 v[{f+2}:{f+3}], v{base} offset:{off+512}"]
        if n < 40:
            va, off = (vXA + ks, 8192 * b) if b < 8 else (vXA + 4 + ks, 8192 * (b - 8))
            r.append(f"ds_read_b128 {ar(4*n,4)}, v{va} offset:{off}")
        return r

    GS0 = O.get("gs0", 1)
    starts = list(range(0, 10, GS0)) + list(range(10, 30, GS))
    grp_of = {}
    for gi_, st_ in enumerate(starts):
        en_ = starts[gi_ + 1] if gi_ + 1 < len(starts) else 30
        for b_ in range(st_, en_):
            grp_of[b_] = gi_
    extra_tags = {}

    def group_sync(g):
        def f():
            tags = [f"w1_{b}" for b in range(30) if grp_of[b] == g] + extra_tags.get(g, [])
            if g == grp_of[O["p0flag"]]:
                tags.append("p0out")
            A.wait(*tags)
            A("s_barrier")
            if g == grp_of[O["p0flag"]]:
                A(f"""v_readfirstlane_b32 {sTAGC}, v{vG0}
                      v_readfirstlane_b32 {sTAGR}, v{vG1}
                      s_mul_i32 {sTAGC}, {sTAGC}, 0x2C9277B5
                      s_mul_i32 {sTAGR}, {sTAGR}, 0x2C9277B5
                      s_add_u32 {sTAGC}, {sTAGC}, 0xAC564B05
                      s_add_u32 {sTAGR}, {sTAGR}, 0xAC564B05
                      s_lshl_b32 {sT0}, {sCB}, 12
                      s_lshl_b32 {sT1}, {sRB}, 7
                      s_add_u32 {sT0}, {sT0}, {sT1}
                      s_cmp_eq_u32 {sW}, 0
                      s_cselect_b32 {sT0}, {sT0}, 0x7f000000
                      v_mov_b32 v{vZ}, {sTAGC}""")
                A(f"buffer_store_dword v{vZ}, v{vFL}, {sWS}, {sT0} offen sc1")
        return f

    def silu_ops(p):
        ac = vACC[p & 1]
        ops = []
        for h in range(0, 8, 2):
            t0, t1 = vS + 4 * ((h >> 1) & 1), vS + 4 * ((h >> 1) & 1) + 2
            z0, z1 = ac + 2 * h, ac + 2 * h + 2
            ops += [(1, f"v_pk_mul_f32 v[{t0}:{t0+1}], v[{z0}:{z0+1}], {sNL2E}"),
                    (1, f"v_pk_mul_f32 v[{t1}:{t1+1}], v[{z1}:{z1+1}], {sNL2E}"),
                    (2, f"v_exp_f32 v{t0}, v{t0}"), (2, f"v_exp_f32 v{t0+1}, v{t0+1}"),
                    (2, f"v_exp_f32 v{t1}, v{t1}"), (2, f"v_exp_f32 v{t1+1}, v{t1+1}"),
                    (1, f"v_pk_add_f32 v[{t0}:{t0+1}], v[{t0}:{t0+1}], 1.0 op_sel_hi:[1,0]"),
                    (1, f"v_pk_add_f32 v[{t1}:{t1+1}], v[{t1}:{t1+1}], 1.0 op_sel_hi:[1,0]"),
                    (2, f"v_rcp_f32 v{t0}, v{t0}"), (2, f"v_rcp_f32 v{t0+1}, v{t0+1}"),
                    (2, f"v_rcp_f32 v{t1}, v{t1}"), (2, f"v_rcp_f32 v{t1+1}, v{t1+1}"),
                    (1, f"v_pk_mul_f32 v[{t0}:{t0+1}], v[{t0}:{t0+1}], v[{z0}:{z0+1}]"),
                    (1, f"v_pk_mul_f32 v[{t1}:{t1+1}], v[{t1}:{t1+1}], v[{z1}:{z1+1}]"),
                    (1, f"v_cvt_pk_bf16_f32 v{vHO+h}, v{t0}, v{t0+1}"),
                    (1, f"v_cvt_pk_bf16_f32 v{vHO+h+1}, v{t1}, v{t1+1}")]
            if h in (2, 6):
                r = h >> 2
                ops.append((1, (f"buffer_store_dwordx4 v[{vHO+4*r}:{vHO+4*r+3}], v{vHS}, {sWS}, {sHB[p]} offen offset:{512*r} sc1", "hout")))
        return ops

    def w2reg(i):
        return (4 * i + 160) % 240

    def w2_items(i):
        it = []
        if i % 4 == 0 and i:
            it.append(f"s_add_u32 {sW2L}, {sW2L}, 4096")
        it.append(f"buffer_load_dwordx4 {ar(w2reg(i),4)}, {vr(vL16)}, {sWS}, {sW2L} offen offset:{1024*(i%4)} sc1")
        return it

    extra_tags[0] = ["bo"]
    group_sync(0)()
    stamp("g1start")
    bo_reads()
    synced = {0}
    sync_at = {0: -2}
    for n in range(DIST):
        g = grp_of[n // 4]
        if g not in synced:
            A.waitall(vm=False)
            group_sync(g)(); synced.add(g); sync_at[g] = -1
        for r in fr_reads(n):
            A(r)
    anchors = []
    for n in range(120):
        p, k = divmod(n, 40)
        ac = vACC[p & 1]
        f = vFR + 4 * (n % NB)
        grp = [f"v_mfma_f32_32x32x16_bf16 v[{ac}:{ac+15}], v[{f}:{f+3}], {ar(4*k,4)}, " + ("0" if k == 0 else f"v[{ac}:{ac+15}]")]
        m = n + DIST
        if m < 120:
            g = grp_of[m // 4]
            if g not in synced:
                grp.append(group_sync(g)); synced.add(g); sync_at[g] = n
            grp += fr_reads(m)
        if n in (39, 79) and O.get("pstamp", 0):
            grp.append((lambda nm: (lambda: stamp(nm)))(f"pass{n//40}"))
        anchors.append(grp)
    sync_after = lambda n: min(v for v in sync_at.values() if v >= n)
    free_at = lambda b: sync_after(4 * b + 3)
    dma = []
    LA = O.get("la", 40)
    st_list = [[x] for x in w2st] + [kvst[0:2], kvst[2:4], kvst[4:6]]
    SP = O.get("stpace", 0)
    for b in range(NP0_P, 30):
        lat = sync_at[grp_of[b]]
        e = 0 if b < 10 else free_at(b - 10)
        e = max(e, lat - LA)
        its = w1_items(b)
        if b < 10:
            its = x_items(b) + its
            if b >= 8:
                e = max(e, sync_after(0))
        for it in its:
            dma.append(dict(e=e, l=lat, it=it))
        if b == 9:
            for it in gw_ld:
                dma.append(dict(e=e, l=lat, it=it))
        if b + 1 >= O.get("st_at", 6):
            for _ in range(O.get("st_n", 6)):
                if st_list:
                    for it in st_list.pop(0):
                        dma.append(dict(e=e, l=sync_at[grp_of[O["p0flag"]]], it=it))
    if O.get("st_at", 6) <= NP0_P:
        pass
    e_q = sync_at[grp_of[9]]
    qs = [dict(e=e_q, it=x) for x in qg]
    g_free = min(g for g in sync_at if sync_at[g] >= e_q + 8)
    extra_tags[g_free] = ["xrd"]
    for d in qs:
        d["l"] = sync_at[g_free]
    qs += [dict(e=e_q + 3, it=x) for x in gops]
    x_free = max(sync_at[g_free], free_at(9))
    pi = O["poll_i"]

    def ins_at(e, items):
        pos = next((i for i, d in enumerate(dma) if d["e"] > e), len(dma))
        dma[pos:pos] = [dict(e=e, it=x) for x in items]
    pl = [f"v_and_b32 v{vPA}, 31, {vr(vLANE)}", f"v_lshlrev_b32 v{vPA}, 7, v{vPA}", f"s_lshl_b32 {sHL}, {sCB}, 12",
          lambda: poll(vPA, sTAGC, sHL, vPO, check=False)]
    ins_at(pi, pl)
    e_h = max(x_free, O.get('hin_at', 50))
    e_u = x_free
    misc = [f"s_mul_i32 {sT2}, {sW}, {HBP}", f"v_min_u32 v{vGAD}, 23, {vr(vLANE)}",
            f"v_lshlrev_b32 v{vGAD}, 2, v{vGAD}", f"v_mov_b32 v{vZ}, 0", f"v_add_u32 v{vGAD}, {sT2}, v{vGAD}",
            f"v_mov_b32 v{vDD}, 0",
            (f"ds_write_b32 v{vGAD}, v{vZ} offset:{L_HB}", "pad"),
            f"s_add_u32 m0, {sT2}, {L_HB+96}", f"s_lshl_b32 {sT3}, {sCH}, 12"]
    misc += [(f"buffer_load_dwordx4 {vr(vL16)}, {sSK}, {sT3} offen offset:{1024*i} {NT} lds", "hin") for i in range(4)]
    misc += [f"s_lshl_b32 {sT3}, {sCH}, 1", f"buffer_load_short_d16_hi v{vDD}, off, {sD}, {sT3}"]
    misc += [f"v_and_b32 v{vGAD}, 3, {vr(vLANE)}", f"v_lshrrev_b32 v{vHAD}, 4, {vr(vLANE)}",
             f"v_bfe_u32 v{vUAD}, {vr(vLANE)}, 2, 2", f"v_add_u32 v{vYW}, v{vGAD}, v{vHAD}",
             f"v_lshlrev_b32 v{vYW}, 5, v{vYW}", f"v_lshl_add_u32 v{vYW}, v{vUAD}, 3, v{vYW}",
             f"v_sub_u32 v{vGAD}, v{vGAD}, v{vUAD}", f"v_lshlrev_b32 v{vHAD}, 2, v{vHAD}",
             f"v_sub_u32 v{vHAD}, v{vGAD}, v{vHAD}", f"v_add_u32 v{vGAD}, {sT2}, v{vYW}",
             f"s_mul_i32 {sT2}, {sW}, {UBP}", f"s_add_u32 {sT3}, {sT2}, {L_UB+128}",
             f"v_lshlrev_b32 v{vHAD}, 3, v{vHAD}", f"v_add_u32 v{vHAD}, {sT3}, v{vHAD}",
             f"v_lshlrev_b32 v{vYW}, 1, {vr(vLANE)}", f"s_add_u32 {sT3}, {sT2}, {L_UB+32}",
             f"v_add_u32 v{vUAD}, {sT3}, v{vYW}", f"s_lshl_b32 {sT3}, {sW}, 12",
             f"s_add_u32 {sT3}, {sT3}, {L_YS}", f"v_add_u32 v{vYW}, {sT3}, v{vYW}"]
    ins_at(e_h, misc)
    pc = max(O["poll_c"], e_u, e_h)

    def col_ok():
        poll(vPA, sTAGC, sHL, vPO, issue=False)
        A(f"""s_lshr_b32 {sT0}, {sHL}, 4
              s_add_u32 {sT0}, {sT0}, {WS_COLG}
              s_or_b32 {sT1}, {sRB}, {sW}
              s_cmp_eq_u32 {sT1}, 0
              s_cselect_b32 {sT0}, {sT0}, 0x7f000000
              v_mov_b32 v{vPO}, {sTAGC}""")
        A(f"buffer_store_dword v{vPO}, v{vFL}, {sWS}, {sT0} offen sc1")
    misc2 = [col_ok, f"v_and_b32 v{vPA}, 7, {vr(vLANE)}", f"s_mul_i32 {sT2}, {sW}, {UBP}",
             f"v_lshlrev_b32 v{vPA}, 2, v{vPA}", f"v_add_u32 v{vPA}, {sT2}, v{vPA}",
             (f"ds_write_b32 v{vPA}, v{vZ} offset:{L_UB}", "pad"),
             f"s_add_u32 m0, {sT2}, {L_UB+32}", f"s_mul_i32 {sT3}, {sCH}, {TP}", f"s_add_u32 {sT3}, {sT3}, {WS_KVT}"]
    misc2 += [(f"buffer_load_dwordx4 {vr(vL16)}, {sWS}, {sT3} offen offset:{1024*i} sc1 lds", "uin") for i in range(4)]
    KQ = (lambda d: f"s_add_u32 {d}, {sW}, {sCB}\ns_and_b32 {d}, {d}, 3") if O.get("kqrot", 0) else (lambda d: f"s_mov_b32 {d}, {sW}")
    misc2 += [f"s_mul_i32 {sW2L}, {sCB}, {48*5120}", KQ(sT3), f"s_mul_i32 {sT3}, {sT3}, {12*5120}",
              f"s_add_u32 {sW2L}, {sW2L}, {sT3}", f"s_add_u32 {sW2L}, {sW2L}, {WS_W2P}"]
    ins_at(pc, misc2)
    NW2_G1 = O.get("w2g1", 12)
    w2s = max(pc + 2, max(d["e"] for d in dma), O.get("w2start", 0))
    for i in range(NW2_G1):
        for x in w2_items(i):
            e = w2s + (i * O.get("w2p1", 5)) // 2
            if i >= 20:
                e = max(e, 80 + i - 20 + 1)
            dma.append(dict(e=min(e, 119), it=x))
    sil = []
    for p in range(2):
        for c, x in silu_ops(p):
            sil.append(dict(e=40 * (p + 1) + 2, l=40 * (p + 2), c=c, it=x))
    left = weave2(A, anchors, [dma, qs, sil], O.get("cap1", 3))
    drain(A, left)
    stamp("g1end")

    vG = 114
    vH = 178
    NA = 8
    vCA = 16
    vP2 = [244, 245, 246]
    vP1 = [247, 248, 249]
    vY = [250, 251]
    vU = [252, 253, 254]
    vYO = 96
    vCV = 255
    Hreg = lambda b: vH + 2 * (31 - b)
    rd = []
    for n in range(32):
        rd.append((n, f"ds_read_b64_tr_b16 v[{Hreg(n)}:{Hreg(n)+1}], v{vHAD} offset:{128*n}"))
        if n % 2 == 0:
            for x in (n, n + 1):
                rd.append((n, f"ds_read_b64_tr_b16 v[{vG+2*x}:{vG+2*x+1}], v{vGAD} offset:{L_HB+128*x}"))
    A.wait("hin", "uin", "pad")
    so = silu_ops(2)
    NPRE = 24
    ri = 0
    for i, (c, x) in enumerate(so):
        put_item(A, x)
        if i >= 8 and i % 2 == 0 and ri < NPRE:
            A(rd[ri][1]); ri += 1
    for r in (Hreg(-1), Hreg(-1) + 1, vP2[2], vP1[2], vU[0], vU[1], vU[2], vZ):
        A(f"v_mov_b32 v{r}, 0")
    stamp("silu2")

    vHF = 48
    vL16b, vL16c = 4, 5

    def hload(ph, kk, dst):
        vo = (vL16, vL16b, vL16c)[kk // 4]
        return f"buffer_load_dwordx4 v[{dst}:{dst+3}], v{vo}, {sWS}, {sHL} offen offset:{1024*(kk%4)} sc1"

    def hbase(ph):
        return [f"s_add_u32 {sT0}, {sW}, {1+ph}", f"s_and_b32 {sT0}, {sT0}, 3", f"s_mul_i32 {sT0}, {sT0}, 49152",
                f"s_add_u32 {sHL}, {sT0}, {sHB[0]}"]

    def h_flag():
        stamp("hf0")
        A.wait("hout")
        stamp("hf1")
        A(f"""s_lshl_b32 {sT0}, {sRB}, 12
              s_lshl_b32 {sT1}, {sCB}, 9
              s_add_u32 {sT0}, {sT0}, {WS_ROWH}
              s_add_u32 {sT1}, {sT1}, {sT0}
              s_lshl_b32 {sT2}, {sW}, 7
              s_add_u32 {sT1}, {sT1}, {sT2}
              v_mov_b32 v{vPO}, {sTAGR}
              v_writelane_b32 v{vPO}, {sG0}, 1
              v_writelane_b32 v{vPO}, {sG1}, 3""")
        A(f"buffer_store_dword v{vPO}, v{vFL}, {sWS}, {sT1} offen sc1")

    def row_poll_issue():
        A(f"""v_and_b32 v{vPA}, 15, {vr(vLANE)}
              s_lshl_b32 {sHB[1]}, {sRB}, 12
              v_lshrrev_b32 v{vPO}, 1, v{vPA}
              v_and_b32 v{vPA}, 1, v{vPA}
              s_add_u32 {sHB[1]}, {sHB[1]}, {sW1K}
              v_lshlrev_b32 v{vPA}, 3, v{vPA}
              s_add_u32 {sHB[1]}, {sHB[1]}, {WS_ROWH}
              v_lshl_add_u32 v{vPA}, v{vPO}, 7, v{vPA}""")
        poll(vPA, sTAGR, sHB[1], vPO, n=3, check=False)

    vGT = 6
    def row_ok():
        stamp("ro0")
        poll(vPA, sTAGR, sHB[1], vPO, n=3, issue=False)
        stamp("ro1")
        A(f"""v_mov_b32 v{vGT}, v{vPO+1}
              v_add_u32 v{vL16b}, 4096, {vr(vL16)}
              v_add_u32 v{vL16c}, 8192, {vr(vL16)}
              v_mov_b32 v7, v{vFL}""")
        A(f"""s_mul_i32 {sHB[0]}, {sRB}, 196608
              s_mul_i32 {sT0}, {sW}, 12288
              s_add_u32 {sHB[0]}, {sHB[0]}, {sT0}
              s_add_u32 {sHB[0]}, {sHB[0]}, {WS_H}""")
        for x in hbase(0):
            A(x)

    PACE = O["w2pace"]
    common = []
    t = 4
    for i in range(NW2_G1, 60):
        if i == NW2_G1 + O.get("hflag_after", 8):
            common.append(dict(e=t, it=h_flag))
        if i == O.get("rowpoll_at", 52):
            common.append(dict(e=t, it=row_poll_issue))
        for x in w2_items(i):
            common.append(dict(e=t, it=x))
        t += PACE
    t += O.get("rowok_gap", 16)
    common.append(dict(e=t, it=row_ok))
    for kk in range(O["hpre"]):
        t += PACE
        common.append(dict(e=min(t, 270), it=hload(0, kk, vHF + 4 * kk)))

    snapshot_out = len(A.out)
    sYF = "s70"
    A(f"""s_lshl_b32 {sYF}, {sCH}, 7
          s_add_u32 {sYF}, {sYF}, {WS_YF}
          s_cmp_lt_u32 {sRB}, 20
          s_cselect_b32 {sYF}, {sYF}, 0x7f000000""")
    A(f"s_cmp_ge_u32 {sRB}, 20")
    A.settle()
    A("s_cbranch_scc1 Lnoconv")
    import copy
    saved = (copy.deepcopy(A.q), dict(A.pend), A.nid)
    A.nopt += 1
    A.opt = A.nopt
    A._hidden = []
    optid = A.opt

    def as_common(it):
        def f():
            n0 = {qn: len(A.q[qn]) for qn in A.q}
            ids0 = A.nid
            put_item(A, it)
            for qn in A.q:
                for e in A.q[qn]:
                    if e["id"] > ids0:
                        e["opt"] = 0
        return f

    YF = O.get("yflag_at", -1)
    YD = [int(x) for x in str(O.get("yd", "754"))]

    def y_flag(i):
        A.wait(f"yout{i}")
        A(f"buffer_store_dword v{vZ}, v{vFL if i < 3 else 7}, {sWS}, {sYF} offen sc1")
        if i < 3:
            A(f"s_add_u32 {sYF}, {sYF}, {640*128}")
        else:
            stamp("yfl")

    anchors, last = [], {}
    first = {}
    for n in range(32):
        ac = vCA + 4 * ((n + 4) % NA)
        first[n] = len(anchors)
        for q in range(n // 2 + 1):
            b = n - 2 * q
            anchors.append([f"v_mfma_f32_16x16x32_bf16 v[{ac}:{ac+3}], v[{vG+4*q}:{vG+4*q+3}], v[{Hreg(b)}:{Hreg(b)+3}], " +
                            ("0" if q == 0 else f"v[{ac}:{ac+3}]")])
        last[n] = len(anchors) - 1
    NAN = len(anchors)
    rds = [dict(e=-1, l=first[n], it=x) for n, x in rd[ri:]]
    for d in rds:
        d["e"] = 0 if d["l"] > 0 else -1
    acc = lambda n, r: vCA + 4 * ((n + 4) % NA) + r
    DP = "row_mask:0xf bank_mask:0xf"
    comb = []
    uread = lambda n: f"ds_read_u16_d16_hi v{vU[n%3]}, v{vUAD} offset:{128*n}"
    comb.append(dict(e=0, it=uread(0)))
    comb.append(dict(e=0, it=uread(1)))
    for s in range(32 + 3):
        a, b, c = s, s - 1, s - 2
        e = min(last[min(s, 31)] + 3, NAN + 5)
        l = first[c + NA] if 0 <= c + NA < 32 and c >= 0 else 1 << 30
        it = []
        d3p = (lambda n: acc(n - 1, 3) if n > 0 else vZ)
        if a < 32:
            it.append(f"v_add_f32_dpp v{vP2[a%3]}, v{d3p(a)}, v{acc(a,2)} wave_ror:1 {DP}")
        if 0 <= b < 32:
            it.append(f"v_add_f32_dpp v{vP1[b%3]}, v{vP2[(b-1)%3]}, v{acc(b,1)} wave_ror:1 {DP}")
        if 0 <= c < 32:
            it.append(f"v_add_f32_dpp v{vY[c%2]}, v{vP1[(c-1)%3]}, v{acc(c,0)} wave_ror:1 {DP}")
        if a < 32:
            it.append(f"v_add_f32_dpp v{vP2[a%3]}, v{acc(a,3)}, v{acc(a,2)} wave_shr:1 {DP}")
        if 0 <= b < 32:
            it.append(f"v_add_f32_dpp v{vP1[b%3]}, v{vP2[b%3]}, v{acc(b,1)} wave_shr:1 {DP}")
        if 0 <= c < 32:
            it.append(f"v_add_f32_dpp v{vY[c%2]}, v{vP1[c%3]}, v{acc(c,0)} wave_shr:1 {DP}")
        if a < 32:
            it.append(f"v_fmac_f32 v{acc(a,0)}, v{vU[a%3]}, v{vDD}")
        if a + 2 < 32:
            it.append(uread(a + 2))
        if 0 <= c < 32 and c % 2 == 1:
            it.append(f"v_cvt_pk_bf16_f32 v{vCV}, v{vY[0]}, v{vY[1]}")
            it.append((f"ds_write_b16 v{vYW}, v{vCV} offset:{128*(c-1)}", "ys"))
            it.append((f"ds_write_b16_d16_hi v{vYW}, v{vCV} offset:{128*c}", "ys"))
            if c % 8 == 7:
                i = c // 8
                if i == 0:
                    it += [f"s_lshl_b32 {sT3}, {sW}, 12", f"v_add_u32 v113, {sT3}, {vr(vL16)}",
                           f"s_mul_i32 {sCH}, {sCH}, {TP}", f"s_add_u32 {sCH}, {sCH}, {WS_YT}",
                           f"v_mov_b32 v{vZ}, {sTAGC}"]
                it.append(f"ds_read_b128 v[{vYO+4*(i&1)}:{vYO+4*(i&1)+3}], v113 offset:{L_YS+1024*i}")
        dd = s - 3
        if 0 <= dd < 32 and dd % 8 == 7:
            i = dd // 8
            it.append((f"buffer_store_dwordx4 v[{vYO+4*(i&1)}:{vYO+4*(i&1)+3}], {vr(vL16)}, {sWS}, {sCH} offen offset:{1024*i} sc1", f"yout{i}"))
        for i, dl in enumerate(YD):
            if s == 8 * i + 10 + dl:
                it.append((lambda i: (lambda: y_flag(i)))(i))
        for x in it:
            comb.append(dict(e=e, l=l, it=x))
    com2 = [dict(e=d["e"], it=as_common(d["it"])) for d in common]
    left = weave2(A, anchors, [com2, rds, comb], 2)
    drain(A, [left[1], left[2], left[0]])
    stamp("cvm")
    if YF < 0:
        y_flag(3)
    A.settle()
    A("s_branch Ljoin")
    for qn in A.q:
        back = [h for h in A._hidden if h[0] == qn]
        A.q[qn] = [h[1] for h in back] + A.q[qn]
        for h in back:
            for r, v in h[2].items():
                A.pend.setdefault(r, v)
    A.opt = 0
    stateA = (A.q, A.pend, A.nid)
    A.label("Lnoconv")
    A.q, A.pend, A.nid = saved[0], saved[1], stateA[2]
    for d in common:
        put_item(A, d["it"])
    stamp("cvm")
    A.settle()
    seqB = [e["text"] for e in A.q["vm"]]
    seqA = [e["text"] for e in stateA[0]["vm"] if e["opt"] == 0]
    assert seqA[-len(seqB):] == seqB, (seqA, seqB)
    nid = A.nid
    A.q, A.pend, A.nid = stateA[0], stateA[1], nid
    A.label("Ljoin")
    stamp("conv")

    HF = [48, 114, 162, 210 - 0]
    HF = [48, 112, 160, 208]
    vA2 = [8, 28]
    vFL2, vRW = 7, 96
    vGQ = 48
    vOMG = 68
    vYR = 70
    vTM = 80
    vRD = 112
    vYA, vOA, vOB, vRR = 97, 98, 99, 100
    anchors = []
    for ph in range(4):
        for kk in range(12):
            for nt in range(5):
                ac = vA2[ph & 1] + 4 * nt
                anchors.append([f"v_mfma_f32_16x16x32_bf16 v[{ac}:{ac+3}], {ar(w2reg(kk*5+nt),4)}, v[{HF[ph]+4*kk}:{HF[ph]+4*kk+3}], " +
                                ("0" if kk == 0 else f"v[{ac}:{ac+3}]")])
        if O.get("pstamp", 0):
            anchors[-1].append((lambda nm: (lambda: stamp(nm)))(f"ph{ph}"))
    pre = []
    for kk in range(O["hpre"], 12):
        pre.append(hload(0, kk, HF[0] + 4 * kk))
    for x in pre:
        A(x)
    ld = []
    t = -1
    H0 = O.get("hburst", 12)
    cnt = 0
    for ph in range(1, 4):
        for x in hbase(ph):
            ld.append(dict(e=t, it=x))
        for kk in range(12):
            if cnt == YF:
                ld.append(dict(e=t, it=lambda: y_flag(3)))
            ld.append(dict(e=t, l=60 * ph + 5 * kk, it=hload(ph, kk, HF[ph] + 4 * kk)))
            cnt += 1
            if cnt >= H0:
                t += O.get("hpace", 4)
    while ld and ld[0]["e"] < 0:
        put_item(A, ld.pop(0)["it"])
    ty = max(t, 0) + 2

    def y_issue():
        A(f"""v_min_u32 v{vPA}, 23, {vr(vLANE)}
              s_lshr_b32 {sHB[1]}, {sRB}, 3
              v_lshrrev_b32 v{vPO}, 3, v{vPA}
              s_lshl_b32 {sHB[1]}, {sHB[1]}, 3
              v_mul_u32_u24 v{vPO}, 24, v{vPO}
              s_add_u32 {sHB[1]}, {sHB[1]}, {sCB}
              v_add_u32 v{vPA}, v{vPA}, v{vPO}
              s_mul_i32 {sHB[1]}, {sHB[1]}, {80*128}
              v_lshl_add_u32 v{vPA}, v{vPA}, 7, {sW1K}
              s_add_u32 {sHB[1]}, {sHB[1]}, {WS_YF}
              v_min_u32 v{vPA}, {79*128}, v{vPA}""")
        poll(vPA, sTAGC, sHB[1], vPO, check=False)

    def y_dma():
        stamp("ychk")
        poll(vPA, sTAGC, sHB[1], vPO, issue=False)
        stamp("ypass")
        A(f"""s_add_u32 {sT0}, {sKVO}, {WS_YT}
              s_add_u32 m0, {sW1K}, {L_YT}
              s_add_u32 {sT1}, {sKVO}, {WS_YT + 32*TP}""")
        A(f"buffer_load_dwordx4 {vr(vT)}, {sWS}, {sT0} offen sc1 lds", "yin")
        A(f"""s_add_u32 m0, {sW1K}, {L_YT+4096}
              s_add_u32 {sT0}, {sKVO}, {WS_YT + 64*TP}""")
        A(f"buffer_load_dwordx4 {vr(vT)}, {sWS}, {sT1} offen sc1 lds", "yin")
        A(f"s_add_u32 m0, {sW1K}, {L_YT+8192}")
        A(f"s_cmp_ge_u32 {sW}, 2")
        A.begin_opt("s_cbranch_scc1", settle=False)
        A(f"buffer_load_dwordx4 {vr(vT)}, {sWS}, {sT0} offen sc1 lds", "yin")
        A.end_opt()
    ld.append(dict(e=O.get("ypoll_i", ty), it=y_issue))
    ld.append(dict(e=O.get("ypoll_c", 150), it=y_dma))

    red = []
    for ph in range(3):
        e = 60 * (ph + 1) + 2
        its = [f"s_add_u32 {sT2}, {sW}, {1+ph}", f"s_and_b32 {sT2}, {sT2}, 3", f"s_mul_i32 {sT2}, {sT2}, 15360",
               f"s_add_u32 {sT2}, {sT2}, {L_RED + 5120*ph}", f"v_add_u32 v{vRW}, {sT2}, {vr(vL16)}"]
        for x in its:
            red.append(dict(e=e - 8, l=60 * (ph + 2), it=x))
        for nt in range(5):
            ac = vA2[ph & 1] + 4 * nt
            red.append(dict(e=e, l=60 * (ph + 2), it=(f"ds_write_b128 v{vRW}, v[{ac}:{ac+3}] offset:{1024*nt}", "red")))
        if ph == 0:
            its = [f"v_sub_f32 v{vOMG}, 1.0, v{vGT}"]
            for i in range(10):
                its += [f"v_accvgpr_read_b32 v{vTM}, a{240+i}", f"v_lshlrev_b32 v{vGQ+2*i}, 16, v{vTM}",
                        f"v_and_b32 v{vGQ+2*i+1}, 0xffff0000, v{vTM}",
                        f"v_pk_mul_f32 v[{vGQ+2*i}:{vGQ+2*i+1}], v[{vGQ+2*i}:{vGQ+2*i+1}], v[{vGT}:{vGT+1}] op_sel_hi:[1,0]"]
            its += [f"v_lshrrev_b32 v{vTM}, 4, {vr(vLANE)}", f"v_bfe_u32 v{vTM+1}, {vr(vLANE)}, 2, 2",
                    f"v_and_b32 v{vTM+2}, 3, {vr(vLANE)}", f"v_lshlrev_b32 v{vTM+1}, 7, v{vTM+1}",
                    f"v_lshl_add_u32 v{vTM+1}, v{vTM+2}, 3, v{vTM+1}", f"s_lshl_b32 {sT3}, {sW}, 5",
                    f"s_add_u32 {sT3}, {sT3}, {L_YT}", f"v_add_u32 v{vTM+1}, {sT3}, v{vTM+1}",
                    f"v_lshl_add_u32 v{vYA}, v{vTM}, 10, v{vTM+1}", f"v_lshl_add_u32 v101, v{vTM}, 9, v{vTM+1}",
                    f"v_and_b32 v{vTM+2}, 15, {vr(vLANE)}", f"v_mul_u32_u24 v{vTM+2}, 1280, v{vTM+2}",
                    f"v_lshl_add_u32 v{vOA}, v{vTM}, 4, v{vTM+2}", f"v_lshl_add_u32 v{vOB}, v{vTM}, 3, v{vTM+2}",
                    f"s_mul_i32 {sT3}, {sW}, 20480", f"s_add_u32 {sROWOFF}, {sROWOFF}, {sT3}",
                    f"s_mul_i32 {sT3}, {sW}, 15360", f"s_add_u32 {sT3}, {sT3}, {L_RED}",
                    f"v_add_u32 v{vRR}, {sT3}, {vr(vL16)}"]
            for x in its:
                red.append(dict(e=e, it=x))

    def sync2():
        A.wait("red", "yin")
        A("s_barrier")
        stamp("sync2")
        A(f"""s_lshl_b32 {sT0}, {sRB}, 8
              s_add_u32 {sT0}, {sT0}, {WS_ROWG}
              s_or_b32 {sT1}, {sCB}, {sW}
              s_cmp_eq_u32 {sT1}, 0
              s_cselect_b32 {sT0}, {sT0}, 0x7f000000
              v_mov_b32 v{vPO}, {sTAGR}""")
        A(f"buffer_store_dword v{vPO}, v7, {sWS}, {sT0} offen sc1")
    e = O.get("sync2", 190)
    red.append(dict(e=e, it=sync2))
    for nt, (va, off) in enumerate(((vYA, 0), (vYA, 512), (vYA, 4096), (vYA, 4608), (101, 8192))):
        red.append(dict(e=e, it=f"ds_read_b64_tr_b16 v[{vYR+2*nt}:{vYR+2*nt+1}], v{va} offset:{off}"))
    for nt in range(5):
        for p in range(3):
            d = vRD + 20 * p + 4 * nt
            red.append(dict(e=e, it=f"ds_read_b128 v[{d}:{d+3}], v{vRR} offset:{5120*p+1024*nt}"))
    for i in range(10):
        t0 = vTM + 2 * (i & 1)
        g, r = vGQ + 2 * i, vRD + 2 * i
        for x in (f"v_lshlrev_b32 v{t0}, 16, v{vYR+i}", f"v_and_b32 v{t0+1}, 0xffff0000, v{vYR+i}",
                  f"v_pk_add_f32 v[{r}:{r+1}], v[{r}:{r+1}], v[{r+20}:{r+21}]",
                  f"v_pk_mul_f32 v[{g}:{g+1}], v[{g}:{g+1}], v[{t0}:{t0+1}]",
                  f"v_pk_add_f32 v[{r}:{r+1}], v[{r}:{r+1}], v[{r+40}:{r+41}]",
                  f"v_pk_fma_f32 v[{g}:{g+1}], v[{r}:{r+1}], v[{vOMG}:{vOMG+1}], v[{g}:{g+1}] op_sel_hi:[1,0,1]"):
            red.append(dict(e=e, it=x))
    left = weave2(A, anchors, [ld, red], 2)
    drain(A, left)
    for i in range(10):
        g, a = vGQ + 2 * i, vA2[1] + 2 * i
        A(f"v_pk_fma_f32 v[{g}:{g+1}], v[{a}:{a+1}], v[{vOMG}:{vOMG+1}], v[{g}:{g+1}] op_sel_hi:[1,0,1]")
        A(f"v_cvt_pk_bf16_f32 v{vYR+i}, v{g}, v{g+1}")
        if i == 3:
            A(f"buffer_store_dwordx4 v[{vYR}:{vYR+3}], v{vOA}, {sOUT}, {sROWOFF} offen {OF}")
        if i == 7:
            A(f"buffer_store_dwordx4 v[{vYR+4}:{vYR+7}], v{vOA}, {sOUT}, {sROWOFF} offen offset:64 {OF}")
    A(f"buffer_store_dwordx2 v[{vYR+8}:{vYR+9}], v{vOB}, {sOUT}, {sROWOFF} offen offset:128 {OF}")
    if O["stamps"]:
        A.waitall()
        stamp("end")
        A("s_memrealtime s[52:53]")
        A("s_waitcnt lgkmcnt(0)")
        A("v_mov_b32 v8, 0")
        for k in range(nst[0]):
            A(f"v_writelane_b32 v8, s{STR[k]}, {k}")
        A(f"v_writelane_b32 v8, {sRB}, 12")
        A("v_writelane_b32 v8, s100, 13")
        A("v_writelane_b32 v8, s52, 14")
        A(f"v_writelane_b32 v8, {sSPIN}, 15")
        A.raw("; STAMPS " + " ".join(names))
        A(f"""s_lshl_b32 s54, s2, 2
              s_add_u32 s54, s54, {sW}
              s_lshl_b32 s54, s54, 6
              s_add_u32 s54, s54, {WS_DBG}
              v_lshlrev_b32 v9, 2, {vr(vLANE)}
              v_cmp_gt_u32 vcc, 16, {vr(vLANE)}
              v_mov_b32 v10, 0x7ff00000
              v_cndmask_b32 v9, v10, v9, vcc""")
        A(f"buffer_store_dword v8, v9, {sWS}, s54 offen")
    if O.get("dbg", 0):
        A("s_load_dwordx2 s[8:9], s[0:1], 88")
        A("s_mov_b32 s10, 256")
        A("s_mov_b32 s11, 0x20000")
        A("s_getreg_b32 s55, hwreg(HW_REG_XCC_ID)")
        A("s_waitcnt lgkmcnt(0)")
        A("s_not_b32 s100, s100")
        A("v_mov_b32 v10, s100")
        A("v_mov_b32 v11, s52")
        A("v_mov_b32 v12, 0")
        A("s_mov_b64 exec, 1")
        A("buffer_atomic_umax v10, v12, s[8:11], 0 offen sc1")
        A("buffer_atomic_umax v11, v12, s[8:11], 0 offen offset:4 sc1")
        for k in range(1, nst[0]):
            A(f"s_sub_u32 s54, s{STR[k]}, s{STR[0]}")
            A(f"v_mov_b32 v{12+k}, s54")
            A(f"buffer_atomic_umax v{12+k}, v12, s[8:11], 0 offen offset:{4+4*k} sc1")
        A("s_and_b32 s55, s55, 15")
        A("s_lshl_b32 s54, s2, 2")
        A("s_lshl_b32 s53, s55, s54")
        A("s_cmp_lt_u32 s2, 8")
        A("s_cselect_b32 s53, s53, 0")
        A("v_mov_b32 v30, s53")
        A("buffer_atomic_or v30, v12, s[8:11], 0 offen offset:56 sc1")
        A("s_lshr_b32 s54, s2, 1")
        A("s_lshl_b32 s53, s55, s54")
        A("s_and_b32 s54, s2, 0xc7")
        A("s_cmp_eq_u32 s54, 0")
        A("s_cselect_b32 s53, s53, 0")
        A("v_mov_b32 v31, s53")
        A("buffer_atomic_or v31, v12, s[8:11], 0 offen offset:60 sc1")
    if O.get("padto", 0):
        A.waitall()
        A.label("Lpad")
        A.raw("  s_memrealtime s[52:53]")
        A.raw("  s_waitcnt lgkmcnt(0)")
        A.raw("  s_sub_u32 s52, s52, s100")
        A.raw(f"  s_cmp_lt_u32 s52, {O['padto']}")
        A.raw("  s_cbranch_scc1 Lpad")
    A.label("Lend")
    A("s_endpgm")

    head = f"""; Fused gated mix: one persistent launch, 256 workgroups (32 row blocks x 8 column blocks).
; @launch grid=(256,1,1) block=(256,1,1) lds={LDS}
.amdgcn_target "amdgcn-amd-amdhsa--gfx950"
.text
.globl {KN}_kernel
.p2align {O.get("al", 8)}
.type {KN}_kernel,@function
{KN}_kernel:
"""
    tail = f"""
.section .rodata,"a"
.p2align 6
.amdhsa_kernel {KN}_kernel
  .amdhsa_next_free_vgpr 512
  .amdhsa_next_free_sgpr 102
  .amdhsa_accum_offset 256
  .amdhsa_group_segment_fixed_size 0
  .amdhsa_kernarg_size 104
  .amdhsa_user_sgpr_count 2
  .amdhsa_user_sgpr_kernarg_segment_ptr 1
  .amdhsa_system_sgpr_workgroup_id_x 1
.end_amdhsa_kernel
"""
    txt = head + A.text() + tail
    if O.get("touch", ""):
        import padlib
        txt = padlib.add_pads(txt, sW, O.get("tstep", 4096), [x for x in O.get("textra", "Lnoconv+Ljoin").split("+") if x])
    return txt, A.stats


if __name__ == "__main__":
    out = sys.argv[1]
    kw = {}
    for a in sys.argv[2:]:
        k, v = a.split("=")
        kw[k] = int(v) if v.lstrip("-").isdigit() else v
    s, st = gen(**kw)
    open(out, "w").write(s)
    print(out, st)
```

```python
import re
from collections import deque

TRANS = ("v_exp_f32", "v_rcp_f32", "v_log_f32", "v_rsq_f32", "v_sqrt_f32")
NO_DST_SALU = ("s_cmp", "s_waitcnt", "s_barrier", "s_branch", "s_cbranch", "s_nop", "s_sleep", "s_endpgm",
               "s_setprio", "s_bitcmp")


def regs_of(tok):
    tok = tok.strip()
    m = re.fullmatch(r"([vas])(\d+)", tok)
    if m:
        return [(m.group(1), int(m.group(2)))]
    m = re.fullmatch(r"([vas])\[(\d+):(\d+)\]", tok)
    if m:
        return [(m.group(1), i) for i in range(int(m.group(2)), int(m.group(3)) + 1)]
    if tok == "vcc":
        return [("s", "vcc")]
    if tok == "exec":
        return [("s", "exec")]
    if tok == "m0":
        return [("s", "m0")]
    return []


class Ins:
    __slots__ = ("text", "op", "kind", "w", "r", "srcc", "passes", "dpp", "trans", "dot", "lane", "perm", "wide",
                 "lds", "sdata", "states", "opsel")


def parse(text):
    t = text.split(";")[0].strip()
    sp = t.split(None, 1)
    op = sp[0]
    rest = sp[1] if len(sp) > 1 else ""
    ops, depth, cur = [], 0, ""
    for ch in rest:
        if ch == "[":
            depth += 1
        if ch == "]":
            depth -= 1
        if ch == "," and depth == 0:
            ops.append(cur)
            cur = ""
        else:
            cur += ch
    ops.append(cur)
    last = ops[-1].strip().split()
    mods = last[1:] if last else []
    ops[-1] = last[0] if last else ""
    ops = [o.strip() for o in ops]
    I = Ins()
    I.text, I.op = text, op
    I.w, I.r, I.srcc, I.sdata = [], [], [], []
    I.passes = 0
    I.dpp = I.trans = I.dot = I.lane = I.perm = I.wide = I.lds = I.opsel = False
    I.states = 1
    R = [regs_of(o.lstrip("-").strip("|")) for o in ops]
    allr = lambda k: [x for l in R[k:] for x in l]
    if op.startswith("v_mfma"):
        I.kind = "mfma"
        I.w = R[0]
        I.r = allr(1)
        I.srcc = R[3]
        I.passes = 8 if "32x32x16" in op else 4
    elif op.startswith("v_"):
        I.kind = "valu"
        I.w = R[0]
        I.r = allr(1)
        ms = " ".join(mods)
        if any(k in ms for k in ("row_", "wave_", "quad_perm")):
            I.dpp = True
            I.r = I.r + R[0]
        if op.startswith("v_cndmask") and len(ops) == 3:
            I.r = I.r + [("s", "vcc")]
        if op.startswith(("v_fmac", "v_mac", "v_pk_fmac", "v_dot2c")):
            I.r = I.r + R[0]
        if op.startswith("v_permlane"):
            I.perm = True
            I.w = R[0] + R[1]
            I.r = R[0] + R[1]
        if "sdwa" in op or "dst_sel" in ms:
            I.opsel = True
            I.r = I.r + R[0]
        I.trans = op.replace("_e32", "").replace("_e64", "") in TRANS
        I.dot = op.startswith("v_dot")
        I.lane = op.startswith(("v_readfirstlane", "v_readlane"))
    elif op.startswith("ds_"):
        I.kind = "ds"
        if op.startswith("ds_read"):
            I.w = R[0]
            I.r = allr(1)
            if "d16" in op:
                I.r = I.r + R[0]
        else:
            I.r = allr(0)
    elif op.startswith(("buffer_", "global_")):
        I.kind = "vmem"
        if "lds" in mods:
            I.lds = True
            I.r = allr(0) + [("s", "m0")]
        elif "load" in op:
            I.w = R[0]
            I.r = allr(1)
            if "d16" in op:
                I.r = I.r + R[0]
        else:
            I.r = allr(0)
            I.sdata = R[0] if op.startswith("buffer_") else R[1]
            I.wide = op.endswith(("x3", "x4"))
    elif op.startswith("s_"):
        I.kind = "salu"
        if op.startswith(("s_load", "s_memtime", "s_memrealtime")):
            I.kind = "smem"
            I.w = R[0]
            I.r = allr(1)
        elif op.startswith(NO_DST_SALU):
            I.r = allr(0)
            if op == "s_nop":
                I.states = int(ops[0]) + 1
        else:
            I.w = R[0]
            I.r = allr(1)
    else:
        raise ValueError("unknown instruction " + text)
    return I


def need(p, c):
    n = 0
    pw, cr, cw = set(p.w), set(c.r), set(c.w)
    raw = pw & cr
    waw = pw & cw
    if p.kind == "mfma":
        big = 12 if p.passes == 8 else 8
        if c.kind == "mfma":
            ab = set(c.r) - set(c.srcc) if c.srcc else set(c.r)
            if pw & ab:
                n = max(n, big)
            if pw & set(c.srcc):
                if not (p.w == c.srcc and p.passes == c.passes):
                    n = max(n, big - 2)
            elif waw:
                n = max(n, big)
        elif c.kind in ("valu", "ds", "vmem"):
            if raw or waw:
                n = max(n, big)
        if c.kind in ("valu", "ds", "vmem") and set(p.srcc) & cw:
            n = max(n, 7 if p.passes == 8 else 3)
    elif p.kind == "valu":
        vraw = {x for x in raw if x[0] != "s"}
        sraw = {x for x in raw if x[0] == "s"}
        if c.kind == "mfma" and vraw:
            n = max(n, 3 if p.dot else 2)
        if c.kind == "mfma" and ("s", "exec") in pw:
            n = max(n, 4)
        if c.kind == "vmem" and sraw:
            n = max(n, 5)
        if c.kind == "valu":
            if sraw:
                n = max(n, 4 if c.lane else 2)
            if vraw and c.dpp:
                n = max(n, 2)
            if vraw and c.lane:
                n = max(n, 1)
            if vraw and c.perm:
                n = max(n, 2)
            if vraw and p.trans and not c.trans:
                n = max(n, 1)
            if (vraw or waw) and p.opsel:
                n = max(n, 1)
            if ("s", "exec") in pw and c.dpp:
                n = max(n, 5)
        if p.dot and (vraw or waw):
            same_c = c.kind == "valu" and c.op == p.op and not (pw & set(c.r[:-len(p.w)])) and c.r[-len(p.w):] == p.w
            if not same_c:
                n = max(n, 3)
    elif p.kind == "salu":
        if ("s", "m0") in pw and c.kind == "vmem" and c.lds:
            n = max(n, 1)
    elif p.kind == "vmem":
        if p.wide and set(p.sdata) & cw:
            n = max(n, 2 if c.kind in ("valu", "mfma") else 1)
    return n


class Asm:
    def __init__(self):
        self.out = []
        self.hist = deque(maxlen=16)
        self.q = {"vm": [], "lg": []}
        self.pend = {}
        self.nid = 0
        self.opt = 0
        self.nopt = 0
        self.stats = {"nop": 0, "ins": 0}
        self.nlab = 0

    def raw(self, s):
        self.out.append(s)

    def comment(self, s):
        self.out.append("; " + s)

    def _put(self, I):
        self.out.append("  " + I.text)
        self.hist.append(I)
        self.stats["ins"] += 1

    def _count_after(self, qn, oid):
        q = self.q[qn]
        idx = [i for i, e in enumerate(q) if e["id"] == oid]
        if not idx:
            return None
        n = 0
        for e in q[idx[0] + 1:]:
            if e["opt"] == 0 or e["opt"] == self.opt:
                n += 1
        return n

    def _retire(self, qn, oid):
        q = self.q[qn]
        idx = [i for i, e in enumerate(q) if e["id"] == oid][0]
        done = {e["id"] for e in q[:idx + 1]}
        if self.opt:
            for e in q[:idx + 1]:
                if e["opt"] != self.opt:
                    self._hidden.append((qn, e, {r: v for r, v in self.pend.items() if v == (qn, e["id"])}))
        self.q[qn] = q[idx + 1:]
        for r in [r for r, v in self.pend.items() if v[0] == qn and v[1] in done]:
            del self.pend[r]

    def _wait(self, reqs):
        best = {}
        for qn, oid in reqs:
            n = self._count_after(qn, oid)
            if n is None:
                continue
            if qn not in best or oid > best[qn][1]:
                best[qn] = (n, oid)
        if not best:
            return
        parts = []
        for qn, (n, oid) in best.items():
            mx = 63 if qn == "vm" else 15
            parts.append(("vmcnt(%d)" if qn == "vm" else "lgkmcnt(%d)") % min(n, mx))
            self._retire(qn, oid)
        self._put(parse("s_waitcnt " + " ".join(parts)))

    def wait(self, *tags):
        reqs = []
        for qn in self.q:
            for e in self.q[qn]:
                if e["tag"] in tags:
                    reqs.append((qn, e["id"]))
        self._wait(reqs)

    def waitall(self, vm=True, lg=True):
        parts = []
        if vm:
            parts.append("vmcnt(0)")
            if self.q["vm"]:
                self._retire("vm", self.q["vm"][-1]["id"])
        if lg:
            parts.append("lgkmcnt(0)")
            if self.q["lg"]:
                self._retire("lg", self.q["lg"][-1]["id"])
        self._put(parse("s_waitcnt " + " ".join(parts)))

    def pad_for(self, I):
        d, req = 0, 0
        for p in reversed(self.hist):
            req = max(req, need(p, I) - d)
            d += p.states
            if d >= 14:
                break
        return req

    def __call__(self, text, tag=None):
        for line in text.strip().split("\n"):
            line = line.strip()
            if not line or line.startswith(";"):
                continue
            self.emit(line, tag)

    def emit(self, text, tag=None):
        if getattr(self, "skip", None) and re.search(self.skip, text):
            return None
        I = parse(text)
        reqs = [self.pend[r] for r in set(I.r) | set(I.w) if r in self.pend]
        if reqs:
            if any(q == "sm" for q, _ in reqs):
                raise ValueError("scalar load result used before explicit wait: " + text)
            self._wait(reqs)
        req = self.pad_for(I)
        while req > 0:
            n = min(req, 8)
            self._put(parse("s_nop %d" % (n - 1)))
            self.stats["nop"] += n
            req -= n
        self._put(I)
        if I.kind in ("ds", "vmem"):
            qn = "lg" if I.kind == "ds" else "vm"
            self.nid += 1
            self.q[qn].append({"id": self.nid, "tag": tag, "opt": self.opt, "text": text})
            for r in I.w:
                self.pend[r] = (qn, self.nid)
        return I

    def settle(self):
        d, req = 0, 0
        for p in reversed(self.hist):
            mx = 0
            if p.kind == "mfma":
                mx = 12 if p.passes == 8 else 8
            elif p.kind == "valu":
                mx = 5 if any(x[0] == "s" for x in p.w) else 3
            elif p.kind == "salu" and ("s", "m0") in p.w:
                mx = 1
            elif p.kind == "vmem" and p.wide:
                mx = 2
            req = max(req, mx - d)
            d += p.states
        while req > 0:
            n = min(req, 8)
            self._put(parse("s_nop %d" % (n - 1)))
            req -= n

    def label(self, name):
        self.out.append(name + ":")

    def newlabel(self, base="L"):
        self.nlab += 1
        return "%s_%d" % (base, self.nlab)

    def begin_opt(self, branch, settle=True):
        assert self.opt == 0
        lab = self.newlabel("Lskip")
        if settle:
            self.settle()
        self.emit(branch + " " + lab)
        self.nopt += 1
        self.opt = self.nopt
        self._hidden = []
        self._optlab = lab

    def end_opt(self):
        self.label(self._optlab)
        for qn in self.q:
            back = [h for h in self._hidden if h[0] == qn]
            self.q[qn] = [h[1] for h in back] + self.q[qn]
            for h in back:
                for r, v in h[2].items():
                    self.pend.setdefault(r, v)
        self.opt = 0
        self._hidden = []

    def text(self):
        return "\n".join(self.out) + "\n"


def weave(A, anchors, fillers, cap):
    f = deque(fillers)

    def put(it):
        if callable(it):
            it()
        elif isinstance(it, tuple):
            A(it[0], it[1])
        else:
            A(it)
    for i, grp in enumerate(anchors):
        for it in grp:
            put(it)
        c = cap(i) if callable(cap) else cap
        while f and f[0][0] <= i and c >= f[0][1]:
            c -= f[0][1]
            put(f.popleft()[2])
    return f


def put_item(A, it):
    if callable(it):
        it()
    elif isinstance(it, tuple):
        A(it[0], it[1])
    else:
        A(it)


def weave2(A, anchors, streams, cap):
    S = [deque(s) for s in streams]
    for i, grp in enumerate(anchors):
        for s in S:
            last = -1
            for j, e in enumerate(s):
                if e.get("l", 1 << 30) <= i:
                    last = j
            for _ in range(last + 1):
                e = s.popleft()
                assert e["e"] < i, ("forced before allowed", e, i)
                put_item(A, e["it"])
        for it in grp:
            put_item(A, it)
        c = cap(i) if callable(cap) else cap
        prog = True
        while prog:
            prog = False
            for s in S:
                if s and s[0]["e"] <= i and s[0].get("c", 1) <= c:
                    e = s.popleft()
                    c -= e.get("c", 1)
                    put_item(A, e["it"])
                    prog = True
                    break
    return S


def drain(A, S):
    for s in S:
        while s:
            put_item(A, s.popleft()["it"])


def weave3(A, anchors, streams, cap, expose=None, padok=0):
    S = [deque(s) for s in streams]
    if expose is not None:
        expose.extend(S)

    def padneed(it):
        if callable(it):
            it = getattr(it, "inner", None)
            if it is None or callable(it):
                return 0
        t = it[0] if isinstance(it, tuple) else it
        return A.pad_for(parse(t.strip().split("\n")[0]))
    debt = 0
    for i, grp in enumerate(anchors):
        n0 = A.stats["ins"]
        for s in S:
            last = -1
            for j, e in enumerate(s):
                if e.get("l", 1 << 30) <= i:
                    last = j
            for _ in range(last + 1):
                e = s.popleft()
                assert e["e"] < i, ("forced before allowed", e, i)
                put_item(A, e["it"])
        for it in grp:
            put_item(A, it)
        c = (cap(i) if callable(cap) else cap) - (A.stats["ins"] - n0 - len(grp))
        prog = True
        while prog:
            prog = False
            for s in S:
                if s and s[0]["e"] <= i and s[0].get("c", 1) <= c and (i < padok or padneed(s[0]["it"]) == 0):
                    e = s.popleft()
                    n1 = A.stats["ins"]
                    put_item(A, e["it"])
                    c -= max(e.get("c", 1), A.stats["ins"] - n1)
                    if s and s[0].get("gap", 0):
                        s[0]["e"] = max(s[0]["e"], i + s[0]["gap"])
                    prog = True
                    break
    return S
```

```python
import sys, os
sys.path.insert(0, os.path.dirname(os.path.abspath(__file__)))
from asmlib import *

KN = "gated_mix__ssm_conv_h3__dense_activation_silu__prompt"

DEF = dict(stamps=0, mapping="B", rot=0, gs=2, dist=5, p0flag=8, poll_i=60, poll_c=76, w2pace=5,
           spin=200000, early_w1=6)


def gen(**kw):
    O = dict(DEF)
    O.update(kw)
    A = Asm()
    GS, DIST = O["gs"], O["dist"]
    NT = "nt" if O.get("nt", 0) else ""
    NTX = "nt" if O.get("ntx", 0) else ""
    OF = O.get("of", "").replace("+", " ")

    WS_COLP0, WS_COLG, WS_ROWG, WS_ROWH, WS_YF = 0x0000, 0x8000, 0xA000, 0x40000, 0x60000
    FLW = O.get("flw", 32)
    WS_DBG = 0x20000
    WS_KVT, WS_YT, WS_W2P, WS_H = 0x100000, 0x400000, 0x700000, 0x900000
    WS_SIZE = 0x1000000
    TP = 4224
    L_S = 81920
    L_K, L_V, L_W2 = 131072, 142336, 152576
    L_BO = 65536
    L_HB, L_UB, L_YT, L_YS, L_RED = 0, 16896, 33792, 45056, 69632
    HBP, UBP, YSP = 4224, 4128, 4352
    LDS = 163840
    sQ, sK, sV, sSH, sSK, sD, sW1, sW2, sGW, sOUT, sWS = [f"s[{8+4*i}:{11+4*i}]" for i in range(11)]
    srd = lambda n: int(n[2:].split(":")[0])
    sW, sRB, sCB, sROT = "s3", "s4", "s5", "s6"
    sT0, sT1, sT2, sT3 = "s52", "s53", "s54", "s55"
    sROWOFF = "s56"
    sW1K = "s57"
    sW2K = "s58"
    sTAGC, sTAGR = "s59", "s60"
    sCH = "s61"
    sNL2E = "s[62:63]"
    sJ = [f"s{64+i}" for i in range(10)]
    sHB = ["s74", "s75", "s76"]
    sKVO = "s77"
    sW2L = "s78"
    sSPIN = "s79"
    sHL = "s80"
    sSTAMP = 82

    nst = [0]
    names = []
    STR = [82, 84, 86, 88, 90, 92, 94, 96, 98, 64, 66, 68]
    SKIPST = O.get('nostamp', 'iss0+pre+karg+tiles').split('+')
    ONLY = [x for x in O.get('only', '').split('+') if x]
    if ONLY:
        ONLY += ["start", "end"]
        SKIPST = []

    def stamp(name):
        if O.get("touch", "") == name:
            A.settle()
            A.raw("; @TOUCH")
        if O.get("skfrom", "") == name:
            A.skip = O["skip"]
        if O.get("skto", "") == name:
            A.skip = None
        if O.get("padat", "") == name:
            A("s_memrealtime s[100:101]")
        if O["stamps"] and name in names:
            r = STR[names.index(name)]
            A(f"s_memtime s[{r}:{r+1}]")
        elif O["stamps"] and name not in SKIPST and (not ONLY or name in ONLY):
            r = STR[nst[0]]
            A(f"s_memtime s[{r}:{r+1}]")
            nst[0] += 1
            names.append(name)

    def vr(a, n=1):
        return f"v{a}" if n == 1 else f"v[{a}:{a+n-1}]"

    def ar(a, n=1):
        return f"a{a}" if n == 1 else f"a[{a}:{a+n-1}]"

    vTID, vLANE, vL16, vT = 0, 1, 2, 3
    vW1 = [4, 5, 6, 7, 8, 9]
    vTR = [10, 11, 12]
    vHS = 13
    vFL = 14
    vPO = 15

    def poll(voff, tag, soff, vres=None, n=1, issue=True, check=True):
        ld = (f"buffer_load_dword {vr(vres)}, {vr(voff)}, {sWS}, {soff} offen sc1" if n == 1 else
              f"buffer_load_dwordx2 {vr(vres,2)}, {vr(voff)}, {sWS}, {soff} offen sc1")
        if issue:
            A(ld)
        if check:
            lo, dn = A.newlabel("Lpoll"), A.newlabel("Lgot")

            def cmp():
                A(f"v_cmp_ne_u32 vcc, {tag}, {vr(vres)}")
                if n == 2:
                    A(f"v_cmp_ne_u32 s[52:53], {tag}, {vr(vres+1)}")
                    A("s_or_b64 vcc, vcc, s[52:53]")
            cmp()
            A(f"s_cbranch_vccz {dn}" if n != 2 else f"s_cbranch_scc0 {dn}")
            A.label(lo)
            A.raw(f"  s_sleep {O.get('psleep', 1)}")
            A.raw("  " + ld)
            A.raw("  s_waitcnt vmcnt(0)")
            A.raw(f"  s_sub_u32 {sSPIN}, {sSPIN}, 1")
            A.raw(f"  s_cbranch_scc1 Lend")
            A.raw(f"  v_cmp_ne_u32 vcc, {tag}, {vr(vres)}")
            if n == 2:
                A.raw(f"  v_cmp_ne_u32 s[52:53], {tag}, {vr(vres+1)}")
                A.raw("  s_or_b64 vcc, vcc, s[52:53]")
            A.raw(f"  s_cbranch_vccnz {lo}" if n != 2 else f"  s_cbranch_scc1 {lo}")
            A.label(dn)

    A("s_cmp_ge_u32 s2, 256")
    A("s_cbranch_scc1 Lend")
    for s, off in ((sW2, 64), (sK, 8), (sV, 16), (sQ, 0), (sW1, 56), (sWS, 96), (sSH, 24), (sGW, 72), (sSK, 32),
                   (sD, 40), (sOUT, 80)):
        A(f"s_load_dwordx2 s[{srd(s)}:{srd(s)+1}], s[0:1], {off}")
    if O["stamps"] or O.get("padto", 0):
        A("s_memrealtime s[100:101]")
    stamp("start")
    A(f"v_lshrrev_b32 v20, 6, v0")
    A(f"v_and_b32 {vr(vLANE)}, 63, v0")
    A(f"v_readfirstlane_b32 {sW}, v20")
    if O["mapping"] == "A":
        A(f"""s_lshr_b32 {sT0}, s2, 3
              s_and_b32 {sCB}, {sT0}, 7
              s_lshr_b32 {sT0}, {sT0}, 3
              s_and_b32 {sRB}, s2, 7
              s_lshl_b32 {sRB}, {sRB}, 2
              s_add_u32 {sRB}, {sRB}, {sT0}""")
    else:
        A(f"""s_lshr_b32 {sT0}, s2, 3
              s_and_b32 {sCB}, {sT0}, 3
              s_and_b32 {sT1}, s2, 1
              s_lshl_b32 {sT1}, {sT1}, 2
              s_add_u32 {sCB}, {sCB}, {sT1}
              s_bfe_u32 {sRB}, s2, 0x20001""")
        if O.get("rbint", 1):
            A(f"""s_and_b32 {sT0}, {sT0}, 28
                  s_add_u32 {sRB}, {sRB}, {sT0}""")
        else:
            A(f"""s_lshr_b32 {sT0}, {sT0}, 2
                  s_lshl_b32 {sRB}, {sRB}, 3
                  s_add_u32 {sRB}, {sRB}, {sT0}""")
    for s, size in ((sQ, 2621440), (sK, 2621440), (sV, 2621440), (sSH, 5120), (sSK, 2621440), (sD, 1280),
                    (sW1, 1966080), (sW2, 1966080), (sGW, 1280), (sOUT, 2621440), (sWS, WS_SIZE)):
        A(f"s_mov_b32 s{srd(s)+2}, {size}")
        A(f"s_mov_b32 s{srd(s)+3}, 0x20000")
    A(f"""s_mul_i32 {sROWOFF}, {sRB}, 81920
          s_mul_i32 {sT0}, {sCB}, 160
          s_add_u32 {sROWOFF}, {sROWOFF}, {sT0}
          s_lshl_b32 {sW1K}, {sW}, 10
          s_lshl_b32 {sW2K}, {sW}, 11
          s_movk_i32 {sT1}, 6554
          s_movk_i32 {sT2}, 1120
          s_sub_u32 {sT3}, {sROWOFF}, 5120""")
    for n in range(3):
        A(f"v_add_u32 v26, {256*n}, v0") if n else A("v_mov_b32 v26, v0")
        A(f"""v_mul_u32_u24 v27, {sT1}, v26
              v_lshrrev_b32 v27, 16, v27
              v_lshlrev_b32 v26, 4, v26
              v_mad_u32_u24 v{20+n}, v27, {sT2}, v26
              v_add_u32 v{23+n}, {sT3}, v{20+n}""")
    A(f"v_lshlrev_b32 {vr(vL16)}, 4, {vr(vLANE)}")
    R = O["rot"]
    if R == 1:
        A(f"""s_mul_i32 {sT0}, {sRB}, 3
              s_add_u32 {sT0}, {sT0}, {sCB}""")
    elif R == 2:
        A(f"s_lshr_b32 {sT0}, s2, 5")
    elif R == 3:
        A(f"s_and_b32 {sT0}, s2, 7")
    elif R == 4:
        A(f"""s_lshr_b32 {sT0}, s2, 5
              s_and_b32 {sT1}, s2, 7
              s_add_u32 {sT0}, {sT0}, {sT1}""")
    elif R == 5:
        A(f"""s_bfe_u32 {sT0}, s2, 0x10005
              s_mul_i32 {sT0}, {sT0}, 5""")
    if R:
        A(f"""s_mul_i32 {sT1}, {sT0}, 6554
              s_lshr_b32 {sT1}, {sT1}, 16
              s_mul_i32 {sT1}, {sT1}, 10
              s_sub_u32 {sROT}, {sT0}, {sT1}""")
    else:
        A(f"s_mov_b32 {sROT}, 0")
    vX0, vX1 = 114, 115
    sXO, sXE = "s81", "s7"
    A(f"""v_lshrrev_b32 v26, 3, {vr(vLANE)}
          v_lshrrev_b32 v27, 4, {vr(vLANE)}
          v_and_b32 v38, 7, {vr(vLANE)}
          v_xor_b32 v39, v38, v27
          s_movk_i32 {sT0}, 1280
          s_mul_i32 {sT1}, {sW}, 20480
          v_lshlrev_b32 v39, 4, v39
          v_mad_u32_u24 v{vX0}, v26, {sT0}, v39
          v_add_u32 v{vX0}, {sT1}, v{vX0}
          v_xor_b32 v{vX1}, 64, v{vX0}
          v_add_u32 v{vX1}, {8*1280-1024}, v{vX1}
          s_mul_i32 {sXE}, {sRB}, 81920
          s_lshl_b32 {sXO}, {sROT}, 7
          s_add_u32 {sXO}, {sXO}, {sXE}
          s_add_u32 {sXE}, {sXE}, 1280""")
    A(f"""v_and_b32 v27, 1, v27
          v_lshlrev_b32 v27, 2, v27
          v_xor_b32 v39, v38, v27
          v_lshlrev_b32 v39, 4, v39
          s_movk_i32 {sT0}, 3072
          s_mul_i32 {sT1}, {sW}, 49152
          v_mad_u32_u24 v{vW1[0]}, v26, {sT0}, v39""")
    PR = O.get("prot", 0)
    sPR = "s79"
    if PR:
        tab = sum(((i % 3) << (2 * i)) for i in range(8)) if PR == 1 else sum((((i + 1) % 3) << (2 * i)) for i in range(8))
        A(f"""s_lshr_b32 {sPR}, {sRB}, 1
              s_and_b32 {sPR}, {sPR}, 14
              s_lshr_b32 {sPR}, {tab}, {sPR}
              s_and_b32 {sPR}, {sPR}, 3
              s_lshl_b32 {sPR}, {sPR}, 7
              s_add_u32 {sT1}, {sT1}, {sPR}""")
    A(f"""v_add_u32 v{vW1[0]}, {sT1}, v{vW1[0]}
          v_add_u32 v{vW1[1]}, {8*3072-1024}, v{vW1[0]}
          s_mul_i32 {sT0}, {sCB}, 384
          s_mul_i32 {sJ[0]}, {sROT}, 196608
          s_add_u32 {sJ[0]}, {sJ[0]}, {sT0}""")
    stamp("pre")
    A("s_waitcnt lgkmcnt(0)")
    stamp("karg")

    def slot(b):
        return L_S + 8192 * (b % 10)

    def w1_items(b):
        p, j = divmod(b, 10)
        return [f"s_add_u32 m0, {sW2K}, {slot(b)}",
                (f"buffer_load_dwordx4 v{vW1[2*p]}, {sW1}, {sJ[j]} offen lds", f"w1_{b}"),
                (f"buffer_load_dwordx4 v{vW1[2*p+1]}, {sW1}, {sJ[j]} offen offset:1024 lds", f"w1_{b}")]

    def x_items(j):
        it = [f"s_add_u32 m0, {sW2K}, {8192*j}"]
        if j:
            it = [f"s_add_u32 {sXO}, {sXO}, 128", f"s_cmp_ge_u32 {sXO}, {sXE}", f"s_cselect_b32 m0, 1280, 0",
                  f"s_sub_u32 {sXO}, {sXO}, m0"] + it
        it = ["\n".join(it)]
        it += [(f"buffer_load_dwordx4 v{vX0}, {sQ}, {sXO} offen {NTX} lds", f"w1_{j}"),
               (f"buffer_load_dwordx4 v{vX1}, {sQ}, {sXO} offen offset:1024 {NTX} lds", f"w1_{j}")]
        return it

    def pair(j):
        for it in x_items(j) + w1_items(j):
            put_item(A, it)

    def tile_dma(n, which):
        for s, reg, vo, so in which:
            A(f"s_add_u32 m0, {sW1K}, {reg + 4096*n}")
            A(f"buffer_load_dwordx4 v{vo+n}, {s}, {so} offen {NT} lds", "p0in")
    W2T, KT, VT = (sW2, L_W2, 20, sROWOFF), (sK, L_K, 23, "0"), (sV, L_V, 20, sROWOFF)
    PF = O.get("pairfirst", 0)
    if PF:
        pair(0)
    tile_dma(0, [W2T, KT, VT])
    tile_dma(1, [W2T, KT, VT])
    A(f"s_cmp_ge_u32 {sW}, 3")
    A.begin_opt("s_cbranch_scc1", settle=False)
    tile_dma(2, [KT])
    A.end_opt()
    A(f"s_cmp_ge_u32 {sW}, 2")
    A.begin_opt("s_cbranch_scc1", settle=False)
    tile_dma(2, [W2T, VT])
    A.end_opt()

    stamp("tiles")
    vCT, vI16, vR, vCHL = 28, 29, 30, 31
    A(f"""v_lshrrev_b32 v26, 4, v0
          v_mul_u32_u24 v27, 52, v26
          v_lshrrev_b32 v27, 8, v27
          v_mul_u32_u24 v{vR}, 5, v27
          v_sub_u32 v{vCT}, v26, v{vR}
          v_mul_u32_u24 v{vR}, 24, v27
          v_min_u32 v{vR}, 40, v{vR}
          v_and_b32 v{vI16}, 15, v0
          v_lshl_add_u32 v{vCHL}, v{vCT}, 4, v{vI16}
          v_lshlrev_b32 v26, 3, v{vCHL}
          s_mul_i32 {sT0}, {sCB}, 640""")
    vSH = 168
    A(f"buffer_load_dwordx2 v[{vSH}:{vSH+1}], v26, {sSH}, {sT0} offen", "p0in")
    if not PF:
        pair(0)
    stamp("iss0")

    if PR:
        A(f"""s_cmp_eq_u32 {sPR}, 256
              s_cselect_b32 {sHB[1]}, -2, 1
              s_cmp_eq_u32 {sPR}, 0
              s_cselect_b32 {sHB[2]}, 2, -1
              s_lshl_b32 {sHB[1]}, {sHB[1]}, 7
              s_lshl_b32 {sHB[2]}, {sHB[2]}, 7
              v_add_u32 v{vW1[2]}, {sHB[1]}, v{vW1[0]}
              v_add_u32 v{vW1[3]}, {sHB[1]}, v{vW1[1]}
              v_add_u32 v{vW1[4]}, {sHB[2]}, v{vW1[0]}
              v_add_u32 v{vW1[5]}, {sHB[2]}, v{vW1[1]}""")
    else:
        A(f"""v_add_u32 v{vW1[2]}, 128, v{vW1[0]}
              v_add_u32 v{vW1[3]}, 128, v{vW1[1]}
              v_add_u32 v{vW1[4]}, 256, v{vW1[0]}
              v_add_u32 v{vW1[5]}, 256, v{vW1[1]}""")
    for j in range(1, 10):
        A(f"""s_add_u32 {sJ[j]}, {sJ[j-1]}, 196608
              s_cmp_ge_u32 {sJ[j]}, 1966080
              s_cselect_b32 {sT0}, 1966080, 0
              s_sub_u32 {sJ[j]}, {sJ[j]}, {sT0}""")
    vGW = 130
    vGWA = 154
    A(f"""v_bfe_u32 v52, {vr(vLANE)}, 3, 2
          v_add_u32 v53, {sROT}, v52""")
    for n in range(3):
        A(f"""v_add_u32 v54, {4*n}, v53
              v_subrev_u32 v55, 10, v54
              v_min_u32 v54, v54, v55
              v_lshlrev_b32 v54, 7, v54
              v_lshl_add_u32 v{vGWA+n}, v38, 4, v54""")
        if n == 2:
            A(f"""v_lshrrev_b32 v55, 1, v52
                  v_lshl_add_u32 v{vGWA+n}, v55, 16, v{vGWA+n}""")
    vKA, vBW, vBR, vRA, vRB_ = 158, 159, 160, 161, 162
    A(f"""v_lshrrev_b32 v26, 2, v{vI16}
          v_add_u32 v26, v26, v{vR}
          v_mul_u32_u24 v26, 160, v26
          v_and_b32 v27, 3, v0
          v_lshl_add_u32 v26, v27, 3, v26
          v_lshl_add_u32 v26, v{vCT}, 5, v26
          v_add_u32 v{vKA}, {L_K}, v26
          v_mul_u32_u24 v26, 144, v{vCHL}
          v_lshl_add_u32 v26, v{vR}, 1, v26
          v_add_u32 v{vBW}, {L_BO}, v26
          v_lshrrev_b32 v26, 3, v0
          v_mul_u32_u24 v54, 144, v26
          v_lshl_add_u32 v54, v38, 4, v54
          v_add_u32 v{vBR}, {L_BO}, v54
          v_mul_u32_u24 v54, {TP}, v26
          v_lshl_add_u32 {vr(vT)}, v38, 4, v54""")
    A(f"""v_lshrrev_b32 v26, 5, {vr(vLANE)}
          v_lshlrev_b32 v26, 4, v26
          v_bfe_u32 v54, {vr(vLANE)}, 2, 3
          v_add_u32 v26, v26, v54
          v_mul_u32_u24 v26, 160, v26
          s_and_b32 {sT0}, {sW}, 1
          s_mul_i32 {sT0}, {sT0}, 5120
          s_add_u32 {sT0}, {sT0}, {L_W2}
          s_lshr_b32 {sT1}, {sW}, 1
          s_lshl_b32 {sT1}, {sT1}, 6
          v_add_u32 v26, {sT0}, v26
          v_lshl_add_u32 v{vRB_}, v27, 3, v26
          v_lshl_add_u32 v{vRA}, v27, 4, v26
          v_add_u32 v{vRA}, {sT1}, v{vRA}""")
    A(f"""v_lshrrev_b32 v26, 5, {vr(vLANE)}
          v_lshlrev_b32 v26, 10, v26
          v_bfe_u32 v54, {vr(vLANE)}, 2, 2
          v_lshl_add_u32 v26, v54, 7, v26
          v_bfe_u32 v54, {vr(vLANE)}, 3, 1
          v_lshlrev_b32 v54, 6, v54
          v_xor_b32 v54, {sT1}, v54
          v_add_u32 v26, v26, v54
          v_bfe_u32 v54, {vr(vLANE)}, 4, 1
          v_lshl_add_u32 v26, v54, 5, v26
          v_lshl_add_u32 v26, v27, 3, v26
          v_add_u32 v{vTR[1]}, 65536, v26
          v_add_u32 v{vTR[2]}, 131072, v26""")
    A(f"""v_lshrrev_b32 v26, 5, {vr(vLANE)}
          v_lshlrev_b32 v26, 8, v26
          v_lshl_add_u32 v26, v{vI16}, 4, v26
          v_mul_u32_u24 v54, 49152, v54
          v_add_u32 v{vHS}, v26, v54
          s_mul_i32 {sHB[0]}, {sRB}, 196608
          s_and_b32 {sT0}, {sW}, 1
          s_mul_i32 {sT0}, {sT0}, 98304
          s_add_u32 {sHB[0]}, {sHB[0]}, {sT0}
          s_mul_i32 {sT0}, {sCB}, 6144
          s_add_u32 {sHB[0]}, {sHB[0]}, {sT0}
          s_lshl_b32 {sT1}, {sT1}, 4
          s_add_u32 {sHB[0]}, {sHB[0]}, {sT1}
          s_add_u32 {sHB[0]}, {sHB[0]}, {WS_H}""")
    if PR:
        A(f"""s_lshl_b32 {sPR}, {sPR}, 4
              s_add_u32 {sHB[0]}, {sHB[0]}, {sPR}
              s_lshl_b32 {sHB[1]}, {sHB[1]}, 4
              s_lshl_b32 {sHB[2]}, {sHB[2]}, 4
              s_add_u32 {sHB[1]}, {sHB[0]}, {sHB[1]}
              s_add_u32 {sHB[2]}, {sHB[0]}, {sHB[2]}""")
    else:
        A(f"""s_add_u32 {sHB[1]}, {sHB[0]}, 2048
              s_add_u32 {sHB[2]}, {sHB[0]}, 4096""")
    A(f"""
          s_mul_i32 {sKVO}, {sCB}, {80*TP}
          s_lshl_b32 {sT0}, {sRB}, 7
          s_add_u32 {sKVO}, {sKVO}, {sT0}
          s_mul_i32 {sCH}, {sCB}, 80
          s_sub_u32 {sT0}, {sRB}, 12
          s_min_u32 {sT0}, {sT0}, {sRB}
          s_lshl_b32 {sT0}, {sT0}, 2
          s_add_u32 {sCH}, {sCH}, {sT0}
          s_add_u32 {sCH}, {sCH}, {sW}
          s_sub_u32 {sT0}, {sRB}, 4
          s_cmp_ge_u32 {sT0}, 12
          s_cselect_b32 {sCH}, {sCH}, 0x4000
          s_mov_b32 s62, 0xbfb8aa3b
          s_mov_b32 s63, 0xbfb8aa3b
          s_mov_b32 {sSPIN}, {O["spin"]}""")
    A(f"""v_cmp_gt_u32 vcc, {FLW}, {vr(vLANE)}
          v_mov_b32 v26, 0x7ff00000
          v_lshlrev_b32 v54, 2, {vr(vLANE)}
          v_cndmask_b32 v{vFL}, v26, v54, vcc""")
    vXA = 116
    A(f"""v_and_b32 v26, 31, {vr(vLANE)}
          v_lshlrev_b32 v26, 7, v26
          v_lshrrev_b32 v54, 5, {vr(vLANE)}
          v_lshrrev_b32 v55, 1, v{vI16}
          v_xor_b32 v54, v54, v55
          v_lshl_add_u32 v26, v54, 4, v26
          s_and_b32 {sT0}, {sW}, 1
          s_lshl_b32 {sT0}, {sT0}, 12
          v_add_u32 v{vXA}, {sT0}, v26""")
    for ks in range(1, 4):
        A(f"v_xor_b32 v{vXA+ks}, {ks<<5}, v{vXA}")
    for ks in range(4):
        A(f"v_add_u32 v{vXA+4+ks}, 65536, v{vXA+ks}")
    vQA = 124
    A(f"""v_lshrrev_b32 v26, 4, {vr(vLANE)}
          s_mul_i32 {sT0}, {sCB}, 10
          v_lshlrev_b32 v72, 7, v{vI16}
          v_add_u32 v72, {sW2K}, v72""")
    for n in range(3):
        if n < 2:
            A(f"""s_add_u32 {sT1}, {sT0}, {4*n}
                  v_add_u32 v54, {sT1}, v26""")
        else:
            A(f"""s_add_u32 {sT1}, {sT0}, 8
                  v_lshrrev_b32 v54, 1, v26
                  v_add_u32 v54, {sT1}, v54""")
        A(f"""v_lshrrev_b32 v73, 3, v54
              v_subrev_u32 v73, {sROT}, v73
              v_add_u32 v74, 10, v73
              v_min_u32 v73, v73, v74
              v_and_b32 v54, 7, v54
              v_xor_b32 v54, v54, v55
              v_lshl_add_u32 v54, v54, 4, v72
              v_lshl_add_u32 v{vQA+n}, v73, 13, v54""")
    A(f"""v_and_b32 v26, 1, v26
          v_lshl_add_u32 v{vQA+2}, v26, 3, v{vQA+2}""")
    vGA = 127
    A(f"""s_lshl_b32 {sT0}, {sCB}, 2
          s_add_u32 {sT0}, {sT0}, {sW}
          s_and_b32 {sT1}, {sT0}, 7
          s_lshl_b32 {sT0}, {sT0}, 8
          v_xor_b32 v26, {sT1}, v38
          v_lshlrev_b32 v26, 4, v26
          v_lshrrev_b32 v54, 5, {vr(vLANE)}
          v_lshl_add_u32 v26, v54, 7, v26
          v_add_u32 v26, {sT0}, v26
          v_lshl_add_u32 v{vGA}, v52, 13, v26
          v_and_b32 v54, 1, v52
          v_lshl_add_u32 v26, v54, 13, v26
          v_add_u32 v{vGA+1}, 65536, v26""")
    sWA, sWB = sW2L, sHL
    A(f"""s_mul_i32 {sT0}, {sCB}, 48
          s_lshl_b32 {sT1}, {sRB}, 1
          s_add_u32 {sT0}, {sT0}, {sT1}
          s_and_b32 {sT1}, {sW}, 1
          s_add_u32 {sT0}, {sT0}, {sT1}
          s_mul_i32 {sT0}, {sT0}, 5120
          s_add_u32 {sT0}, {sT0}, {WS_W2P}
          s_cmp_lt_u32 {sRB}, 24
          s_cselect_b32 {sT0}, {sT0}, 0x7f000000
          s_and_b32 {sT1}, {sW}, 2
          s_lshl_b32 {sWA}, {sT1}, 10
          s_add_u32 {sWA}, {sWA}, {sT0}
          s_add_u32 {sWB}, {sT0}, 4096
          s_cmp_eq_u32 {sT1}, 0
          s_cselect_b32 {sWB}, {sWB}, 0x7f000000""")
    stamp("calc")
    NPRE_P = O.get("prepairs", 3)
    for j in range(1, NPRE_P):
        pair(j)
    vG0, vG1 = 170, 171
    A(f"""s_lshl_b32 {sT0}, {sCB}, 8
          s_lshl_b32 {sT1}, {sRB}, 8
          s_add_u32 {sT0}, {sT0}, {WS_COLG}
          s_add_u32 {sT1}, {sT1}, {WS_ROWG}""")
    A(f"buffer_load_dword v{vG0}, off, {sWS}, {sT0} sc1")
    A(f"buffer_load_dword v{vG1}, off, {sWS}, {sT1} sc1")
    stamp("issued")

    A.wait("p0in")
    A("s_barrier")
    stamp("p0in")
    vWT = 172
    vP = 184
    vVV = 198
    vO = 210
    vE = 222
    for m in range(7):
        A(f"ds_read_b64_tr_b16 v[{vP+2*m}:{vP+2*m+1}], v{vKA} offset:{640*m}")
        if m < 6:
            A(f"ds_read_b64_tr_b16 v[{vVV+2*m}:{vVV+2*m+1}], v{vKA} offset:{640*m + L_V - L_K}")
    for i, (va, off) in enumerate(((vRA, 0), (vRA, 8), (vRB_, 128))):
        A(f"ds_read_b64_tr_b16 v[{vWT+4*i}:{vWT+4*i+1}], v{va} offset:{off}")
        A(f"ds_read_b64_tr_b16 v[{vWT+4*i+2}:{vWT+4*i+3}], v{va} offset:{off+1280}")
    vWa, vWb, vWc, vWd, vWe = 163, 164, 165, 166, 167
    A(f"""s_mov_b32 {sT0}, 0xffff
          v_and_b32 v{vWa}, 0xffff, v{vSH}
          v_bfi_b32 v{vWb}, {sT0}, v{vSH+1}, v{vSH}
          v_and_b32 v{vWc}, 0xffff0000, v{vSH+1}
          v_alignbit_b32 v{vWd}, v{vSH}, v{vSH}, 16
          v_alignbit_b32 v{vWe}, v{vSH+1}, v{vSH+1}, 16""")
    w2st = [(f"buffer_store_dwordx4 v[{vWT}:{vWT+3}], {vr(vL16)}, {sWS}, {sWA} offen sc1", "p0out"),
            (f"buffer_store_dwordx4 v[{vWT+4}:{vWT+7}], {vr(vL16)}, {sWS}, {sWA} offen offset:1024 sc1", "p0out"),
            (f"buffer_store_dwordx4 v[{vWT+8}:{vWT+11}], {vr(vL16)}, {sWS}, {sWB} offen sc1", "p0out")]
    NP0_P = O.get("p0pairs", 6)
    mem = []
    for j in range(NPRE_P, NP0_P):
        mem += [x_items(j), w1_items(j)]
    if O.get("w2st_early", 0):
        mem = [[x] for x in w2st] + mem
        w2st = []
    for o in range(13):
        e = vE + 4 * (o & 1) * 2
        if o < 12:
            A(f"""v_dot2_f32_bf16 v{e}, v{vP+o+2}, v{vWa}, 0
                  v_dot2_f32_bf16 v{e+1}, v{vP+o+2}, v{vWd}, 0
                  v_dot2_f32_bf16 v{e}, v{vP+o+1}, v{vWb}, v{e}
                  v_dot2_f32_bf16 v{e+1}, v{vP+o+1}, v{vWe}, v{e+1}
                  v_dot2_f32_bf16 v{e}, v{vP+o}, v{vWc}, v{e}
                  v_lshlrev_b32 v{e+2}, 16, v{vVV+o}
                  v_and_b32 v{e+3}, 0xffff0000, v{vVV+o}""")
        if o > 0:
            e = vE + 4 * ((o - 1) & 1) * 2
            A(f"""v_pk_mul_f32 v[{e}:{e+1}], v[{e}:{e+1}], v[{e+2}:{e+3}]
                  v_cvt_pk_bf16_f32 v{vO+o-1}, v{e}, v{e+1}""")
            if o % 4 == 0:
                i = o // 4 - 1
                A(f"ds_write_b128 v{vBW}, v[{vO+4*i}:{vO+4*i+3}] offset:{16*i}", "bo")
        k = -(-len(mem) // (13 - o))
        if o % 2 == 1 or len(mem) >= 13 - o:
            for _ in range(min(k, len(mem))):
                for it in mem.pop(0):
                    put_item(A, it)
    stamp("p0done")

    def bo_reads():
        for n in range(3):
            A(f"ds_read_b128 v[{vP+4*n}:{vP+4*n+3}], v{vBR} offset:{4608*n}")

    sKA = [sT0, sT1, sT2]
    kvst = [f"s_add_u32 {sT3}, {sKVO}, {WS_KVT}",
            (f"buffer_store_dwordx4 v[{vP}:{vP+3}], {vr(vT)}, {sWS}, {sT3} offen sc1", "p0out"),
            f"s_add_u32 {sT3}, {sKVO}, {WS_KVT + 32*TP}",
            (f"buffer_store_dwordx4 v[{vP+4}:{vP+7}], {vr(vT)}, {sWS}, {sT3} offen sc1", "p0out"),
            f"s_add_u32 {sT3}, {sKVO}, {WS_KVT + 64*TP}\ns_cmp_lt_u32 {sW}, 2\ns_cselect_b32 {sT3}, {sT3}, 0x7f000000",
            (f"buffer_store_dwordx4 v[{vP+8}:{vP+11}], {vr(vT)}, {sWS}, {sT3} offen sc1", "p0out")]

    vGX = 142
    gw_ld = [f"buffer_load_dwordx4 v[{vGW+4*n}:{vGW+4*n+3}], v{vGWA+n}, {sGW}, 0 offen" for n in range(3)]
    qg = [(f"ds_read_b128 v[{vGX}:{vGX+3}], v{vGA}", "xrd"),
          (f"ds_read_b128 v[{vGX+4}:{vGX+7}], v{vGA} offset:32768", "xrd"),
          (f"ds_read_b128 v[{vGX+8}:{vGX+11}], v{vGA+1}", "xrd"),
          (f"ds_read_b128 a[240:243], v{vQA}", "xrd"),
          (f"ds_read_b128 a[244:247], v{vQA+1}", "xrd"),
          (f"ds_read_b64 a[248:249], v{vQA+2}", "xrd")]
    gops = []
    g0, g1, g2 = 154, 155, 156
    for i in range(12):
        gops.append(f"v_dot2_f32_bf16 v{g0}, v{vGX+i}, v{vGW+i}, " + ("0" if i == 0 else f"v{g0}"))
    for m in ("quad_perm:[1,0,3,2]", "quad_perm:[2,3,0,1]", "row_half_mirror", "row_mirror"):
        gops.append(f"v_add_f32_dpp v{g0}, v{g0}, v{g0} {m} row_mask:0xf bank_mask:0xf")
    gops.append(f"v_add_f32_dpp v{g0}, v{g0}, v{g0} row_bcast:15 row_mask:0xa bank_mask:0xf")
    gops += [f"v_mul_f32 v{g0}, s62, v{g0}", f"v_exp_f32 v{g0}, v{g0}", f"v_add_f32 v{g0}, 1.0, v{g0}", f"v_rcp_f32 v{g0}, v{g0}"]
    sG0, sG1 = sXE, sXO
    gops += [f"v_readlane_b32 {sG0}, v{g0}, 31", f"v_readlane_b32 {sG1}, v{g0}, 63"]

    vACC = [16, 32]
    NB = 8
    vFR = 48
    vS = 80
    vHO = 96
    vPO = 104
    vPA = 106
    vZ = 107
    vDD = 108
    vGAD, vHAD, vUAD, vYW = 109, 110, 111, 112

    def fr_reads(n):
        b, ks = divmod(n, 4)
        a = slot(b) + 2048 * ks
        base, off = vTR[a >> 16], a & 0xffff
        f = vFR + 4 * (n % NB)
        r = [f"ds_read_b64_tr_b16 v[{f}:{f+1}], v{base} offset:{off}",
             f"ds_read_b64_tr_b16 v[{f+2}:{f+3}], v{base} offset:{off+512}"]
        if n < 40:
            va, off = (vXA + ks, 8192 * b) if b < 8 else (vXA + 4 + ks, 8192 * (b - 8))
            r.append(f"ds_read_b128 {ar(4*n,4)}, v{va} offset:{off}")
        return r

    GS0 = O.get("gs0", 1)
    starts = list(range(0, 10, GS0)) + list(range(10, 30, GS))
    grp_of = {}
    for gi_, st_ in enumerate(starts):
        en_ = starts[gi_ + 1] if gi_ + 1 < len(starts) else 30
        for b_ in range(st_, en_):
            grp_of[b_] = gi_
    extra_tags = {}

    def group_sync(g):
        def f():
            tags = [f"w1_{b}" for b in range(30) if grp_of[b] == g] + extra_tags.get(g, [])
            if g == grp_of[O["p0flag"]]:
                tags.append("p0out")
            A.wait(*tags)
            A("s_barrier")
            if g == grp_of[O["p0flag"]]:
                A(f"""v_readfirstlane_b32 {sTAGC}, v{vG0}
                      v_readfirstlane_b32 {sTAGR}, v{vG1}
                      s_mul_i32 {sTAGC}, {sTAGC}, 0x2C9277B5
                      s_mul_i32 {sTAGR}, {sTAGR}, 0x2C9277B5
                      s_add_u32 {sTAGC}, {sTAGC}, 0xAC564B05
                      s_add_u32 {sTAGR}, {sTAGR}, 0xAC564B05
                      s_lshl_b32 {sT0}, {sCB}, 12
                      s_lshl_b32 {sT1}, {sRB}, 7
                      s_add_u32 {sT0}, {sT0}, {sT1}
                      s_cmp_eq_u32 {sW}, 0
                      s_cselect_b32 {sT0}, {sT0}, 0x7f000000
                      v_mov_b32 v{vZ}, {sTAGC}""")
                A(f"buffer_store_dword v{vZ}, v{vFL}, {sWS}, {sT0} offen sc1")
        return f

    def silu_ops(p, pk=False):
        ac = vACC[p & 1]
        ops = []
        for h in range(0, 8, 2):
            t0, t1 = vS + 4 * ((h >> 1) & 1), vS + 4 * ((h >> 1) & 1) + 2
            z0, z1 = ac + 2 * h, ac + 2 * h + 2
            if pk:
                ops += [(1, f"v_pk_mul_f32 v[{t0}:{t0+1}], v[{z0}:{z0+1}], {sNL2E}"),
                        (1, f"v_pk_mul_f32 v[{t1}:{t1+1}], v[{z1}:{z1+1}], {sNL2E}")]
            else:
                ops += [(1, f"v_mul_f32 v{t0+i}, s62, v{z0+i}") for i in range(4)]
            ops += [(2, f"v_exp_f32 v{t0+i}, v{t0+i}") for i in range(4)]
            if pk:
                ops += [(1, f"v_pk_add_f32 v[{t0}:{t0+1}], v[{t0}:{t0+1}], 1.0 op_sel_hi:[1,0]"),
                        (1, f"v_pk_add_f32 v[{t1}:{t1+1}], v[{t1}:{t1+1}], 1.0 op_sel_hi:[1,0]")]
            else:
                ops += [(1, f"v_add_f32 v{t0+i}, 1.0, v{t0+i}") for i in range(4)]
            ops += [(2, f"v_rcp_f32 v{t0+i}, v{t0+i}") for i in range(4)]
            if pk:
                ops += [(1, f"v_pk_mul_f32 v[{t0}:{t0+1}], v[{t0}:{t0+1}], v[{z0}:{z0+1}]"),
                        (1, f"v_pk_mul_f32 v[{t1}:{t1+1}], v[{t1}:{t1+1}], v[{z1}:{z1+1}]")]
            else:
                ops += [(1, f"v_mul_f32 v{t0+i}, v{t0+i}, v{z0+i}") for i in range(4)]
            ops += [(1, f"v_cvt_pk_bf16_f32 v{vHO+h}, v{t0}, v{t0+1}"),
                    (1, f"v_cvt_pk_bf16_f32 v{vHO+h+1}, v{t1}, v{t1+1}")]
            if h in (2, 6):
                r = h >> 2
                ops.append((1, (f"buffer_store_dwordx4 v[{vHO+4*r}:{vHO+4*r+3}], v{vHS}, {sWS}, {sHB[p]} offen offset:{512*r} sc1", "hout")))
        return ops

    def w2reg(i):
        return (4 * i + 160) % 240

    def w2_items(i):
        it = []
        if i % 4 == 0 and i:
            it.append(f"s_add_u32 {sW2L}, {sW2L}, 4096")
        it.append(f"buffer_load_dwordx4 {ar(w2reg(i),4)}, {vr(vL16)}, {sWS}, {sW2L} offen offset:{1024*(i%4)} sc1")
        return it

    extra_tags[0] = ["bo"]
    group_sync(0)()
    stamp("g1start")
    bo_reads()
    synced = {0}
    sync_at = {0: -2}
    for n in range(DIST):
        g = grp_of[n // 4]
        if g not in synced:
            A.waitall(vm=False)
            group_sync(g)(); synced.add(g); sync_at[g] = -1
        for r in fr_reads(n):
            A(r)
    anchors = []
    for n in range(120):
        p, k = divmod(n, 40)
        ac = vACC[p & 1]
        f = vFR + 4 * (n % NB)
        grp = [f"v_mfma_f32_32x32x16_bf16 v[{ac}:{ac+15}], v[{f}:{f+3}], {ar(4*k,4)}, " + ("0" if k == 0 else f"v[{ac}:{ac+15}]")]
        m = n + DIST
        if m < 120:
            g = grp_of[m // 4]
            if g not in synced:
                grp.append(group_sync(g)); synced.add(g); sync_at[g] = n
            grp += fr_reads(m)
        if n in (39, 79) and O.get("pstamp", 0):
            grp.append((lambda nm: (lambda: stamp(nm)))(f"pass{n//40}"))
        if f"b{n}" in ONLY:
            grp.append((lambda nm: (lambda: stamp(nm)))(f"b{n}"))
        anchors.append(grp)
    sync_after = lambda n: min(v for v in sync_at.values() if v >= n)
    free_at = lambda b: sync_after(4 * b + 3)
    dma = []
    LA = O.get("la", 40)
    st_list = [[x] for x in w2st] + [kvst[0:2], kvst[2:4], kvst[4:6]]
    SP = O.get("stpace", 0)
    for b in range(NP0_P, 30):
        lat = sync_at[grp_of[b]]
        e = 0 if b < 10 else free_at(b - 10)
        e = max(e, lat - LA)
        its = w1_items(b)
        if b < 10:
            its = x_items(b) + its
            if b >= 8:
                e = max(e, sync_after(0))
        for it in its:
            dma.append(dict(e=e, l=lat, it=it))
        if b == 9:
            for it in gw_ld:
                dma.append(dict(e=e, l=lat, it=it))
        if b + 1 >= O.get("st_at", 6):
            for _ in range(O.get("st_n", 6)):
                if st_list:
                    for it in st_list.pop(0):
                        dma.append(dict(e=e, l=sync_at[grp_of[O["p0flag"]]], it=it))
    if O.get("st_at", 6) <= NP0_P:
        pass
    e_q = sync_at[grp_of[9]]
    qs = [dict(e=e_q, it=x) for x in qg]
    g_free = min(g for g in sync_at if sync_at[g] >= e_q + 8)
    extra_tags[g_free] = ["xrd"]
    for d in qs:
        d["l"] = sync_at[g_free]
    qs += [dict(e=e_q + 3, it=x) for x in gops]
    x_free = max(sync_at[g_free], free_at(9))
    pi = O["poll_i"]

    def ins_at(e, items):
        pos = next((i for i, d in enumerate(dma) if d["e"] > e), len(dma))
        dma[pos:pos] = [dict(e=e, it=x) for x in items]
    pl = [f"v_and_b32 v{vPA}, 31, {vr(vLANE)}", f"v_lshlrev_b32 v{vPA}, 7, v{vPA}", f"s_lshl_b32 {sHL}, {sCB}, 12",
          lambda: poll(vPA, sTAGC, sHL, vPO, check=False)]
    ins_at(pi, pl)
    e_h = max(x_free, O.get('hin_at', 50))
    e_u = x_free
    misc = [f"s_mul_i32 {sT2}, {sW}, {HBP}", f"v_min_u32 v{vGAD}, 23, {vr(vLANE)}",
            f"v_lshlrev_b32 v{vGAD}, 2, v{vGAD}", f"v_mov_b32 v{vZ}, 0", f"v_add_u32 v{vGAD}, {sT2}, v{vGAD}",
            f"v_mov_b32 v{vDD}, 0",
            (f"ds_write_b32 v{vGAD}, v{vZ} offset:{L_HB}", "pad"),
            f"s_add_u32 m0, {sT2}, {L_HB+96}", f"s_lshl_b32 {sT3}, {sCH}, 12"]
    misc += [(f"buffer_load_dwordx4 {vr(vL16)}, {sSK}, {sT3} offen offset:{1024*i} {NT} lds", "hin") for i in range(4)]
    misc += [f"s_lshl_b32 {sT3}, {sCH}, 1", f"buffer_load_short_d16_hi v{vDD}, off, {sD}, {sT3}"]
    misc += [f"v_and_b32 v{vGAD}, 3, {vr(vLANE)}", f"v_lshrrev_b32 v{vHAD}, 4, {vr(vLANE)}",
             f"v_bfe_u32 v{vUAD}, {vr(vLANE)}, 2, 2", f"v_add_u32 v{vYW}, v{vGAD}, v{vHAD}",
             f"v_lshlrev_b32 v{vYW}, 5, v{vYW}", f"v_lshl_add_u32 v{vYW}, v{vUAD}, 3, v{vYW}",
             f"v_sub_u32 v{vGAD}, v{vGAD}, v{vUAD}", f"v_lshlrev_b32 v{vHAD}, 2, v{vHAD}",
             f"v_sub_u32 v{vHAD}, v{vGAD}, v{vHAD}", f"v_add_u32 v{vGAD}, {sT2}, v{vYW}",
             f"s_mul_i32 {sT2}, {sW}, {UBP}", f"s_add_u32 {sT3}, {sT2}, {L_UB+128}",
             f"v_lshlrev_b32 v{vHAD}, 3, v{vHAD}", f"v_add_u32 v{vHAD}, {sT3}, v{vHAD}",
             f"v_lshlrev_b32 v{vYW}, 1, {vr(vLANE)}", f"s_add_u32 {sT3}, {sT2}, {L_UB+32}",
             f"v_add_u32 v{vUAD}, {sT3}, v{vYW}", f"s_mul_i32 {sT3}, {sW}, {YSP}",
             f"s_add_u32 {sT3}, {sT3}, {L_YS+6}", f"v_add_u32 v{vYW}, {sT3}, v{vYW}",
             f"v_add_u32 v113, {sT3}, {vr(vL16)}"]
    ins_at(e_h, misc)
    pc = max(O["poll_c"], e_u, e_h)

    def col_ok():
        poll(vPA, sTAGC, sHL, vPO, issue=False)
        A(f"""s_lshr_b32 {sT0}, {sHL}, 4
              s_add_u32 {sT0}, {sT0}, {WS_COLG}
              s_or_b32 {sT1}, {sRB}, {sW}
              s_cmp_eq_u32 {sT1}, 0
              s_cselect_b32 {sT0}, {sT0}, 0x7f000000
              v_mov_b32 v{vPO}, {sTAGC}""")
        A(f"buffer_store_dword v{vPO}, v{vFL}, {sWS}, {sT0} offen sc1")
    misc2 = [col_ok, f"v_and_b32 v{vPA}, 7, {vr(vLANE)}", f"s_mul_i32 {sT2}, {sW}, {UBP}",
             f"v_lshlrev_b32 v{vPA}, 2, v{vPA}", f"v_add_u32 v{vPA}, {sT2}, v{vPA}",
             (f"ds_write_b32 v{vPA}, v{vZ} offset:{L_UB}", "pad"),
             f"s_add_u32 m0, {sT2}, {L_UB+32}", f"s_mul_i32 {sT3}, {sCH}, {TP}", f"s_add_u32 {sT3}, {sT3}, {WS_KVT}"]
    misc2 += [(f"buffer_load_dwordx4 {vr(vL16)}, {sWS}, {sT3} offen offset:{1024*i} sc1 lds", "uin") for i in range(4)]
    KQ = (lambda d: f"s_add_u32 {d}, {sW}, {sCB}\ns_and_b32 {d}, {d}, 3") if O.get("kqrot", 0) else (lambda d: f"s_mov_b32 {d}, {sW}")
    misc2 += [f"s_mul_i32 {sW2L}, {sCB}, {48*5120}", KQ(sT3), f"s_mul_i32 {sT3}, {sT3}, {12*5120}",
              f"s_add_u32 {sW2L}, {sW2L}, {sT3}", f"s_add_u32 {sW2L}, {sW2L}, {WS_W2P}"]
    if O.get("pfw2", 0):
        misc2 += [f"v_min_u32 v255, 59, {vr(vLANE)}", f"s_lshr_b32 {sT3}, {sRB}, 2", f"v_lshlrev_b32 v255, 7, v255",
                  f"s_mul_i32 {sT3}, {sT3}, 7680", f"s_add_u32 {sT3}, {sT3}, {sW2L}",
                  f"buffer_load_dword v255, v255, {sWS}, {sT3} offen sc1"]
    ins_at(pc, misc2)
    NW2_G1 = O.get("w2g1", 12)
    w2s = max(pc + 2, max(d["e"] for d in dma), O.get("w2start", 0))
    for i in range(NW2_G1):
        for x in w2_items(i):
            e = w2s + (i * O.get("w2p1", 5)) // 2
            if i >= 20:
                e = max(e, 80 + i - 20 + 1)
            dma.append(dict(e=min(e, 119), it=x))
    sil = []
    for p in range(2):
        for c, x in silu_ops(p, O.get("g1pk", 0)):
            sil.append(dict(e=40 * (p + 1) + 2, l=40 * (p + 2), c=c, it=x))
    vG = 114
    vH = 178
    Hreg = lambda b: vH + 2 * (31 - b)

    def wait_in(tag, text):
        def f():
            assert any(text in l for l in A.out), tag
            A.wait(tag, "pad")
        return f
    gh = [dict(e=O.get("g_at", 70), c=0, it=wait_in("hin", misc[-1]))]
    gh += [dict(e=O.get("g_at", 70), it=f"ds_read_b64_tr_b16 v[{vG+2*x}:{vG+2*x+1}], v{vGAD} offset:{L_HB+128*x}") for x in range(32)]
    gh += [dict(e=O.get("h_at", 100), c=0, it=wait_in("uin", "offen offset:3072 sc1 lds"))]
    gh += [dict(e=O.get("h_at", 100), it=f"ds_read_b64_tr_b16 v[{Hreg(n)}:{Hreg(n)+1}], v{vHAD} offset:{128*n}") for n in range(31, -1, -1)]
    vU = [252, 253, 254, 109]
    gh += [dict(e=O.get("h_at", 100), it=f"v_mov_b32 v{r}, 0") for r in (Hreg(-1), Hreg(-1) + 1, vU[0], vU[1], vU[2], vU[3])]
    sHF, sRP, sYP, sYF = "s12", "s13", "s14", "s70"
    sHP = ["s16", "s17", "s18", "s19"]
    vHFD, vL16b, vL16c = 15, 4, 5
    sU = "s15"
    pre2 = [f"s_lshl_b32 {sRP}, {sRB}, 12", f"s_lshl_b32 {sHF}, {sCB}, 9", f"s_add_u32 {sRP}, {sRP}, {WS_ROWH}",
            f"s_add_u32 {sHF}, {sHF}, {sRP}", f"s_lshl_b32 {sU}, {sW}, 7", f"s_add_u32 {sHF}, {sHF}, {sU}",
            f"s_add_u32 {sRP}, {sRP}, {sW1K}",
            f"v_mov_b32 v{vHFD}, {sTAGR}", f"v_writelane_b32 v{vHFD}, {sG0}, 1", f"v_writelane_b32 v{vHFD}, {sG1}, 3",
            f"v_and_b32 v{vPA}, 15, {vr(vLANE)}", f"v_lshrrev_b32 v{vPO}, 1, v{vPA}", f"v_and_b32 v{vPA}, 1, v{vPA}",
            f"v_lshlrev_b32 v{vPA}, 3, v{vPA}", f"v_lshl_add_u32 v{vPA}, v{vPO}, 7, v{vPA}",
            f"v_add_u32 v{vL16b}, 4096, {vr(vL16)}", f"v_add_u32 v{vL16c}, 8192, {vr(vL16)}", f"v_mov_b32 v7, v{vFL}",
            f"v_mov_b32 v{vZ}, {sTAGC}",
            f"s_mul_i32 {sYP}, {sRB}, 196608", f"s_mul_i32 {sU}, {sW}, 12288", f"s_add_u32 {sYP}, {sYP}, {sU}",
            f"s_add_u32 {sYP}, {sYP}, {WS_H}"]
    for ph in range(4):
        pre2 += [f"s_add_u32 {sU}, {sW}, {1+ph}", f"s_and_b32 {sU}, {sU}, 3", f"s_mul_i32 {sU}, {sU}, 49152",
                 f"s_add_u32 {sHP[ph]}, {sU}, {sYP}"]
    sPH, vPH = "s23", 110
    if O.get("pfh", 0):
        pre2 += [f"s_and_b32 {sPH}, {sCB}, 3", f"s_mul_i32 {sPH}, {sPH}, 3072", f"s_add_u32 {sPH}, {sPH}, {sYP}"]
    pre2 += [f"s_lshr_b32 {sYP}, {sRB}, 3", f"s_cmp_eq_u32 {sYP}, 1\ns_cselect_b32 {sYP}, 8, 0", f"s_add_u32 {sYP}, {sYP}, {sCB}",
             f"s_mul_i32 {sYP}, {sYP}, {80*128}", f"s_add_u32 {sYP}, {sYP}, {WS_YF}",
             f"s_lshl_b32 {sU}, {sCH}, 7", f"s_add_u32 {sU}, {sU}, {WS_YF}",
             f"s_cmp_lt_u32 {sCH}, 640\ns_cselect_b32 {sU}, {sU}, 0x7f000000",
             f"s_mul_i32 {sCH}, {sCH}, {TP}", f"s_add_u32 {sCH}, {sCH}, {WS_YT}"]
    sYF = sU
    sRED = ["s20", "s21", "s22"]
    pre2 += [f"s_mul_i32 {sRED[0]}, {sW}, 5120", f"s_add_u32 {sRED[0]}, {sRED[0]}, {L_RED}",
             f"s_xor_b32 {sRED[1]}, {sW}, 2", f"s_mul_i32 {sRED[1]}, {sRED[1]}, 5120", f"s_add_u32 {sRED[1]}, {sRED[1]}, {L_RED}",
             f"s_add_u32 {sRED[2]}, {sW}, 1", f"s_and_b32 {sRED[2]}, {sRED[2]}, 3", f"s_mul_i32 {sRED[2]}, {sRED[2]}, 5120",
             f"s_add_u32 {sRED[2]}, {sRED[2]}, {L_RED + 40960}"]

    def pre2_ok():
        txt = "\n".join(A.out)
        assert "offen offset:3072 sc1 lds" in txt and gops[-1] in txt and w1_items(19)[2][0] in txt
    if O.get("pfh", 0):
        gh += [dict(e=O.get("h_at", 100), it=x) for x in (
            f"v_lshrrev_b32 v{vPH}, 4, {vr(vLANE)}", f"v_and_b32 v8, 15, {vr(vLANE)}", f"v_mul_u32_u24 v{vPH}, 49152, v{vPH}",
            f"v_and_b32 v9, 7, {vr(vLANE)}", f"v_lshl_add_u32 v9, v9, 7, v{vPH}", f"v_lshl_add_u32 v8, v8, 7, v{vPH}")]
    hpos = next(i for i, d in enumerate(gh) if d["e"] == O.get("h_at", 100))
    gh[hpos:hpos] = [dict(e=O.get("pre2_at", 88), c=0, it=pre2_ok)] + [dict(e=O.get("pre2_at", 88), it=x) for x in pre2]
    C1 = [int(x) for x in str(O.get("cap1", "346"))]
    left = weave2(A, anchors, [dma, qs, sil, gh], lambda i: C1[i // 40])
    print("g1 leftovers", [len(x) for x in left])
    drain(A, left)
    stamp("g1end")

    vCV = 255
    vYO = 96
    SETS = [32, 36, 40, 44, 28]
    vZ7 = 0
    CH = [dict(E=[244, 245], R1=[246, 247], R2=[248, 249]), dict(E=[16, 17], R1=[18, 19], R2=[20, 21])]
    vZZ = [250, 251]
    XS, YS = 8, 28
    HQ = [48 + 4 * i for i in range(12)]
    XSET = [vG + 4 * q for q in (15, 14, 13, 12)][:O.get("xsets", 4)]
    for q in range(15, -1, -1):
        HQ += [x for x in (vG + 4 * q, vH + 4 * (15 - q)) if x not in XSET]
    HQ += XSET + [242, 246, 250, 108]
    assert len(HQ) == 48

    def hload(i):
        kk = i % 12
        vo = (vL16, vL16b, vL16c)[kk // 4]
        return f"buffer_load_dwordx4 v[{HQ[i]}:{HQ[i]+3}], v{vo}, {sWS}, {sHP[i//12]} offen offset:{1024*(kk%4)} sc1"

    def h_flag():
        assert sum(f"{sWS}, {sHB[2]} offen offset" in l for l in A.out) in (2, 4)
        stamp("hf0")
        A.wait("hout")
        stamp("hf1")
        A(f"buffer_store_dword v{vHFD}, v7, {sWS}, {sHF} offen sc1")

    vGT = 6

    def row_ok():
        stamp("ro0")
        poll(vPA, sTAGR, sRP, vPO, n=3, issue=False)
        stamp("ro1")
        A(f"v_mov_b32 v{vGT}, v{vPO+1}")
        if O.get("pfh", 0):
            A(f"buffer_load_dword v8, v8, {sWS}, {sPH} offen sc1")
            A(f"buffer_load_dword v9, v9, {sWS}, {sPH} offen offset:2048 sc1")

    order = list(range(31, 23, -1))
    for i in range(8):
        order += [23 - i, 7 - i]
    order += list(range(15, 7, -1))
    NCV = 272
    J = O.get("join", 24)
    first, last = {}, {}
    k = 0
    for n in order:
        first[n] = k
        k += n // 2 + 1
        last[n] = k - 1
    assert k == NCV
    quad_free = {}
    for q in range(16):
        t_ = last[max(2 * q, 8)] + 1
        quad_free[vG + 4 * q] = quad_free[vH + 4 * (15 - q)] = t_

    PACE, HPACE = O.get("w2pace", 5), O.get("hpace", 5)
    T_HF, T_RP, T_RO = O.get("t_hf", 110), O.get("t_rp", 150), O.get("t_ro", 180)
    common = []
    t = O.get("w2t0", 2)
    GAPS = [tuple(int(y) for y in x.split("-")) for x in str(O.get("gaps", "")).split("+") if x]

    def nogap(t):
        for a_, b_ in GAPS:
            if a_ <= t < b_:
                t = b_
        return t
    for i in range(NW2_G1, 60):
        t = nogap(t)
        for x in w2_items(i):
            common.append(dict(e=t, it=x))
        t += PACE

    def cins(e, items, c=1):
        pos = next((i for i, d in enumerate(common) if d["e"] > e), len(common))
        common[pos:pos] = [dict(e=e, it=x, c=c) for x in items]
    cins(T_HF, [h_flag], 2)
    cins(T_RP, [lambda: poll(vPA, sTAGR, sRP, vPO, n=3, check=False)])
    cins(T_RO, [row_ok], 2)
    hl = []
    t = max(T_RO, common[-1]["e"]) + 1
    for i in range(48):
        t = max(t, quad_free.get(HQ[i], 0))
        if i >= 44 - len(XSET):
            t = max(t, NCV + J)
        t = nogap(t)
        hl.append(dict(e=t, l=NCV + 60 * (i // 12) + min(5 * (i % 12), 5 * (12 - O.get("ntm", 4))), it=hload(i)))
        t += HPACE
    while hl and hl[0]["e"] < NCV + J - 1:
        common.append(hl.pop(0))

    NTM = O.get("ntm", 4)

    def g2pos(r):
        if r < 5 * (12 - NTM):
            return divmod(r, 5)
        nt, kk = divmod(r - 5 * (12 - NTM), NTM)
        return kk + 12 - NTM, nt
    g2done = lambda nt: max(r for r in range(60) if g2pos(r)[1] == nt)
    g2need = lambda kk: min(r for r in range(60) if g2pos(r)[0] == kk)

    def g2anchor(a):
        ph, r = divmod(a, 60)
        kk, nt = g2pos(r)
        ac = (XS, YS)[ph & 1] + 4 * nt
        hq = HQ[12 * ph + kk]
        return (f"v_mfma_f32_16x16x32_bf16 v[{ac}:{ac+3}], {ar(w2reg(kk*5+nt),4)}, v[{hq}:{hq+3}], " +
                ("0" if kk == 0 and ph < 2 else f"v[{ac}:{ac+3}]"))

    A(f"s_cmp_lt_u32 {sYF}, 0x7f000000")
    A.settle()
    A("s_cbranch_scc0 Lnoconv")
    import copy
    saved = (copy.deepcopy(A.q), dict(A.pend), A.nid)
    A.nopt += 1
    A.opt = A.nopt
    A._hidden = []
    optid = A.opt

    def as_common(it):
        def f():
            ids0 = A.nid
            put_item(A, it)
            for qn in A.q:
                for e in A.q[qn]:
                    if e["id"] > ids0:
                        e["opt"] = 0
        f.inner = it
        return f

    def y_flag(i):
        assert sum(f"{sWS}, {sCH} offen offset" in l for l in A.out) >= 3 + i
        A.wait(f"yout{i}")
        A(f"buffer_store_dword v{vZ}, v7, {sWS}, {sYF} offen sc1")
        if i == 0:
            A(f"s_add_u32 {sYF}, {sYF}, {640*128}")
        else:
            stamp("yfl")

    anchors = []
    setof, nxt_use = {}, {}
    ring = list(SETS)
    for i, n in enumerate(order):
        if n == O.get("xset_at", 23):
            ring = XSET + ring
        r_ = ring.pop(0)
        ring.append(r_)
        for m in setof:
            if setof[m] == r_ and m not in nxt_use:
                nxt_use[m] = n
        setof[n] = r_
    for n in order:
        ac = setof[n]
        for q in range(n // 2 + 1):
            b = n - 2 * q
            anchors.append([f"v_mfma_f32_16x16x32_bf16 v[{ac}:{ac+3}], v[{vG+4*q}:{vG+4*q+3}], v[{Hreg(b)}:{Hreg(b)+3}], " +
                            ("0" if q == 0 else f"v[{ac}:{ac+3}]")])
        if O.get("pstamp", 0) and n % 4 == 0:
            anchors[-1].append((lambda nm: (lambda: stamp(nm)))(f"t{n}"))
    anchors += [[g2anchor(a)] for a in range(J)]
    if O.get("pstamp", 0):
        for a_ in range(len(anchors)):
            if f"a{a_}" in ONLY:
                anchors[a_].append((lambda nm: (lambda: stamp(nm)))(f"a{a_}"))
    DP = "row_mask:0xf bank_mask:0xf"
    seq = []
    for n in order:
        seq.append(n)
        if n == 15:
            seq.append(-1)
        if n == 8:
            seq.append(107)
    comb = []
    ureg = lambda si: vU[si & 3]

    def uread(si):
        return [f"ds_read_u16_d16_hi v{ureg(si)}, v{vUAD} offset:{128*seq[si]}"] if si < len(seq) and 0 <= seq[si] < 32 else []
    for si in range(4):
        comb.append(dict(e=0, it=uread(si)[0]))
    MD = O.get("mdel", 3)
    late = []
    nrb = [0]
    defer = []
    pos = lambda m: (7 if m == 107 else m) + 1
    for si, n in enumerate(seq):
        real = 0 <= n < 32
        tn = n if real else (0 if n == -1 else 8)
        ch = CH[1] if (n < 8) else CH[0]
        par = (n if real else tn - 1) & 1
        E, R1, R2 = ch["E"][par], ch["R1"][par], ch["R2"][par]
        Ep, R1p, R2p = ch["E"][par ^ 1], ch["R1"][par ^ 1], ch["R2"][par ^ 1]
        Z = vZ7 if n == 7 else vZZ[si & 1]
        e = last[tn if real else seq[si - 1]] + MD
        l = first[nxt_use[n]] if n in nxt_use else 1 << 30
        if ch is CH[1]:
            l = min(l, NCV)
        if si & 1:
            pre, F = [], uread(si + 3) + uread(si + 4)
        else:
            pre, F = defer[:1], defer[1:]
            defer = []
        F1, F2 = F[:1], F[1:]
        if real:
            D = setof[n]
            bc = " bound_ctrl:0" if n == 7 else ""
            rol = [[f"v_add_f32_dpp v{d}, v{s_}, v{D+1+i} wave_rol:1 {DP}"] if n not in (7, 31) else []
                   for i, (d, s_) in enumerate(((R1, Ep), (R2, R1p), (Z, R2p)))]
            shl = [[f"v_add_f32_dpp v{d}, v{s_}, v{D+1+i} wave_shl:1 {DP}{bc}"] for i, (d, s_) in enumerate(((R1, E), (R2, R1), (Z, R2)))]
            fma = [f"v_fma_f32 v{E}, v{ureg(si)}, v{vDD}, v{D}"]
        else:
            zop = (lambda s_, m: f"v_mov_b32_dpp v{Z}, v{s_} {m} {DP}") if n == -1 else (lambda s_, m: f"v_add_f32_dpp v{Z}, v{s_}, v{vZ7} {m} {DP}")
            rol = [[f"v_mov_b32_dpp v{R1}, v{Ep} wave_rol:1 {DP}"], [f"v_mov_b32_dpp v{R2}, v{R1p} wave_rol:1 {DP}"], [zop(R2p, "wave_rol:1")]]
            shl = [[], [f"v_mov_b32_dpp v{R2}, v{R1} wave_shl:1 {DP}"], [zop(R2, "wave_shl:1")]]
            fma = []
        it = rol[0] + pre + fma + rol[1] + rol[2] + shl[0] + F1 + shl[1] + F2 + shl[2]
        if si & 1:
            defer = [f"v_cvt_pk_bf16_f32 v{vCV}, v{vZZ[0]}, v{Z}",
                     f"ds_write_b16 v{vYW}, v{vCV} offset:{128*pos(seq[si-1])}",
                     f"ds_write_b16_d16_hi v{vYW}, v{vCV} offset:{128*pos(n)}"]
            cks = {7: [(3, 0)], -1: [(2, 0), (0, 0)], 107: [(1, 1)]}.get(n, [])
            if cks:
                it += defer
                defer = []
            for ck, fl in cks:
                r_ = {3: vYO, 2: vYO + 4, 0: 22, 1: vYO}[ck]
                it.append(f"ds_read_b128 v[{r_}:{r_+3}], v113 offset:{122+1024*ck}")
                late.append((si + 1 if ck != 3 or not O.get("ydefer", 1) else seq.index(-1) + 1, (f"buffer_store_dwordx4 v[{r_}:{r_+3}], {vr(vL16)}, {sWS}, {sCH} offen offset:{1024*ck} sc1", f"yout{fl}")))
        for x in it:
            comb.append(dict(e=e, l=l, it=x))
        while late and (si + 1 == len(seq) or late[0][0] <= si):
            comb.append(dict(e=e, l=(NCV if si + 1 < len(seq) else 1 << 30), gap=(O.get("ygap", 8) if si + 1 == len(seq) else 0), it=late.pop(0)[1]))
    so = silu_ops(2)
    if O.get("hst2", 1):
        so = [x for x in so if not isinstance(x[1], tuple)] + [x for x in so if isinstance(x[1], tuple)]
    sil2 = [dict(e=O.get("s2t0", 0), l=first[order[4]], c=c, it=as_common(x)) for c, x in so]
    com2 = [dict(d, it=as_common(d["it"])) for d in common]
    FA = O.get("t_fa", NCV + J - 2)
    fa_in = FA < NCV + J
    if fa_in:
        pos = next((i for i, d in enumerate(com2) if d["e"] > FA), len(com2))
        com2.insert(pos, dict(e=FA, it=lambda: y_flag(0), c=2))
    cq = []
    S2C = O.get("s2cap", 4)
    left = weave3(A, anchors, [com2, sil2, comb], lambda i: S2C if cq[1] else 2, expose=cq)
    print("conv leftovers", [len(x) for x in left])
    drain(A, [left[1], left[2], left[0]])
    stamp("cvm")
    A.settle()
    A("s_branch Ljoin")
    for qn in A.q:
        back = [h for h in A._hidden if h[0] == qn]
        A.q[qn] = [h[1] for h in back] + A.q[qn]
        for h in back:
            for r, v in h[2].items():
                A.pend.setdefault(r, v)
    A.opt = 0
    stateA = (A.q, A.pend, A.nid)
    A.label("Lnoconv")
    A.q, A.pend, A.nid = saved[0], saved[1], stateA[2]
    for c, x in silu_ops(2, True):
        put_item(A, x)
    cb_ = [d["it"] for d in common if d["it"] is not h_flag]
    cb_.insert(O.get("nc_hf", 8), h_flag)
    for x in cb_:
        put_item(A, x)
    for a in range(J):
        A(g2anchor(a))
    A.waitall(vm=False)
    stamp("cvm")
    A.settle()
    seqB = [e["text"] for e in A.q["vm"]]
    seqA = [e["text"] for e in stateA[0]["vm"] if e["opt"] == 0]
    assert seqA[-len(seqB):] == seqB, (seqA, seqB)
    nid = A.nid
    A.q, A.pend, A.nid = stateA[0], stateA[1], nid
    A.label("Ljoin")
    stamp("conv")

    vGQ = 48
    vOMG = 68
    vYR = 70
    vTM = 80
    vRW, vR2, vR1, vYA, vYB, vOA, vOB = 100, 101, 102, 87, 88, 89, 90
    anchors = []
    for a in range(J, 240):
        anchors.append([g2anchor(a)])
        if O.get("pstamp", 0) and a % 60 == 59:
            anchors[-1].append((lambda nm: (lambda: stamp(nm)))(f"ph{a//60}"))
    ld = [dict(d, e=d["e"] - NCV - J, l=d.get("l", 1 << 30) - NCV - J) for d in hl]

    def lins(e, items, c=1):
        e -= J
        pos = next((i for i, d in enumerate(ld) if d["e"] > e), len(ld))
        ld[pos:pos] = [dict(e=e, it=x, c=c) for x in items]
    if not fa_in:
        lins(FA - NCV, [lambda: y_flag(0)], 2)
    lins(O.get("t_fb", 70), [lambda: y_flag(1)], 2)
    y_issue = [f"v_min_u32 v{vPA}, 23, {vr(vLANE)}", f"v_lshrrev_b32 v{vPO}, 3, v{vPA}", f"v_mul_u32_u24 v{vPO}, 24, v{vPO}",
               f"v_add_u32 v{vPA}, v{vPA}, v{vPO}", f"v_lshl_add_u32 v{vPA}, v{vPA}, 7, {sW1K}",
               f"v_min_u32 v{vPA}, {79*128}, v{vPA}"]

    def y_chk():
        stamp("ychk")
        poll(vPA, sTAGC, sYP, vPO, issue=False)
        stamp("ypass")
    y_dma = [f"s_add_u32 {sT1}, {sKVO}, {WS_YT}\ns_add_u32 m0, {sW1K}, {L_YT}",
             (f"buffer_load_dwordx4 {vr(vT)}, {sWS}, {sT1} offen sc1 lds", "yin"),
             f"s_add_u32 {sT1}, {sKVO}, {WS_YT + 32*TP}\ns_add_u32 m0, {sW1K}, {L_YT+4096}",
             (f"buffer_load_dwordx4 {vr(vT)}, {sWS}, {sT1} offen sc1 lds", "yin"),
             f"s_add_u32 {sT1}, {sKVO}, {WS_YT + 64*TP}\ns_cmp_lt_u32 {sW}, 2\ns_cselect_b32 {sT1}, {sT1}, 0x7f000000\ns_add_u32 m0, {sW1K}, {L_YT+8192}",
             (f"buffer_load_dwordx4 {vr(vT)}, {sWS}, {sT1} offen sc1 lds", "yin")]
    TI, TC = O.get("ypoll_i", 90), O.get("ypoll_c", 130)
    lins(TI - 10, y_issue)
    lins(TI, [lambda: poll(vPA, sTAGC, sYP, vPO, check=False)])
    lins(TC, [y_chk] + y_dma)

    red = []

    def rput(e, items, l=1 << 30, c=1):
        for x in items:
            red.append(dict(e=e - J, l=l - J, c=c, it=x))

    def sync(nm, tags):
        def f():
            A.wait(*tags)
            A("s_barrier")
            stamp(nm)
        return f
    BD = O.get("bdel", 12)
    wr = []

    def wput(ph, S_, l):
        for nt in range(5):
            wr.append(dict(e=60 * ph + g2done(nt) + 3 - J, l=l - J, c=1, gap=O.get("wgap", 4) if nt else 0,
                           it=(f"ds_write_b128 v{vRW}, v[{S_+4*nt}:{S_+4*nt+3}] offset:{20480*ph+1024*nt}", "red")))

    def wsync(nm, n, tags):
        def f():
            assert O.get("skip") or sum("ds_write_b128 v%d," % vRW in l for l in A.out) == n, nm
            sync(nm, tags)()
        return f
    wr += [dict(e=0, it=x) for x in (f"v_add_u32 v{vRW}, {sRED[0]}, {vr(vL16)}", f"v_add_u32 v{vR2}, {sRED[1]}, {vr(vL16)}",
                                     f"v_add_u32 v{vR1}, {sRED[2]}, {vr(vL16)}")]
    wput(0, XS, 60 + BD)
    wput(1, YS, 120 + BD)
    wput(2, XS, O.get("sync2", 192))
    rput(60 + BD, [wsync("sync0", 5, ["red"])], 120, 2)
    rput(60 + BD, [f"ds_read_b128 v[{XS+4*nt}:{XS+4*nt+3}], v{vR2} offset:{1024*nt}" for nt in range(5)], 120)
    rput(O.get("t_gen", 60 + BD), [f"s_lshl_b32 {sT2}, {sRB}, 8", f"s_add_u32 {sT2}, {sT2}, {WS_ROWG}",
                   f"s_or_b32 {sT3}, {sCB}, {sW}\ns_cmp_eq_u32 {sT3}, 0\ns_cselect_b32 {sT2}, {sT2}, 0x7f000000",
                   f"v_mov_b32 v{vTM}, {sTAGR}", f"buffer_store_dword v{vTM}, v7, {sWS}, {sT2} offen sc1"])
    its = [f"v_sub_f32 v{vOMG}, 1.0, v{vGT}"]
    for i in range(10):
        t0 = vTM + 1 + (i & 1)
        its += [f"v_accvgpr_read_b32 v{t0}, a{240+i}", f"v_lshlrev_b32 v{vGQ+2*i}, 16, v{t0}",
                f"v_and_b32 v{vGQ+2*i+1}, 0xffff0000, v{t0}",
                f"v_mul_f32 v{vGQ+2*i}, v{vGQ+2*i}, v{vGT}", f"v_mul_f32 v{vGQ+2*i+1}, v{vGQ+2*i+1}, v{vGT}"]
    rput(60 + BD, its)
    rput(120 + BD, [wsync("sync1", 10, ["red"])], 180, 2)
    rput(120 + BD, [f"ds_read_b128 v[{YS+4*nt}:{YS+4*nt+3}], v{vR2} offset:{20480+1024*nt}" for nt in range(5)], 180)
    a_, b_, c_ = vTM + 1, vTM + 2, vTM + 3
    rput(120 + BD, [f"v_lshrrev_b32 v{a_}, 4, {vr(vLANE)}", f"v_bfe_u32 v{b_}, {vr(vLANE)}, 2, 2",
                    f"v_and_b32 v{c_}, 3, {vr(vLANE)}", f"v_lshlrev_b32 v{b_}, 7, v{b_}",
                    f"v_lshl_add_u32 v{b_}, v{c_}, 3, v{b_}", f"s_lshl_b32 {sT3}, {sW}, 5",
                    f"s_add_u32 {sT3}, {sT3}, {L_YT}", f"v_add_u32 v{b_}, {sT3}, v{b_}",
                    f"v_lshl_add_u32 v{vYA}, v{a_}, 10, v{b_}", f"v_lshl_add_u32 v{vYB}, v{a_}, 9, v{b_}",
                    f"v_and_b32 v{c_}, 15, {vr(vLANE)}", f"v_mul_u32_u24 v{c_}, 1280, v{c_}",
                    f"v_lshl_add_u32 v{vOA}, v{a_}, 4, v{c_}", f"v_lshl_add_u32 v{vOB}, v{a_}, 3, v{c_}",
                    f"s_mul_i32 {sT3}, {sW}, 20480", f"s_add_u32 {sROWOFF}, {sROWOFF}, {sT3}"])
    e = O.get("sync2", 192)
    e3 = O.get("sync3", 212)

    def sync3():
        assert not ldq[1], "y loads must be out"
        wsync("sync3", 15, ["red", "yin"])()
    yrd = [f"ds_read_b64_tr_b16 v[{vYR+2*nt}:{vYR+2*nt+1}], v{va} offset:{off}"
           for nt, (va, off) in enumerate(((vYA, 0), (vYA, 512), (vYA, 4096), (vYA, 4608), (vYB, 8192)))]
    xrd = [f"ds_read_b128 v[{XS+4*nt}:{XS+4*nt+3}], v{vR1} offset:{1024*nt}" for nt in range(5)]
    if e3 > e:
        rput(e, [wsync("sync2", 15, ["red"])], c=2)
        rput(e, xrd)
        rput(e + 8, [f"v_mul_f32 v{XS+i}, v{XS+i}, v{vOMG}" for i in range(20)])
        rput(e3, [sync3], c=2)
        rput(e3, yrd)
    else:
        rput(e, [sync3], c=2)
        rput(e, xrd + yrd)
        rput(e + 8, [f"v_mul_f32 v{XS+i}, v{XS+i}, v{vOMG}" for i in range(20)])
    for i in range(10):
        t0 = vTM + 2 * (i & 1)
        g = vGQ + 2 * i
        rput(e3 + 7, [f"v_lshlrev_b32 v{t0}, 16, v{vYR+i}", f"v_and_b32 v{t0+1}, 0xffff0000, v{vYR+i}",
                      f"v_fma_f32 v{g}, v{g}, v{t0}, v{XS+2*i}", f"v_fma_f32 v{g+1}, v{g+1}, v{t0+1}, v{XS+2*i+1}"])
    fin = []
    for i in range(10):
        g, a = vGQ + 2 * i, YS + 2 * i
        if i < O.get("finw", 8):
            x = [f"v_fmac_f32 v{g}, v{a}, v{vOMG}", f"v_fmac_f32 v{g+1}, v{a+1}, v{vOMG}"]
        else:
            x = [f"v_pk_fma_f32 v[{g}:{g+1}], v[{a}:{a+1}], v[{vOMG}:{vOMG+1}], v[{g}:{g+1}] op_sel_hi:[1,0,1]"]
        x.append(f"v_cvt_pk_bf16_f32 v{vYR+i}, v{g}, v{g+1}")
        if i == 3:
            x.append(f"buffer_store_dwordx4 v[{vYR}:{vYR+3}], v{vOA}, {sOUT}, {sROWOFF} offen {OF}")
        if i == 7:
            x.append(f"buffer_store_dwordx4 v[{vYR+4}:{vYR+7}], v{vOA}, {sOUT}, {sROWOFF} offen offset:64 {OF}")
        if i == 9:
            x.append(f"buffer_store_dwordx2 v[{vYR+8}:{vYR+9}], v{vOB}, {sOUT}, {sROWOFF} offen offset:128 {OF}")
        rput(180 + g2done(i // 2) + 3, x)
    ldq = []
    left = weave3(A, anchors, [wr, ld, red], 2, expose=ldq)
    print("g2 leftovers", [len(x) for x in left])
    drain(A, left)
    if O["stamps"]:
        A.waitall()
        stamp("end")
        A("s_memrealtime s[52:53]")
        A("s_waitcnt lgkmcnt(0)")
        A("v_mov_b32 v8, 0")
        for k in range(nst[0]):
            A(f"v_writelane_b32 v8, s{STR[k]}, {k}")
        A(f"s_sub_u32 s54, {sRB}, 4")
        A(f"s_cmp_ge_u32 s54, 12")
        A(f"s_cselect_b32 s54, 3, 2")
        A(f"s_lshl_b32 s54, s54, 8")
        A(f"s_or_b32 s54, s54, {sRB}")
        A(f"v_writelane_b32 v8, s54, 12")
        A("v_writelane_b32 v8, s100, 13")
        A("v_writelane_b32 v8, s52, 14")
        A(f"v_writelane_b32 v8, {sSPIN}, 15")
        A.raw("; STAMPS " + " ".join(names))
        A(f"""s_lshl_b32 s54, s2, 2
              s_add_u32 s54, s54, {sW}
              s_lshl_b32 s54, s54, 6
              s_add_u32 s54, s54, {WS_DBG}
              v_lshlrev_b32 v9, 2, {vr(vLANE)}
              v_cmp_gt_u32 vcc, 16, {vr(vLANE)}
              v_mov_b32 v10, 0x7ff00000
              v_cndmask_b32 v9, v10, v9, vcc""")
        A(f"buffer_store_dword v8, v9, {sWS}, s54 offen")
    if O.get("dbg", 0):
        A("s_load_dwordx2 s[8:9], s[0:1], 88")
        A("s_mov_b32 s10, 256")
        A("s_mov_b32 s11, 0x20000")
        A("s_getreg_b32 s55, hwreg(HW_REG_XCC_ID)")
        A("s_waitcnt lgkmcnt(0)")
        A("s_not_b32 s100, s100")
        A("v_mov_b32 v10, s100")
        A("v_mov_b32 v11, s52")
        A("v_mov_b32 v12, 0")
        A("s_mov_b64 exec, 1")
        A("buffer_atomic_umax v10, v12, s[8:11], 0 offen sc1")
        A("buffer_atomic_umax v11, v12, s[8:11], 0 offen offset:4 sc1")
        for k in range(1, nst[0]):
            A(f"s_sub_u32 s54, s{STR[k]}, s{STR[0]}")
            A(f"v_mov_b32 v{12+k}, s54")
            A(f"buffer_atomic_umax v{12+k}, v12, s[8:11], 0 offen offset:{4+4*k} sc1")
        A("s_and_b32 s55, s55, 15")
        A("s_lshl_b32 s54, s2, 2")
        A("s_lshl_b32 s53, s55, s54")
        A("s_cmp_lt_u32 s2, 8")
        A("s_cselect_b32 s53, s53, 0")
        A("v_mov_b32 v30, s53")
        A("buffer_atomic_or v30, v12, s[8:11], 0 offen offset:56 sc1")
        A("s_lshr_b32 s54, s2, 1")
        A("s_lshl_b32 s53, s55, s54")
        A("s_and_b32 s54, s2, 0xc7")
        A("s_cmp_eq_u32 s54, 0")
        A("s_cselect_b32 s53, s53, 0")
        A("v_mov_b32 v31, s53")
        A("buffer_atomic_or v31, v12, s[8:11], 0 offen offset:60 sc1")
    if O.get("padto", 0):
        A.waitall()
        A.label("Lpad")
        A.raw("  s_memrealtime s[52:53]")
        A.raw("  s_waitcnt lgkmcnt(0)")
        A.raw("  s_sub_u32 s52, s52, s100")
        A.raw(f"  s_cmp_lt_u32 s52, {O['padto']}")
        A.raw("  s_cbranch_scc1 Lpad")
    A.label("Lend")
    A("s_endpgm")

    head = f"""; Fused gated mix: one persistent launch, 256 workgroups (32 row blocks x 8 column blocks).
; Generated by a script (address maps, interleaving and wait counts are computed there).
; @launch grid=(256,1,1) block=(256,1,1) lds={LDS}
.amdgcn_target "amdgcn-amd-amdhsa--gfx950"
.text
.globl {KN}_kernel
.p2align {O.get("al", 8)}
.type {KN}_kernel,@function
{KN}_kernel:
"""
    tail = f"""
.section .rodata,"a"
.p2align 6
.amdhsa_kernel {KN}_kernel
  .amdhsa_next_free_vgpr 512
  .amdhsa_next_free_sgpr 102
  .amdhsa_accum_offset 256
  .amdhsa_group_segment_fixed_size 0
  .amdhsa_kernarg_size 104
  .amdhsa_user_sgpr_count 2
  .amdhsa_user_sgpr_kernarg_segment_ptr 1
  .amdhsa_system_sgpr_workgroup_id_x 1
.end_amdhsa_kernel
"""
    txt = head + A.text() + tail
    if O.get("touch", ""):
        import padlib
        txt = padlib.add_pads(txt, sW, O.get("tstep", 4096), [x for x in O.get("textra", "Lnoconv+Ljoin").split("+") if x])
    return txt, A.stats


if __name__ == "__main__":
    out = sys.argv[1]
    kw = {}
    for a in sys.argv[2:]:
        k, v = a.split("=")
        kw[k] = int(v) if v.lstrip("-").isdigit() else v
    s, st = gen(**kw)
    open(out, "w").write(s)
    print(out, st)
```

```python
import sys, os
sys.path.insert(0, os.path.dirname(os.path.abspath(__file__)))
from asmlib import *

KN = "gated_mix__ssm_conv_h3__dense_activation_silu__prompt"

DEF = dict(stamps=0, mapping="B", rot=0, gs=2, dist=5, p0flag=8, poll_i=60, poll_c=76, w2pace=5,
           spin=200000, early_w1=6)


def gen(**kw):
    O = dict(DEF)
    O.update(kw)
    A = Asm()
    GS, DIST = O["gs"], O["dist"]
    NT = "nt" if O.get("nt", 0) else ""
    NTX = "nt" if O.get("ntx", 0) else ""
    OF = O.get("of", "").replace("+", " ")

    WS_COLP0, WS_COLG, WS_ROWG, WS_ROWH, WS_YF = 0x0000, 0x8000, 0xA000, 0x40000, 0x60000
    FLW = O.get("flw", 32)
    WS_DBG = 0x20000
    WS_KVT, WS_YT, WS_W2P, WS_H = 0x100000, 0x400000, 0x700000, 0x900000
    WS_SIZE = 0x1000000
    TP = 4224
    L_S = 81920
    L_K, L_V, L_W2 = 131072, 142336, 152576
    L_BO = 65536
    CBS = O.get("cbs", 0)
    SHR = O.get("shr", 1)
    HBP, YSP = 4224, 4352
    L_HB = 8192 * CBS
    L_UB = L_HB if SHR else L_HB + 4 * HBP
    L_YS = L_UB + 4 * HBP
    L_RED = O.get("lred", -(-(L_YS + 4 * YSP) // 1024) * 1024)
    assert L_RED + 61440 <= 163840
    LDS = 163840
    sQ, sK, sV, sSH, sSK, sD, sW1, sW2, sGW, sOUT, sWS = [f"s[{8+4*i}:{11+4*i}]" for i in range(11)]
    srd = lambda n: int(n[2:].split(":")[0])
    sW, sRB, sCB, sROT = "s3", "s4", "s5", "s6"
    sT0, sT1, sT2, sT3 = "s52", "s53", "s54", "s55"
    sROWOFF = "s56"
    sW1K = "s57"
    sW2K = "s58"
    sTAGC, sTAGR = "s59", "s60"
    sCH = "s61"
    sNL2E = "s[62:63]"
    sJ = [f"s{64+i}" for i in range(10)]
    sHB = ["s74", "s75", "s76"]
    sKVO = "s77"
    sW2L = "s37"
    sSPIN = "s79"
    sHL = "s38"
    sSTAMP = 82

    nst = [0]
    names = []
    STR = [82, 84, 86, 88, 90, 92, 94, 96, 98, 64, 66, 68]
    SKIPST = O.get('nostamp', 'iss0+pre+karg+tiles').split('+')
    ONLY = [x for x in O.get('only', '').split('+') if x]
    if ONLY:
        ONLY += ["start", "end"]
        SKIPST = []

    def stamp(name):
        if O.get("touch", "") == name:
            A.settle()
            A.raw("; @TOUCH")
        if O.get("skfrom", "") == name:
            A.skip = O["skip"]
        if O.get("skto", "") == name:
            A.skip = None
        if O.get("padat", "") == name:
            A("s_memrealtime s[100:101]")
        if O["stamps"] and name in names:
            r = STR[names.index(name)]
            A(f"s_memtime s[{r}:{r+1}]")
        elif O["stamps"] and name not in SKIPST and (not ONLY or name in ONLY):
            r = STR[nst[0]]
            A(f"s_memtime s[{r}:{r+1}]")
            nst[0] += 1
            names.append(name)

    def vr(a, n=1):
        return f"v{a}" if n == 1 else f"v[{a}:{a+n-1}]"

    def ar(a, n=1):
        return f"a{a}" if n == 1 else f"a[{a}:{a+n-1}]"

    vTID, vLANE, vL16, vT = 0, 1, 2, 3
    vW1 = [6, 14]
    vTR = [10, 11, 12]
    vHS = 13
    vFL = 7
    vL16b, vL16c, vPR, vPC, vPAD = 4, 5, 8, 9, 0

    def poll(voff, tag, soff, vres=None, n=1, issue=True, check=True):
        ld = (f"buffer_load_dword {vr(vres)}, {vr(voff)}, {sWS}, {soff} offen sc1" if n == 1 else
              f"buffer_load_dwordx2 {vr(vres,2)}, {vr(voff)}, {sWS}, {soff} offen sc1")
        if issue:
            A(ld)
        if check:
            lo, dn = A.newlabel("Lpoll"), A.newlabel("Lgot")

            def cmp():
                A(f"v_cmp_ne_u32 vcc, {tag}, {vr(vres)}")
                if n == 2:
                    A(f"v_cmp_ne_u32 s[52:53], {tag}, {vr(vres+1)}")
                    A("s_or_b64 vcc, vcc, s[52:53]")
            cmp()
            A(f"s_cbranch_vccz {dn}" if n != 2 else f"s_cbranch_scc0 {dn}")
            A.label(lo)
            A.raw(f"  s_sleep {O.get('psleep', 1)}")
            A.raw("  " + ld)
            A.raw("  s_waitcnt vmcnt(0)")
            A.raw(f"  s_sub_u32 {sSPIN}, {sSPIN}, 1")
            A.raw(f"  s_cbranch_scc1 Lend")
            A.raw(f"  v_cmp_ne_u32 vcc, {tag}, {vr(vres)}")
            if n == 2:
                A.raw(f"  v_cmp_ne_u32 s[52:53], {tag}, {vr(vres+1)}")
                A.raw("  s_or_b64 vcc, vcc, s[52:53]")
            A.raw(f"  s_cbranch_vccnz {lo}" if n != 2 else f"  s_cbranch_scc1 {lo}")
            A.label(dn)

    A("s_cmp_ge_u32 s2, 256")
    A("s_cbranch_scc1 Lend")
    for s, off in ((sW2, 64), (sK, 8), (sV, 16), (sQ, 0), (sW1, 56), (sWS, 96), (sSH, 24), (sGW, 72), (sSK, 32),
                   (sD, 40), (sOUT, 80)):
        A(f"s_load_dwordx2 s[{srd(s)}:{srd(s)+1}], s[0:1], {off}")
    if O["stamps"] or O.get("padto", 0):
        A("s_memrealtime s[100:101]")
    stamp("start")
    A(f"v_lshrrev_b32 v20, 6, v0")
    A(f"v_and_b32 {vr(vLANE)}, 63, v0")
    A(f"v_readfirstlane_b32 {sW}, v20")
    if O["mapping"] == "A":
        A(f"""s_lshr_b32 {sT0}, s2, 3
              s_and_b32 {sCB}, {sT0}, 7
              s_lshr_b32 {sT0}, {sT0}, 3
              s_and_b32 {sRB}, s2, 7
              s_lshl_b32 {sRB}, {sRB}, 2
              s_add_u32 {sRB}, {sRB}, {sT0}""")
    else:
        A(f"""s_lshr_b32 {sT0}, s2, 3
              s_and_b32 {sCB}, {sT0}, 3
              s_and_b32 {sT1}, s2, 1
              s_lshl_b32 {sT1}, {sT1}, 2
              s_add_u32 {sCB}, {sCB}, {sT1}
              s_bfe_u32 {sRB}, s2, 0x20001""")
        if O.get("rbint", 1):
            if O.get("rbo", 0):
                A(f"s_add_u32 {sT0}, {sT0}, {O['rbo']}")
            A(f"""s_and_b32 {sT0}, {sT0}, 28
                  s_add_u32 {sRB}, {sRB}, {sT0}""")
        else:
            A(f"""s_lshr_b32 {sT0}, {sT0}, 2
                  s_lshl_b32 {sRB}, {sRB}, 3
                  s_add_u32 {sRB}, {sRB}, {sT0}""")
    for s, size in ((sQ, 2621440), (sK, 2621440), (sV, 2621440), (sSH, 5120), (sSK, 2621440), (sD, 1280),
                    (sW1, 1966080), (sW2, 1966080), (sGW, 1280), (sOUT, 2621440), (sWS, WS_SIZE)):
        A(f"s_mov_b32 s{srd(s)+2}, {size}")
        A(f"s_mov_b32 s{srd(s)+3}, 0x20000")
    A(f"""s_mul_i32 {sROWOFF}, {sRB}, 81920
          s_mul_i32 {sT0}, {sCB}, 160
          s_add_u32 {sROWOFF}, {sROWOFF}, {sT0}
          s_lshl_b32 {sW1K}, {sW}, 10
          s_lshl_b32 {sW2K}, {sW}, 11
          s_movk_i32 {sT1}, 6554
          s_movk_i32 {sT2}, 1120
          s_sub_u32 {sT3}, {sROWOFF}, 5120""")
    for n in range(3):
        A(f"v_add_u32 v26, {256*n}, v0") if n else A("v_mov_b32 v26, v0")
        A(f"""v_mul_u32_u24 v27, {sT1}, v26
              v_lshrrev_b32 v27, 16, v27
              v_lshlrev_b32 v26, 4, v26
              v_mad_u32_u24 v{20+n}, v27, {sT2}, v26
              v_add_u32 v{23+n}, {sT3}, v{20+n}""")
    A(f"v_lshlrev_b32 {vr(vL16)}, 4, {vr(vLANE)}")
    R = O["rot"]
    if R == 1:
        A(f"""s_mul_i32 {sT0}, {sRB}, 3
              s_add_u32 {sT0}, {sT0}, {sCB}""")
    elif R == 2:
        A(f"s_lshr_b32 {sT0}, s2, 5")
    elif R == 3:
        A(f"s_and_b32 {sT0}, s2, 7")
    elif R == 4:
        A(f"""s_lshr_b32 {sT0}, s2, 5
              s_and_b32 {sT1}, s2, 7
              s_add_u32 {sT0}, {sT0}, {sT1}""")
    elif R == 5:
        A(f"""s_bfe_u32 {sT0}, s2, 0x10005
              s_mul_i32 {sT0}, {sT0}, 5""")
    elif R >= 6:
        A(f"""s_mul_i32 {sT0}, {sRB}, {O.get("ra", 3)}
              s_mul_i32 {sT1}, {sCB}, {O.get("rc", 5)}
              s_add_u32 {sT1}, {sT1}, 1
              s_lshr_b32 {sT1}, {sT1}, 1
              s_lshr_b32 {sT0}, {sT0}, {O.get("rs", 0)}
              s_add_u32 {sT0}, {sT0}, {sT1}""")
    if R:
        A(f"""s_mul_i32 {sT1}, {sT0}, 6554
              s_lshr_b32 {sT1}, {sT1}, 16
              s_mul_i32 {sT1}, {sT1}, 10
              s_sub_u32 {sROT}, {sT0}, {sT1}""")
    else:
        A(f"s_mov_b32 {sROT}, 0")
    vX0, vX1 = 114, 115
    sXO, sXE = "s81", "s7"
    A(f"""v_lshrrev_b32 v26, 3, {vr(vLANE)}
          v_lshrrev_b32 v27, 4, {vr(vLANE)}
          v_and_b32 v38, 7, {vr(vLANE)}
          v_xor_b32 v39, v38, v27
          s_movk_i32 {sT0}, 1280
          s_mul_i32 {sT1}, {sW}, 20480
          v_lshlrev_b32 v39, 4, v39
          v_mad_u32_u24 v{vX0}, v26, {sT0}, v39
          v_add_u32 v{vX0}, {sT1}, v{vX0}
          v_xor_b32 v{vX1}, 64, v{vX0}
          v_add_u32 v{vX1}, {8*1280-1024}, v{vX1}
          s_mul_i32 {sXE}, {sRB}, 81920
          s_lshl_b32 {sXO}, {sROT}, 7
          s_add_u32 {sXO}, {sXO}, {sXE}
          s_add_u32 {sXE}, {sXE}, 1280""")
    A(f"""v_and_b32 v27, 1, v27
          v_lshlrev_b32 v27, 2, v27
          v_xor_b32 v39, v38, v27
          v_lshlrev_b32 v39, 4, v39
          s_movk_i32 {sT0}, 3072
          s_mul_i32 {sT1}, {sW}, 49152
          v_mad_u32_u24 v{vW1[0]}, v26, {sT0}, v39""")
    A(f"""v_add_u32 v{vW1[0]}, {sT1}, v{vW1[0]}
          v_add_u32 v{vW1[1]}, {8*3072-1024}, v{vW1[0]}
          s_mul_i32 {sT0}, {sCB}, 384
          s_mul_i32 {sJ[0]}, {sROT}, 196608
          s_add_u32 {sJ[0]}, {sJ[0]}, {sT0}""")
    stamp("pre")
    A("s_waitcnt lgkmcnt(0)")
    stamp("karg")

    NCB = -(-(L_YS + 4 * YSP - L_HB) // 8192)
    wslot = {b: 10 + b for b in range(10)}
    wdep = {}
    fq = []
    for j in range(10):
        fq += [(10 + j, j)] + ([(j, j)] if not (CBS <= j < CBS + NCB) and j >= O.get("xs0", 0) else [])
    for b in range(10, 30):
        wslot[b], wdep[b] = fq.pop(0)
        fq.append((wslot[b], b))

    def slot(b):
        return 8192 * wslot[b]

    def w1_items(b):
        p, j = divmod(b, 10)
        assert slot(b) >= 128 * p
        return [f"s_add_u32 m0, {sW2K}, {slot(b) - 128 * p}",
                (f"buffer_load_dwordx4 v{vW1[0]}, {sW1}, {sJ[j]} offen offset:{128*p} lds", f"w1_{b}"),
                (f"buffer_load_dwordx4 v{vW1[1]}, {sW1}, {sJ[j]} offen offset:{1024+128*p} lds", f"w1_{b}")]

    def x_items(j):
        it = [f"s_add_u32 m0, {sW2K}, {8192*j}"]
        if j:
            it = [f"s_add_u32 {sXO}, {sXO}, 128", f"s_cmp_ge_u32 {sXO}, {sXE}", f"s_cselect_b32 m0, 1280, 0",
                  f"s_sub_u32 {sXO}, {sXO}, m0"] + it
        it = ["\n".join(it)]
        it += [(f"buffer_load_dwordx4 v{vX0}, {sQ}, {sXO} offen {NTX} lds", f"w1_{j}"),
               (f"buffer_load_dwordx4 v{vX1}, {sQ}, {sXO} offen offset:1024 {NTX} lds", f"w1_{j}")]
        return it

    def pair(j):
        for it in x_items(j) + w1_items(j):
            put_item(A, it)

    def tile_dma(n, which):
        for s, reg, vo, so in which:
            A(f"s_add_u32 m0, {sW1K}, {reg + 4096*n}")
            A(f"buffer_load_dwordx4 v{vo+n}, {s}, {so} offen {NT} lds", "p0in")
    W2T, KT, VT = (sW2, L_W2, 20, sROWOFF), (sK, L_K, 23, "0"), (sV, L_V, 20, sROWOFF)
    PF = O.get("pairfirst", 0)
    TL = dict(q=(sQ, sXO), w=(sW1, sJ[0]), s=(sWS, "0"), h=(sSH, "0"), k=(sK, sROWOFF), v=(sV, sROWOFF), u=(sW2, sROWOFF),
              c=(sSK, sROWOFF), g=(sGW, "0"), d=(sD, "0"), o=(sOUT, sROWOFF))
    for i_, c_ in enumerate(str(O.get("tlb", ""))):
        A(f"buffer_load_dword v{238+i_ if i_ < 4 else 240+i_}, off, {TL[c_][0]}, {TL[c_][1]}")
    if PF:
        pair(0)
    tile_dma(0, [W2T, KT, VT])
    tile_dma(1, [W2T, KT, VT])
    A(f"s_cmp_ge_u32 {sW}, 3")
    A.begin_opt("s_cbranch_scc1", settle=False)
    tile_dma(2, [KT])
    A.end_opt()
    A(f"s_cmp_ge_u32 {sW}, 2")
    A.begin_opt("s_cbranch_scc1", settle=False)
    tile_dma(2, [W2T, VT])
    A.end_opt()

    stamp("tiles")
    vCT, vI16, vR, vCHL = 28, 29, 30, 31
    A(f"""v_lshrrev_b32 v26, 4, v0
          v_mul_u32_u24 v27, 52, v26
          v_lshrrev_b32 v27, 8, v27
          v_mul_u32_u24 v{vR}, 5, v27
          v_sub_u32 v{vCT}, v26, v{vR}
          v_mul_u32_u24 v{vR}, 24, v27
          v_min_u32 v{vR}, 40, v{vR}
          v_and_b32 v{vI16}, 15, v0
          v_lshl_add_u32 v{vCHL}, v{vCT}, 4, v{vI16}
          v_lshlrev_b32 v26, 3, v{vCHL}
          s_mul_i32 {sT0}, {sCB}, 640""")
    vSH = 168
    A(f"buffer_load_dwordx2 v[{vSH}:{vSH+1}], v26, {sSH}, {sT0} offen", "p0in")
    if not PF:
        pair(0)
    stamp("iss0")

    for j in range(1, 10):
        A(f"""s_add_u32 {sJ[j]}, {sJ[j-1]}, 196608
              s_cmp_ge_u32 {sJ[j]}, 1966080
              s_cselect_b32 {sT0}, 1966080, 0
              s_sub_u32 {sJ[j]}, {sJ[j]}, {sT0}""")
    vGW = 130
    vGWA = 154
    A(f"""v_bfe_u32 v52, {vr(vLANE)}, 3, 2
          v_add_u32 v53, {sROT}, v52""")
    for n in range(3):
        A(f"""v_add_u32 v54, {4*n}, v53
              v_subrev_u32 v55, 10, v54
              v_min_u32 v54, v54, v55
              v_lshlrev_b32 v54, 7, v54
              v_lshl_add_u32 v{vGWA+n}, v38, 4, v54""")
        if n == 2:
            A(f"""v_lshrrev_b32 v55, 1, v52
                  v_lshl_add_u32 v{vGWA+n}, v55, 16, v{vGWA+n}""")
    vKA, vBW, vBR, vRA, vRB_ = 158, 159, 160, 161, 162
    A(f"""v_lshrrev_b32 v26, 2, v{vI16}
          v_add_u32 v26, v26, v{vR}
          v_mul_u32_u24 v26, 160, v26
          v_and_b32 v27, 3, v0
          v_lshl_add_u32 v26, v27, 3, v26
          v_lshl_add_u32 v26, v{vCT}, 5, v26
          v_add_u32 v{vKA}, {L_K}, v26
          v_mul_u32_u24 v26, 144, v{vCHL}
          v_lshl_add_u32 v26, v{vR}, 1, v26
          v_add_u32 v{vBW}, {L_BO}, v26
          v_lshrrev_b32 v26, 3, v0
          v_mul_u32_u24 v54, 144, v26
          v_lshl_add_u32 v54, v38, 4, v54
          v_add_u32 v{vBR}, {L_BO}, v54
          v_mul_u32_u24 v54, {TP}, v26
          v_lshl_add_u32 {vr(vT)}, v38, 4, v54""")
    A(f"""v_lshrrev_b32 v26, 5, {vr(vLANE)}
          v_lshlrev_b32 v26, 4, v26
          v_bfe_u32 v54, {vr(vLANE)}, 2, 3
          v_add_u32 v26, v26, v54
          v_mul_u32_u24 v26, 160, v26
          s_and_b32 {sT0}, {sW}, 1
          s_mul_i32 {sT0}, {sT0}, 5120
          s_add_u32 {sT0}, {sT0}, {L_W2}
          s_lshr_b32 {sT1}, {sW}, 1
          s_lshl_b32 {sT1}, {sT1}, 6
          v_add_u32 v26, {sT0}, v26
          v_lshl_add_u32 v{vRB_}, v27, 3, v26
          v_lshl_add_u32 v{vRA}, v27, 4, v26
          v_add_u32 v{vRA}, {sT1}, v{vRA}""")
    A(f"""v_lshrrev_b32 v26, 5, {vr(vLANE)}
          v_lshlrev_b32 v26, 10, v26
          v_bfe_u32 v54, {vr(vLANE)}, 2, 2
          v_lshl_add_u32 v26, v54, 7, v26
          v_bfe_u32 v54, {vr(vLANE)}, 3, 1
          v_lshlrev_b32 v54, 6, v54
          v_xor_b32 v54, {sT1}, v54
          v_add_u32 v26, v26, v54
          v_bfe_u32 v54, {vr(vLANE)}, 4, 1
          v_lshl_add_u32 v26, v54, 5, v26
          v_lshl_add_u32 v{vTR[0]}, v27, 3, v26
          v_add_u32 v{vTR[1]}, 65536, v{vTR[0]}
          v_add_u32 v{vTR[2]}, 131072, v{vTR[0]}""")
    A(f"""v_lshrrev_b32 v26, 5, {vr(vLANE)}
          v_lshlrev_b32 v26, 8, v26
          v_lshl_add_u32 v26, v{vI16}, 4, v26
          v_mul_u32_u24 v54, 49152, v54
          v_add_u32 v{vHS}, v26, v54
          s_mul_i32 {sHB[0]}, {sRB}, 196608
          s_and_b32 {sT0}, {sW}, 1
          s_mul_i32 {sT0}, {sT0}, 98304
          s_add_u32 {sHB[0]}, {sHB[0]}, {sT0}
          s_mul_i32 {sT0}, {sCB}, 6144
          s_add_u32 {sHB[0]}, {sHB[0]}, {sT0}
          s_lshl_b32 {sT1}, {sT1}, 4
          s_add_u32 {sHB[0]}, {sHB[0]}, {sT1}
          s_add_u32 {sHB[0]}, {sHB[0]}, {WS_H}""")
    A(f"""s_add_u32 {sHB[1]}, {sHB[0]}, 2048
          s_add_u32 {sHB[2]}, {sHB[0]}, 4096""")
    A(f"""
          s_mul_i32 {sKVO}, {sCB}, {80*TP}
          s_lshl_b32 {sT0}, {sRB}, 7
          s_add_u32 {sKVO}, {sKVO}, {sT0}
          s_mul_i32 {sCH}, {sCB}, 80
          s_sub_u32 {sT0}, {sRB}, 12
          s_min_u32 {sT0}, {sT0}, {sRB}
          s_lshl_b32 {sT0}, {sT0}, 2
          s_add_u32 {sCH}, {sCH}, {sT0}
          s_add_u32 {sCH}, {sCH}, {sW}
          s_sub_u32 {sT0}, {sRB}, 4
          s_cmp_ge_u32 {sT0}, 12
          s_cselect_b32 {sCH}, {sCH}, 0x4000
          s_mov_b32 s62, 0xbfb8aa3b
          s_mov_b32 s63, 0xbfb8aa3b
          s_mov_b32 {sSPIN}, {O["spin"]}""")
    A(f"""v_cmp_gt_u32 vcc, {FLW}, {vr(vLANE)}
          v_mov_b32 v26, 0x7ff00000
          v_lshlrev_b32 v54, 2, {vr(vLANE)}
          v_cndmask_b32 v{vFL}, v26, v54, vcc""")
    vXA = 116
    A(f"""v_and_b32 v26, 31, {vr(vLANE)}
          v_lshlrev_b32 v26, 7, v26
          v_lshrrev_b32 v54, 5, {vr(vLANE)}
          v_lshrrev_b32 v55, 1, v{vI16}
          v_xor_b32 v54, v54, v55
          v_lshl_add_u32 v26, v54, 4, v26
          s_and_b32 {sT0}, {sW}, 1
          s_lshl_b32 {sT0}, {sT0}, 12
          v_add_u32 v{vXA}, {sT0}, v26""")
    for ks in range(1, 4):
        A(f"v_xor_b32 v{vXA+ks}, {ks<<5}, v{vXA}")
    for ks in range(4):
        A(f"v_add_u32 v{vXA+4+ks}, 65536, v{vXA+ks}")
    vGA = 127
    A(f"""s_lshl_b32 {sT0}, {sCB}, 2
          s_add_u32 {sT0}, {sT0}, {sW}
          s_and_b32 {sT1}, {sT0}, 7
          s_lshl_b32 {sT0}, {sT0}, 8
          v_xor_b32 v26, {sT1}, v38
          v_lshlrev_b32 v26, 4, v26
          v_lshrrev_b32 v54, 5, {vr(vLANE)}
          v_lshl_add_u32 v26, v54, 7, v26
          v_add_u32 v26, {sT0}, v26
          v_lshl_add_u32 v{vGA}, v52, 13, v26
          v_and_b32 v54, 1, v52
          v_lshl_add_u32 v26, v54, 13, v26
          v_add_u32 v{vGA+1}, 65536, v26""")
    sWA, sWB = "s78", "s80"
    A(f"""s_mul_i32 {sT0}, {sCB}, 48
          s_lshl_b32 {sT1}, {sRB}, 1
          s_add_u32 {sT0}, {sT0}, {sT1}
          s_and_b32 {sT1}, {sW}, 1
          s_add_u32 {sT0}, {sT0}, {sT1}
          s_mul_i32 {sT0}, {sT0}, 5120
          s_add_u32 {sT0}, {sT0}, {WS_W2P}
          s_cmp_lt_u32 {sRB}, 24
          s_cselect_b32 {sT0}, {sT0}, 0x7f000000
          s_and_b32 {sT1}, {sW}, 2
          s_lshl_b32 {sWA}, {sT1}, 10
          s_add_u32 {sWA}, {sWA}, {sT0}
          s_add_u32 {sWB}, {sT0}, 4096
          s_cmp_eq_u32 {sT1}, 0
          s_cselect_b32 {sWB}, {sWB}, 0x7f000000""")
    MK = O.get("mk", 1)
    A(f"""v_lshrrev_b32 v244, {MK}, {vr(vLANE)}
          v_and_b32 v245, {(1 << MK) - 1}, {vr(vLANE)}
          v_mul_u32_u24 v246, {TP}, v244
          v_lshl_add_u32 v245, v245, {7 - MK}, v246
          v_mov_b32 v244, -1""")
    ymark = [f"s_mul_i32 {sT3}, {sW}, {20*TP}\ns_add_u32 {sT3}, {sT3}, {sKVO}\ns_add_u32 {sT3}, {sT3}, {WS_YT}",
             (f"buffer_store_dword v244, v245, {sWS}, {sT3} offen sc1", "mk" if O.get("ym", 0) == 3 else "p0out")]
    if MK == 1:
        _st = ymark[1]

        _s0 = ymark[0]

        def _mk():
            A(_s0)
            A("s_mov_b32 exec_hi, 0xff")
            put_item(A, _st)
            A("s_mov_b32 exec_hi, -1")
        ymark = [_mk]
    if MK == 4:
        A("v_mov_b32 v245, -1\nv_mov_b32 v246, -1\nv_mov_b32 v247, -1")
        tg = "mk" if O.get("ym", 0) == 3 else "p0out"

        def _mk4():
            for x in [f"s_add_u32 {sT3}, {sKVO}, {WS_YT}",
                      (f"buffer_store_dwordx4 v[244:247], {vr(vT)}, {sWS}, {sT3} offen sc1", tg),
                      f"s_add_u32 {sT3}, {sKVO}, {WS_YT + 32*TP}",
                      (f"buffer_store_dwordx4 v[244:247], {vr(vT)}, {sWS}, {sT3} offen sc1", tg),
                      f"s_add_u32 {sT3}, {sKVO}, {WS_YT + 64*TP}\ns_cmp_lt_u32 {sW}, 2\ns_cselect_b32 {sT3}, {sT3}, 0x7f000000",
                      (f"buffer_store_dwordx4 v[244:247], {vr(vT)}, {sWS}, {sT3} offen sc1", tg)]:
                put_item(A, x)
        ymark = [_mk4]
    if MK == 2:
        ymark += [f"s_add_u32 {sT3}, {sT3}, {4*TP}", (f"buffer_store_dword v244, v245, {sWS}, {sT3} offen sc1", "p0out")]
    YM = O.get("ym", 0)
    if YM == 0:
        for x in ymark:
            put_item(A, x)
    stamp("calc")
    NPRE_P = O.get("prepairs", 3)
    for j in range(1, NPRE_P):
        pair(j)
    if YM == 1:
        for x in ymark:
            put_item(A, x)
    vG0, vG1 = 170, 171
    A(f"""s_lshl_b32 {sT0}, {sCB}, 8
          s_lshl_b32 {sT1}, {sRB}, 8
          s_add_u32 {sT0}, {sT0}, {WS_COLG}
          s_add_u32 {sT1}, {sT1}, {WS_ROWG}""")
    A(f"buffer_load_dword v{vG0}, off, {sWS}, {sT0} sc1")
    A(f"buffer_load_dword v{vG1}, off, {sWS}, {sT1} sc1")
    stamp("issued")
    vPO = 104
    vPA = 106
    vZ = 107
    vDD = 108
    vGAD, vHAD, vUAD, vYW = 109, 110, 111, 112
    vG = 114
    vH = 178
    Hreg = lambda b: vH + 2 * (31 - b)
    vU = [252, 253, 254, 109]
    vQA, vQB = 124, 125
    sHF, sRP, sYP, sYF = "s12", "s13", "s14", "s15"
    sHP = ["s16", "s17", "s18", "s19"]
    sRED = ["s20", "s21", "s22"]
    sHIN, sCBW, sCG, sRG = "s23", "s36", "s39", sROT
    calc2 = []
    sC0, sC1 = "s0", "s1"

    def C2(t):
        for l in t.strip().split("\n"):
            l = l.strip()
            if l.startswith("s_cselect"):
                calc2[-1] += "\n" + l
            else:
                calc2.append(l)
    sC2 = sYF
    C2(f"v_and_b32 v85, 15, {vr(vLANE)}")
    C2(f"s_movk_i32 {sC2}, {2*HBP + 2048}")
    C2(f"""s_mul_i32 {sC0}, {sW}, {HBP}
          v_min_u32 v80, 31, {vr(vLANE)}
          v_add_u32 v81, 8, v80
          v_lshrrev_b32 v81, 5, v81
          v_lshl_add_u32 v80, v81, 10, v80
          v_lshl_add_u32 v{vPAD}, v80, 2, {sC0}
          s_add_u32 {sCBW}, {sC0}, {L_HB+96}
          s_lshl_b32 {sHIN}, {sCH}, 12
          v_and_b32 v80, 3, {vr(vLANE)}
          v_lshrrev_b32 v81, 4, {vr(vLANE)}
          v_bfe_u32 v82, {vr(vLANE)}, 2, 2
          v_add_u32 v83, v80, v81
          v_lshlrev_b32 v83, 5, v83
          v_lshl_add_u32 v83, v82, 3, v83
          v_add_u32 v{vGAD}, {sC0}, v83
          v_sub_u32 v83, v80, v82
          v_lshlrev_b32 v84, 2, v81
          v_sub_u32 v83, v83, v84
          s_add_u32 {sC1}, {sC0}, {L_UB+192}
          v_lshl_add_u32 v{vHAD}, v83, 3, {sC1}
          s_add_u32 {sC1}, {sC0}, {L_UB+96}
          v_lshl_add_u32 v{vUAD}, {vr(vLANE)}, 1, {sC1}
          s_mul_i32 {sC1}, {sW}, {YSP}
          s_add_u32 {sC1}, {sC1}, {L_YS+6}
          v_lshl_add_u32 v{vYW}, {vr(vLANE)}, 1, {sC1}
          v_add_u32 v113, {sC1}, {vr(vL16)}""")
    for r in (vDD, Hreg(-1), Hreg(-1) + 1, vU[0], vU[1], vU[2]):
        C2(f"v_mov_b32 v{r}, 0")
    C2(f"""v_lshlrev_b32 v82, 7, v82
          v_lshl_add_u32 v82, v80, 3, v82
          s_lshl_b32 {sC1}, {sW}, 5
          s_add_u32 {sC1}, {sC1}, {L_HB+96}
          v_add_u32 v82, {sC1}, v82
          v_mul_u32_u24 v{vPA}, {HBP}, v81
          v_add_u32 v83, v{vPA}, v82
          v_lshrrev_b32 v84, 1, v81
          v_mul_u32_u24 v84, {HBP - 1024}, v84
          v_lshl_add_u32 v82, v81, 9, v82
          v_add3_u32 v82, v82, v84, {sC2}
          v_mul_u32_u24 v84, 1280, v85
          v_lshl_add_u32 v{vQA}, v81, 4, v84
          v_lshl_add_u32 v{vQB}, v81, 3, v84
          v_accvgpr_write_b32 a250, v83
          v_accvgpr_write_b32 a251, v82
          v_accvgpr_write_b32 a252, v{vQA}
          v_accvgpr_write_b32 a253, v{vQB}
          s_mul_i32 {sC1}, {sW}, 20480
          s_add_u32 {sROWOFF}, {sROWOFF}, {sC1}""")
    C2(f"""v_and_b32 v{vPC}, 31, {vr(vLANE)}
          v_lshlrev_b32 v{vPC}, 7, v{vPC}
          s_lshl_b32 {sHL}, {sCB}, 12
          v_lshrrev_b32 v80, 1, v85
          v_and_b32 v81, 1, {vr(vLANE)}
          v_lshlrev_b32 v81, 3, v81
          v_lshl_add_u32 v{vPR}, v80, 7, v81""")
    WROT = O.get("wrot", 0)
    vL16a = vLANE if WROT else vL16
    if not WROT:
        C2(f"""v_add_u32 v{vL16b}, 4096, {vr(vL16)}
              v_add_u32 v{vL16c}, 8192, {vr(vL16)}""")
    C2(f"""s_lshl_b32 {sCG}, {sCB}, 8
          s_add_u32 {sCG}, {sCG}, {WS_COLG}
          s_or_b32 {sC1}, {sRB}, {sW}
          s_cmp_eq_u32 {sC1}, 0
          s_cselect_b32 {sCG}, {sCG}, 0x7f000000
          s_lshl_b32 {sRG}, {sRB}, 8
          s_add_u32 {sRG}, {sRG}, {WS_ROWG}
          s_or_b32 {sC1}, {sCB}, {sW}
          s_cmp_eq_u32 {sC1}, 0
          s_cselect_b32 {sRG}, {sRG}, 0x7f000000
          s_mul_i32 {sW2L}, {sCB}, {48*5120}
          s_mul_i32 {sC1}, {sW}, {12*5120}
          s_add_u32 {sW2L}, {sW2L}, {sC1}
          s_add_u32 {sW2L}, {sW2L}, {WS_W2P}
          s_lshl_b32 {sRP}, {sRB}, 12
          s_lshl_b32 {sHF}, {sCB}, 9
          s_add_u32 {sRP}, {sRP}, {WS_ROWH}
          s_add_u32 {sHF}, {sHF}, {sRP}
          s_lshl_b32 {sC0}, {sW}, 7
          s_add_u32 {sHF}, {sHF}, {sC0}
          s_add_u32 {sRP}, {sRP}, {sW1K}
          s_mul_i32 {sC1}, {sRB}, 196608
          s_mul_i32 {sC0}, {sW}, 12288
          s_add_u32 {sC1}, {sC1}, {sC0}
          s_add_u32 {sC1}, {sC1}, {WS_H}""")
    if WROT:
        C2(f"""s_lshr_b32 {sHP[0]}, {sRB}, 2
              s_and_b32 {sHP[1]}, {sCB}, {3 if WROT == 1 else 0}
              s_add_u32 {sHP[0]}, {sHP[0]}, {sHP[1]}
              s_lshl_b32 {sHP[0]}, {sHP[0]}, 1
              s_lshr_b32 {sHP[0]}, {sum((i % 3) << (2 * i) for i in range(15)):#x}, {sHP[0]}
              s_bfe_u32 {sHP[1]}, {sHP[0]}, 0x20002
              s_bfe_u32 {sHP[2]}, {sHP[0]}, 0x20004
              s_and_b32 {sHP[0]}, {sHP[0]}, 3
              v_lshl_add_u32 v{vL16b}, {sHP[1]}, 12, {vr(vL16)}
              v_lshl_add_u32 v{vL16c}, {sHP[2]}, 12, {vr(vL16)}
              v_lshl_add_u32 v{vL16a}, {sHP[0]}, 12, {vr(vL16)}
              s_mul_i32 {sWA}, {sHP[1]}, 20480
              s_mul_i32 {sWB}, {sHP[2]}, 20480
              s_mul_i32 {sHP[0]}, {sHP[0]}, 20480
              s_add_u32 {sWA}, {sWA}, {sW2L}
              s_add_u32 {sWB}, {sWB}, {sW2L}
              s_add_u32 {sW2L}, {sW2L}, {sHP[0]}""")
    for ph in range(4):
        C2(f"""s_add_u32 {sC0}, {sW}, {1+ph}
              s_and_b32 {sC0}, {sC0}, 3
              s_mul_i32 {sC0}, {sC0}, 49152
              s_add_u32 {sHP[ph]}, {sC0}, {sC1}""")
    C2(f"""s_add_u32 {sYP}, {sKVO}, {WS_YT}
          s_add_u32 {sYF}, {sKVO}, {WS_YT + 48*TP - 2048}
          s_cmp_ge_u32 {sW}, 2
          s_cselect_b32 {sYF}, {sYF}, 0x7f000000
          s_mul_i32 {sCH}, {sCH}, {TP}
          s_add_u32 {sCH}, {sCH}, {WS_KVT}
          s_mul_i32 {sRED[0]}, {sW}, 5120
          s_add_u32 {sRED[0]}, {sRED[0]}, {L_RED}
          s_xor_b32 {sRED[1]}, {sW}, 2
          s_mul_i32 {sC0}, {sRED[1]}, {HBP}
          s_mul_i32 {sRED[1]}, {sRED[1]}, 5120
          s_add_u32 {sRED[1]}, {sRED[1]}, {L_RED}
          s_add_u32 {sRED[2]}, {sW}, 1
          s_and_b32 {sRED[2]}, {sRED[2]}, 3
          s_mul_i32 {sC1}, {sRED[2]}, {HBP}
          s_mul_i32 {sRED[2]}, {sRED[2]}, 5120
          s_add_u32 {sRED[2]}, {sRED[2]}, {L_RED + 40960}""")
    NC2 = O.get("c2pro", 0)
    for x in calc2[:NC2]:
        A(x)
    calc2 = calc2[NC2:]
    stamp("calc2")

    A.wait("p0in")
    A("s_barrier")
    stamp("p0in")
    vWT = 172
    vP = 184
    vVV = 198
    vO = 210
    vE = 222
    for m in range(7):
        A(f"ds_read_b64_tr_b16 v[{vP+2*m}:{vP+2*m+1}], v{vKA} offset:{640*m}")
        if m < 6:
            A(f"ds_read_b64_tr_b16 v[{vVV+2*m}:{vVV+2*m+1}], v{vKA} offset:{640*m + L_V - L_K}")
    for i, (va, off) in enumerate(((vRA, 0), (vRA, 8), (vRB_, 128))):
        A(f"ds_read_b64_tr_b16 v[{vWT+4*i}:{vWT+4*i+1}], v{va} offset:{off}")
        A(f"ds_read_b64_tr_b16 v[{vWT+4*i+2}:{vWT+4*i+3}], v{va} offset:{off+1280}")
    vWa, vWb, vWc, vWd, vWe = 163, 164, 165, 166, 167
    A(f"""s_mov_b32 {sT0}, 0xffff
          v_and_b32 v{vWa}, 0xffff, v{vSH}
          v_bfi_b32 v{vWb}, {sT0}, v{vSH+1}, v{vSH}
          v_and_b32 v{vWc}, 0xffff0000, v{vSH+1}
          v_alignbit_b32 v{vWd}, v{vSH}, v{vSH}, 16
          v_alignbit_b32 v{vWe}, v{vSH+1}, v{vSH+1}, 16""")
    w2st = [(f"buffer_store_dwordx4 v[{vWT}:{vWT+3}], {vr(vL16)}, {sWS}, {sWA} offen sc1", "p0out"),
            (f"buffer_store_dwordx4 v[{vWT+4}:{vWT+7}], {vr(vL16)}, {sWS}, {sWA} offen offset:1024 sc1", "p0out"),
            (f"buffer_store_dwordx4 v[{vWT+8}:{vWT+11}], {vr(vL16)}, {sWS}, {sWB} offen sc1", "p0out")]
    w2st_txt = w2st[-1][0]
    NP0_P = O.get("p0pairs", 6)
    mem = []
    for j in range(NPRE_P, NP0_P):
        mem += [x_items(j), w1_items(j)]
    if O.get("w2st_early", 0):
        mem = [[x] for x in w2st] + mem
        w2st = []
    for o in range(13):
        e = vE + 4 * (o & 1) * 2
        if o < 12:
            A(f"""v_dot2_f32_bf16 v{e}, v{vP+o+2}, v{vWa}, 0
                  v_dot2_f32_bf16 v{e+1}, v{vP+o+2}, v{vWd}, 0
                  v_dot2_f32_bf16 v{e}, v{vP+o+1}, v{vWb}, v{e}
                  v_dot2_f32_bf16 v{e+1}, v{vP+o+1}, v{vWe}, v{e+1}
                  v_dot2_f32_bf16 v{e}, v{vP+o}, v{vWc}, v{e}
                  v_lshlrev_b32 v{e+2}, 16, v{vVV+o}
                  v_and_b32 v{e+3}, 0xffff0000, v{vVV+o}""")
        if o > 0:
            e = vE + 4 * ((o - 1) & 1) * 2
            A(f"""v_pk_mul_f32 v[{e}:{e+1}], v[{e}:{e+1}], v[{e+2}:{e+3}]
                  v_cvt_pk_bf16_f32 v{vO+o-1}, v{e}, v{e+1}""")
            if o % 4 == 0:
                i = o // 4 - 1
                A(f"ds_write_b128 v{vBW}, v[{vO+4*i}:{vO+4*i+3}] offset:{16*i}", "bo")
        k = -(-len(mem) // (13 - o))
        if o % 2 == 1 or len(mem) >= 13 - o:
            for _ in range(min(k, len(mem))):
                for it in mem.pop(0):
                    put_item(A, it)
    stamp("p0done")

    def bo_reads():
        for n in range(3):
            A(f"ds_read_b128 v[{vP+4*n}:{vP+4*n+3}], v{vBR} offset:{4608*n}")

    sKA = [sT0, sT1, sT2]
    kvst = [f"s_add_u32 {sT3}, {sKVO}, {WS_KVT}",
            (f"buffer_store_dwordx4 v[{vP}:{vP+3}], {vr(vT)}, {sWS}, {sT3} offen sc1", "p0out"),
            f"s_add_u32 {sT3}, {sKVO}, {WS_KVT + 32*TP}",
            (f"buffer_store_dwordx4 v[{vP+4}:{vP+7}], {vr(vT)}, {sWS}, {sT3} offen sc1", "p0out"),
            f"s_add_u32 {sT3}, {sKVO}, {WS_KVT + 64*TP}\ns_cmp_lt_u32 {sW}, 2\ns_cselect_b32 {sT3}, {sT3}, 0x7f000000",
            (f"buffer_store_dwordx4 v[{vP+8}:{vP+11}], {vr(vT)}, {sWS}, {sT3} offen sc1", "p0out")]

    vGX = 142
    gw_ld = [f"buffer_load_dwordx4 v[{vGW+4*n}:{vGW+4*n+3}], v{vGWA+n}, {sGW}, 0 offen" for n in range(3)]
    q_ld = [f"buffer_load_dwordx4 a[240:243], v{vQA}, {sQ}, {sROWOFF} offen",
            f"buffer_load_dwordx4 a[244:247], v{vQA}, {sQ}, {sROWOFF} offen offset:64",
            f"buffer_load_dwordx2 a[248:249], v{vQB}, {sQ}, {sROWOFF} offen offset:128"]

    def gate_read(j):
        m = (0xff << (8 * (j & 3))) if j < 8 else (0x00ff00ff << (8 * (j & 1)))
        src = f"v{vGA} offset:{32768*(j>>2)}" if j < 8 else f"v{vGA+1}"
        r = vGX + 4 * (j >> 2)
        return (f"s_mov_b32 exec_lo, {m:#x}\ns_mov_b32 exec_hi, {m:#x}\nds_read_b128 v[{r}:{r+3}], {src}\ns_mov_b64 exec, -1", f"rd_{j}")
    gops = []
    g0, g1, g2 = 154, 155, 156
    for i in range(12):
        gops.append(f"v_dot2_f32_bf16 v{g0}, v{vGX+i}, v{vGW+i}, " + ("0" if i == 0 else f"v{g0}"))
    for m in ("quad_perm:[1,0,3,2]", "quad_perm:[2,3,0,1]", "row_half_mirror", "row_mirror"):
        gops.append(f"v_add_f32_dpp v{g0}, v{g0}, v{g0} {m} row_mask:0xf bank_mask:0xf")
    gops.append(f"v_add_f32_dpp v{g0}, v{g0}, v{g0} row_bcast:15 row_mask:0xa bank_mask:0xf")
    gops += [f"v_mul_f32 v{g0}, s62, v{g0}", f"v_exp_f32 v{g0}, v{g0}", f"v_add_f32 v{g0}, 1.0, v{g0}", f"v_rcp_f32 v{g0}, v{g0}"]
    sG0, sG1 = sXE, sXO
    gops += [f"v_readlane_b32 {sG0}, v{g0}, 31", f"v_readlane_b32 {sG1}, v{g0}, 63"]

    vACC = [16, 32]
    NB = 8
    vFR = 48
    vS = 80
    vHO = 96

    def fr_reads(n):
        b, ks = divmod(n, 4)
        a = slot(b) + 2048 * ks
        base, off = vTR[a >> 16], a & 0xffff
        f = vFR + 4 * (n % NB)
        r = [f"ds_read_b64_tr_b16 v[{f}:{f+1}], v{base} offset:{off}",
             f"ds_read_b64_tr_b16 v[{f+2}:{f+3}], v{base} offset:{off+512}"]
        if n < 40:
            va, off = (vXA + ks, 8192 * b) if b < 8 else (vXA + 4 + ks, 8192 * (b - 8))
            r.append(f"ds_read_b128 {ar(4*n,4)}, v{va} offset:{off}")
        r = [(x, f"rd_{b}") for x in r]
        if n < 40 and ks == 3:
            r.append(gate_read(b))
        return r

    GS0 = O.get("gs0", 1)
    starts = list(range(0, 10, GS0)) + [int(x) for x in str(O.get("grp", "10+12+14+16+20+24+27")).split("+")]
    STRICT = O.get("strict", 10)
    grp_of = {}
    for gi_, st_ in enumerate(starts):
        en_ = starts[gi_ + 1] if gi_ + 1 < len(starts) else 30
        for b_ in range(st_, en_):
            grp_of[b_] = gi_
    extra_tags = {}

    def group_sync(g):
        def f():
            tags = [f"w1_{b}" for b in range(30) if grp_of[b] == g] + extra_tags.get(g, [])
            if g == grp_of[O["p0flag"]]:
                tags.append("p0out")
            if starts[g] <= STRICT:
                tags += [f"rd_{b}" for b in range(starts[g])]
            A.wait(*tags)
            A("s_barrier")
            if g == grp_of[O["p0flag"]]:
                A(f"""v_readfirstlane_b32 {sTAGC}, v{vG0}
                      v_readfirstlane_b32 {sTAGR}, v{vG1}
                      s_mul_i32 {sTAGC}, {sTAGC}, 0x2C9277B5
                      s_mul_i32 {sTAGR}, {sTAGR}, 0x2C9277B5
                      s_add_u32 {sTAGC}, {sTAGC}, 0xAC564B05
                      s_add_u32 {sTAGR}, {sTAGR}, 0xAC564B05
                      s_lshl_b32 {sT0}, {sCB}, 12
                      s_lshl_b32 {sT1}, {sRB}, 7
                      s_add_u32 {sT0}, {sT0}, {sT1}
                      s_cmp_eq_u32 {sW}, 0
                      s_cselect_b32 {sT0}, {sT0}, 0x7f000000
                      v_mov_b32 v{vZ}, {sTAGC}""")
                A(f"buffer_store_dword v{vZ}, v{vFL}, {sWS}, {sT0} offen sc1")
        return f

    def silu_ops(p, pk=False):
        ac = vACC[p & 1]
        ops = []
        for h in range(0, 8, 2):
            t0, t1 = vS + 4 * ((h >> 1) & 1), vS + 4 * ((h >> 1) & 1) + 2
            z0, z1 = ac + 2 * h, ac + 2 * h + 2
            if pk:
                ops += [(1, f"v_pk_mul_f32 v[{t0}:{t0+1}], v[{z0}:{z0+1}], {sNL2E}"),
                        (1, f"v_pk_mul_f32 v[{t1}:{t1+1}], v[{z1}:{z1+1}], {sNL2E}")]
            else:
                ops += [(1, f"v_mul_f32 v{t0+i}, s62, v{z0+i}") for i in range(4)]
            ops += [(2, f"v_exp_f32 v{t0+i}, v{t0+i}") for i in range(4)]
            if pk:
                ops += [(1, f"v_pk_add_f32 v[{t0}:{t0+1}], v[{t0}:{t0+1}], 1.0 op_sel_hi:[1,0]"),
                        (1, f"v_pk_add_f32 v[{t1}:{t1+1}], v[{t1}:{t1+1}], 1.0 op_sel_hi:[1,0]")]
            else:
                ops += [(1, f"v_add_f32 v{t0+i}, 1.0, v{t0+i}") for i in range(4)]
            ops += [(2, f"v_rcp_f32 v{t0+i}, v{t0+i}") for i in range(4)]
            if pk:
                ops += [(1, f"v_pk_mul_f32 v[{t0}:{t0+1}], v[{t0}:{t0+1}], v[{z0}:{z0+1}]"),
                        (1, f"v_pk_mul_f32 v[{t1}:{t1+1}], v[{t1}:{t1+1}], v[{z1}:{z1+1}]")]
            else:
                ops += [(1, f"v_mul_f32 v{t0+i}, v{t0+i}, v{z0+i}") for i in range(4)]
            ops += [(1, f"v_cvt_pk_bf16_f32 v{vHO+h}, v{t0}, v{t0+1}"),
                    (1, f"v_cvt_pk_bf16_f32 v{vHO+h+1}, v{t1}, v{t1+1}")]
            if h in (2, 6):
                r = h >> 2
                ops.append((1, (f"buffer_store_dwordx4 v[{vHO+4*r}:{vHO+4*r+3}], v{vHS}, {sWS}, {sHB[p]} offen offset:{512*r} sc1", "houte" if p < O.get("eh", 0) else "hout")))
        return ops

    def w2reg(i):
        return (4 * i + 160) % 240

    def w2_items(i):
        it = []
        if i % 4 == 0 and i:
            it.append(f"s_mov_b32 {sW2L}, {(sWA, sWB)[i // 40]}" if WROT and i % 20 == 0 else f"s_add_u32 {sW2L}, {sW2L}, 4096")
        it.append(f"buffer_load_dwordx4 {ar(w2reg(i),4)}, {vr(vL16)}, {sWS}, {sW2L} offen offset:{1024*(i%4)} sc1")
        return it

    extra_tags[0] = ["bo"]
    group_sync(0)()
    stamp("g1start")
    bo_reads()
    synced = {0}
    sync_at = {0: -2}
    for n in range(DIST):
        g = grp_of[n // 4]
        if g not in synced:
            A.waitall(vm=False)
            group_sync(g)(); synced.add(g); sync_at[g] = -1
        for r in fr_reads(n):
            put_item(A, r)

    def frag_wait(n):
        def f():
            rs = [("v", vFR + 4 * (n % NB) + i) for i in range(4)]
            A._wait([A.pend[r] for r in rs if r in A.pend])
        return f
    anchors = []
    for n in range(120):
        p, k = divmod(n, 40)
        ac = vACC[p & 1]
        f = vFR + 4 * (n % NB)
        grp = [f"v_mfma_f32_32x32x16_bf16 v[{ac}:{ac+15}], v[{f}:{f+3}], {ar(4*k,4)}, " + ("0" if k == 0 else f"v[{ac}:{ac+15}]")]
        if n >= 40 and n % O.get("fw", 2) == 0 and O.get("fw", 2) > 1:
            grp.insert(0, frag_wait(n + O.get("fw", 2) - 1))
        m = n + DIST
        if m < 120:
            g = grp_of[m // 4]
            if g not in synced:
                grp.append(group_sync(g)); synced.add(g); sync_at[g] = n
            grp += fr_reads(m)
        if n in (39, 79) and O.get("pstamp", 0):
            grp.append((lambda nm: (lambda: stamp(nm)))(f"pass{n//40}"))
        if f"b{n}" in ONLY:
            grp.append((lambda nm: (lambda: stamp(nm)))(f"b{n}"))
        anchors.append(grp)
    sync_after = lambda n: min(v for v in sync_at.values() if v >= n)

    def free_at(b):
        g = grp_of[b] + 1
        if g < len(starts) and starts[g] <= STRICT:
            return max(sync_at[g], 0)
        return sync_after(4 * b + 3)
    for b in range(10, 30):
        for lo, hi in ((L_YS, L_YS + 4 * YSP), (L_RED, L_RED + 61440)):
            if slot(b) < hi and slot(b) + 8192 > lo:
                free_at(b)
    dma = []
    LA = O.get("la", 100)
    st_list = [[x] for x in w2st] + [kvst[0:2], kvst[2:4], kvst[4:6] + (ymark if YM == 2 else [])]
    SP = O.get("stpace", 0)
    for b in range(NP0_P, 30):
        lat = sync_at[grp_of[b]]
        e = 0 if b < 10 else free_at(wdep[b])
        e = max(e, lat - LA)
        if O.get("fl", 0):
            i_ = (2 * b + 1 if b < 10 else b + 10) - O["fl"]
            d_ = i_ // 2 if i_ < 20 else i_ - 10
            e = max(e, 4 * d_ - DIST)
        its = w1_items(b)
        if b < 10:
            its = x_items(b) + its
        for it in its:
            dma.append(dict(e=e, l=lat, it=it))
        if b == 9:
            for it in gw_ld:
                dma.append(dict(e=e, l=lat, it=it))
        if b + 1 >= O.get("st_at", 6):
            for _ in range(O.get("st_n", 6)):
                if st_list:
                    for it in st_list.pop(0):
                        dma.append(dict(e=e, l=sync_at[grp_of[O["p0flag"]]], it=it))
    if O.get("st_at", 6) <= NP0_P:
        pass
    e_q = sync_at[grp_of[9]]
    qs = [dict(e=e_q + (0 if i_ < 8 else 4), l=O.get("g_at", 44), it=x) for i_, x in enumerate(gops)]
    pi = O["poll_i"]

    def ins_at(e, items):
        pos = next((i for i, d in enumerate(dma) if d["e"] > e), len(dma))
        dma[pos:pos] = [dict(e=e, it=x) for x in items]
    ins_at(pi, [lambda: poll(vPC, sTAGC, sHL, vPO, check=False)])
    ins_at(O.get("q_at", 30), q_ld)
    if YM == 3:
        ins_at(O.get("ym_at", 44), ymark)
    e_h = max(free_at(CBS + 2), O.get('hin_at', 0))
    e_u = free_at(CBS + NCB - 1)
    misc = [(f"ds_write_b32 v{vPAD}, v{Hreg(-1)} offset:{L_HB}", "pad"), f"s_mov_b32 m0, {sCBW}"]
    misc += [(f"buffer_load_dwordx4 {vr(vL16)}, {sSK}, {sHIN} offen offset:{1024*i} {NT} lds", "hin") for i in range(4)]
    misc += [f"s_lshr_b32 {sHIN}, {sHIN}, 11", f"buffer_load_short_d16_hi v{vDD}, off, {sD}, {sHIN}"]
    ins_at(e_h, misc)
    pc = max(O["poll_c"], e_u, e_h)

    def col_ok():
        poll(vPC, sTAGC, sHL, vPO, issue=False)
        A(f"buffer_store_dword v{vZ}, v{vFL}, {sWS}, {sCG} offen sc1")

    def g_done():
        assert sum(f"v{vGAD} offset:" in l for l in A.out) == 32
        A.wait("grd")
    misc2 = [col_ok]
    if SHR:
        misc2 += [g_done, f"s_mov_b32 m0, {sCBW}"]
    else:
        misc2 += [(f"ds_write_b32 v{vPAD}, v{Hreg(-1)} offset:{L_UB}", "pad"), f"s_add_u32 m0, {sCBW}, {L_UB-L_HB}"]
    misc2 += [(f"buffer_load_dwordx4 {vr(vL16)}, {sWS}, {sCH} offen offset:{1024*i} sc1 lds", "uin") for i in range(4)]
    misc2 += [f"s_add_u32 {sCH}, {sCH}, {WS_YT-WS_KVT}"]
    EH = O.get("eh", 0)
    T_EF, T_EP, T_EO = O.get("t_ef", -20), O.get("t_ep", 40), O.get("t_eo", 80)
    vHFD = 15

    def e_flag():
        assert sum(f"{sWS}, {sHB[EH-1]} offen offset" in l for l in A.out) == 2
        assert any(f"v_writelane_b32 v{vHFD}, {sG1}, 3" in l for l in A.out)
        stamp("ef0")
        A.wait("houte")
        stamp("ef1")
        A(f"s_add_u32 {sT0}, {sHF}, 0x40000")
        A(f"buffer_store_dword v{vHFD}, v7, {sWS}, {sT0} offen sc1")
    if EH:
        misc2 += [f"s_add_u32 {sHL}, {sRP}, 0x40000"]
    ins_at(pc, misc2)
    NW2_G1 = O.get("w2g1", 12)
    w2s = max(pc + 2, max(d["e"] for d in dma), O.get("w2start", 0))
    for i in range(NW2_G1):
        for x in w2_items(i):
            e = w2s + (i * O.get("w2p1", 5)) // 2
            if i >= 20:
                e = max(e, 80 + i - 20 + 1)
            dma.append(dict(e=min(e, 119), it=x))
    if EH and T_EF < 0:
        ins_at(120 + T_EF, [e_flag])
    sil = []
    for p in range(2):
        for c, x in silu_ops(p, O.get("g1pk", 0)):
            sil.append(dict(e=40 * (p + 1) + 2, l=40 * (p + 2), c=c, it=x))
    def wait_in(tag, text):
        def f():
            assert any(text in l for l in A.out), tag
            A.wait(tag, "pad")
        return f

    def g_ok():
        txt = "\n".join(A.out)
        assert O.get("skip") or gops[-1] in txt and q_ld[-1] in txt and w2st_txt in txt and not any(q_ld[0] in str(d["it"]) for d in gq[0])
        wait_in("hin", misc[-1])()
    GA, HA = O.get("g_at", 44), O.get("h_at", 90)
    gh = [dict(e=GA, c=0, it=g_ok)]
    gh += [dict(e=GA, it=(f"ds_read_b64_tr_b16 v[{vG+2*x}:{vG+2*x+1}], v{vGAD} offset:{L_HB+128*x}", "grd")) for x in range(32)]
    if SHR:
        for d in gh:
            d["l"] = pc
    gh += [dict(e=GA, it=x) for x in (f"v_mov_b32 v{vHFD}, {sTAGR}", f"v_writelane_b32 v{vHFD}, {sG0}, 1",
                                      f"v_writelane_b32 v{vHFD}, {sG1}, 3", f"v_mov_b32 v{vU[3]}, 0")]
    gh += [dict(e=HA, c=0, it=wait_in("uin", "offen offset:3072 sc1 lds"))]
    gh += [dict(e=HA, it=f"ds_read_b64_tr_b16 v[{Hreg(n)}:{Hreg(n)+1}], v{vHAD} offset:{128*n}") for n in range(31, -1, -1)]
    vCV = 255
    vYO = 96
    SETS = [32, 36, 40, 44, 28]
    vZ7 = 0
    CH = [dict(E=[244, 245], R1=[246, 247], R2=[248, 249]), dict(E=[16, 17], R1=[18, 19], R2=[20, 21])]
    vZZ = [250, 251]
    XSET = [vG + 4 * q for q in (15, 14, 13, 12)][:O.get("xsets", 4)]
    order = list(range(31, 23, -1))
    for i in range(8):
        order += [23 - i, 7 - i]
    order += list(range(15, 7, -1))
    NFT = O.get("nft", 0)
    NF = sum(n // 2 + 1 for n in order[:NFT])
    NCV = 272 - NF
    J = O.get("join", 24)
    first, last = {}, {}
    k = -NF
    for n in order:
        first[n] = k
        k += n // 2 + 1
        last[n] = k - 1
    assert k == NCV
    cva = []
    setof, nxt_use = {}, {}
    ring = [88, 92]
    for i, n in enumerate(order):
        if i == NFT:
            ring = list(SETS)
        if n == O.get("xset_at", 23):
            ring = XSET + ring
        r_ = ring.pop(0)
        ring.append(r_)
        for m in setof:
            if setof[m] == r_ and m not in nxt_use:
                nxt_use[m] = n
        setof[n] = r_
    for n in order:
        ac = setof[n]
        for q in range(n // 2 + 1):
            b = n - 2 * q
            cva.append([f"v_mfma_f32_16x16x32_bf16 v[{ac}:{ac+3}], v[{vG+4*q}:{vG+4*q+3}], v[{Hreg(b)}:{Hreg(b)+3}], " +
                            ("0" if q == 0 else f"v[{ac}:{ac+3}]")])
        if O.get("pstamp", 0) and n % 4 == 0:
            cva[-1].append((lambda nm: (lambda: stamp(nm)))(f"t{n}"))
    DP = "row_mask:0xf bank_mask:0xf"
    seq = []
    for n in order:
        seq.append(n)
        if n == 15:
            seq.append(-1)
        if n == 8:
            seq.append(107)
    comb = []
    ureg = lambda si: vU[si & 3]

    def uread(si):
        return [f"ds_read_u16_d16_hi v{ureg(si)}, v{vUAD} offset:{128*seq[si]}"] if si < len(seq) and 0 <= seq[si] < 32 else []
    for si in range(4):
        comb.append(dict(e=-NF, it=uread(si)[0]))
    MD = O.get("mdel", 3)
    late = []
    nrb = [0]
    defer = []
    pos = lambda m: (7 if m == 107 else m) + 1
    for si, n in enumerate(seq):
        real = 0 <= n < 32
        tn = n if real else (0 if n == -1 else 8)
        ch = CH[1] if (n < 8) else CH[0]
        par = (n if real else tn - 1) & 1
        E, R1, R2 = ch["E"][par], ch["R1"][par], ch["R2"][par]
        Ep, R1p, R2p = ch["E"][par ^ 1], ch["R1"][par ^ 1], ch["R2"][par ^ 1]
        Z = vZ7 if n == 7 else vZZ[si & 1]
        e = last[tn if real else seq[si - 1]] + MD
        l = first[nxt_use[n]] if n in nxt_use else 1 << 30
        if ch is CH[1]:
            l = min(l, NCV)
        if si & 1:
            pre, F = [], uread(si + 3) + uread(si + 4)
        else:
            pre, F = defer[:1], defer[1:]
            defer = []
        F1, F2 = F[:1], F[1:]
        if real:
            D = setof[n]
            bc = " bound_ctrl:0" if n == 7 else ""
            rol = [[f"v_add_f32_dpp v{d}, v{s_}, v{D+1+i} wave_rol:1 {DP}"] if n not in (7, 31) else []
                   for i, (d, s_) in enumerate(((R1, Ep), (R2, R1p), (Z, R2p)))]
            shl = [[f"v_add_f32_dpp v{d}, v{s_}, v{D+1+i} wave_shl:1 {DP}{bc}"] for i, (d, s_) in enumerate(((R1, E), (R2, R1), (Z, R2)))]
            fma = [f"v_fma_f32 v{E}, v{ureg(si)}, v{vDD}, v{D}"]
        else:
            zop = (lambda s_, m: f"v_mov_b32_dpp v{Z}, v{s_} {m} {DP}") if n == -1 else (lambda s_, m: f"v_add_f32_dpp v{Z}, v{s_}, v{vZ7} {m} {DP}")
            rol = [[f"v_mov_b32_dpp v{R1}, v{Ep} wave_rol:1 {DP}"], [f"v_mov_b32_dpp v{R2}, v{R1p} wave_rol:1 {DP}"], [zop(R2p, "wave_rol:1")]]
            shl = [[], [f"v_mov_b32_dpp v{R2}, v{R1} wave_shl:1 {DP}"], [zop(R2, "wave_shl:1")]]
            fma = []
        it = rol[0] + pre + fma + rol[1] + rol[2] + shl[0] + F1 + shl[1] + F2 + shl[2]
        if si & 1:
            defer = [f"v_cvt_pk_bf16_f32 v{vCV}, v{vZZ[0]}, v{Z}",
                     f"ds_write_b16 v{vYW}, v{vCV} offset:{128*pos(seq[si-1])}",
                     f"ds_write_b16_d16_hi v{vYW}, v{vCV} offset:{128*pos(n)}"]
            cks = {7: [(3, 0)], -1: [(2, 0), (0, 0)], 107: [(1, 1)]}.get(n, [])
            if cks:
                it += defer
                defer = []
            for ck, fl in cks:
                r_ = {3: vYO, 2: vYO + 4, 0: 22, 1: vYO}[ck]
                it.append(f"ds_read_b128 v[{r_}:{r_+3}], v113 offset:{122+1024*ck}")
                late.append((si + 1 if ck != 3 or not O.get("ydefer", 1) else seq.index(-1) + 1, (f"buffer_store_dwordx4 v[{r_}:{r_+3}], {vr(vL16)}, {sWS}, {sCH} offen offset:{1024*ck} sc1", f"yout{fl}")))
        for x in it:
            comb.append(dict(e=e, l=l, it=x))
        while late and (si + 1 == len(seq) or late[0][0] <= si):
            comb.append(dict(e=e, l=(NCV if si + 1 < len(seq) else 1 << 30), gap=(O.get("ygap", 8) if si + 1 == len(seq) else 0), it=late.pop(0)[1]))
    C1 = [int(x, 16) for x in str(O.get("cap1", "866"))]
    gq = []
    for d in dma:
        t_ = d["it"][0] if isinstance(d["it"], tuple) else d["it"]
        if isinstance(t_, str) and t_.startswith("buffer_"):
            d["c"] = O.get("vmc", 2)
    c2s = [dict(e=0, l=min(e_h, O.get("q_at", 30)) if i_ < 54 - NC2 else 40, it=x) for i_, x in enumerate(calc2)]
    strm = [dma, c2s, qs, sil, gh] if O.get("gprio", 0) == 0 else [dma, c2s, qs, gh, sil]
    F0, F1 = O.get("f0", HA + 2), O.get("f1", 120)
    fine, idx, cpos, caps = [], {}, {}, []
    kf = 0
    for i, grp in enumerate(anchors):
        idx[i] = len(fine)
        fine.append(grp)
        caps.append(C1[i // 40] if i < F0 or not NF else O.get("fcap", 4))
        while i >= F0 and kf < NF and kf < (i + 1 - F0) * NF / (F1 - F0):
            cpos[kf - NF] = len(fine)
            fine.append(cva[kf])
            caps.append(2)
            kf += 1
    assert kf == NF
    for st_ in strm:
        for d in st_:
            d["e"] = idx[d["e"]]
            if d.get("l", 1 << 30) < 120:
                d["l"] = idx[d["l"]]
            else:
                d["l"] = 1 << 30
    fcomb = []
    if NF:
        for nb in range(32):
            gh[-32 + nb]["l"] = cpos[nb // 2 - NF] - O.get("hdist", 1)
        while comb[0]["e"] - MD < 0:
            d = comb.pop(0)
            fcomb.append(dict(d, e=cpos[max(d["e"] - MD, -NF)] + O.get("fmdel", 2), l=cpos.get(d.get("l", 0), 1 << 30), post=d))
    left = weave3(A, fine, strm + [fcomb], lambda i: caps[i], expose=gq, padok=O.get("padok", 36))
    print("g1 leftovers", [len(x) for x in left])
    drain(A, left[:-1])
    comb[0:0] = [dict(d["post"], e=0) for d in left[-1]]
    stamp("g1end")

    XS, YS = 8, 28
    HQ = [48 + 4 * i for i in range(12)]
    for q in range(15, -1, -1):
        HQ += [x for x in (vG + 4 * q, vH + 4 * (15 - q)) if x not in XSET]
    HQ += XSET + [242, 246, 250, 108]
    assert len(HQ) == 48

    HQL, HQ = HQ, {}
    nextq = lambda i: i if i < 12 else 12 + sum(j >= 12 for j in HQ)

    def hload(i):
        HQ[i] = HQL[nextq(i)]
        kk = i % 12
        vo = (vL16a, vL16b, vL16c)[kk // 4]
        return f"buffer_load_dwordx4 v[{HQ[i]}:{HQ[i]+3}], v{vo}, {sWS}, {sHP[i//12]} offen offset:{1024*(kk%4)} sc1"

    def h_flag():
        assert sum(f"{sWS}, {sHB[2]} offen offset" in l for l in A.out) in (2, 4)
        stamp("hf0")
        A.wait("hout")
        stamp("hf1")
        A(f"buffer_store_dword v{vHFD}, v7, {sWS}, {sHF} offen sc1")

    vGT = 6

    def row_ok():
        stamp("ro0")
        poll(vPR, sTAGR, sRP, vPO, n=3, issue=False)
        stamp("ro1")
        A(f"v_mov_b32 v{vGT}, v{vPO+1}")

    quad_free = {}
    for q in range(16):
        t_ = last[max(2 * q, 8)] + 1
        quad_free[vG + 4 * q] = quad_free[vH + 4 * (15 - q)] = t_

    PACE, HPACE = O.get("w2pace", 5), O.get("hpace", 5)
    T_HF, T_RP, T_RO = O.get("t_hf", 110), O.get("t_rp", 150), O.get("t_ro", 180)
    common = []
    t = O.get("w2t0", 2)
    GAPS = [tuple(int(y) for y in x.split("-")) for x in str(O.get("gaps", "")).split("+") if x]

    def nogap(t):
        for a_, b_ in GAPS:
            if a_ <= t < b_:
                t = b_
        return t
    wi = NW2_G1
    KM = 5 * (12 - O.get("ntm", 4))
    early = [i for i in range(48) if (i % 6) // 2 < EH][:O.get("ehn", 48)]
    tf = t
    while (wi < 60 or early) and t <= T_RO:
        t = nogap(t)
        if wi < 60 and not (early and t > T_EO and O.get("emix", 0) and (wi + len(HQ)) % 2 and quad_free.get(HQL[nextq(early[0])], 0) <= t):
            its_ = w2_items(wi)
            wi += 1
        else:
            t = max(t, T_EO + 1, quad_free.get(HQL[nextq(early[0])], 0))
            if t > T_RO or nextq(early[0]) >= 44 - len(XSET):
                break
            its_ = [hload(early.pop(0))]
        for x in its_:
            common.append(dict(e=t, it=x))
        tf = max(tf, t) + O.get("pace10", 10 * PACE) / 10
        t = int(tf)
    print("early h loads", len(HQ), "w2 left", 60 - wi)

    def cins(e, items, c=1):
        pos = next((i for i, d in enumerate(common) if d["e"] > e), len(common))
        common[pos:pos] = [dict(e=e, it=x, c=c) for x in items]
    def early_ok():
        assert sum(f"{sWS}, {sHB[2]} offen offset" in l for l in A.out) in (2, 4)
        stamp("eo0")
        poll(vPR, sTAGR, sHL, vPO, issue=False)
        stamp("eo1")
    if EH:
        assert T_EP < T_EO < T_RP
        if T_EF >= 0:
            cins(T_EF, [e_flag], 2)
        cins(T_EP, [lambda: poll(vPR, sTAGR, sHL, vPO, check=False)])
        cins(T_EO, [early_ok], 2)
    cins(T_HF, [h_flag], 2)
    cins(T_RP, [lambda: poll(vPR, sTAGR, sRP, vPO, n=3, check=False)])
    assert T_RO < NCV - 10
    cins(T_RO, [row_ok], 2)
    hl = []
    t = max(T_RO, common[-1]["e"]) + 1
    rest = [(60 * (i // 12) + min(5 * (i % 12), KM), 1, i) for i in range(48) if i not in HQ] + [(min(i, KM), 0, i) for i in range(wi, 60)]
    tprev = t - 1
    for dl, kind, i in sorted(rest):
        t = max(min(t, NCV + dl - O.get("lead", 40)), tprev + O.get("minpace", 2))
        if kind:
            t = max(t, quad_free.get(HQL[nextq(i)], 0))
            if nextq(i) >= 44 - len(XSET):
                t = max(t, NCV + J)
        t = nogap(t)
        for x in ([hload(i)] if kind else w2_items(i)):
            hl.append(dict(e=min(t, NCV + dl - 1), l=NCV + dl, it=x))
        tprev = t
        t += HPACE
    while hl and hl[0]["e"] < NCV + J - 1:
        common.append(hl.pop(0))

    NTM = O.get("ntm", 4)

    def g2pos(r):
        if r < 5 * (12 - NTM):
            return divmod(r, 5)
        nt, kk = divmod(r - 5 * (12 - NTM), NTM)
        return kk + 12 - NTM, nt
    g2done = lambda nt: max(r for r in range(60) if g2pos(r)[1] == nt)
    g2need = lambda kk: min(r for r in range(60) if g2pos(r)[0] == kk)

    def g2anchor(a):
        ph, r = divmod(a, 60)
        kk, nt = g2pos(r)
        ac = (XS, YS)[ph & 1] + 4 * nt
        hq = HQ[12 * ph + kk]
        return (f"v_mfma_f32_16x16x32_bf16 v[{ac}:{ac+3}], {ar(w2reg(kk*5+nt),4)}, v[{hq}:{hq+3}], " +
                ("0" if kk == 0 and ph < 2 else f"v[{ac}:{ac+3}]"))

    A(f"s_cmp_lt_u32 {sCH}, {WS_SIZE}")
    A.settle()
    A("s_cbranch_scc0 Lnoconv")
    import copy
    saved = (copy.deepcopy(A.q), dict(A.pend), A.nid)
    A.nopt += 1
    A.opt = A.nopt
    A._hidden = []
    optid = A.opt

    def as_common(it):
        def f():
            ids0 = A.nid
            put_item(A, it)
            for qn in A.q:
                for e in A.q[qn]:
                    if e["id"] > ids0:
                        e["opt"] = 0
        f.inner = it
        return f

    anchors = cva[NF:] + [[g2anchor(a)] for a in range(J)]
    if O.get("pstamp", 0):
        for a_ in range(len(anchors)):
            if f"a{a_}" in ONLY:
                anchors[a_].append((lambda nm: (lambda: stamp(nm)))(f"a{a_}"))
    so = silu_ops(2)
    if O.get("hst2", 1):
        so = [x for x in so if not isinstance(x[1], tuple)] + [x for x in so if isinstance(x[1], tuple)]
    sil2 = [dict(e=O.get("s2t0", 0), l=min(last[7], min(first[n] for n in order if setof[n] == 28)), c=c, it=as_common(x)) for c, x in so]
    com2 = [dict(d, it=as_common(d["it"])) for d in common]
    cq = []
    S2C = O.get("s2cap", 4)
    left = weave3(A, anchors, [com2, sil2, comb], lambda i: S2C if cq[1] else 2, expose=cq)
    print("conv leftovers", [len(x) for x in left])
    drain(A, [left[1], left[2], left[0]])
    stamp("cvm")
    A.settle()
    A("s_branch Ljoin")
    for qn in A.q:
        back = [h for h in A._hidden if h[0] == qn]
        A.q[qn] = [h[1] for h in back] + A.q[qn]
        for h in back:
            for r, v in h[2].items():
                A.pend.setdefault(r, v)
    A.opt = 0
    stateA = (A.q, A.pend, A.nid)
    A.label("Lnoconv")
    A.q, A.pend, A.nid = saved[0], saved[1], stateA[2]
    if O.get("dbgnc", 0) & 1:
        for r_ in sHP:
            A(f"s_mov_b32 {r_}, 0x7f000000")
    if O.get("dbgnc", 0) & 2:
        A(f"s_mov_b32 {sW2L}, 0x7f000000")
    for c, x in silu_ops(2, True):
        put_item(A, x)
    cb_ = [d["it"] for d in common if d["it"] is not h_flag]
    cb_.insert(O.get("nc_hf", 8), h_flag)
    for x in cb_:
        put_item(A, x)
    for a in range(J):
        A(g2anchor(a))
    A.waitall(vm=False)
    stamp("cvm")
    A.settle()
    seqB = [e["text"] for e in A.q["vm"]]
    seqA = [e["text"] for e in stateA[0]["vm"] if e["opt"] == 0]
    assert not seqB or seqA[-len(seqB):] == seqB
    nid = A.nid
    A.q, A.pend, A.nid = stateA[0], stateA[1], nid
    A.label("Ljoin")
    stamp("conv")

    vGQ = 48
    vOMG = 68
    vYR = 70
    vTM = 80
    vRW, vR2, vR1, vYA, vYB, vOA, vOB = 100, 101, 102, 87, 88, 89, 90
    anchors = []
    for a in range(J, 240):
        anchors.append([g2anchor(a)])
        if O.get("pstamp", 0) and a % 60 == 59:
            anchors[-1].append((lambda nm: (lambda: stamp(nm)))(f"ph{a//60}"))
    ld = [dict(d, e=d["e"] - NCV - J, l=d.get("l", 1 << 30) - NCV - J) for d in hl]

    def lins(e, items, c=1):
        e -= J
        pos = next((i for i, d in enumerate(ld) if d["e"] > e), len(ld))
        ld[pos:pos] = [dict(e=e, it=x, c=c) for x in items]
    vFW, vF2, vF1, vFV, vYC, vYK = 103, 104, 105, 107, 91, 84
    FO = L_HB + 4192
    y_dma = [f"s_mov_b32 m0, {sCBW}",
             (f"buffer_load_dwordx4 {vr(vT)}, {sWS}, {sYP} offen sc1 lds", "yin"),
             f"s_add_u32 {sT1}, {sYP}, {32*TP - 1024}",
             (f"buffer_load_dwordx4 {vr(vT)}, {sWS}, {sT1} offen offset:1024 sc1 lds", "yin"),
             (f"buffer_load_dwordx4 {vr(vT)}, {sWS}, {sYF} offen offset:2048 sc1 lds", "yin")]
    TY, TYR = O.get("t_y", 130), O.get("t_yr", 175)
    lins(TY, y_dma)

    red = []

    def rput(e, items, l=1 << 30, c=1):
        for x in items:
            red.append(dict(e=e - J, l=l - J, c=c, it=x))

    def retry(nm, cmp, again, fail):
        def f():
            stamp(nm + "0")
            lo, dn = A.newlabel("Lagain"), A.newlabel("Lhave")
            A(cmp)
            A(f"s_cbranch_vccz {dn}")
            A.label(lo)
            for x in again:
                A.raw("  " + (x[0] if isinstance(x, tuple) else x))
            A.raw(f"  s_sub_u32 {sSPIN}, {sSPIN}, 1")
            A.raw(f"  s_cbranch_scc1 {fail or dn}")
            for x in cmp.split("\n"):
                A.raw("  " + x)
            A.raw(f"  s_cbranch_vccnz {lo}")
            A.label(dn)
            stamp(nm + "1")
        return f
    wr = []

    def wput(ph, S_, l):
        for nt in range(5):
            wr.append(dict(e=60 * ph + g2done(nt) + 3 - J, l=l - J, c=1, gap=O.get("wgap", 4) if nt else 0,
                           it=f"ds_write_b128 v{vRW}, v[{S_+4*nt}:{S_+4*nt+3}] offset:{20480*ph+1024*nt}"))
        wr.append(dict(e=0, l=l - J, it=f"ds_write_b32 v{vFW}, v{vRW} offset:{4096+4*ph}"))

    def fetch(ph, S_, va, vf, off, e, l):
        rd = [f"ds_read_b32 v{vFV}, v{vf} offset:{FO+4*ph}"]
        rd += [f"ds_read_b128 v[{S_+4*nt}:{S_+4*nt+3}], v{va} offset:{off+1024*nt}" for nt in range(5)]
        rput(e, rd, l)
        rput(e + O.get("ckd", 8), [retry(f"x{ph}", f"v_cmp_eq_u32 vcc, 0, v{vFV}", rd + ["s_waitcnt lgkmcnt(0)"], "Lend")], l, 2)
    wr += [dict(e=0, it=x) for x in (f"v_add_u32 v{vRW}, {sRED[0]}, {vr(vL16)}", f"v_add_u32 v{vR2}, {sRED[1]}, {vr(vL16)}",
                                     f"v_add_u32 v{vR1}, {sRED[2]}, {vr(vL16)}", f"v_mov_b32 v{vFW}, {sCBW}",
                                     f"v_mov_b32 v{vF2}, {sC0}", f"v_mov_b32 v{vF1}, {sC1}")]
    X0, X1, X2 = O.get("x0", 100), O.get("x1", 160), O.get("x2", 200)
    wput(0, XS, X0)
    wput(1, YS, X1)
    wput(2, XS, X2)
    its = [f"v_sub_f32 v{vOMG}, 1.0, v{vGT}"]
    for i in range(10):
        t0 = vTM + 1 + (i & 1)
        its += [f"v_accvgpr_read_b32 v{t0}, a{240+i}", f"v_lshlrev_b32 v{vGQ+2*i}, 16, v{t0}",
                f"v_and_b32 v{vGQ+2*i+1}, 0xffff0000, v{t0}",
                f"v_mul_f32 v{vGQ+2*i}, v{vGQ+2*i}, v{vGT}", f"v_mul_f32 v{vGQ+2*i+1}, v{vGQ+2*i+1}, v{vGT}"]
    rput(62, its[:26], X0)
    fetch(0, XS, vR2, vF2, 0, X0, 120)
    rput(62, its[26:])
    rput(62, [f"v_accvgpr_read_b32 v{r}, a{250+i}" for i, r in enumerate((vYA, vYB, vOA, vOB))] + [f"v_add_u32 v{vYC}, {sCBW}, {vr(vL16)}"], O.get("t_yc", TYR - 20))
    ykr = [f"ds_read2st64_b32 v[{vYK}:{vYK+1}], v{vYC} offset0:0 offset1:4", f"ds_read_b32 v{vYK+2}, v{vYC} offset:2048"]
    yrd = [f"ds_read_b32 v{vYK}, v{vPA} offset:{FO+12}"]
    yrd += [f"ds_read_b64_tr_b16 v[{vYR+2*nt}:{vYR+2*nt+1}], v{va} offset:{off}"
            for nt, (va, off) in enumerate(((vYA, 0), (vYA, 512), (vYA, 1024), (vYA, 1536), (vYB, 0)))]

    def y_in():
        assert not any("yin" in str(d["it"]) for d in ldq[1]), "y loads must be out"
        stamp("yw0")
        A.wait("yin")
        stamp("yw1")
    TYC = O.get("t_yc", TYR - 20)
    yq = [dict(e=TYC - J, it=x) for x in [y_in] + ykr]
    ycmp = f"v_max3_u32 v{vYK}, v{vYK}, v{vYK+1}, v{vYK+2}\nv_cmp_eq_u32 vcc, -1, v{vYK}"
    again = [f"s_sleep {O.get('psleep', 1)}"] + [y_dma[i] for i in (1, 3, 4)] + ["s_waitcnt vmcnt(0)"] + ykr + ["s_waitcnt lgkmcnt(0)"]
    yq += [dict(e=TYC - J + O.get("ckd2", 5), c=2, it=retry("y", ycmp, again, None)),
           dict(e=0, l=TYR - J, it=f"ds_write_b32 v{vFW}, v{vRW} offset:{4096+12}")]

    def y_part():
        rput(TYR, yrd)
        rput(TYR + O.get("ckd", 8), [retry("z", f"v_cmp_eq_u32 vcc, 0, v{vYK}", yrd + ["s_waitcnt lgkmcnt(0)"], "Lend")], c=2)
    unp = lambda i: [f"v_lshlrev_b32 v{vTM+2*(i&1)}, 16, v{vYR+i}", f"v_and_b32 v{vTM+2*(i&1)+1}, 0xffff0000, v{vYR+i}"]
    gen_st = [f"v_mov_b32 v{vFV}, {sTAGR}", f"buffer_store_dword v{vFV}, v7, {sWS}, {sRG} offen sc1"]
    if TYR < X1:
        y_part()
    fetch(1, YS, vR2, vF2, 20480, X1, 180)
    if TYR < X2:
        if TYR >= X1:
            y_part()
        ym_ = []
        for i in range(10):
            t0, g = vTM + 2 * (i & 1), vGQ + 2 * i
            ym_ += unp(i) + [f"v_mul_f32 v{g}, v{g}, v{t0}", f"v_mul_f32 v{g+1}, v{g+1}, v{t0+1}"]
        k_ = min(40, max(0, (X2 - TYR - O.get("ckd", 8) - 2) * 2 // 4 * 4))
        rput(TYR, ym_[:k_])
        fetch(2, XS, vR1, vF1, 0, X2, 1 << 30)
        red[-1:-1] = [dict(e=TYR - J, it=x) for x in ym_[k_:]]
        rput(X2, gen_st)
        rput(X2, [f"v_fmac_f32 v{vGQ+i}, v{XS+i}, v{vOMG}" for i in range(20)])
    else:
        fetch(2, XS, vR1, vF1, 0, X2, 1 << 30)
        rput(X2, gen_st)
        rput(X2, [f"v_mul_f32 v{XS+i}, v{XS+i}, v{vOMG}" for i in range(20)])
        y_part()
        for i in range(10):
            t0, g = vTM + 2 * (i & 1), vGQ + 2 * i
            rput(TYR, unp(i) + [f"v_fma_f32 v{g}, v{g}, v{t0}, v{XS+2*i}", f"v_fma_f32 v{g+1}, v{g+1}, v{t0+1}, v{XS+2*i+1}"])
    for i in range(10):
        g, a = vGQ + 2 * i, YS + 2 * i
        if i < O.get("finw", 8):
            x = [f"v_fmac_f32 v{g}, v{a}, v{vOMG}", f"v_fmac_f32 v{g+1}, v{a+1}, v{vOMG}"]
        else:
            x = [f"v_pk_fma_f32 v[{g}:{g+1}], v[{a}:{a+1}], v[{vOMG}:{vOMG+1}], v[{g}:{g+1}] op_sel_hi:[1,0,1]"]
        x.append(f"v_cvt_pk_bf16_f32 v{vYR+i}, v{g}, v{g+1}")
        if i == 3:
            x.append(f"buffer_store_dwordx4 v[{vYR}:{vYR+3}], v{vOA}, {sOUT}, {sROWOFF} offen {OF}")
        if i == 7:
            x.append(f"buffer_store_dwordx4 v[{vYR+4}:{vYR+7}], v{vOA}, {sOUT}, {sROWOFF} offen offset:64 {OF}")
        if i == 9:
            x.append(f"buffer_store_dwordx2 v[{vYR+8}:{vYR+9}], v{vOB}, {sOUT}, {sROWOFF} offen offset:128 {OF}")
        rput(180 + g2done(i // 2) + 3, x)
    ldq = []
    left = weave3(A, anchors, [wr, ld, yq, red], 2, expose=ldq)
    print("g2 leftovers", [len(x) for x in left])
    drain(A, left)
    if O["stamps"]:
        A.waitall()
        stamp("end")
        A("s_memrealtime s[52:53]")
        A("s_waitcnt lgkmcnt(0)")
        A("v_mov_b32 v8, 0")
        for k in range(nst[0]):
            A(f"v_writelane_b32 v8, s{STR[k]}, {k}")
        A(f"s_sub_u32 s54, {sRB}, 4")
        A(f"s_cmp_ge_u32 s54, 12")
        A(f"s_cselect_b32 s54, 3, 2")
        A(f"s_lshl_b32 s54, s54, 8")
        A(f"s_or_b32 s54, s54, {sRB}")
        A(f"v_writelane_b32 v8, s54, 12")
        A("v_writelane_b32 v8, s100, 13")
        A("v_writelane_b32 v8, s52, 14")
        A(f"v_writelane_b32 v8, {sSPIN}, 15")
        A.raw("; STAMPS " + " ".join(names))
        A(f"""s_lshl_b32 s54, s2, 2
              s_add_u32 s54, s54, {sW}
              s_lshl_b32 s54, s54, 6
              s_add_u32 s54, s54, {WS_DBG}
              v_lshrrev_b32 v9, 2, {vr(vL16)}
              v_cmp_gt_u32 vcc, 64, v9
              v_mov_b32 v10, 0x7ff00000
              v_cndmask_b32 v9, v10, v9, vcc""")
        A(f"buffer_store_dword v8, v9, {sWS}, s54 offen")
    if O.get("dbg", 0):
        A("s_load_dwordx2 s[8:9], s[0:1], 88")
        A("s_mov_b32 s10, 256")
        A("s_mov_b32 s11, 0x20000")
        A("s_getreg_b32 s55, hwreg(HW_REG_XCC_ID)")
        A("s_waitcnt lgkmcnt(0)")
        A("s_not_b32 s100, s100")
        A("v_mov_b32 v10, s100")
        A("v_mov_b32 v11, s52")
        A("v_mov_b32 v12, 0")
        A("s_mov_b64 exec, 1")
        A("buffer_atomic_umax v10, v12, s[8:11], 0 offen sc1")
        A("buffer_atomic_umax v11, v12, s[8:11], 0 offen offset:4 sc1")
        for k in range(1, nst[0]):
            A(f"s_sub_u32 s54, s{STR[k]}, s{STR[0]}")
            A(f"v_mov_b32 v{12+k}, s54")
            A(f"buffer_atomic_umax v{12+k}, v12, s[8:11], 0 offen offset:{4+4*k} sc1")
        A("s_and_b32 s55, s55, 15")
        A("s_lshl_b32 s54, s2, 2")
        A("s_lshl_b32 s53, s55, s54")
        A("s_cmp_lt_u32 s2, 8")
        A("s_cselect_b32 s53, s53, 0")
        A("v_mov_b32 v30, s53")
        A("buffer_atomic_or v30, v12, s[8:11], 0 offen offset:56 sc1")
        A("s_lshr_b32 s54, s2, 1")
        A("s_lshl_b32 s53, s55, s54")
        A("s_and_b32 s54, s2, 0xc7")
        A("s_cmp_eq_u32 s54, 0")
        A("s_cselect_b32 s53, s53, 0")
        A("v_mov_b32 v31, s53")
        A("buffer_atomic_or v31, v12, s[8:11], 0 offen offset:60 sc1")
    if O.get("padto", 0):
        A.waitall()
        A.label("Lpad")
        A.raw("  s_memrealtime s[52:53]")
        A.raw("  s_waitcnt lgkmcnt(0)")
        A.raw("  s_sub_u32 s52, s52, s100")
        A.raw(f"  s_cmp_lt_u32 s52, {O['padto']}")
        A.raw("  s_cbranch_scc1 Lpad")
    A.label("Lend")
    A("s_endpgm")

    head = f"""; Fused gated mix: one persistent launch, 256 workgroups (32 row blocks x 8 column blocks).
; Generated by a script (address maps, interleaving and wait counts are computed there).
; @launch grid=(256,1,1) block=(256,1,1) lds={LDS}
.amdgcn_target "amdgcn-amd-amdhsa--gfx950"
.text
.globl {KN}_kernel
.p2align {O.get("al", 8)}
.type {KN}_kernel,@function
{KN}_kernel:
"""
    tail = f"""
.section .rodata,"a"
.p2align 6
.amdhsa_kernel {KN}_kernel
  .amdhsa_next_free_vgpr 512
  .amdhsa_next_free_sgpr 102
  .amdhsa_accum_offset 256
  .amdhsa_group_segment_fixed_size 0
  .amdhsa_kernarg_size 104
  .amdhsa_user_sgpr_count 2
  .amdhsa_user_sgpr_kernarg_segment_ptr 1
  .amdhsa_system_sgpr_workgroup_id_x 1
.end_amdhsa_kernel
"""
    txt = head + A.text() + tail
    if O.get("touch", ""):
        import padlib
        txt = padlib.add_pads(txt, sW, O.get("tstep", 4096), [x for x in O.get("textra", "Lnoconv+Ljoin").split("+") if x])
    return txt, A.stats


if __name__ == "__main__":
    out = sys.argv[1]
    kw = {}
    for a in sys.argv[2:]:
        k, v = a.split("=")
        kw[k] = int(v) if v.lstrip("-").isdigit() else v
    s, st = gen(**kw)
    open(out, "w").write(s)
    print(out, st)
```

```python
import sys, os
sys.path.insert(0, os.path.dirname(os.path.abspath(__file__)))
from asmlib import *

KN = "gated_mix__ssm_conv_h3__dense_activation_silu__prompt"

DEF = dict(stamps=0, mapping="B", rot=0, gs=2, dist=5, p0flag=8, poll_i=60, poll_c=76, w2pace=5,
           spin=200000, early_w1=6)


def gen(**kw):
    O = dict(DEF)
    O.update(kw)
    A = Asm()
    GS, DIST = O["gs"], O["dist"]
    NT = "nt" if O.get("nt", 0) else ""
    NTX = "nt" if O.get("ntx", 0) else ""
    OF = O.get("of", "").replace("+", " ")

    WS_COLP0, WS_COLG, WS_ROWG, WS_ROWH, WS_YF = 0x0000, 0x8000, 0xA000, 0x40000, 0x60000
    FLW = O.get("flw", 32)
    WS_DBG = 0x20000
    WS_KVT, WS_YT, WS_W2P, WS_H = 0x100000, 0x400000, 0x700000, 0x900000
    WS_SIZE = 0x1000000
    TP = 4224
    L_S = 81920
    L_K, L_V, L_W2 = 131072, 142336, 152576
    L_BO = 65536
    CBS = O.get("cbs", 0)
    SHR = O.get("shr", 1)
    HBP, YSP = 4224, 4352
    L_HB = 8192 * CBS
    L_UB = L_HB if SHR else L_HB + 4 * HBP
    L_YS = L_UB + 4 * HBP
    L_RED = O.get("lred", -(-(L_YS + 4 * YSP) // 8192) * 8192)
    L_YT = L_RED + 61440
    assert L_YT + 11264 <= 163840
    LDS = 163840
    sQ, sK, sV, sSH, sSK, sD, sW1, sW2, sGW, sOUT, sWS = [f"s[{8+4*i}:{11+4*i}]" for i in range(11)]
    srd = lambda n: int(n[2:].split(":")[0])
    sW, sRB, sCB, sROT = "s3", "s4", "s5", "s6"
    sT0, sT1, sT2, sT3 = "s52", "s53", "s54", "s55"
    sROWOFF = "s56"
    sW1K = "s57"
    sW2K = "s58"
    sTAGC, sTAGR = "s59", "s60"
    sCH = "s61"
    sNL2E = "s[62:63]"
    sJ = [f"s{64+i}" for i in range(10)]
    sHB = ["s74", "s75", "s76"]
    sKVO = "s77"
    sW2L = "s37"
    sSPIN = "s79"
    sHL = "s38"
    sSTAMP = 82

    nst = [0]
    names = []
    STR = [82, 84, 86, 88, 90, 92, 94, 96, 98, 64, 66, 68]
    SKIPST = O.get('nostamp', 'iss0+pre+karg+tiles').split('+')
    ONLY = [x for x in O.get('only', '').split('+') if x]
    if ONLY:
        ONLY += ["start", "end"]
        SKIPST = []

    def stamp(name):
        if O.get("touch", "") == name:
            A.settle()
            A.raw("; @TOUCH")
        if O.get("skfrom", "") == name:
            A.skip = O["skip"]
        if O.get("skto", "") == name:
            A.skip = None
        if O.get("padat", "") == name:
            A("s_memrealtime s[100:101]")
        if O["stamps"] and name in names:
            r = STR[names.index(name)]
            A(f"s_memtime s[{r}:{r+1}]")
        elif O["stamps"] and name not in SKIPST and (not ONLY or name in ONLY):
            r = STR[nst[0]]
            A(f"s_memtime s[{r}:{r+1}]")
            nst[0] += 1
            names.append(name)

    def vr(a, n=1):
        return f"v{a}" if n == 1 else f"v[{a}:{a+n-1}]"

    def ar(a, n=1):
        return f"a{a}" if n == 1 else f"a[{a}:{a+n-1}]"

    vTID, vLANE, vL16, vT = 0, 1, 2, 3
    vW1 = [6, 14]
    vTR = [10, 11, 12]
    vHS = 13
    vFL = 7
    vL16b, vL16c, vPR, vPC, vPAD = 4, 5, 8, 9, 0

    def poll(voff, tag, soff, vres=None, n=1, issue=True, check=True):
        ld = (f"buffer_load_dword {vr(vres)}, {vr(voff)}, {sWS}, {soff} offen sc1" if n == 1 else
              f"buffer_load_dwordx2 {vr(vres,2)}, {vr(voff)}, {sWS}, {soff} offen sc1")
        if issue:
            A(ld)
        if check:
            lo, dn = A.newlabel("Lpoll"), A.newlabel("Lgot")

            def cmp():
                A(f"v_cmp_ne_u32 vcc, {tag}, {vr(vres)}")
                if n == 2:
                    A(f"v_cmp_ne_u32 s[52:53], {tag}, {vr(vres+1)}")
                    A("s_or_b64 vcc, vcc, s[52:53]")
            cmp()
            A(f"s_cbranch_vccz {dn}" if n != 2 else f"s_cbranch_scc0 {dn}")
            A.label(lo)
            A.raw(f"  s_sleep {O.get('psleep', 1)}")
            A.raw("  " + ld)
            A.raw("  s_waitcnt vmcnt(0)")
            A.raw(f"  s_sub_u32 {sSPIN}, {sSPIN}, 1")
            A.raw(f"  s_cbranch_scc1 Lend")
            A.raw(f"  v_cmp_ne_u32 vcc, {tag}, {vr(vres)}")
            if n == 2:
                A.raw(f"  v_cmp_ne_u32 s[52:53], {tag}, {vr(vres+1)}")
                A.raw("  s_or_b64 vcc, vcc, s[52:53]")
            A.raw(f"  s_cbranch_vccnz {lo}" if n != 2 else f"  s_cbranch_scc1 {lo}")
            A.label(dn)

    A("s_cmp_ge_u32 s2, 256")
    A("s_cbranch_scc1 Lend")
    for s, off in ((sW2, 64), (sK, 8), (sV, 16), (sQ, 0), (sW1, 56), (sWS, 96), (sSH, 24), (sGW, 72), (sSK, 32),
                   (sD, 40), (sOUT, 80)):
        A(f"s_load_dwordx2 s[{srd(s)}:{srd(s)+1}], s[0:1], {off}")
    if O["stamps"] or O.get("padto", 0):
        A("s_memrealtime s[100:101]")
    stamp("start")
    A(f"v_lshrrev_b32 v20, 6, v0")
    A(f"v_and_b32 {vr(vLANE)}, 63, v0")
    A(f"v_readfirstlane_b32 {sW}, v20")
    if O["mapping"] == "A":
        A(f"""s_lshr_b32 {sT0}, s2, 3
              s_and_b32 {sCB}, {sT0}, 7
              s_lshr_b32 {sT0}, {sT0}, 3
              s_and_b32 {sRB}, s2, 7
              s_lshl_b32 {sRB}, {sRB}, 2
              s_add_u32 {sRB}, {sRB}, {sT0}""")
    else:
        A(f"""s_lshr_b32 {sT0}, s2, 3
              s_and_b32 {sCB}, {sT0}, 3
              s_and_b32 {sT1}, s2, 1
              s_lshl_b32 {sT1}, {sT1}, 2
              s_add_u32 {sCB}, {sCB}, {sT1}
              s_bfe_u32 {sRB}, s2, 0x20001""")
        if O.get("rbint", 1):
            if O.get("rbo", 0):
                A(f"s_add_u32 {sT0}, {sT0}, {O['rbo']}")
            A(f"""s_and_b32 {sT0}, {sT0}, 28
                  s_add_u32 {sRB}, {sRB}, {sT0}""")
        else:
            A(f"""s_lshr_b32 {sT0}, {sT0}, 2
                  s_lshl_b32 {sRB}, {sRB}, 3
                  s_add_u32 {sRB}, {sRB}, {sT0}""")
    for s, size in ((sQ, 2621440), (sK, 2621440), (sV, 2621440), (sSH, 5120), (sSK, 2621440), (sD, 1280),
                    (sW1, 1966080), (sW2, 1966080), (sGW, 1280), (sOUT, 2621440), (sWS, WS_SIZE)):
        A(f"s_mov_b32 s{srd(s)+2}, {size}")
        A(f"s_mov_b32 s{srd(s)+3}, 0x20000")
    A(f"""s_mul_i32 {sROWOFF}, {sRB}, 81920
          s_mul_i32 {sT0}, {sCB}, 160
          s_add_u32 {sROWOFF}, {sROWOFF}, {sT0}
          s_lshl_b32 {sW1K}, {sW}, 10
          s_lshl_b32 {sW2K}, {sW}, 11
          s_movk_i32 {sT1}, 6554
          s_movk_i32 {sT2}, 1120
          s_sub_u32 {sT3}, {sROWOFF}, 5120""")
    for n in range(3):
        A(f"v_add_u32 v26, {256*n}, v0") if n else A("v_mov_b32 v26, v0")
        A(f"""v_mul_u32_u24 v27, {sT1}, v26
              v_lshrrev_b32 v27, 16, v27
              v_lshlrev_b32 v26, 4, v26
              v_mad_u32_u24 v{20+n}, v27, {sT2}, v26
              v_add_u32 v{23+n}, {sT3}, v{20+n}""")
    A(f"v_lshlrev_b32 {vr(vL16)}, 4, {vr(vLANE)}")
    R = O["rot"]
    if R == 1:
        A(f"""s_mul_i32 {sT0}, {sRB}, 3
              s_add_u32 {sT0}, {sT0}, {sCB}""")
    elif R == 2:
        A(f"s_lshr_b32 {sT0}, s2, 5")
    elif R == 3:
        A(f"s_and_b32 {sT0}, s2, 7")
    elif R == 4:
        A(f"""s_lshr_b32 {sT0}, s2, 5
              s_and_b32 {sT1}, s2, 7
              s_add_u32 {sT0}, {sT0}, {sT1}""")
    elif R == 5:
        A(f"""s_bfe_u32 {sT0}, s2, 0x10005
              s_mul_i32 {sT0}, {sT0}, 5""")
    elif R >= 6:
        A(f"""s_mul_i32 {sT0}, {sRB}, {O.get("ra", 3)}
              s_mul_i32 {sT1}, {sCB}, {O.get("rc", 5)}
              s_add_u32 {sT1}, {sT1}, 1
              s_lshr_b32 {sT1}, {sT1}, 1
              s_lshr_b32 {sT0}, {sT0}, {O.get("rs", 0)}
              s_add_u32 {sT0}, {sT0}, {sT1}""")
    if R:
        A(f"""s_mul_i32 {sT1}, {sT0}, 6554
              s_lshr_b32 {sT1}, {sT1}, 16
              s_mul_i32 {sT1}, {sT1}, 10
              s_sub_u32 {sROT}, {sT0}, {sT1}""")
    else:
        A(f"s_mov_b32 {sROT}, 0")
    vX0, vX1 = 114, 115
    sXO, sXE = "s81", "s7"
    A(f"""v_lshrrev_b32 v26, 3, {vr(vLANE)}
          v_lshrrev_b32 v27, 4, {vr(vLANE)}
          v_and_b32 v38, 7, {vr(vLANE)}
          v_xor_b32 v39, v38, v27
          s_movk_i32 {sT0}, 1280
          s_mul_i32 {sT1}, {sW}, 20480
          v_lshlrev_b32 v39, 4, v39
          v_mad_u32_u24 v{vX0}, v26, {sT0}, v39
          v_add_u32 v{vX0}, {sT1}, v{vX0}
          v_xor_b32 v{vX1}, 64, v{vX0}
          v_add_u32 v{vX1}, {8*1280-1024}, v{vX1}
          s_mul_i32 {sXE}, {sRB}, 81920
          s_lshl_b32 {sXO}, {sROT}, 7
          s_add_u32 {sXO}, {sXO}, {sXE}
          s_add_u32 {sXE}, {sXE}, 1280""")
    A(f"""v_and_b32 v27, 1, v27
          v_lshlrev_b32 v27, 2, v27
          v_xor_b32 v39, v38, v27
          v_lshlrev_b32 v39, 4, v39
          s_movk_i32 {sT0}, 3072
          s_mul_i32 {sT1}, {sW}, 49152
          v_mad_u32_u24 v{vW1[0]}, v26, {sT0}, v39""")
    A(f"""v_add_u32 v{vW1[0]}, {sT1}, v{vW1[0]}
          v_add_u32 v{vW1[1]}, {8*3072-1024}, v{vW1[0]}
          s_mul_i32 {sT0}, {sCB}, 384
          s_mul_i32 {sJ[0]}, {sROT}, 196608
          s_add_u32 {sJ[0]}, {sJ[0]}, {sT0}""")
    stamp("pre")
    A("s_waitcnt lgkmcnt(0)")
    stamp("karg")

    NCB = -(-(L_YS + (4 * YSP if O.get("nft", 0) else 0) - L_HB) // 8192)
    wslot = {b: 10 + b for b in range(10)}
    wdep = {}
    fq = []
    QL = O.get("ql", 0)
    for j in range(10):
        fq += [(10 + j, j)] + ([(j, j)] if not (CBS <= j < CBS + NCB) and j >= O.get("xs0", 0) and not QL else [])
    if QL:
        fq += [(j, 9) for j in range(10) if not (CBS <= j < CBS + NCB)]
    for b in range(10, 30):
        wslot[b], wdep[b] = fq.pop(0)
        fq.append((wslot[b], b))

    def slot(b):
        return 8192 * wslot[b]

    def w1_items(b):
        p, j = divmod(b, 10)
        assert slot(b) >= 128 * p
        return [f"s_add_u32 m0, {sW2K}, {slot(b) - 128 * p}",
                (f"buffer_load_dwordx4 v{vW1[0]}, {sW1}, {sJ[j]} offen offset:{128*p} lds", f"w1_{b}"),
                (f"buffer_load_dwordx4 v{vW1[1]}, {sW1}, {sJ[j]} offen offset:{1024+128*p} lds", f"w1_{b}")]

    def x_items(j):
        it = [f"s_add_u32 m0, {sW2K}, {8192*j}"]
        if j:
            it = [f"s_add_u32 {sXO}, {sXO}, 128", f"s_cmp_ge_u32 {sXO}, {sXE}", f"s_cselect_b32 m0, 1280, 0",
                  f"s_sub_u32 {sXO}, {sXO}, m0"] + it
        it = ["\n".join(it)]
        it += [(f"buffer_load_dwordx4 v{vX0}, {sQ}, {sXO} offen {NTX} lds", f"w1_{j}"),
               (f"buffer_load_dwordx4 v{vX1}, {sQ}, {sXO} offen offset:1024 {NTX} lds", f"w1_{j}")]
        return it

    def pair(j):
        for it in x_items(j) + w1_items(j):
            put_item(A, it)

    def tile_dma(n, which):
        for s, reg, vo, so in which:
            A(f"s_add_u32 m0, {sW1K}, {reg + 4096*n}")
            A(f"buffer_load_dwordx4 v{vo+n}, {s}, {so} offen {NT} lds", "p0in")
    W2T, KT, VT = (sW2, L_W2, 20, sROWOFF), (sK, L_K, 23, "0"), (sV, L_V, 20, sROWOFF)
    PF = O.get("pairfirst", 0)
    TL = dict(q=(sQ, sXO), w=(sW1, sJ[0]), s=(sWS, "0"), h=(sSH, "0"), k=(sK, sROWOFF), v=(sV, sROWOFF), u=(sW2, sROWOFF),
              c=(sSK, sROWOFF), g=(sGW, "0"), d=(sD, "0"), o=(sOUT, sROWOFF))
    for i_, c_ in enumerate(str(O.get("tlb", ""))):
        A(f"buffer_load_dword v{238+i_ if i_ < 4 else 240+i_}, off, {TL[c_][0]}, {TL[c_][1]}")
    if PF:
        pair(0)
    tile_dma(0, [W2T, KT, VT])
    tile_dma(1, [W2T, KT, VT])
    A(f"s_cmp_ge_u32 {sW}, 3")
    A.begin_opt("s_cbranch_scc1", settle=False)
    tile_dma(2, [KT])
    A.end_opt()
    A(f"s_cmp_ge_u32 {sW}, 2")
    A.begin_opt("s_cbranch_scc1", settle=False)
    tile_dma(2, [W2T, VT])
    A.end_opt()

    stamp("tiles")
    vCT, vI16, vR, vCHL = 28, 29, 30, 31
    A(f"""v_lshrrev_b32 v26, 4, v0
          v_mul_u32_u24 v27, 52, v26
          v_lshrrev_b32 v27, 8, v27
          v_mul_u32_u24 v{vR}, 5, v27
          v_sub_u32 v{vCT}, v26, v{vR}
          v_mul_u32_u24 v{vR}, 24, v27
          v_min_u32 v{vR}, 40, v{vR}
          v_and_b32 v{vI16}, 15, v0
          v_lshl_add_u32 v{vCHL}, v{vCT}, 4, v{vI16}
          v_lshlrev_b32 v26, 3, v{vCHL}
          s_mul_i32 {sT0}, {sCB}, 640""")
    vSH = 168
    A(f"buffer_load_dwordx2 v[{vSH}:{vSH+1}], v26, {sSH}, {sT0} offen", "p0in")
    if not PF:
        pair(0)
    stamp("iss0")

    for j in range(1, 10):
        A(f"""s_add_u32 {sJ[j]}, {sJ[j-1]}, 196608
              s_cmp_ge_u32 {sJ[j]}, 1966080
              s_cselect_b32 {sT0}, 1966080, 0
              s_sub_u32 {sJ[j]}, {sJ[j]}, {sT0}""")
    vGW = 130
    vGWA = 154
    A(f"""v_bfe_u32 v52, {vr(vLANE)}, 3, 2
          v_add_u32 v53, {sROT}, v52""")
    for n in range(3):
        A(f"""v_add_u32 v54, {4*n}, v53
              v_subrev_u32 v55, 10, v54
              v_min_u32 v54, v54, v55
              v_lshlrev_b32 v54, 7, v54
              v_lshl_add_u32 v{vGWA+n}, v38, 4, v54""")
        if n == 2:
            A(f"""v_lshrrev_b32 v55, 1, v52
                  v_lshl_add_u32 v{vGWA+n}, v55, 16, v{vGWA+n}""")
    vKA, vBW, vBR, vRA, vRB_ = 158, 159, 160, 161, 162
    A(f"""v_lshrrev_b32 v26, 2, v{vI16}
          v_add_u32 v26, v26, v{vR}
          v_mul_u32_u24 v26, 160, v26
          v_and_b32 v27, 3, v0
          v_lshl_add_u32 v26, v27, 3, v26
          v_lshl_add_u32 v26, v{vCT}, 5, v26
          v_add_u32 v{vKA}, {L_K}, v26
          v_mul_u32_u24 v26, 144, v{vCHL}
          v_lshl_add_u32 v26, v{vR}, 1, v26
          v_add_u32 v{vBW}, {L_BO}, v26
          v_lshrrev_b32 v26, 3, v0
          v_mul_u32_u24 v54, 144, v26
          v_lshl_add_u32 v54, v38, 4, v54
          v_add_u32 v{vBR}, {L_BO}, v54
          v_mul_u32_u24 v54, {TP}, v26
          v_lshl_add_u32 {vr(vT)}, v38, 4, v54""")
    A(f"""v_lshrrev_b32 v26, 5, {vr(vLANE)}
          v_lshlrev_b32 v26, 4, v26
          v_bfe_u32 v54, {vr(vLANE)}, 2, 3
          v_add_u32 v26, v26, v54
          v_mul_u32_u24 v26, 160, v26
          s_and_b32 {sT0}, {sW}, 1
          s_mul_i32 {sT0}, {sT0}, 5120
          s_add_u32 {sT0}, {sT0}, {L_W2}
          s_lshr_b32 {sT1}, {sW}, 1
          s_lshl_b32 {sT1}, {sT1}, 6
          v_add_u32 v26, {sT0}, v26
          v_lshl_add_u32 v{vRB_}, v27, 3, v26
          v_lshl_add_u32 v{vRA}, v27, 4, v26
          v_add_u32 v{vRA}, {sT1}, v{vRA}""")
    A(f"""v_lshrrev_b32 v26, 5, {vr(vLANE)}
          v_lshlrev_b32 v26, 10, v26
          v_bfe_u32 v54, {vr(vLANE)}, 2, 2
          v_lshl_add_u32 v26, v54, 7, v26
          v_bfe_u32 v54, {vr(vLANE)}, 3, 1
          v_lshlrev_b32 v54, 6, v54
          v_xor_b32 v54, {sT1}, v54
          v_add_u32 v26, v26, v54
          v_bfe_u32 v54, {vr(vLANE)}, 4, 1
          v_lshl_add_u32 v26, v54, 5, v26
          v_lshl_add_u32 v{vTR[0]}, v27, 3, v26
          v_add_u32 v{vTR[1]}, 65536, v{vTR[0]}
          v_add_u32 v{vTR[2]}, 131072, v{vTR[0]}""")
    A(f"""v_lshrrev_b32 v26, 5, {vr(vLANE)}
          v_lshlrev_b32 v26, 8, v26
          v_lshl_add_u32 v26, v{vI16}, 4, v26
          v_mul_u32_u24 v54, 49152, v54
          v_add_u32 v{vHS}, v26, v54
          s_mul_i32 {sHB[0]}, {sRB}, 196608
          s_and_b32 {sT0}, {sW}, 1
          s_mul_i32 {sT0}, {sT0}, 98304
          s_add_u32 {sHB[0]}, {sHB[0]}, {sT0}
          s_mul_i32 {sT0}, {sCB}, 6144
          s_add_u32 {sHB[0]}, {sHB[0]}, {sT0}
          s_lshl_b32 {sT1}, {sT1}, 4
          s_add_u32 {sHB[0]}, {sHB[0]}, {sT1}
          s_add_u32 {sHB[0]}, {sHB[0]}, {WS_H}""")
    A(f"""s_add_u32 {sHB[1]}, {sHB[0]}, 2048
          s_add_u32 {sHB[2]}, {sHB[0]}, 4096""")
    A(f"""
          s_mul_i32 {sKVO}, {sCB}, {80*TP}
          s_lshl_b32 {sT0}, {sRB}, 7
          s_add_u32 {sKVO}, {sKVO}, {sT0}
          s_mul_i32 {sCH}, {sCB}, 80
          s_sub_u32 {sT0}, {sRB}, 12
          s_min_u32 {sT0}, {sT0}, {sRB}
          s_lshl_b32 {sT0}, {sT0}, 2
          s_add_u32 {sCH}, {sCH}, {sT0}
          s_add_u32 {sCH}, {sCH}, {sW}
          s_sub_u32 {sT0}, {sRB}, 4
          s_cmp_ge_u32 {sT0}, 12
          s_cselect_b32 {sCH}, {sCH}, 0x4000
          s_mov_b32 s62, 0xbfb8aa3b
          s_mov_b32 s63, 0xbfb8aa3b
          s_mov_b32 {sSPIN}, {O["spin"]}""")
    A(f"""v_cmp_gt_u32 vcc, {FLW}, {vr(vLANE)}
          v_mov_b32 v26, 0x7ff00000
          v_lshlrev_b32 v54, 2, {vr(vLANE)}
          v_cndmask_b32 v{vFL}, v26, v54, vcc""")
    vXA = 116
    A(f"""v_and_b32 v26, 31, {vr(vLANE)}
          v_lshlrev_b32 v26, 7, v26
          v_lshrrev_b32 v54, 5, {vr(vLANE)}
          v_lshrrev_b32 v55, 1, v{vI16}
          v_xor_b32 v54, v54, v55
          v_lshl_add_u32 v26, v54, 4, v26
          s_and_b32 {sT0}, {sW}, 1
          s_lshl_b32 {sT0}, {sT0}, 12
          v_add_u32 v{vXA}, {sT0}, v26""")
    for ks in range(1, 4):
        A(f"v_xor_b32 v{vXA+ks}, {ks<<5}, v{vXA}")
    for ks in range(4):
        A(f"v_add_u32 v{vXA+4+ks}, 65536, v{vXA+ks}")
    if QL:
        A(f"""v_lshrrev_b32 v26, 4, {vr(vLANE)}
              s_mul_i32 {sT0}, {sCB}, 10
              v_lshlrev_b32 v72, 7, v{vI16}
              v_add_u32 v72, {sW2K}, v72""")
        for n in range(3):
            if n < 2:
                A(f"""s_add_u32 {sT1}, {sT0}, {4*n}
                      v_add_u32 v54, {sT1}, v26""")
            else:
                A(f"""s_add_u32 {sT1}, {sT0}, 8
                      v_lshrrev_b32 v54, 1, v26
                      v_add_u32 v54, {sT1}, v54""")
            A(f"""v_lshrrev_b32 v73, 3, v54
                  v_subrev_u32 v73, {sROT}, v73
                  v_add_u32 v74, 10, v73
                  v_min_u32 v73, v73, v74
                  v_and_b32 v54, 7, v54
                  v_xor_b32 v54, v54, v55
                  v_lshl_add_u32 v54, v54, 4, v72
                  v_lshl_add_u32 v{124+n}, v73, 13, v54""")
        A(f"""v_and_b32 v26, 1, v26
              v_lshl_add_u32 v126, v26, 3, v126""")
    vGA = 127
    A(f"""s_lshl_b32 {sT0}, {sCB}, 2
          s_add_u32 {sT0}, {sT0}, {sW}
          s_and_b32 {sT1}, {sT0}, 7
          s_lshl_b32 {sT0}, {sT0}, 8
          v_xor_b32 v26, {sT1}, v38
          v_lshlrev_b32 v26, 4, v26
          v_lshrrev_b32 v54, 5, {vr(vLANE)}
          v_lshl_add_u32 v26, v54, 7, v26
          v_add_u32 v26, {sT0}, v26
          v_lshl_add_u32 v{vGA}, v52, 13, v26
          v_and_b32 v54, 1, v52
          v_lshl_add_u32 v26, v54, 13, v26
          v_add_u32 v{vGA+1}, 65536, v26""")
    sWA, sWB = "s78", "s80"
    A(f"""s_mul_i32 {sT0}, {sCB}, 48
          s_lshl_b32 {sT1}, {sRB}, 1
          s_add_u32 {sT0}, {sT0}, {sT1}
          s_and_b32 {sT1}, {sW}, 1
          s_add_u32 {sT0}, {sT0}, {sT1}
          s_mul_i32 {sT0}, {sT0}, 5120
          s_add_u32 {sT0}, {sT0}, {WS_W2P}
          s_cmp_lt_u32 {sRB}, 24
          s_cselect_b32 {sT0}, {sT0}, 0x7f000000
          s_and_b32 {sT1}, {sW}, 2
          s_lshl_b32 {sWA}, {sT1}, 10
          s_add_u32 {sWA}, {sWA}, {sT0}
          s_add_u32 {sWB}, {sT0}, 4096
          s_cmp_eq_u32 {sT1}, 0
          s_cselect_b32 {sWB}, {sWB}, 0x7f000000""")
    stamp("calc")
    NPRE_P = O.get("prepairs", 3)
    if O.get("gw_at", 9) == 0:
        for n in range(3):
            A(f"buffer_load_dwordx4 v[{vGW+4*n}:{vGW+4*n+3}], v{vGWA+n}, {sGW}, 0 offen")
    for j in range(1, NPRE_P):
        pair(j)
    vG0, vG1 = 170, 171
    A(f"""s_lshl_b32 {sT0}, {sCB}, 8
          s_lshl_b32 {sT1}, {sRB}, 8
          s_add_u32 {sT0}, {sT0}, {WS_COLG}
          s_add_u32 {sT1}, {sT1}, {WS_ROWG}""")
    A(f"buffer_load_dword v{vG0}, off, {sWS}, {sT0} sc1")
    A(f"buffer_load_dword v{vG1}, off, {sWS}, {sT1} sc1")
    stamp("issued")
    vPO = 104
    vPA = 106
    vZ = 107
    vDD = 108
    vGAD, vHAD, vUAD, vYW = 109, 110, 111, 112
    vG = 114
    vH = 178
    Hreg = lambda b: vH + 2 * (31 - b)
    vU = [252, 253, 254, 109]
    vQA, vQB = (86, 87) if QL else (124, 125)
    sHF, sRP, sYP, sYF = "s12", "s13", "s14", "s15"
    sHP = ["s16", "s17", "s18", "s19"]
    sRED = ["s20", "s21", "s22"]
    sHIN, sCBW, sCG, sRG = "s23", "s36", "s39", sROT
    calc2 = []
    sC0, sC1 = "s0", "s1"

    def C2(t):
        for l in t.strip().split("\n"):
            l = l.strip()
            if l.startswith("s_cselect"):
                calc2[-1] += "\n" + l
            else:
                calc2.append(l)
    C2(f"v_and_b32 v85, 15, {vr(vLANE)}")
    C2(f"""s_mul_i32 {sC0}, {sW}, {HBP}
          v_min_u32 v80, 23, {vr(vLANE)}
          v_lshl_add_u32 v{vPAD}, v80, 2, {sC0}
          s_add_u32 {sCBW}, {sC0}, {L_HB+96}
          s_lshl_b32 {sHIN}, {sCH}, 12
          v_and_b32 v80, 3, {vr(vLANE)}
          v_lshrrev_b32 v81, 4, {vr(vLANE)}
          v_bfe_u32 v82, {vr(vLANE)}, 2, 2
          v_add_u32 v83, v80, v81
          v_lshlrev_b32 v83, 5, v83
          v_lshl_add_u32 v83, v82, 3, v83
          v_add_u32 v{vGAD}, {sC0}, v83
          v_sub_u32 v83, v80, v82
          v_lshlrev_b32 v84, 2, v81
          v_sub_u32 v83, v83, v84
          s_add_u32 {sC1}, {sC0}, {L_UB+192}
          v_lshl_add_u32 v{vHAD}, v83, 3, {sC1}
          s_add_u32 {sC1}, {sC0}, {L_UB+96}
          v_lshl_add_u32 v{vUAD}, {vr(vLANE)}, 1, {sC1}
          s_mul_i32 {sC1}, {sW}, {YSP}
          s_add_u32 {sC1}, {sC1}, {L_YS+6}
          v_lshl_add_u32 v{vYW}, {vr(vLANE)}, 1, {sC1}
          v_add_u32 v113, {sC1}, {vr(vL16)}""")
    for r in (vDD, Hreg(-1), Hreg(-1) + 1, vU[0], vU[1], vU[2]):
        C2(f"v_mov_b32 v{r}, 0")
    C2(f"""v_lshlrev_b32 v82, 7, v82
          v_lshl_add_u32 v82, v80, 3, v82
          s_lshl_b32 {sC1}, {sW}, 5
          s_add_u32 {sC1}, {sC1}, {L_YT}
          v_add_u32 v82, {sC1}, v82
          v_lshl_add_u32 v83, v81, 10, v82
          v_lshl_add_u32 v82, v81, 9, v82
          v_mul_u32_u24 v84, 1280, v85
          v_lshl_add_u32 v{vQA}, v81, 4, v84
          v_lshl_add_u32 v{vQB}, v81, 3, v84
          v_accvgpr_write_b32 a250, v83
          v_accvgpr_write_b32 a251, v82
          v_accvgpr_write_b32 a252, v{vQA}
          v_accvgpr_write_b32 a253, v{vQB}
          s_mul_i32 {sC1}, {sW}, 20480
          s_add_u32 {sROWOFF}, {sROWOFF}, {sC1}""")
    C2(f"""v_and_b32 v{vPC}, 31, {vr(vLANE)}
          v_lshlrev_b32 v{vPC}, 7, v{vPC}
          s_lshl_b32 {sHL}, {sCB}, 12
          v_lshrrev_b32 v80, 1, v85
          v_and_b32 v81, 1, {vr(vLANE)}
          v_lshlrev_b32 v81, 3, v81
          v_lshl_add_u32 v{vPR}, v80, 7, v81
          v_min_u32 v80, 23, {vr(vLANE)}
          v_lshrrev_b32 v81, 3, v80
          v_mul_u32_u24 v81, 24, v81
          v_add_u32 v80, v80, v81
          v_lshl_add_u32 v80, v80, 7, {sW1K}
          v_min_u32 v{vPA}, {79*128}, v80
          v_add_u32 v{vL16b}, 4096, {vr(vL16)}
          v_add_u32 v{vL16c}, 8192, {vr(vL16)}""")
    C2(f"""s_lshl_b32 {sCG}, {sCB}, 8
          s_add_u32 {sCG}, {sCG}, {WS_COLG}
          s_or_b32 {sC1}, {sRB}, {sW}
          s_cmp_eq_u32 {sC1}, 0
          s_cselect_b32 {sCG}, {sCG}, 0x7f000000
          s_lshl_b32 {sRG}, {sRB}, 8
          s_add_u32 {sRG}, {sRG}, {WS_ROWG}
          s_or_b32 {sC1}, {sCB}, {sW}
          s_cmp_eq_u32 {sC1}, 0
          s_cselect_b32 {sRG}, {sRG}, 0x7f000000
          s_mul_i32 {sW2L}, {sCB}, {48*5120}
          s_mul_i32 {sC1}, {sW}, {12*5120}
          s_add_u32 {sW2L}, {sW2L}, {sC1}
          s_add_u32 {sW2L}, {sW2L}, {WS_W2P}
          s_lshl_b32 {sRP}, {sRB}, 12
          s_lshl_b32 {sHF}, {sCB}, 9
          s_add_u32 {sRP}, {sRP}, {WS_ROWH}
          s_add_u32 {sHF}, {sHF}, {sRP}
          s_lshl_b32 {sC0}, {sW}, 7
          s_add_u32 {sHF}, {sHF}, {sC0}
          s_add_u32 {sRP}, {sRP}, {sW1K}
          s_mul_i32 {sC1}, {sRB}, 196608
          s_mul_i32 {sC0}, {sW}, 12288
          s_add_u32 {sC1}, {sC1}, {sC0}
          s_add_u32 {sC1}, {sC1}, {WS_H}""")
    for ph in range(4):
        C2(f"""s_add_u32 {sC0}, {sW}, {1+ph}
              s_and_b32 {sC0}, {sC0}, 3
              s_mul_i32 {sC0}, {sC0}, 49152
              s_add_u32 {sHP[ph]}, {sC0}, {sC1}""")
    C2(f"""s_lshr_b32 {sYP}, {sRB}, 3
          s_cmp_eq_u32 {sYP}, 1
          s_cselect_b32 {sYP}, 8, 0
          s_add_u32 {sYP}, {sYP}, {sCB}
          s_mul_i32 {sYP}, {sYP}, {80*128}
          s_add_u32 {sYP}, {sYP}, {WS_YF}
          s_lshl_b32 {sYF}, {sCH}, 7
          s_add_u32 {sYF}, {sYF}, {WS_YF}
          s_cmp_lt_u32 {sCH}, 640
          s_cselect_b32 {sYF}, {sYF}, 0x7f000000
          s_mul_i32 {sCH}, {sCH}, {TP}
          s_add_u32 {sCH}, {sCH}, {WS_KVT}
          s_mul_i32 {sRED[0]}, {sW}, 5120
          s_add_u32 {sRED[0]}, {sRED[0]}, {L_RED}
          s_xor_b32 {sRED[1]}, {sW}, 2
          s_mul_i32 {sRED[1]}, {sRED[1]}, 5120
          s_add_u32 {sRED[1]}, {sRED[1]}, {L_RED}
          s_add_u32 {sRED[2]}, {sW}, 1
          s_and_b32 {sRED[2]}, {sRED[2]}, 3
          s_mul_i32 {sRED[2]}, {sRED[2]}, 5120
          s_add_u32 {sRED[2]}, {sRED[2]}, {L_RED + 40960}""")
    NC2 = O.get("c2pro", 0)
    for x in calc2[:NC2]:
        A(x)
    calc2 = calc2[NC2:]
    stamp("calc2")

    A.wait("p0in")
    A("s_barrier")
    stamp("p0in")
    vWT = 172
    vP = 184
    vVV = 198
    vO = 210
    vE = 222
    for m in range(7):
        A(f"ds_read_b64_tr_b16 v[{vP+2*m}:{vP+2*m+1}], v{vKA} offset:{640*m}")
        if m < 6:
            A(f"ds_read_b64_tr_b16 v[{vVV+2*m}:{vVV+2*m+1}], v{vKA} offset:{640*m + L_V - L_K}")
    for i, (va, off) in enumerate(((vRA, 0), (vRA, 8), (vRB_, 128))):
        A(f"ds_read_b64_tr_b16 v[{vWT+4*i}:{vWT+4*i+1}], v{va} offset:{off}")
        A(f"ds_read_b64_tr_b16 v[{vWT+4*i+2}:{vWT+4*i+3}], v{va} offset:{off+1280}")
    vWa, vWb, vWc, vWd, vWe = 163, 164, 165, 166, 167
    A(f"""s_mov_b32 {sT0}, 0xffff
          v_and_b32 v{vWa}, 0xffff, v{vSH}
          v_bfi_b32 v{vWb}, {sT0}, v{vSH+1}, v{vSH}
          v_and_b32 v{vWc}, 0xffff0000, v{vSH+1}
          v_alignbit_b32 v{vWd}, v{vSH}, v{vSH}, 16
          v_alignbit_b32 v{vWe}, v{vSH+1}, v{vSH+1}, 16""")
    w2st = [(f"buffer_store_dwordx4 v[{vWT}:{vWT+3}], {vr(vL16)}, {sWS}, {sWA} offen sc1", "p0out"),
            (f"buffer_store_dwordx4 v[{vWT+4}:{vWT+7}], {vr(vL16)}, {sWS}, {sWA} offen offset:1024 sc1", "p0out"),
            (f"buffer_store_dwordx4 v[{vWT+8}:{vWT+11}], {vr(vL16)}, {sWS}, {sWB} offen sc1", "p0out")]
    w2st_txt = w2st[-1][0]
    NP0_P = O.get("p0pairs", 6)
    mem = []
    for j in range(NPRE_P, NP0_P):
        mem += [x_items(j), w1_items(j)]
    if O.get("w2st_early", 0):
        mem = [[x] for x in w2st] + mem
        w2st = []
    for o in range(13):
        e = vE + 4 * (o & 1) * 2
        if o < 12:
            A(f"""v_dot2_f32_bf16 v{e}, v{vP+o+2}, v{vWa}, 0
                  v_dot2_f32_bf16 v{e+1}, v{vP+o+2}, v{vWd}, 0
                  v_dot2_f32_bf16 v{e}, v{vP+o+1}, v{vWb}, v{e}
                  v_dot2_f32_bf16 v{e+1}, v{vP+o+1}, v{vWe}, v{e+1}
                  v_dot2_f32_bf16 v{e}, v{vP+o}, v{vWc}, v{e}
                  v_lshlrev_b32 v{e+2}, 16, v{vVV+o}
                  v_and_b32 v{e+3}, 0xffff0000, v{vVV+o}""")
        if o > 0:
            e = vE + 4 * ((o - 1) & 1) * 2
            A(f"""v_pk_mul_f32 v[{e}:{e+1}], v[{e}:{e+1}], v[{e+2}:{e+3}]
                  v_cvt_pk_bf16_f32 v{vO+o-1}, v{e}, v{e+1}""")
            if o % 4 == 0:
                i = o // 4 - 1
                A(f"ds_write_b128 v{vBW}, v[{vO+4*i}:{vO+4*i+3}] offset:{16*i}", "bo")
        k = -(-len(mem) // (13 - o))
        if o % 2 == 1 or len(mem) >= 13 - o:
            for _ in range(min(k, len(mem))):
                for it in mem.pop(0):
                    put_item(A, it)
    stamp("p0done")

    def bo_reads():
        for n in range(3):
            A(f"ds_read_b128 v[{vP+4*n}:{vP+4*n+3}], v{vBR} offset:{4608*n}")

    sKA = [sT0, sT1, sT2]
    kvst = [f"s_add_u32 {sT3}, {sKVO}, {WS_KVT}",
            (f"buffer_store_dwordx4 v[{vP}:{vP+3}], {vr(vT)}, {sWS}, {sT3} offen sc1", "p0out"),
            f"s_add_u32 {sT3}, {sKVO}, {WS_KVT + 32*TP}",
            (f"buffer_store_dwordx4 v[{vP+4}:{vP+7}], {vr(vT)}, {sWS}, {sT3} offen sc1", "p0out"),
            f"s_add_u32 {sT3}, {sKVO}, {WS_KVT + 64*TP}\ns_cmp_lt_u32 {sW}, 2\ns_cselect_b32 {sT3}, {sT3}, 0x7f000000",
            (f"buffer_store_dwordx4 v[{vP+8}:{vP+11}], {vr(vT)}, {sWS}, {sT3} offen sc1", "p0out")]

    vGX = 142
    gw_ld = [f"buffer_load_dwordx4 v[{vGW+4*n}:{vGW+4*n+3}], v{vGWA+n}, {sGW}, 0 offen" for n in range(3)]
    q_ld = [f"buffer_load_dwordx4 a[240:243], v{vQA}, {sQ}, {sROWOFF} offen",
            f"buffer_load_dwordx4 a[244:247], v{vQA}, {sQ}, {sROWOFF} offen offset:64",
            f"buffer_load_dwordx2 a[248:249], v{vQB}, {sQ}, {sROWOFF} offen offset:128"]

    if QL:
        q_ld = [f"ds_read_b128 v[{vGX}:{vGX+3}], v{vGA}", f"ds_read_b128 v[{vGX+4}:{vGX+7}], v{vGA} offset:32768",
                f"ds_read_b128 v[{vGX+8}:{vGX+11}], v{vGA+1}",
                "ds_read_b128 a[240:243], v124", "ds_read_b128 a[244:247], v125", "ds_read_b64 a[248:249], v126"]

    def gate_read(j):
        m = (0xff << (8 * (j & 3))) if j < 8 else (0x00ff00ff << (8 * (j & 1)))
        src = f"v{vGA} offset:{32768*(j>>2)}" if j < 8 else f"v{vGA+1}"
        r = vGX + 4 * (j >> 2)
        return (f"s_mov_b32 exec_lo, {m:#x}\ns_mov_b32 exec_hi, {m:#x}\nds_read_b128 v[{r}:{r+3}], {src}\ns_mov_b64 exec, -1", f"rd_{j}")
    gops = []
    g0, g1, g2 = 154, 155, 156
    for i in range(12):
        gops.append(f"v_dot2_f32_bf16 v{g0}, v{vGX+i}, v{vGW+i}, " + ("0" if i == 0 else f"v{g0}"))
    for m in ("quad_perm:[1,0,3,2]", "quad_perm:[2,3,0,1]", "row_half_mirror", "row_mirror"):
        gops.append(f"v_add_f32_dpp v{g0}, v{g0}, v{g0} {m} row_mask:0xf bank_mask:0xf")
    gops.append(f"v_add_f32_dpp v{g0}, v{g0}, v{g0} row_bcast:15 row_mask:0xa bank_mask:0xf")
    gops += [f"v_mul_f32 v{g0}, s62, v{g0}", f"v_exp_f32 v{g0}, v{g0}", f"v_add_f32 v{g0}, 1.0, v{g0}", f"v_rcp_f32 v{g0}, v{g0}"]
    sG0, sG1 = sXE, sXO
    gops += [f"v_readlane_b32 {sG0}, v{g0}, 31", f"v_readlane_b32 {sG1}, v{g0}, 63"]

    vACC = [16, 32]
    NB = 8
    vFR = 48
    vS = 80
    vHO = 96

    def fr_reads(n):
        b, ks = divmod(n, 4)
        a = slot(b) + 2048 * ks
        base, off = vTR[a >> 16], a & 0xffff
        f = vFR + 4 * (n % NB)
        r = [f"ds_read_b64_tr_b16 v[{f}:{f+1}], v{base} offset:{off}",
             f"ds_read_b64_tr_b16 v[{f+2}:{f+3}], v{base} offset:{off+512}"]
        if n < 40:
            va, off = (vXA + ks, 8192 * b) if b < 8 else (vXA + 4 + ks, 8192 * (b - 8))
            r.append(f"ds_read_b128 {ar(4*n,4)}, v{va} offset:{off}")
        r = [(x, f"rd_{b}") for x in r]
        if n < 40 and ks == 3 and not QL:
            r.append(gate_read(b))
        return r

    GS0 = O.get("gs0", 1)
    starts = list(range(0, 10, GS0)) + [int(x) for x in str(O.get("grp", "10+12+14+16+20+24+27")).split("+")]
    STRICT = O.get("strict", 10)
    grp_of = {}
    for gi_, st_ in enumerate(starts):
        en_ = starts[gi_ + 1] if gi_ + 1 < len(starts) else 30
        for b_ in range(st_, en_):
            grp_of[b_] = gi_
    extra_tags = {}

    def group_sync(g):
        def f():
            tags = [f"w1_{b}" for b in range(30) if grp_of[b] == g] + extra_tags.get(g, [])
            if g == grp_of[O["p0flag"]]:
                tags.append("p0out")
            if O.get("strict0", 0) <= starts[g] <= STRICT:
                tags += [f"rd_{b}" for b in range(starts[g])]
            A.wait(*tags)
            A("s_barrier")
            if g == grp_of[O["p0flag"]]:
                A(f"""v_readfirstlane_b32 {sTAGC}, v{vG0}
                      v_readfirstlane_b32 {sTAGR}, v{vG1}
                      s_mul_i32 {sTAGC}, {sTAGC}, 0x2C9277B5
                      s_mul_i32 {sTAGR}, {sTAGR}, 0x2C9277B5
                      s_add_u32 {sTAGC}, {sTAGC}, 0xAC564B05
                      s_add_u32 {sTAGR}, {sTAGR}, 0xAC564B05
                      s_lshl_b32 {sT0}, {sCB}, 12
                      s_lshl_b32 {sT1}, {sRB}, 7
                      s_add_u32 {sT0}, {sT0}, {sT1}
                      s_cmp_eq_u32 {sW}, 0
                      s_cselect_b32 {sT0}, {sT0}, 0x7f000000
                      v_mov_b32 v{vZ}, {sTAGC}""")
                A(f"buffer_store_dword v{vZ}, v{vFL}, {sWS}, {sT0} offen sc1")
        return f

    def silu_ops(p, pk=False):
        ac = vACC[p & 1]
        ops = []
        for h in range(0, 8, 2):
            t0, t1 = vS + 4 * ((h >> 1) & 1), vS + 4 * ((h >> 1) & 1) + 2
            z0, z1 = ac + 2 * h, ac + 2 * h + 2
            if pk:
                ops += [(1, f"v_pk_mul_f32 v[{t0}:{t0+1}], v[{z0}:{z0+1}], {sNL2E}"),
                        (1, f"v_pk_mul_f32 v[{t1}:{t1+1}], v[{z1}:{z1+1}], {sNL2E}")]
            else:
                ops += [(1, f"v_mul_f32 v{t0+i}, s62, v{z0+i}") for i in range(4)]
            ops += [(2, f"v_exp_f32 v{t0+i}, v{t0+i}") for i in range(4)]
            if pk:
                ops += [(1, f"v_pk_add_f32 v[{t0}:{t0+1}], v[{t0}:{t0+1}], 1.0 op_sel_hi:[1,0]"),
                        (1, f"v_pk_add_f32 v[{t1}:{t1+1}], v[{t1}:{t1+1}], 1.0 op_sel_hi:[1,0]")]
            else:
                ops += [(1, f"v_add_f32 v{t0+i}, 1.0, v{t0+i}") for i in range(4)]
            ops += [(2, f"v_rcp_f32 v{t0+i}, v{t0+i}") for i in range(4)]
            if pk:
                ops += [(1, f"v_pk_mul_f32 v[{t0}:{t0+1}], v[{t0}:{t0+1}], v[{z0}:{z0+1}]"),
                        (1, f"v_pk_mul_f32 v[{t1}:{t1+1}], v[{t1}:{t1+1}], v[{z1}:{z1+1}]")]
            else:
                ops += [(1, f"v_mul_f32 v{t0+i}, v{t0+i}, v{z0+i}") for i in range(4)]
            ops += [(1, f"v_cvt_pk_bf16_f32 v{vHO+h}, v{t0}, v{t0+1}"),
                    (1, f"v_cvt_pk_bf16_f32 v{vHO+h+1}, v{t1}, v{t1+1}")]
            if h in (2, 6):
                r = h >> 2
                ops.append((1, (f"buffer_store_dwordx4 v[{vHO+4*r}:{vHO+4*r+3}], v{vHS}, {sWS}, {sHB[p]} offen offset:{512*r} sc1", "hout")))
        return ops

    def w2reg(i):
        return (4 * i + 160) % 240

    def w2_items(i):
        it = []
        if i % 4 == 0 and i:
            it.append(f"s_add_u32 {sW2L}, {sW2L}, 4096")
        it.append(f"buffer_load_dwordx4 {ar(w2reg(i),4)}, {vr(vL16)}, {sWS}, {sW2L} offen offset:{1024*(i%4)} sc1")
        return it

    extra_tags[0] = ["bo"]
    group_sync(0)()
    stamp("g1start")
    bo_reads()
    synced = {0}
    sync_at = {0: -2}
    for n in range(DIST):
        g = grp_of[n // 4]
        if g not in synced:
            A.waitall(vm=False)
            group_sync(g)(); synced.add(g); sync_at[g] = -1
        for r in fr_reads(n):
            put_item(A, r)

    def frag_wait(n):
        def f():
            rs = [("v", vFR + 4 * (n % NB) + i) for i in range(4)]
            A._wait([A.pend[r] for r in rs if r in A.pend])
        return f
    anchors = []
    for n in range(120):
        p, k = divmod(n, 40)
        ac = vACC[p & 1]
        f = vFR + 4 * (n % NB)
        grp = [f"v_mfma_f32_32x32x16_bf16 v[{ac}:{ac+15}], v[{f}:{f+3}], {ar(4*k,4)}, " + ("0" if k == 0 else f"v[{ac}:{ac+15}]")]
        if n >= 40 and n % O.get("fw", 2) == 0 and O.get("fw", 2) > 1:
            grp.insert(0, frag_wait(n + O.get("fw", 2) - 1))
        m = n + DIST
        if m < 120:
            g = grp_of[m // 4]
            if g not in synced:
                grp.append(group_sync(g)); synced.add(g); sync_at[g] = n
            grp += fr_reads(m)
        if n in (39, 79) and O.get("pstamp", 0):
            grp.append((lambda nm: (lambda: stamp(nm)))(f"pass{n//40}"))
        if f"b{n}" in ONLY:
            grp.append((lambda nm: (lambda: stamp(nm)))(f"b{n}"))
        anchors.append(grp)
    sync_after = lambda n: min(v for v in sync_at.values() if v >= n)

    def free_at(b):
        g = grp_of[b] + 1
        if g < len(starts) and O.get("strict0", 0) <= starts[g] <= STRICT:
            return max(sync_at[g], 0)
        return sync_after(4 * b + 3)
    for b in range(10, 30):
        for lo, hi in ((L_YS, L_YS + 4 * YSP), (L_RED, L_RED + 20480)):
            if slot(b) < hi and slot(b) + 8192 > lo:
                free_at(b)
    dma = []
    LA = O.get("la", 100)
    st_list = [[x] for x in w2st] + [kvst[0:2], kvst[2:4], kvst[4:6]]
    SP = O.get("stpace", 0)
    stw = []
    if O.get("stw", 0):
        import re as _re

        def turn(grp, i):
            def f():
                A(f"s_cmp_eq_u32 {sW}, {i}")
                A.begin_opt("s_cbranch_scc0", settle=False)
                for x in grp:
                    put_item(A, x)
                A.end_opt()
            return f
        k_ = 0
        G_ = O.get("stg", 1)
        while st_list:
            grp = []
            for _ in range(G_):
                grp += st_list.pop(0)
            for i in range(4):
                stw.append(dict(e=O.get("st0", 1) + k_ * O["stw"] // 10, l=sync_at[grp_of[O["p0flag"]]], c=3, it=turn(grp, i)))
                k_ += 1
    for b in range(NP0_P, 30):
        lat = sync_at[grp_of[b]]
        e = 0 if b < 10 else free_at(wdep[b])
        e = max(e, lat - LA)
        if O.get("fl", 0):
            i_ = (2 * b + 1 if b < 10 else b + 10) - O["fl"]
            d_ = i_ // 2 if i_ < 20 else i_ - 10
            e = max(e, 4 * d_ - DIST)
        its = w1_items(b)
        if b < 10:
            its = x_items(b) + its
        for it in its:
            dma.append(dict(e=e, l=lat, it=it))
        if b == O.get("gw_at", 9):
            for it in gw_ld:
                dma.append(dict(e=e, l=lat, it=it))
        if b + 1 >= O.get("st_at", 6):
            for _ in range(O.get("st_n", 6)):
                if st_list:
                    for it in st_list.pop(0):
                        dma.append(dict(e=e, l=sync_at[grp_of[O["p0flag"]]], it=it))
    if O.get("st_at", 6) <= NP0_P:
        pass
    e_q = sync_at[grp_of[9]]
    qs = [dict(e=e_q + (0 if i_ < 8 else 4), l=O.get("g_at", 44), it=x) for i_, x in enumerate(gops)]
    if QL:
        assert STRICT >= 10
        qs = [dict(e=e_q, l=free_at(9), it=(x, "rd_9")) for x in q_ld] + [dict(d, e=e_q + 3) for d in qs]
    pi = O["poll_i"]

    def ins_at(e, items):
        pos = next((i for i, d in enumerate(dma) if d["e"] > e), len(dma))
        dma[pos:pos] = [dict(e=e, it=x) for x in items]
    ins_at(pi, [lambda: poll(vPC, sTAGC, sHL, vPO, check=False)])
    if not QL:
        ins_at(O.get("q_at", 30), q_ld)
    e_h = max(free_at(9 if QL else CBS + 2), O.get('hin_at', 0))
    e_u = free_at(CBS + NCB - 1)
    misc = [(f"ds_write_b32 v{vPAD}, v{Hreg(-1)} offset:{L_HB}", "pad"), f"s_mov_b32 m0, {sCBW}"]
    misc += [(f"buffer_load_dwordx4 {vr(vL16)}, {sSK}, {sHIN} offen offset:{1024*i} {NT} lds", "hin") for i in range(4)]
    misc += [f"s_lshr_b32 {sHIN}, {sHIN}, 11", f"buffer_load_short_d16_hi v{vDD}, off, {sD}, {sHIN}"]
    ins_at(e_h, misc)
    pc = max(O["poll_c"], e_u, e_h)

    def col_ok():
        poll(vPC, sTAGC, sHL, vPO, issue=False)
        A(f"buffer_store_dword v{vZ}, v{vFL}, {sWS}, {sCG} offen sc1")

    def g_done():
        assert sum(f"v{vGAD} offset:" in l for l in A.out) == 32
        A.wait("grd")
    misc2 = [col_ok]
    if SHR:
        misc2 += [g_done, f"s_mov_b32 m0, {sCBW}"]
    else:
        misc2 += [(f"ds_write_b32 v{vPAD}, v{Hreg(-1)} offset:{L_UB}", "pad"), f"s_add_u32 m0, {sCBW}, {L_UB-L_HB}"]
    misc2 += [(f"buffer_load_dwordx4 {vr(vL16)}, {sWS}, {sCH} offen offset:{1024*i} sc1 lds", "uin") for i in range(4)]
    misc2 += [f"s_add_u32 {sCH}, {sCH}, {WS_YT-WS_KVT}"]
    ins_at(pc, misc2)
    NW2_G1 = O.get("w2g1", 12)
    w2s = max(pc + 2, max(d["e"] for d in dma), O.get("w2start", 0))
    for i in range(NW2_G1):
        for x in w2_items(i):
            e = w2s + (i * O.get("w2p1", 5)) // 2
            if i >= 20:
                e = max(e, 80 + i - 20 + 1)
            dma.append(dict(e=min(e, 119), it=x))
    sil = []
    for p in range(2):
        for c, x in silu_ops(p, O.get("g1pk", 0)):
            sil.append(dict(e=40 * (p + 1) + 2, l=40 * (p + 2), c=c, it=x))
    def wait_in(tag, text):
        def f():
            assert any(text in l for l in A.out), tag
            A.wait(tag, "pad")
        return f

    def g_ok():
        txt = "\n".join(A.out)
        assert O.get("skip") or gops[-1] in txt and q_ld[-1] in txt and w2st_txt in txt and not any(q_ld[0] in str(d["it"]) for d in gq[0])
        wait_in("hin", misc[-1])()
    vHFD = 15
    GA, HA = O.get("g_at", 44), O.get("h_at", 90)
    gh = [dict(e=GA, c=0, it=g_ok)]
    gh += [dict(e=GA, it=(f"ds_read_b64_tr_b16 v[{vG+2*x}:{vG+2*x+1}], v{vGAD} offset:{L_HB+128*x}", "grd")) for x in range(32)]
    if SHR:
        for d in gh:
            d["l"] = pc
    gh += [dict(e=GA, it=x) for x in (f"v_mov_b32 v{vHFD}, {sTAGR}", f"v_writelane_b32 v{vHFD}, {sG0}, 1",
                                      f"v_writelane_b32 v{vHFD}, {sG1}, 3", f"v_mov_b32 v{vU[3]}, 0")]
    gh += [dict(e=HA, c=0, it=wait_in("uin", "offen offset:3072 sc1 lds"))]
    gh += [dict(e=HA, it=f"ds_read_b64_tr_b16 v[{Hreg(n)}:{Hreg(n)+1}], v{vHAD} offset:{128*n}") for n in range(31, -1, -1)]
    vCV = 255
    vYO = 96
    SETS = [32, 36, 40, 44, 28]
    vZ7 = 0
    CH = [dict(E=[244, 245], R1=[246, 247], R2=[248, 249]), dict(E=[16, 17], R1=[18, 19], R2=[20, 21])]
    vZZ = [250, 251]
    XSET = [vG + 4 * q for q in (15, 14, 13, 12)][:O.get("xsets", 4)]
    order = list(range(31, 23, -1))
    for i in range(8):
        order += [23 - i, 7 - i]
    order += list(range(15, 7, -1))
    NFT = O.get("nft", 0)
    NF = sum(n // 2 + 1 for n in order[:NFT])
    NCV = 272 - NF
    J = O.get("join", 24)
    first, last = {}, {}
    k = -NF
    for n in order:
        first[n] = k
        k += n // 2 + 1
        last[n] = k - 1
    assert k == NCV
    cva = []
    setof, nxt_use = {}, {}
    ring = [88, 92]
    for i, n in enumerate(order):
        if i == NFT:
            ring = list(SETS)
        if n == O.get("xset_at", 23):
            ring = XSET + ring
        r_ = ring.pop(0)
        ring.append(r_)
        for m in setof:
            if setof[m] == r_ and m not in nxt_use:
                nxt_use[m] = n
        setof[n] = r_
    for n in order:
        ac = setof[n]
        for q in range(n // 2 + 1):
            b = n - 2 * q
            cva.append([f"v_mfma_f32_16x16x32_bf16 v[{ac}:{ac+3}], v[{vG+4*q}:{vG+4*q+3}], v[{Hreg(b)}:{Hreg(b)+3}], " +
                            ("0" if q == 0 else f"v[{ac}:{ac+3}]")])
        if O.get("pstamp", 0) and n % 4 == 0:
            cva[-1].append((lambda nm: (lambda: stamp(nm)))(f"t{n}"))
    DP = "row_mask:0xf bank_mask:0xf"
    seq = []
    for n in order:
        seq.append(n)
        if n == 15:
            seq.append(-1)
        if n == 8:
            seq.append(107)
    comb = []
    ureg = lambda si: vU[si & 3]

    def uread(si):
        return [f"ds_read_u16_d16_hi v{ureg(si)}, v{vUAD} offset:{128*seq[si]}"] if si < len(seq) and 0 <= seq[si] < 32 else []
    for si in range(4):
        comb.append(dict(e=-NF, it=uread(si)[0]))
    MD = O.get("mdel", 3)
    late = []
    nrb = [0]
    defer = []
    pos = lambda m: (7 if m == 107 else m) + 1
    for si, n in enumerate(seq):
        real = 0 <= n < 32
        tn = n if real else (0 if n == -1 else 8)
        ch = CH[1] if (n < 8) else CH[0]
        par = (n if real else tn - 1) & 1
        E, R1, R2 = ch["E"][par], ch["R1"][par], ch["R2"][par]
        Ep, R1p, R2p = ch["E"][par ^ 1], ch["R1"][par ^ 1], ch["R2"][par ^ 1]
        Z = vZ7 if n == 7 else vZZ[si & 1]
        e = last[tn if real else seq[si - 1]] + MD
        l = first[nxt_use[n]] if n in nxt_use else 1 << 30
        if ch is CH[1]:
            l = min(l, NCV)
        if si & 1:
            pre, F = [], uread(si + 3) + uread(si + 4)
        else:
            pre, F = defer[:1], defer[1:]
            defer = []
        F1, F2 = F[:1], F[1:]
        if real:
            D = setof[n]
            bc = " bound_ctrl:0" if n == 7 else ""
            rol = [[f"v_add_f32_dpp v{d}, v{s_}, v{D+1+i} wave_rol:1 {DP}"] if n not in (7, 31) else []
                   for i, (d, s_) in enumerate(((R1, Ep), (R2, R1p), (Z, R2p)))]
            shl = [[f"v_add_f32_dpp v{d}, v{s_}, v{D+1+i} wave_shl:1 {DP}{bc}"] for i, (d, s_) in enumerate(((R1, E), (R2, R1), (Z, R2)))]
            fma = [f"v_fma_f32 v{E}, v{ureg(si)}, v{vDD}, v{D}"]
        else:
            zop = (lambda s_, m: f"v_mov_b32_dpp v{Z}, v{s_} {m} {DP}") if n == -1 else (lambda s_, m: f"v_add_f32_dpp v{Z}, v{s_}, v{vZ7} {m} {DP}")
            rol = [[f"v_mov_b32_dpp v{R1}, v{Ep} wave_rol:1 {DP}"], [f"v_mov_b32_dpp v{R2}, v{R1p} wave_rol:1 {DP}"], [zop(R2p, "wave_rol:1")]]
            shl = [[], [f"v_mov_b32_dpp v{R2}, v{R1} wave_shl:1 {DP}"], [zop(R2, "wave_shl:1")]]
            fma = []
        it = rol[0] + pre + fma + rol[1] + rol[2] + shl[0] + F1 + shl[1] + F2 + shl[2]
        if si & 1:
            defer = [f"v_cvt_pk_bf16_f32 v{vCV}, v{vZZ[0]}, v{Z}",
                     f"ds_write_b16 v{vYW}, v{vCV} offset:{128*pos(seq[si-1])}",
                     f"ds_write_b16_d16_hi v{vYW}, v{vCV} offset:{128*pos(n)}"]
            cks = {7: [(3, 0)], -1: [(2, 0), (0, 0)], 107: [(1, 1)]}.get(n, [])
            if cks:
                it += defer
                defer = []
            for ck, fl in cks:
                r_ = {3: vYO, 2: vYO + 4, 0: 22, 1: vYO}[ck]
                it.append(f"ds_read_b128 v[{r_}:{r_+3}], v113 offset:{122+1024*ck}")
                late.append((si + 1 if ck != 3 or not O.get("ydefer", 1) else seq.index(-1) + 1, (f"buffer_store_dwordx4 v[{r_}:{r_+3}], {vr(vL16)}, {sWS}, {sCH} offen offset:{1024*ck} sc1", f"yout{fl}")))
        for x in it:
            comb.append(dict(e=e, l=l, it=x))
        while late and (si + 1 == len(seq) or late[0][0] <= si):
            comb.append(dict(e=e, l=(NCV if si + 1 < len(seq) else 1 << 30), gap=(O.get("ygap", 8) if si + 1 == len(seq) else 0), it=late.pop(0)[1]))
    C1 = [int(x, 16) for x in str(O.get("cap1", "866"))]
    gq = []
    for d in dma:
        t_ = d["it"][0] if isinstance(d["it"], tuple) else d["it"]
        if isinstance(t_, str) and t_.startswith("buffer_"):
            d["c"] = O.get("vmc", 2)
    c2s = [dict(e=0, l=min(e_h, O.get("q_at", 30)) if i_ < 46 - NC2 else 40, it=x) for i_, x in enumerate(calc2)]
    strm = [dma, c2s, qs, sil, gh] if O.get("gprio", 0) == 0 else [dma, c2s, qs, gh, sil]
    if stw:
        strm.insert(1, stw)
    F0, F1 = O.get("f0", HA + 2), O.get("f1", 120)
    fine, idx, cpos, caps = [], {}, {}, []
    kf = 0
    for i, grp in enumerate(anchors):
        idx[i] = len(fine)
        fine.append(grp)
        caps.append(C1[i // 40] if i < F0 or not NF else O.get("fcap", 4))
        while i >= F0 and kf < NF and kf < (i + 1 - F0) * NF / (F1 - F0):
            cpos[kf - NF] = len(fine)
            fine.append(cva[kf])
            caps.append(2)
            kf += 1
    assert kf == NF
    for st_ in strm:
        for d in st_:
            d["e"] = idx[d["e"]]
            if d.get("l", 1 << 30) < 120:
                d["l"] = idx[d["l"]]
            else:
                d["l"] = 1 << 30
    fcomb = []
    if NF:
        for nb in range(32):
            gh[-32 + nb]["l"] = cpos[nb // 2 - NF] - O.get("hdist", 1)
        while comb[0]["e"] - MD < 0:
            d = comb.pop(0)
            fcomb.append(dict(d, e=cpos[max(d["e"] - MD, -NF)] + O.get("fmdel", 2), l=cpos.get(d.get("l", 0), 1 << 30), post=d))
    left = weave3(A, fine, strm + [fcomb], lambda i: caps[i], expose=gq, padok=O.get("padok", 36))
    print("g1 leftovers", [len(x) for x in left])
    drain(A, left[:-1])
    comb[0:0] = [dict(d["post"], e=0) for d in left[-1]]
    stamp("g1end")

    XS, YS = 8, 28
    HQ = [48 + 4 * i for i in range(12)]
    for q in range(15, -1, -1):
        HQ += [x for x in (vG + 4 * q, vH + 4 * (15 - q)) if x not in XSET]
    HQ += XSET + [242, 246, 250, 108]
    assert len(HQ) == 48

    def hload(i):
        kk = i % 12
        vo = (vL16, vL16b, vL16c)[kk // 4]
        return f"buffer_load_dwordx4 v[{HQ[i]}:{HQ[i]+3}], v{vo}, {sWS}, {sHP[i//12]} offen offset:{1024*(kk%4)} sc1"

    def h_flag():
        assert sum(f"{sWS}, {sHB[2]} offen offset" in l for l in A.out) in (2, 4)
        stamp("hf0")
        A.wait("hout")
        stamp("hf1")
        A(f"buffer_store_dword v{vHFD}, v7, {sWS}, {sHF} offen sc1")

    vGT = 6

    def row_ok():
        stamp("ro0")
        poll(vPR, sTAGR, sRP, vPO, n=3, issue=False)
        stamp("ro1")
        A(f"v_mov_b32 v{vGT}, v{vPO+1}")

    quad_free = {}
    for q in range(16):
        t_ = last[max(2 * q, 8)] + 1
        quad_free[vG + 4 * q] = quad_free[vH + 4 * (15 - q)] = t_

    PACE, HPACE = O.get("w2pace", 5), O.get("hpace", 5)
    T_HF, T_RP, T_RO = O.get("t_hf", 110), O.get("t_rp", 150), O.get("t_ro", 180)
    common = []
    t = O.get("w2t0", 2)
    GAPS = [tuple(int(y) for y in x.split("-")) for x in str(O.get("gaps", "")).split("+") if x]

    def nogap(t):
        for a_, b_ in GAPS:
            if a_ <= t < b_:
                t = b_
        return t
    wi = NW2_G1
    while wi < 60 and t <= T_RO:
        t = nogap(t)
        for x in w2_items(wi):
            common.append(dict(e=t, it=x))
        t += PACE
        wi += 1

    def cins(e, items, c=1):
        pos = next((i for i, d in enumerate(common) if d["e"] > e), len(common))
        common[pos:pos] = [dict(e=e, it=x, c=c) for x in items]
    cins(T_HF, [h_flag], 2)
    cins(T_RP, [lambda: poll(vPR, sTAGR, sRP, vPO, n=3, check=False)])
    assert T_RO < NCV - 10
    cins(T_RO, [row_ok], 2)
    hl = []
    t = max(T_RO, common[-1]["e"]) + 1
    KM = 5 * (12 - O.get("ntm", 4))
    rest = [(60 * (i // 12) + min(5 * (i % 12), KM), 1, i) for i in range(48)] + [(min(i, KM), 0, i) for i in range(wi, 60)]
    tprev = t - 1
    for dl, kind, i in sorted(rest):
        t = max(min(t, NCV + dl - O.get("lead", 40)), tprev + O.get("minpace", 2))
        if kind:
            t = max(t, quad_free.get(HQ[i], 0))
            if i >= 44 - len(XSET):
                t = max(t, NCV + J)
        t = nogap(t)
        for x in ([hload(i)] if kind else w2_items(i)):
            hl.append(dict(e=min(t, NCV + dl - 1), l=NCV + dl, it=x))
        tprev = t
        t += HPACE
    while hl and hl[0]["e"] < NCV + J - 1:
        common.append(hl.pop(0))

    NTM = O.get("ntm", 4)

    def g2pos(r):
        if r < 5 * (12 - NTM):
            return divmod(r, 5)
        nt, kk = divmod(r - 5 * (12 - NTM), NTM)
        return kk + 12 - NTM, nt
    g2done = lambda nt: max(r for r in range(60) if g2pos(r)[1] == nt)
    g2need = lambda kk: min(r for r in range(60) if g2pos(r)[0] == kk)

    def g2anchor(a):
        ph, r = divmod(a, 60)
        kk, nt = g2pos(r)
        ac = (XS, YS)[ph & 1] + 4 * nt
        hq = HQ[12 * ph + kk]
        return (f"v_mfma_f32_16x16x32_bf16 v[{ac}:{ac+3}], {ar(w2reg(kk*5+nt),4)}, v[{hq}:{hq+3}], " +
                ("0" if kk == 0 and ph < 2 else f"v[{ac}:{ac+3}]"))

    A(f"s_cmp_lt_u32 {sYF}, 0x7f000000")
    A.settle()
    A("s_cbranch_scc0 Lnoconv")
    import copy
    saved = (copy.deepcopy(A.q), dict(A.pend), A.nid)
    A.nopt += 1
    A.opt = A.nopt
    A._hidden = []
    optid = A.opt

    def as_common(it):
        def f():
            ids0 = A.nid
            put_item(A, it)
            for qn in A.q:
                for e in A.q[qn]:
                    if e["id"] > ids0:
                        e["opt"] = 0
        f.inner = it
        return f

    def y_flag(i):
        assert sum(f"{sWS}, {sCH} offen offset" in l and "store" in l for l in A.out) >= 3 + i
        A.wait(f"yout{i}")
        A(f"buffer_store_dword v{vZ}, v7, {sWS}, {sYF} offen sc1")
        if i == 0:
            A(f"s_add_u32 {sYF}, {sYF}, {640*128}")
        else:
            stamp("yfl")

    anchors = cva[NF:] + [[g2anchor(a)] for a in range(J)]
    if O.get("pstamp", 0):
        for a_ in range(len(anchors)):
            if f"a{a_}" in ONLY:
                anchors[a_].append((lambda nm: (lambda: stamp(nm)))(f"a{a_}"))
    so = silu_ops(2)
    if O.get("hst2", 1):
        so = [x for x in so if not isinstance(x[1], tuple)] + [x for x in so if isinstance(x[1], tuple)]
    sil2 = [dict(e=O.get("s2t0", 0), l=min(last[7], min(first[n] for n in order if setof[n] == 28)), c=c, it=as_common(x)) for c, x in so]
    com2 = [dict(d, it=as_common(d["it"])) for d in common]
    FA = O.get("t_fa", NCV + J - 2)
    fa_in = FA < NCV + J
    if fa_in:
        pos = next((i for i, d in enumerate(com2) if d["e"] > FA), len(com2))
        com2.insert(pos, dict(e=FA, it=lambda: y_flag(0), c=2))
    cq = []
    S2C = O.get("s2cap", 4)
    left = weave3(A, anchors, [com2, sil2, comb], lambda i: S2C if cq[1] else 2, expose=cq)
    print("conv leftovers", [len(x) for x in left])
    drain(A, [left[1], left[2], left[0]])
    stamp("cvm")
    A.settle()
    A("s_branch Ljoin")
    for qn in A.q:
        back = [h for h in A._hidden if h[0] == qn]
        A.q[qn] = [h[1] for h in back] + A.q[qn]
        for h in back:
            for r, v in h[2].items():
                A.pend.setdefault(r, v)
    A.opt = 0
    stateA = (A.q, A.pend, A.nid)
    A.label("Lnoconv")
    A.q, A.pend, A.nid = saved[0], saved[1], stateA[2]
    for c, x in silu_ops(2, True):
        put_item(A, x)
    cb_ = [d["it"] for d in common if d["it"] is not h_flag]
    cb_.insert(O.get("nc_hf", 8), h_flag)
    for x in cb_:
        put_item(A, x)
    for a in range(J):
        A(g2anchor(a))
    A.waitall(vm=False)
    stamp("cvm")
    A.settle()
    seqB = [e["text"] for e in A.q["vm"]]
    seqA = [e["text"] for e in stateA[0]["vm"] if e["opt"] == 0]
    assert seqA[-len(seqB):] == seqB, (seqA, seqB)
    nid = A.nid
    A.q, A.pend, A.nid = stateA[0], stateA[1], nid
    A.label("Ljoin")
    stamp("conv")

    vGQ = 48
    vOMG = 68
    vYR = 70
    vTM = 80
    vRW, vR2, vR1, vYA, vYB, vOA, vOB = 100, 101, 102, 87, 88, 89, 90
    anchors = []
    for a in range(J, 240):
        anchors.append([g2anchor(a)])
        if O.get("pstamp", 0) and a % 60 == 59:
            anchors[-1].append((lambda nm: (lambda: stamp(nm)))(f"ph{a//60}"))
    ld = [dict(d, e=d["e"] - NCV - J, l=d.get("l", 1 << 30) - NCV - J) for d in hl]

    def lins(e, items, c=1):
        e -= J
        pos = next((i for i, d in enumerate(ld) if d["e"] > e), len(ld))
        ld[pos:pos] = [dict(e=e, it=x, c=c) for x in items]
    if not fa_in:
        lins(FA - NCV, [lambda: y_flag(0)], 2)
    lins(O.get("t_fb", 70), [lambda: y_flag(1)], 2)

    def y_chk():
        stamp("ychk")
        poll(vPA, sTAGC, sYP, vPO, issue=False)
        stamp("ypass")
    y_dma = [f"s_add_u32 {sT1}, {sKVO}, {WS_YT}\ns_add_u32 m0, {sW1K}, {L_YT}",
             (f"buffer_load_dwordx4 {vr(vT)}, {sWS}, {sT1} offen sc1 lds", "yin"),
             f"s_add_u32 {sT1}, {sKVO}, {WS_YT + 32*TP}\ns_add_u32 m0, {sW1K}, {L_YT+4096}",
             (f"buffer_load_dwordx4 {vr(vT)}, {sWS}, {sT1} offen sc1 lds", "yin"),
             f"s_add_u32 {sT1}, {sKVO}, {WS_YT + 64*TP}\ns_cmp_lt_u32 {sW}, 2\ns_cselect_b32 {sT1}, {sT1}, 0x7f000000\ns_add_u32 m0, {sW1K}, {L_YT+8192}",
             (f"buffer_load_dwordx4 {vr(vT)}, {sWS}, {sT1} offen sc1 lds", "yin")]
    TI, TC = O.get("ypoll_i", 90), O.get("ypoll_c", 130)
    lins(TI, [lambda: poll(vPA, sTAGC, sYP, vPO, check=False)])
    lins(TC, [y_chk] + y_dma)

    red = []

    def rput(e, items, l=1 << 30, c=1):
        for x in items:
            red.append(dict(e=e - J, l=l - J, c=c, it=x))

    def sync(nm, tags):
        def f():
            A.wait(*tags)
            A("s_barrier")
            stamp(nm)
        return f
    BD = O.get("bdel", 12)
    wr = []

    def wput(ph, S_, l):
        for nt in range(5):
            wr.append(dict(e=60 * ph + g2done(nt) + 3 - J, l=l - J, c=1, gap=O.get("wgap", 4) if nt else 0,
                           it=(f"ds_write_b128 v{vRW}, v[{S_+4*nt}:{S_+4*nt+3}] offset:{20480*ph+1024*nt}", "red")))

    def wsync(nm, n, tags):
        def f():
            assert O.get("skip") or sum("ds_write_b128 v%d," % vRW in l for l in A.out) == n, nm
            sync(nm, tags)()
        return f
    wr += [dict(e=0, it=x) for x in (f"v_add_u32 v{vRW}, {sRED[0]}, {vr(vL16)}", f"v_add_u32 v{vR2}, {sRED[1]}, {vr(vL16)}",
                                     f"v_add_u32 v{vR1}, {sRED[2]}, {vr(vL16)}")]
    wput(0, XS, 60 + BD)
    wput(1, YS, 120 + BD)
    wput(2, XS, O.get("sync2", 192))
    rput(60 + BD, [wsync("sync0", 5, ["red"])], 120, 2)
    rput(60 + BD, [f"ds_read_b128 v[{XS+4*nt}:{XS+4*nt+3}], v{vR2} offset:{1024*nt}" for nt in range(5)], 120)
    rput(O.get("t_gen", 60 + BD), [f"v_mov_b32 v{vTM}, {sTAGR}", f"buffer_store_dword v{vTM}, v7, {sWS}, {sRG} offen sc1"])
    its = [f"v_sub_f32 v{vOMG}, 1.0, v{vGT}"]
    for i in range(10):
        t0 = vTM + 1 + (i & 1)
        its += [f"v_accvgpr_read_b32 v{t0}, a{240+i}", f"v_lshlrev_b32 v{vGQ+2*i}, 16, v{t0}",
                f"v_and_b32 v{vGQ+2*i+1}, 0xffff0000, v{t0}",
                f"v_mul_f32 v{vGQ+2*i}, v{vGQ+2*i}, v{vGT}", f"v_mul_f32 v{vGQ+2*i+1}, v{vGQ+2*i+1}, v{vGT}"]
    rput(60 + BD, its)
    rput(120 + BD, [wsync("sync1", 10, ["red"])], 180, 2)
    rput(120 + BD, [f"ds_read_b128 v[{YS+4*nt}:{YS+4*nt+3}], v{vR2} offset:{20480+1024*nt}" for nt in range(5)], 180)
    rput(120 + BD, [f"v_accvgpr_read_b32 v{r}, a{250+i}" for i, r in enumerate((vYA, vYB, vOA, vOB))])
    e = O.get("sync2", 192)
    e3 = O.get("sync3", 212)

    def sync3():
        assert not any("yin" in str(d["it"]) for d in ldq[1]), "y loads must be out"
        wsync("sync3", 15, ["red", "yin"])()
    yrd = [f"ds_read_b64_tr_b16 v[{vYR+2*nt}:{vYR+2*nt+1}], v{va} offset:{off}"
           for nt, (va, off) in enumerate(((vYA, 0), (vYA, 512), (vYA, 4096), (vYA, 4608), (vYB, 8192)))]
    xrd = [f"ds_read_b128 v[{XS+4*nt}:{XS+4*nt+3}], v{vR1} offset:{1024*nt}" for nt in range(5)]
    if e3 > e:
        rput(e, [wsync("sync2", 15, ["red"])], c=2)
        rput(e, xrd)
        rput(e + 8, [f"v_mul_f32 v{XS+i}, v{XS+i}, v{vOMG}" for i in range(20)])
        rput(e3, [sync3], c=2)
        rput(e3, yrd)
    else:
        rput(e, [sync3], c=2)
        rput(e, xrd + yrd)
        rput(e + 8, [f"v_mul_f32 v{XS+i}, v{XS+i}, v{vOMG}" for i in range(20)])
    for i in range(10):
        t0 = vTM + 2 * (i & 1)
        g = vGQ + 2 * i
        rput(e3 + 7, [f"v_lshlrev_b32 v{t0}, 16, v{vYR+i}", f"v_and_b32 v{t0+1}, 0xffff0000, v{vYR+i}",
                      f"v_fma_f32 v{g}, v{g}, v{t0}, v{XS+2*i}", f"v_fma_f32 v{g+1}, v{g+1}, v{t0+1}, v{XS+2*i+1}"])
    fin = []
    for i in range(10):
        g, a = vGQ + 2 * i, YS + 2 * i
        if i < O.get("finw", 8):
            x = [f"v_fmac_f32 v{g}, v{a}, v{vOMG}", f"v_fmac_f32 v{g+1}, v{a+1}, v{vOMG}"]
        else:
            x = [f"v_pk_fma_f32 v[{g}:{g+1}], v[{a}:{a+1}], v[{vOMG}:{vOMG+1}], v[{g}:{g+1}] op_sel_hi:[1,0,1]"]
        x.append(f"v_cvt_pk_bf16_f32 v{vYR+i}, v{g}, v{g+1}")
        if i == 3:
            x.append(f"buffer_store_dwordx4 v[{vYR}:{vYR+3}], v{vOA}, {sOUT}, {sROWOFF} offen {OF}")
        if i == 7:
            x.append(f"buffer_store_dwordx4 v[{vYR+4}:{vYR+7}], v{vOA}, {sOUT}, {sROWOFF} offen offset:64 {OF}")
        if i == 9:
            x.append(f"buffer_store_dwordx2 v[{vYR+8}:{vYR+9}], v{vOB}, {sOUT}, {sROWOFF} offen offset:128 {OF}")
        rput(180 + g2done(i // 2) + 3, x)
    ldq = []
    left = weave3(A, anchors, [wr, ld, red], 2, expose=ldq)
    print("g2 leftovers", [len(x) for x in left])
    drain(A, left)
    if O["stamps"]:
        A.waitall()
        stamp("end")
        A("s_memrealtime s[52:53]")
        A("s_waitcnt lgkmcnt(0)")
        A("v_mov_b32 v8, 0")
        for k in range(nst[0]):
            A(f"v_writelane_b32 v8, s{STR[k]}, {k}")
        A(f"s_sub_u32 s54, {sRB}, 4")
        A(f"s_cmp_ge_u32 s54, 12")
        A(f"s_cselect_b32 s54, 3, 2")
        A(f"s_lshl_b32 s54, s54, 8")
        A(f"s_or_b32 s54, s54, {sRB}")
        A(f"v_writelane_b32 v8, s54, 12")
        A("v_writelane_b32 v8, s100, 13")
        A("v_writelane_b32 v8, s52, 14")
        A(f"v_writelane_b32 v8, {sSPIN}, 15")
        A.raw("; STAMPS " + " ".join(names))
        A(f"""s_lshl_b32 s54, s2, 2
              s_add_u32 s54, s54, {sW}
              s_lshl_b32 s54, s54, 6
              s_add_u32 s54, s54, {WS_DBG}
              v_lshlrev_b32 v9, 2, {vr(vLANE)}
              v_cmp_gt_u32 vcc, 16, {vr(vLANE)}
              v_mov_b32 v10, 0x7ff00000
              v_cndmask_b32 v9, v10, v9, vcc""")
        A(f"buffer_store_dword v8, v9, {sWS}, s54 offen")
    if O.get("dbg", 0):
        A("s_load_dwordx2 s[8:9], s[0:1], 88")
        A("s_mov_b32 s10, 256")
        A("s_mov_b32 s11, 0x20000")
        A("s_getreg_b32 s55, hwreg(HW_REG_XCC_ID)")
        A("s_waitcnt lgkmcnt(0)")
        A("s_not_b32 s100, s100")
        A("v_mov_b32 v10, s100")
        A("v_mov_b32 v11, s52")
        A("v_mov_b32 v12, 0")
        A("s_mov_b64 exec, 1")
        A("buffer_atomic_umax v10, v12, s[8:11], 0 offen sc1")
        A("buffer_atomic_umax v11, v12, s[8:11], 0 offen offset:4 sc1")
        for k in range(1, nst[0]):
            A(f"s_sub_u32 s54, s{STR[k]}, s{STR[0]}")
            A(f"v_mov_b32 v{12+k}, s54")
            A(f"buffer_atomic_umax v{12+k}, v12, s[8:11], 0 offen offset:{4+4*k} sc1")
        A("s_and_b32 s55, s55, 15")
        A("s_lshl_b32 s54, s2, 2")
        A("s_lshl_b32 s53, s55, s54")
        A("s_cmp_lt_u32 s2, 8")
        A("s_cselect_b32 s53, s53, 0")
        A("v_mov_b32 v30, s53")
        A("buffer_atomic_or v30, v12, s[8:11], 0 offen offset:56 sc1")
        A("s_lshr_b32 s54, s2, 1")
        A("s_lshl_b32 s53, s55, s54")
        A("s_and_b32 s54, s2, 0xc7")
        A("s_cmp_eq_u32 s54, 0")
        A("s_cselect_b32 s53, s53, 0")
        A("v_mov_b32 v31, s53")
        A("buffer_atomic_or v31, v12, s[8:11], 0 offen offset:60 sc1")
    if O.get("padto", 0):
        A.waitall()
        A.label("Lpad")
        A.raw("  s_memrealtime s[52:53]")
        A.raw("  s_waitcnt lgkmcnt(0)")
        A.raw("  s_sub_u32 s52, s52, s100")
        A.raw(f"  s_cmp_lt_u32 s52, {O['padto']}")
        A.raw("  s_cbranch_scc1 Lpad")
    A.label("Lend")
    A("s_endpgm")

    head = f"""; Fused gated mix: one persistent launch, 256 workgroups (32 row blocks x 8 column blocks).
; Generated by a script (address maps, interleaving and wait counts are computed there).
; @launch grid=(256,1,1) block=(256,1,1) lds={LDS}
.amdgcn_target "amdgcn-amd-amdhsa--gfx950"
.text
.globl {KN}_kernel
.p2align {O.get("al", 8)}
.type {KN}_kernel,@function
{KN}_kernel:
"""
    tail = f"""
.section .rodata,"a"
.p2align 6
.amdhsa_kernel {KN}_kernel
  .amdhsa_next_free_vgpr 512
  .amdhsa_next_free_sgpr 102
  .amdhsa_accum_offset 256
  .amdhsa_group_segment_fixed_size 0
  .amdhsa_kernarg_size 104
  .amdhsa_user_sgpr_count 2
  .amdhsa_user_sgpr_kernarg_segment_ptr 1
  .amdhsa_system_sgpr_workgroup_id_x 1
.end_amdhsa_kernel
"""
    txt = head + A.text() + tail
    if O.get("touch", ""):
        import padlib
        txt = padlib.add_pads(txt, sW, O.get("tstep", 4096), [x for x in O.get("textra", "Lnoconv+Ljoin").split("+") if x])
    return txt, A.stats


if __name__ == "__main__":
    out = sys.argv[1]
    kw = {}
    for a in sys.argv[2:]:
        k, v = a.split("=")
        kw[k] = int(v) if v.lstrip("-").isdigit() else v
    s, st = gen(**kw)
    open(out, "w").write(s)
    print(out, st)
```

```python
import sys, os, re
sys.path.insert(0, os.path.dirname(os.path.abspath(__file__)))
from asmlib import *

KN = "gated_mix__ssm_conv_h3__dense_activation_silu__prompt"

DEF = dict(stamps=0, mapping="B", rot=0, gs=2, dist=5, p0flag=8, poll_i=60, poll_c=76, w2pace=5,
           spin=200000, early_w1=6)


def gen(**kw):
    O = dict(DEF)
    O.update(kw)
    A = Asm()
    GS, DIST = O["gs"], O["dist"]
    NT = "nt" if O.get("nt", 0) else ""
    NTX = "nt" if O.get("ntx", 0) else ""
    OF = O.get("of", "").replace("+", " ")

    WS_COLP0, WS_COLG, WS_ROWG, WS_ROWH, WS_YF = 0x0000, 0x8000, 0xA000, 0x40000, 0x60000
    FLW = O.get("flw", 32)
    WS_DBG = 0x20000
    WS_KVT, WS_YT, WS_W2P, WS_H = 0x100000, 0x400000, 0x700000, 0x900000
    WS_SIZE = 0x1000000
    TP = 4224
    L_S = 81920
    L_K, L_V, L_W2 = 131072, 142336, 152576
    L_BO = 65536
    CBS = O.get("cbs", 0)
    SHR = O.get("shr", 1)
    ATM = O.get("atm", 0)
    HBP, YSP = 4352, (8448 if ATM else 4480)
    L_HB = 8192 * CBS
    L_UB = L_HB if SHR else L_HB + 4 * HBP
    L_YS = O.get("lys", L_UB + 4 * HBP)
    L_RED = O.get("lred", -(-(L_YS + 4 * YSP) // 8192) * 8192)
    L_YT = L_RED + 61440
    assert L_YT + 11264 <= 163840
    LDS = 163840
    sQ, sK, sV, sSH, sSK, sD, sW1, sW2, sGW, sOUT, sWS = [f"s[{8+4*i}:{11+4*i}]" for i in range(11)]
    srd = lambda n: int(n[2:].split(":")[0])
    sW, sRB, sCB, sROT = "s3", "s4", "s5", "s6"
    sT0, sT1, sT2, sT3 = "s52", "s53", "s54", "s55"
    sROWOFF = "s56"
    sW1K = "s57"
    sW2K = "s58"
    sTAGC, sTAGR = "s59", "s60"
    sCH = "s61"
    sDL = "s54"
    sNL2E = "s[62:63]"
    sJ = [f"s{64+i}" for i in range(10)]
    sHB = ["s74", "s75", "s76"]
    sKVO = "s77"
    sW2L = "s37"
    sSPIN = "s79"
    sHL = "s38"
    sSTAMP = 82

    nst = [0]
    names = []
    STR = [82, 84, 86, 88, 90, 92, 94, 96, 98, 64, 66, 68]
    SKIPST = O.get('nostamp', 'iss0+pre+karg+tiles').split('+')
    ONLY = [x for x in O.get('only', '').split('+') if x]
    if ONLY:
        ONLY += ["start", "end"]
        SKIPST = []

    def stamp(name):
        if O.get("touch", "") == name:
            A.settle()
            A.raw("; @TOUCH")
        if O.get("skfrom", "") == name:
            A.skip = O["skip"]
        if O.get("skto", "") == name:
            A.skip = None
        if O.get("padat", "") == name:
            A("s_memrealtime s[100:101]")
        if O["stamps"] and name in names:
            r = STR[names.index(name)]
            A(f"s_memtime s[{r}:{r+1}]")
        elif O["stamps"] and name not in SKIPST and (not ONLY or name in ONLY):
            r = STR[nst[0]]
            A(f"s_memtime s[{r}:{r+1}]")
            nst[0] += 1
            names.append(name)

    def vr(a, n=1):
        return f"v{a}" if n == 1 else f"v[{a}:{a+n-1}]"

    def ar(a, n=1):
        return f"a{a}" if n == 1 else f"a[{a}:{a+n-1}]"

    vTID, vLANE, vL16, vT = 0, 1, 2, 3
    vW1 = [6, 14]
    vTR = [10, 11, 12]
    vHS = 13
    vFL = 7
    vL16b, vL16c, vPR, vPC, vPAD = 4, 5, 8, 9, 0

    def poll(voff, tag, soff, vres=None, n=1, issue=True, check=True):
        ld = (f"buffer_load_dword {vr(vres)}, {vr(voff)}, {sWS}, {soff} offen sc1" if n == 1 else
              f"buffer_load_dwordx2 {vr(vres,2)}, {vr(voff)}, {sWS}, {soff} offen sc1")
        if issue:
            A(ld)
        if check:
            lo, dn = A.newlabel("Lpoll"), A.newlabel("Lgot")

            def cmp():
                A(f"v_cmp_ne_u32 vcc, {tag}, {vr(vres)}")
                if n == 2:
                    A(f"v_cmp_ne_u32 s[52:53], {tag}, {vr(vres+1)}")
                    A("s_or_b64 vcc, vcc, s[52:53]")
            cmp()
            A(f"s_cbranch_vccz {dn}" if n != 2 else f"s_cbranch_scc0 {dn}")
            A.label(lo)
            A.raw(f"  s_sleep {O.get('psleep', 1)}")
            A.raw("  " + ld)
            A.raw("  s_waitcnt vmcnt(0)")
            A.raw(f"  s_sub_u32 {sSPIN}, {sSPIN}, 1")
            A.raw(f"  s_cbranch_scc1 Lend")
            A.raw(f"  v_cmp_ne_u32 vcc, {tag}, {vr(vres)}")
            if n == 2:
                A.raw(f"  v_cmp_ne_u32 s[52:53], {tag}, {vr(vres+1)}")
                A.raw("  s_or_b64 vcc, vcc, s[52:53]")
            A.raw(f"  s_cbranch_vccnz {lo}" if n != 2 else f"  s_cbranch_scc1 {lo}")
            A.label(dn)

    A("s_cmp_ge_u32 s2, 256")
    A("s_cbranch_scc1 Lend")
    for s, off in ((sW2, 64), (sK, 8), (sV, 16), (sQ, 0), (sW1, 56), (sWS, 96), (sSH, 24), (sGW, 72), (sSK, 32),
                   (sD, 40), (sOUT, 80)):
        A(f"s_load_dwordx2 s[{srd(s)}:{srd(s)+1}], s[0:1], {off}")
    if O["stamps"] or O.get("padto", 0):
        A("s_memrealtime s[100:101]")
    stamp("start")
    A(f"v_lshrrev_b32 v20, 6, v0")
    A(f"v_and_b32 {vr(vLANE)}, 63, v0")
    A(f"v_readfirstlane_b32 {sW}, v20")
    if O["mapping"] == "A":
        A(f"""s_lshr_b32 {sT0}, s2, 3
              s_and_b32 {sCB}, {sT0}, 7
              s_lshr_b32 {sT0}, {sT0}, 3
              s_and_b32 {sRB}, s2, 7
              s_lshl_b32 {sRB}, {sRB}, 2
              s_add_u32 {sRB}, {sRB}, {sT0}""")
    else:
        A(f"""s_lshr_b32 {sT0}, s2, 3
              s_and_b32 {sCB}, {sT0}, 3
              s_and_b32 {sT1}, s2, 1
              s_lshl_b32 {sT1}, {sT1}, 2
              s_add_u32 {sCB}, {sCB}, {sT1}
              s_bfe_u32 {sRB}, s2, 0x20001""")
        if O.get("rbint", 1):
            if O.get("rbo", 0):
                A(f"s_add_u32 {sT0}, {sT0}, {O['rbo']}")
            A(f"""s_and_b32 {sT0}, {sT0}, 28
                  s_add_u32 {sRB}, {sRB}, {sT0}""")
        else:
            A(f"""s_lshr_b32 {sT0}, {sT0}, 2
                  s_lshl_b32 {sRB}, {sRB}, 3
                  s_add_u32 {sRB}, {sRB}, {sT0}""")
    for s, size in ((sQ, 2621440), (sK, 2621440), (sV, 2621440), (sSH, 5120), (sSK, 2621440), (sD, 1280),
                    (sW1, 1966080), (sW2, 1966080), (sGW, 1280), (sOUT, 2621440), (sWS, WS_SIZE)):
        A(f"s_mov_b32 s{srd(s)+2}, {size}")
        A(f"s_mov_b32 s{srd(s)+3}, 0x20000")
    A(f"""s_mul_i32 {sROWOFF}, {sRB}, 81920
          s_mul_i32 {sT0}, {sCB}, 160
          s_add_u32 {sROWOFF}, {sROWOFF}, {sT0}
          s_lshl_b32 {sW1K}, {sW}, 10
          s_lshl_b32 {sW2K}, {sW}, 11
          s_movk_i32 {sT1}, 6554
          s_movk_i32 {sT2}, 1120
          s_sub_u32 {sT3}, {sROWOFF}, 5120""")
    for n in range(3):
        A(f"v_add_u32 v26, {256*n}, v0") if n else A("v_mov_b32 v26, v0")
        A(f"""v_mul_u32_u24 v27, {sT1}, v26
              v_lshrrev_b32 v27, 16, v27
              v_lshlrev_b32 v26, 4, v26
              v_mad_u32_u24 v{20+n}, v27, {sT2}, v26
              v_add_u32 v{23+n}, {sT3}, v{20+n}""")
    A(f"v_lshlrev_b32 {vr(vL16)}, 4, {vr(vLANE)}")
    R = O["rot"]
    if R == 1:
        A(f"""s_mul_i32 {sT0}, {sRB}, 3
              s_add_u32 {sT0}, {sT0}, {sCB}""")
    elif R == 2:
        A(f"s_lshr_b32 {sT0}, s2, 5")
    elif R == 3:
        A(f"s_and_b32 {sT0}, s2, 7")
    elif R == 4:
        A(f"""s_lshr_b32 {sT0}, s2, 5
              s_and_b32 {sT1}, s2, 7
              s_add_u32 {sT0}, {sT0}, {sT1}""")
    elif R == 5:
        A(f"""s_bfe_u32 {sT0}, s2, 0x10005
              s_mul_i32 {sT0}, {sT0}, 5""")
    elif R >= 6:
        A(f"""s_mul_i32 {sT0}, {sRB}, {O.get("ra", 3)}
              s_mul_i32 {sT1}, {sCB}, {O.get("rc", 5)}
              s_add_u32 {sT1}, {sT1}, 1
              s_lshr_b32 {sT1}, {sT1}, 1
              s_lshr_b32 {sT0}, {sT0}, {O.get("rs", 0)}
              s_add_u32 {sT0}, {sT0}, {sT1}""")
    if R:
        A(f"""s_mul_i32 {sT1}, {sT0}, 6554
              s_lshr_b32 {sT1}, {sT1}, 16
              s_mul_i32 {sT1}, {sT1}, 10
              s_sub_u32 {sROT}, {sT0}, {sT1}""")
    else:
        A(f"s_mov_b32 {sROT}, 0")
    vX0, vX1 = 114, 115
    sXO, sXE = "s81", "s7"
    A(f"""v_lshrrev_b32 v26, 3, {vr(vLANE)}
          v_lshrrev_b32 v27, 4, {vr(vLANE)}
          v_and_b32 v38, 7, {vr(vLANE)}
          v_xor_b32 v39, v38, v27
          s_movk_i32 {sT0}, 1280
          s_mul_i32 {sT1}, {sW}, 20480
          v_lshlrev_b32 v39, 4, v39
          v_mad_u32_u24 v{vX0}, v26, {sT0}, v39
          v_add_u32 v{vX0}, {sT1}, v{vX0}
          v_xor_b32 v{vX1}, 64, v{vX0}
          v_add_u32 v{vX1}, {8*1280-1024}, v{vX1}
          s_mul_i32 {sXE}, {sRB}, 81920
          s_lshl_b32 {sXO}, {sROT}, 7
          s_add_u32 {sXO}, {sXO}, {sXE}
          s_add_u32 {sXE}, {sXE}, 1280""")
    A(f"""v_and_b32 v27, 1, v27
          v_lshlrev_b32 v27, 2, v27
          v_xor_b32 v39, v38, v27
          v_lshlrev_b32 v39, 4, v39
          s_movk_i32 {sT0}, 3072
          s_mul_i32 {sT1}, {sW}, 49152
          v_mad_u32_u24 v{vW1[0]}, v26, {sT0}, v39""")
    A(f"""v_add_u32 v{vW1[0]}, {sT1}, v{vW1[0]}
          v_add_u32 v{vW1[1]}, {8*3072-1024}, v{vW1[0]}
          s_mul_i32 {sT0}, {sCB}, 384
          s_mul_i32 {sJ[0]}, {sROT}, 196608
          s_add_u32 {sJ[0]}, {sJ[0]}, {sT0}""")
    stamp("pre")
    A("s_waitcnt lgkmcnt(0)")
    stamp("karg")

    NCB = -(-(4 * HBP) // 8192)
    wslot = {b: 10 + b for b in range(10)}
    wdep = {}
    fq = []
    QL = O.get("ql", 0)
    for j in range(10):
        fq += [(10 + j, j)] + ([(j, j)] if not (CBS <= j < CBS + NCB) and j >= O.get("xs0", 0) and not QL else [])
    if QL:
        fq += [(j, 9) for j in range(10) if not (CBS <= j < CBS + NCB)]
    for b in range(10, 30):
        wslot[b], wdep[b] = fq.pop(0)
        fq.append((wslot[b], b))

    def slot(b):
        return 8192 * wslot[b]
    print("slots", [wslot[b] for b in range(20, 30)])
    assert all(slot(b) + 8192 <= L_YS or slot(b) >= L_YS + 4 * YSP for b in range(26, 30))

    def w1_items(b):
        p, j = divmod(b, 10)
        assert slot(b) >= 128 * p
        return [f"s_add_u32 m0, {sW2K}, {slot(b) - 128 * p}",
                (f"buffer_load_dwordx4 v{vW1[0]}, {sW1}, {sJ[j]} offen offset:{128*p} lds", f"w1_{b}"),
                (f"buffer_load_dwordx4 v{vW1[1]}, {sW1}, {sJ[j]} offen offset:{1024+128*p} lds", f"w1_{b}")]

    def x_items(j):
        it = [f"s_add_u32 m0, {sW2K}, {8192*j}"]
        if j:
            it = [f"s_add_u32 {sXO}, {sXO}, 128", f"s_cmp_ge_u32 {sXO}, {sXE}", f"s_cselect_b32 m0, 1280, 0",
                  f"s_sub_u32 {sXO}, {sXO}, m0"] + it
        it = ["\n".join(it)]
        it += [(f"buffer_load_dwordx4 v{vX0}, {sQ}, {sXO} offen {NTX} lds", f"w1_{j}"),
               (f"buffer_load_dwordx4 v{vX1}, {sQ}, {sXO} offen offset:1024 {NTX} lds", f"w1_{j}")]
        return it

    def pair(j):
        for it in x_items(j) + w1_items(j):
            put_item(A, it)

    def tile_dma(n, which):
        for s, reg, vo, so in which:
            A(f"s_add_u32 m0, {sW1K}, {reg + 4096*n}")
            A(f"buffer_load_dwordx4 v{vo+n}, {s}, {so} offen {NT} lds", "p0in")
    W2T, KT, VT = (sW2, L_W2, 20, sROWOFF), (sK, L_K, 23, "0"), (sV, L_V, 20, sROWOFF)
    PF = O.get("pairfirst", 0)
    TL = dict(q=(sQ, sXO), w=(sW1, sJ[0]), s=(sWS, "0"), h=(sSH, "0"), k=(sK, sROWOFF), v=(sV, sROWOFF), u=(sW2, sROWOFF),
              c=(sSK, sROWOFF), g=(sGW, "0"), d=(sD, "0"), o=(sOUT, sROWOFF))
    for i_, c_ in enumerate(str(O.get("tlb", ""))):
        A(f"buffer_load_dword v{238+i_ if i_ < 4 else 240+i_}, off, {TL[c_][0]}, {TL[c_][1]}")
    if PF:
        pair(0)
    tile_dma(0, [W2T, KT, VT])
    tile_dma(1, [W2T, KT, VT])
    A(f"s_cmp_ge_u32 {sW}, 3")
    A.begin_opt("s_cbranch_scc1", settle=False)
    tile_dma(2, [KT])
    A.end_opt()
    A(f"s_cmp_ge_u32 {sW}, 2")
    A.begin_opt("s_cbranch_scc1", settle=False)
    tile_dma(2, [W2T, VT])
    A.end_opt()

    stamp("tiles")
    vCT, vI16, vR, vCHL = 28, 29, 30, 31
    A(f"""v_lshrrev_b32 v26, 4, v0
          v_mul_u32_u24 v27, 52, v26
          v_lshrrev_b32 v27, 8, v27
          v_mul_u32_u24 v{vR}, 5, v27
          v_sub_u32 v{vCT}, v26, v{vR}
          v_mul_u32_u24 v{vR}, 24, v27
          v_min_u32 v{vR}, 40, v{vR}
          v_and_b32 v{vI16}, 15, v0
          v_lshl_add_u32 v{vCHL}, v{vCT}, 4, v{vI16}
          v_lshlrev_b32 v26, 3, v{vCHL}
          s_mul_i32 {sT0}, {sCB}, 640""")
    vSH = 168
    A(f"buffer_load_dwordx2 v[{vSH}:{vSH+1}], v26, {sSH}, {sT0} offen", "p0in")
    if not PF:
        pair(0)
    stamp("iss0")

    for j in range(1, 10):
        A(f"""s_add_u32 {sJ[j]}, {sJ[j-1]}, 196608
              s_cmp_ge_u32 {sJ[j]}, 1966080
              s_cselect_b32 {sT0}, 1966080, 0
              s_sub_u32 {sJ[j]}, {sJ[j]}, {sT0}""")
    vGW = 130
    vGWA = 154
    A(f"""v_bfe_u32 v52, {vr(vLANE)}, 3, 2
          v_add_u32 v53, {sROT}, v52""")
    for n in range(3):
        A(f"""v_add_u32 v54, {4*n}, v53
              v_subrev_u32 v55, 10, v54
              v_min_u32 v54, v54, v55
              v_lshlrev_b32 v54, 7, v54
              v_lshl_add_u32 v{vGWA+n}, v38, 4, v54""")
        if n == 2:
            A(f"""v_lshrrev_b32 v55, 1, v52
                  v_lshl_add_u32 v{vGWA+n}, v55, 16, v{vGWA+n}""")
    vKA, vBW, vBR, vRA, vRB_ = 158, 159, 160, 161, 162
    A(f"""v_lshrrev_b32 v26, 2, v{vI16}
          v_add_u32 v26, v26, v{vR}
          v_mul_u32_u24 v26, 160, v26
          v_and_b32 v27, 3, v0
          v_lshl_add_u32 v26, v27, 3, v26
          v_lshl_add_u32 v26, v{vCT}, 5, v26
          v_add_u32 v{vKA}, {L_K}, v26
          v_mul_u32_u24 v26, 144, v{vCHL}
          v_lshl_add_u32 v26, v{vR}, 1, v26
          v_add_u32 v{vBW}, {L_BO}, v26
          v_lshrrev_b32 v26, 3, v0
          v_mul_u32_u24 v54, 144, v26
          v_lshl_add_u32 v54, v38, 4, v54
          v_add_u32 v{vBR}, {L_BO}, v54
          v_mul_u32_u24 v54, {TP}, v26
          v_lshl_add_u32 {vr(vT)}, v38, 4, v54""")
    A(f"""v_lshrrev_b32 v26, 5, {vr(vLANE)}
          v_lshlrev_b32 v26, 4, v26
          v_bfe_u32 v54, {vr(vLANE)}, 2, 3
          v_add_u32 v26, v26, v54
          v_mul_u32_u24 v26, 160, v26
          s_and_b32 {sT0}, {sW}, 1
          s_mul_i32 {sT0}, {sT0}, 5120
          s_add_u32 {sT0}, {sT0}, {L_W2}
          s_lshr_b32 {sT1}, {sW}, 1
          s_lshl_b32 {sT1}, {sT1}, 6
          v_add_u32 v26, {sT0}, v26
          v_lshl_add_u32 v{vRB_}, v27, 3, v26
          v_lshl_add_u32 v{vRA}, v27, 4, v26
          v_add_u32 v{vRA}, {sT1}, v{vRA}""")
    A(f"""v_lshrrev_b32 v26, 5, {vr(vLANE)}
          v_lshlrev_b32 v26, 10, v26
          v_bfe_u32 v54, {vr(vLANE)}, 2, 2
          v_lshl_add_u32 v26, v54, 7, v26
          v_bfe_u32 v54, {vr(vLANE)}, 3, 1
          v_lshlrev_b32 v54, 6, v54
          v_xor_b32 v54, {sT1}, v54
          v_add_u32 v26, v26, v54
          v_bfe_u32 v54, {vr(vLANE)}, 4, 1
          v_lshl_add_u32 v26, v54, 5, v26
          v_lshl_add_u32 v{vTR[0]}, v27, 3, v26
          v_add_u32 v{vTR[1]}, 65536, v{vTR[0]}
          v_add_u32 v{vTR[2]}, 131072, v{vTR[0]}""")
    A(f"""v_lshrrev_b32 v26, 5, {vr(vLANE)}
          v_lshlrev_b32 v26, 8, v26
          v_lshl_add_u32 v26, v{vI16}, 4, v26
          v_mul_u32_u24 v54, 49152, v54
          v_add_u32 v{vHS}, v26, v54
          s_mul_i32 {sHB[0]}, {sRB}, 196608
          s_and_b32 {sT0}, {sW}, 1
          s_mul_i32 {sT0}, {sT0}, 98304
          s_add_u32 {sHB[0]}, {sHB[0]}, {sT0}
          s_mul_i32 {sT0}, {sCB}, 6144
          s_add_u32 {sHB[0]}, {sHB[0]}, {sT0}
          s_lshl_b32 {sT1}, {sT1}, 4
          s_add_u32 {sHB[0]}, {sHB[0]}, {sT1}
          s_add_u32 {sHB[0]}, {sHB[0]}, {WS_H}""")
    A(f"""s_add_u32 {sHB[1]}, {sHB[0]}, 2048
          s_add_u32 {sHB[2]}, {sHB[0]}, 4096""")
    A(f"""
          s_mul_i32 {sKVO}, {sCB}, {80*TP}
          s_lshl_b32 {sT0}, {sRB}, 7
          s_add_u32 {sKVO}, {sKVO}, {sT0}
          s_mul_i32 {sCH}, {sCB}, 80
          s_sub_u32 {sT0}, {sRB}, 12
          s_min_u32 {sT0}, {sT0}, {sRB}
          s_lshl_b32 {sT0}, {sT0}, 2
          s_add_u32 {sCH}, {sCH}, {sT0}
          s_add_u32 {sCH}, {sCH}, {sW}
          s_sub_u32 {sT0}, {sRB}, 4
          s_lshl_b32 {sT1}, {sT0}, 2
          s_add_u32 {sT1}, {sT1}, {sW}
          s_lshl_b32 {sT1}, {sT1}, 1
          s_mul_i32 {sDL}, {sCB}, 80
          s_add_u32 {sT1}, {sT1}, {sDL}
          s_cmp_lt_u32 {sT0}, 10
          s_cselect_b32 {sT1}, {sT1}, 0x4000
          s_cmp_ge_u32 {sT0}, 12
          s_cselect_b32 {sCH}, {sCH}, {sT1}
          s_cselect_b32 {sDL}, 0, 128
          s_mov_b32 s62, 0xbfb8aa3b
          s_mov_b32 s63, 0xbfb8aa3b
          s_mov_b32 {sSPIN}, {O["spin"]}""")
    A(f"""v_cmp_gt_u32 vcc, {FLW}, {vr(vLANE)}
          v_mov_b32 v26, 0x7ff00000
          v_lshlrev_b32 v54, 2, {vr(vLANE)}
          v_cndmask_b32 v{vFL}, v26, v54, vcc""")
    vXA = 116
    A(f"""v_and_b32 v26, 31, {vr(vLANE)}
          v_lshlrev_b32 v26, 7, v26
          v_lshrrev_b32 v54, 5, {vr(vLANE)}
          v_lshrrev_b32 v55, 1, v{vI16}
          v_xor_b32 v54, v54, v55
          v_lshl_add_u32 v26, v54, 4, v26
          s_and_b32 {sT0}, {sW}, 1
          s_lshl_b32 {sT0}, {sT0}, 12
          v_add_u32 v{vXA}, {sT0}, v26""")
    for ks in range(1, 4):
        A(f"v_xor_b32 v{vXA+ks}, {ks<<5}, v{vXA}")
    for ks in range(4):
        A(f"v_add_u32 v{vXA+4+ks}, 65536, v{vXA+ks}")
    if QL:
        A(f"""v_lshrrev_b32 v26, 4, {vr(vLANE)}
              s_mul_i32 {sT0}, {sCB}, 10
              v_lshlrev_b32 v72, 7, v{vI16}
              v_add_u32 v72, {sW2K}, v72""")
        for n in range(3):
            if n < 2:
                A(f"""s_add_u32 {sT1}, {sT0}, {4*n}
                      v_add_u32 v54, {sT1}, v26""")
            else:
                A(f"""s_add_u32 {sT1}, {sT0}, 8
                      v_lshrrev_b32 v54, 1, v26
                      v_add_u32 v54, {sT1}, v54""")
            A(f"""v_lshrrev_b32 v73, 3, v54
                  v_subrev_u32 v73, {sROT}, v73
                  v_add_u32 v74, 10, v73
                  v_min_u32 v73, v73, v74
                  v_and_b32 v54, 7, v54
                  v_xor_b32 v54, v54, v55
                  v_lshl_add_u32 v54, v54, 4, v72
                  v_lshl_add_u32 v{124+n}, v73, 13, v54""")
        A(f"""v_and_b32 v26, 1, v26
              v_lshl_add_u32 v126, v26, 3, v126""")
    vGA = 127
    A(f"""s_lshl_b32 {sT0}, {sCB}, 2
          s_add_u32 {sT0}, {sT0}, {sW}
          s_and_b32 {sT1}, {sT0}, 7
          s_lshl_b32 {sT0}, {sT0}, 8
          v_xor_b32 v26, {sT1}, v38
          v_lshlrev_b32 v26, 4, v26
          v_lshrrev_b32 v54, 5, {vr(vLANE)}
          v_lshl_add_u32 v26, v54, 7, v26
          v_add_u32 v26, {sT0}, v26
          v_lshl_add_u32 v{vGA}, v52, 13, v26
          v_and_b32 v54, 1, v52
          v_lshl_add_u32 v26, v54, 13, v26
          v_add_u32 v{vGA+1}, 65536, v26""")
    sWA, sWB = "s78", "s80"
    A(f"""s_mul_i32 {sT0}, {sCB}, 48
          s_lshl_b32 {sT1}, {sRB}, 1
          s_add_u32 {sT0}, {sT0}, {sT1}
          s_and_b32 {sT1}, {sW}, 1
          s_add_u32 {sT0}, {sT0}, {sT1}
          s_mul_i32 {sT0}, {sT0}, 5120
          s_add_u32 {sT0}, {sT0}, {WS_W2P}
          s_cmp_lt_u32 {sRB}, 24
          s_cselect_b32 {sT0}, {sT0}, 0x7f000000
          s_and_b32 {sT1}, {sW}, 2
          s_lshl_b32 {sWA}, {sT1}, 10
          s_add_u32 {sWA}, {sWA}, {sT0}
          s_add_u32 {sWB}, {sT0}, 4096
          s_cmp_eq_u32 {sT1}, 0
          s_cselect_b32 {sWB}, {sWB}, 0x7f000000""")
    stamp("calc")
    NPRE_P = O.get("prepairs", 3)
    if O.get("gw_at", 9) == 0:
        for n in range(3):
            A(f"buffer_load_dwordx4 v[{vGW+4*n}:{vGW+4*n+3}], v{vGWA+n}, {sGW}, 0 offen")
    for j in range(1, NPRE_P):
        pair(j)
    vG0, vG1 = 170, 171
    A(f"""s_lshl_b32 {sT0}, {sCB}, 8
          s_lshl_b32 {sT1}, {sRB}, 8
          s_add_u32 {sT0}, {sT0}, {WS_COLG}
          s_add_u32 {sT1}, {sT1}, {WS_ROWG}""")
    A(f"buffer_load_dword v{vG0}, off, {sWS}, {sT0} sc1")
    A(f"buffer_load_dword v{vG1}, off, {sWS}, {sT1} sc1")
    stamp("issued")
    vPO = 104
    vPA = 106
    vZ = 107
    vDD = 108
    vGAD, vHAD, vUAD, vYW = 109, 110, 111, 112
    vG = 114
    vH = 178
    Hreg = lambda b: vH + 2 * (31 - b)
    vU = [252, 253, 254, 109]
    vQA, vQB = (86, 87) if QL else (124, 125)
    sHF, sRP, sYP, sYF = "s12", "s13", "s14", "s15"
    sHP = ["s16", "s17", "s18", "s19"]
    sRED = ["s20", "s21", "s22"]
    sHIN, sCBW, sCG, sRG = "s23", "s36", "s39", sROT
    calc2 = []
    sC0, sC1 = "s0", "s1"

    def C2(t):
        for l in t.strip().split("\n"):
            l = l.strip()
            if l.startswith("s_cselect"):
                calc2[-1] += "\n" + l
            else:
                calc2.append(l)
    C2(f"v_and_b32 v85, 15, {vr(vLANE)}")
    C2(f"""s_mul_i32 {sC0}, {sW}, {HBP}
          v_min_u32 v80, 23, {vr(vLANE)}
          v_lshl_add_u32 v{vPAD}, v80, 2, {sC0}
          s_add_u32 {sCBW}, {sC0}, {L_HB+96}
          s_lshl_b32 {sHIN}, {sCH}, 12
          v_and_b32 v80, 3, {vr(vLANE)}
          v_lshrrev_b32 v81, 4, {vr(vLANE)}
          v_bfe_u32 v82, {vr(vLANE)}, 2, 2
          v_add_u32 v83, v80, v81
          v_lshlrev_b32 v83, 5, v83
          v_lshl_add_u32 v83, v82, 3, v83
          v_add_u32 v{vGAD}, {sC0}, v83
          v_sub_u32 v83, v80, v82
          v_lshlrev_b32 v84, 2, v81
          v_sub_u32 v83, v83, v84
          s_add_u32 {sC1}, {sC0}, {L_UB+192}
          s_add_u32 {sC1}, {sC1}, {sDL}
          v_lshl_add_u32 v{vHAD}, v83, 3, {sC1}
          s_add_u32 {sC1}, {sC0}, {L_UB+96}
          v_lshl_add_u32 v{vUAD}, {vr(vLANE)}, 1, {sC1}
          s_mul_i32 {sC1}, {sW}, {YSP}
          s_add_u32 {sC1}, {sC1}, {L_YS+(0 if ATM else 6)}
          v_lshl_add_u32 v{vYW}, {vr(vLANE)}, {2 if ATM else 1}, {sC1}
          v_lshl_add_u32 v113, {vr(vL16)}, {ATM}, {sC1}""")
    for r in (vDD, 255, Hreg(-1), Hreg(-1) + 1, vU[0], vU[1], vU[2]):
        C2(f"v_mov_b32 v{r}, 0")
    C2(f"""v_lshlrev_b32 v82, 7, v82
          v_lshl_add_u32 v82, v80, 3, v82
          s_lshl_b32 {sC1}, {sW}, 5
          s_add_u32 {sC1}, {sC1}, {L_YT}
          v_add_u32 v82, {sC1}, v82
          v_lshl_add_u32 v83, v81, 10, v82
          v_lshl_add_u32 v82, v81, 9, v82
          v_mul_u32_u24 v84, 1280, v85
          v_lshl_add_u32 v{vQA}, v81, 4, v84
          v_lshl_add_u32 v{vQB}, v81, 3, v84
          v_accvgpr_write_b32 a250, v83
          v_accvgpr_write_b32 a251, v82
          v_accvgpr_write_b32 a252, v{vQA}
          v_accvgpr_write_b32 a253, v{vQB}
          s_mul_i32 {sC1}, {sW}, 20480
          s_add_u32 {sROWOFF}, {sROWOFF}, {sC1}""")
    C2(f"""v_and_b32 v{vPC}, 31, {vr(vLANE)}
          v_lshlrev_b32 v{vPC}, 7, v{vPC}
          s_lshl_b32 {sHL}, {sCB}, 12
          v_lshrrev_b32 v80, 1, v85
          v_and_b32 v81, 1, {vr(vLANE)}
          v_lshlrev_b32 v81, 3, v81
          v_lshl_add_u32 v{vPR}, v80, 7, v81
          v_min_u32 v80, 23, {vr(vLANE)}
          v_lshrrev_b32 v81, 3, v80
          v_mul_u32_u24 v81, 24, v81
          v_add_u32 v80, v80, v81
          v_lshl_add_u32 v80, v80, 7, {sW1K}
          v_min_u32 v{vPA}, {79*128}, v80
          v_add_u32 v{vL16b}, 4096, {vr(vL16)}
          v_add_u32 v{vL16c}, 8192, {vr(vL16)}""")
    C2(f"""s_lshl_b32 {sCG}, {sCB}, 8
          s_add_u32 {sCG}, {sCG}, {WS_COLG}
          s_or_b32 {sC1}, {sRB}, {sW}
          s_cmp_eq_u32 {sC1}, 0
          s_cselect_b32 {sCG}, {sCG}, 0x7f000000
          s_lshl_b32 {sRG}, {sRB}, 8
          s_add_u32 {sRG}, {sRG}, {WS_ROWG}
          s_or_b32 {sC1}, {sCB}, {sW}
          s_cmp_eq_u32 {sC1}, 0
          s_cselect_b32 {sRG}, {sRG}, 0x7f000000
          s_mul_i32 {sW2L}, {sCB}, {48*5120}
          s_mul_i32 {sC1}, {sW}, {12*5120}
          s_add_u32 {sW2L}, {sW2L}, {sC1}
          s_add_u32 {sW2L}, {sW2L}, {WS_W2P}
          s_lshl_b32 {sRP}, {sRB}, 12
          s_lshl_b32 {sHF}, {sCB}, 9
          s_add_u32 {sRP}, {sRP}, {WS_ROWH}
          s_add_u32 {sHF}, {sHF}, {sRP}
          s_lshl_b32 {sC0}, {sW}, 7
          s_add_u32 {sHF}, {sHF}, {sC0}
          s_add_u32 {sRP}, {sRP}, {sW1K}
          s_mul_i32 {sC1}, {sRB}, 196608
          s_mul_i32 {sC0}, {sW}, 12288
          s_add_u32 {sC1}, {sC1}, {sC0}
          s_add_u32 {sC1}, {sC1}, {WS_H}""")
    for ph in range(4):
        C2(f"""s_add_u32 {sC0}, {sW}, {1+ph}
              s_and_b32 {sC0}, {sC0}, 3
              s_mul_i32 {sC0}, {sC0}, 49152
              s_add_u32 {sHP[ph]}, {sC0}, {sC1}""")
    C2(f"""s_lshr_b32 {sYP}, {sRB}, 4
          s_lshl_b32 {sYP}, {sYP}, 3
          s_add_u32 {sYP}, {sYP}, {sCB}
          s_mul_i32 {sYP}, {sYP}, {80*128}
          s_add_u32 {sYP}, {sYP}, {WS_YF}
          s_lshl_b32 {sYF}, {sCH}, 7
          s_add_u32 {sYF}, {sYF}, {WS_YF + 640*128}
          s_mul_i32 {sC0}, {sDL}, 640
          s_sub_u32 {sYF}, {sYF}, {sC0}
          s_cmp_lt_u32 {sCH}, 640
          s_cselect_b32 {sYF}, {sYF}, 0x7f000000
          s_mul_i32 {sCH}, {sCH}, {TP}
          s_add_u32 {sCH}, {sCH}, {WS_KVT}
          s_mul_i32 {sRED[0]}, {sW}, 5120
          s_add_u32 {sRED[0]}, {sRED[0]}, {L_RED}
          s_xor_b32 {sRED[1]}, {sW}, 2
          s_mul_i32 {sRED[1]}, {sRED[1]}, 5120
          s_add_u32 {sRED[1]}, {sRED[1]}, {L_RED}
          s_add_u32 {sRED[2]}, {sW}, 1
          s_and_b32 {sRED[2]}, {sRED[2]}, 3
          s_mul_i32 {sRED[2]}, {sRED[2]}, 5120
          s_add_u32 {sRED[2]}, {sRED[2]}, {L_RED + 40960}""")
    NC2 = O.get("c2pro", 0)
    for x in calc2[:NC2]:
        A(x)
    calc2 = calc2[NC2:]
    stamp("calc2")

    A.wait("p0in")
    A("s_barrier")
    stamp("p0in")
    vWT = 172
    vP = 184
    vVV = 198
    vO = 210
    vE = 222
    for m in range(7):
        A(f"ds_read_b64_tr_b16 v[{vP+2*m}:{vP+2*m+1}], v{vKA} offset:{640*m}")
        if m < 6:
            A(f"ds_read_b64_tr_b16 v[{vVV+2*m}:{vVV+2*m+1}], v{vKA} offset:{640*m + L_V - L_K}")
    for i, (va, off) in enumerate(((vRA, 0), (vRA, 8), (vRB_, 128))):
        A(f"ds_read_b64_tr_b16 v[{vWT+4*i}:{vWT+4*i+1}], v{va} offset:{off}")
        A(f"ds_read_b64_tr_b16 v[{vWT+4*i+2}:{vWT+4*i+3}], v{va} offset:{off+1280}")
    vWa, vWb, vWc, vWd, vWe = 163, 164, 165, 166, 167
    A(f"""s_mov_b32 {sT0}, 0xffff
          v_and_b32 v{vWa}, 0xffff, v{vSH}
          v_bfi_b32 v{vWb}, {sT0}, v{vSH+1}, v{vSH}
          v_and_b32 v{vWc}, 0xffff0000, v{vSH+1}
          v_alignbit_b32 v{vWd}, v{vSH}, v{vSH}, 16
          v_alignbit_b32 v{vWe}, v{vSH+1}, v{vSH+1}, 16""")
    w2st = [(f"buffer_store_dwordx4 v[{vWT}:{vWT+3}], {vr(vL16)}, {sWS}, {sWA} offen sc1", "p0out"),
            (f"buffer_store_dwordx4 v[{vWT+4}:{vWT+7}], {vr(vL16)}, {sWS}, {sWA} offen offset:1024 sc1", "p0out"),
            (f"buffer_store_dwordx4 v[{vWT+8}:{vWT+11}], {vr(vL16)}, {sWS}, {sWB} offen sc1", "p0out")]
    w2st_txt = w2st[-1][0]
    NP0_P = O.get("p0pairs", 6)
    mem = []
    for j in range(NPRE_P, NP0_P):
        mem += [x_items(j), w1_items(j)]
    if O.get("w2st_early", 0):
        mem = [[x] for x in w2st] + mem
        w2st = []
    for o in range(13):
        e = vE + 4 * (o & 1) * 2
        if o < 12:
            A(f"""v_dot2_f32_bf16 v{e}, v{vP+o+2}, v{vWa}, 0
                  v_dot2_f32_bf16 v{e+1}, v{vP+o+2}, v{vWd}, 0
                  v_dot2_f32_bf16 v{e}, v{vP+o+1}, v{vWb}, v{e}
                  v_dot2_f32_bf16 v{e+1}, v{vP+o+1}, v{vWe}, v{e+1}
                  v_dot2_f32_bf16 v{e}, v{vP+o}, v{vWc}, v{e}
                  v_lshlrev_b32 v{e+2}, 16, v{vVV+o}
                  v_and_b32 v{e+3}, 0xffff0000, v{vVV+o}""")
        if o > 0:
            e = vE + 4 * ((o - 1) & 1) * 2
            A(f"""v_pk_mul_f32 v[{e}:{e+1}], v[{e}:{e+1}], v[{e+2}:{e+3}]
                  v_cvt_pk_bf16_f32 v{vO+o-1}, v{e}, v{e+1}""")
            if o % 4 == 0:
                i = o // 4 - 1
                A(f"ds_write_b128 v{vBW}, v[{vO+4*i}:{vO+4*i+3}] offset:{16*i}", "bo")
        k = -(-len(mem) // (13 - o))
        if o % 2 == 1 or len(mem) >= 13 - o:
            for _ in range(min(k, len(mem))):
                for it in mem.pop(0):
                    put_item(A, it)
    stamp("p0done")

    def bo_reads():
        for n in range(3):
            A(f"ds_read_b128 v[{vP+4*n}:{vP+4*n+3}], v{vBR} offset:{4608*n}")

    sKA = [sT0, sT1, sT2]
    kvst = [f"s_add_u32 {sT3}, {sKVO}, {WS_KVT}",
            (f"buffer_store_dwordx4 v[{vP}:{vP+3}], {vr(vT)}, {sWS}, {sT3} offen sc1", "p0out"),
            f"s_add_u32 {sT3}, {sKVO}, {WS_KVT + 32*TP}",
            (f"buffer_store_dwordx4 v[{vP+4}:{vP+7}], {vr(vT)}, {sWS}, {sT3} offen sc1", "p0out"),
            f"s_add_u32 {sT3}, {sKVO}, {WS_KVT + 64*TP}\ns_cmp_lt_u32 {sW}, 2\ns_cselect_b32 {sT3}, {sT3}, 0x7f000000",
            (f"buffer_store_dwordx4 v[{vP+8}:{vP+11}], {vr(vT)}, {sWS}, {sT3} offen sc1", "p0out")]

    vGX = 142
    gw_ld = [f"buffer_load_dwordx4 v[{vGW+4*n}:{vGW+4*n+3}], v{vGWA+n}, {sGW}, 0 offen" for n in range(3)]
    q_ld = [f"buffer_load_dwordx4 a[240:243], v{vQA}, {sQ}, {sROWOFF} offen",
            f"buffer_load_dwordx4 a[244:247], v{vQA}, {sQ}, {sROWOFF} offen offset:64",
            f"buffer_load_dwordx2 a[248:249], v{vQB}, {sQ}, {sROWOFF} offen offset:128"]

    if QL:
        q_ld = [f"ds_read_b128 v[{vGX}:{vGX+3}], v{vGA}", f"ds_read_b128 v[{vGX+4}:{vGX+7}], v{vGA} offset:32768",
                f"ds_read_b128 v[{vGX+8}:{vGX+11}], v{vGA+1}",
                "ds_read_b128 a[240:243], v124", "ds_read_b128 a[244:247], v125", "ds_read_b64 a[248:249], v126"]

    def gate_read(j):
        m = (0xff << (8 * (j & 3))) if j < 8 else (0x00ff00ff << (8 * (j & 1)))
        src = f"v{vGA} offset:{32768*(j>>2)}" if j < 8 else f"v{vGA+1}"
        r = vGX + 4 * (j >> 2)
        return (f"s_mov_b32 exec_lo, {m:#x}\ns_mov_b32 exec_hi, {m:#x}\nds_read_b128 v[{r}:{r+3}], {src}\ns_mov_b64 exec, -1", f"rd_{j}")
    gops = []
    g0, g1, g2 = 154, 155, 156
    for i in range(12):
        gops.append(f"v_dot2_f32_bf16 v{g0}, v{vGX+i}, v{vGW+i}, " + ("0" if i == 0 else f"v{g0}"))
    for m in ("quad_perm:[1,0,3,2]", "quad_perm:[2,3,0,1]", "row_half_mirror", "row_mirror"):
        gops.append(f"v_add_f32_dpp v{g0}, v{g0}, v{g0} {m} row_mask:0xf bank_mask:0xf")
    gops.append(f"v_add_f32_dpp v{g0}, v{g0}, v{g0} row_bcast:15 row_mask:0xa bank_mask:0xf")
    gops += [f"v_mul_f32 v{g0}, s62, v{g0}", f"v_exp_f32 v{g0}, v{g0}", f"v_add_f32 v{g0}, 1.0, v{g0}", f"v_rcp_f32 v{g0}, v{g0}"]
    sG0, sG1 = sXE, sXO
    gops += [f"v_readlane_b32 {sG0}, v{g0}, 31", f"v_readlane_b32 {sG1}, v{g0}, 63"]

    vACC = [16, 32]
    NB = 8
    vFR = 48
    vS = 80
    vHO = 96

    def fr_reads(n):
        b, ks = divmod(n, 4)
        a = slot(b) + 2048 * ks
        base, off = vTR[a >> 16], a & 0xffff
        f = vFR + 4 * (n % NB)
        r = [f"ds_read_b64_tr_b16 v[{f}:{f+1}], v{base} offset:{off}",
             f"ds_read_b64_tr_b16 v[{f+2}:{f+3}], v{base} offset:{off+512}"]
        if n < 40:
            va, off = (vXA + ks, 8192 * b) if b < 8 else (vXA + 4 + ks, 8192 * (b - 8))
            r.append(f"ds_read_b128 {ar(4*n,4)}, v{va} offset:{off}")
        r = [(x, f"rd_{b}") for x in r]
        if n < 40 and ks == 3 and not QL:
            r.append(gate_read(b))
        return r

    GS0 = O.get("gs0", 1)
    starts = list(range(0, 10, GS0)) + [int(x) for x in str(O.get("grp", "10+12+14+16+20+24+27")).split("+")]
    STRICT = O.get("strict", 10)
    grp_of = {}
    for gi_, st_ in enumerate(starts):
        en_ = starts[gi_ + 1] if gi_ + 1 < len(starts) else 30
        for b_ in range(st_, en_):
            grp_of[b_] = gi_
    extra_tags = {}

    def group_sync(g):
        def f():
            tags = [f"w1_{b}" for b in range(30) if grp_of[b] == g] + extra_tags.get(g, [])
            if g == grp_of[O["p0flag"]]:
                tags.append("p0out")
            if O.get("strict0", 0) <= starts[g] <= STRICT:
                tags += [f"rd_{b}" for b in range(starts[g])]
            A.wait(*tags)
            A("s_barrier")
            if g == grp_of[O["p0flag"]]:
                A(f"""v_readfirstlane_b32 {sTAGC}, v{vG0}
                      v_readfirstlane_b32 {sTAGR}, v{vG1}
                      s_mul_i32 {sTAGC}, {sTAGC}, 0x2C9277B5
                      s_mul_i32 {sTAGR}, {sTAGR}, 0x2C9277B5
                      s_add_u32 {sTAGC}, {sTAGC}, 0xAC564B05
                      s_add_u32 {sTAGR}, {sTAGR}, 0xAC564B05
                      s_lshl_b32 {sT0}, {sCB}, 12
                      s_lshl_b32 {sT1}, {sRB}, 7
                      s_add_u32 {sT0}, {sT0}, {sT1}
                      s_cmp_eq_u32 {sW}, 0
                      s_cselect_b32 {sT0}, {sT0}, 0x7f000000
                      v_mov_b32 v{vZ}, {sTAGC}""")
                A(f"buffer_store_dword v{vZ}, v{vFL}, {sWS}, {sT0} offen sc1")
        return f

    def silu_ops(p, pk=False):
        ac = vACC[p & 1]
        ops = []
        for h in range(0, 8, 2):
            t0, t1 = vS + 4 * ((h >> 1) & 1), vS + 4 * ((h >> 1) & 1) + 2
            z0, z1 = ac + 2 * h, ac + 2 * h + 2
            if pk:
                ops += [(1, f"v_pk_mul_f32 v[{t0}:{t0+1}], v[{z0}:{z0+1}], {sNL2E}"),
                        (1, f"v_pk_mul_f32 v[{t1}:{t1+1}], v[{z1}:{z1+1}], {sNL2E}")]
            else:
                ops += [(1, f"v_mul_f32 v{t0+i}, s62, v{z0+i}") for i in range(4)]
            ops += [(2, f"v_exp_f32 v{t0+i}, v{t0+i}") for i in range(4)]
            if pk:
                ops += [(1, f"v_pk_add_f32 v[{t0}:{t0+1}], v[{t0}:{t0+1}], 1.0 op_sel_hi:[1,0]"),
                        (1, f"v_pk_add_f32 v[{t1}:{t1+1}], v[{t1}:{t1+1}], 1.0 op_sel_hi:[1,0]")]
            else:
                ops += [(1, f"v_add_f32 v{t0+i}, 1.0, v{t0+i}") for i in range(4)]
            ops += [(2, f"v_rcp_f32 v{t0+i}, v{t0+i}") for i in range(4)]
            if pk:
                ops += [(1, f"v_pk_mul_f32 v[{t0}:{t0+1}], v[{t0}:{t0+1}], v[{z0}:{z0+1}]"),
                        (1, f"v_pk_mul_f32 v[{t1}:{t1+1}], v[{t1}:{t1+1}], v[{z1}:{z1+1}]")]
            else:
                ops += [(1, f"v_mul_f32 v{t0+i}, v{t0+i}, v{z0+i}") for i in range(4)]
            ops += [(1, f"v_cvt_pk_bf16_f32 v{vHO+h}, v{t0}, v{t0+1}"),
                    (1, f"v_cvt_pk_bf16_f32 v{vHO+h+1}, v{t1}, v{t1+1}")]
            if h in (2, 6):
                r = h >> 2
                ops.append((1, (f"buffer_store_dwordx4 v[{vHO+4*r}:{vHO+4*r+3}], v{vHS}, {sWS}, {sHB[p]} offen offset:{512*r} sc1", "hout")))
        return ops

    def w2reg(i):
        return (4 * i + 160) % 240

    def w2_items(i):
        it = []
        if i % 4 == 0 and i:
            it.append(f"s_add_u32 {sW2L}, {sW2L}, 4096")
        it.append(f"buffer_load_dwordx4 {ar(w2reg(i),4)}, {vr(vL16)}, {sWS}, {sW2L} offen offset:{1024*(i%4)} sc1")
        return it

    extra_tags[0] = ["bo"]
    group_sync(0)()
    stamp("g1start")
    bo_reads()
    synced = {0}
    sync_at = {0: -2}
    for n in range(DIST):
        g = grp_of[n // 4]
        if g not in synced:
            A.waitall(vm=False)
            group_sync(g)(); synced.add(g); sync_at[g] = -1
        for r in fr_reads(n):
            put_item(A, r)

    def frag_wait(n):
        def f():
            rs = [("v", vFR + 4 * (n % NB) + i) for i in range(4)]
            A._wait([A.pend[r] for r in rs if r in A.pend])
        return f
    anchors = []
    for n in range(120):
        p, k = divmod(n, 40)
        ac = vACC[p & 1]
        f = vFR + 4 * (n % NB)
        grp = [f"v_mfma_f32_32x32x16_bf16 v[{ac}:{ac+15}], v[{f}:{f+3}], {ar(4*k,4)}, " + ("0" if k == 0 else f"v[{ac}:{ac+15}]")]
        if n >= 40 and n % O.get("fw", 2) == 0 and O.get("fw", 2) > 1:
            grp.insert(0, frag_wait(n + O.get("fw", 2) - 1))
        m = n + DIST
        if m < 120:
            g = grp_of[m // 4]
            if g not in synced:
                grp.append(group_sync(g)); synced.add(g); sync_at[g] = n
            grp += fr_reads(m)
        if n in (39, 79) and O.get("pstamp", 0):
            grp.append((lambda nm: (lambda: stamp(nm)))(f"pass{n//40}"))
        if f"b{n}" in ONLY:
            grp.append((lambda nm: (lambda: stamp(nm)))(f"b{n}"))
        anchors.append(grp)
    sync_after = lambda n: min(v for v in sync_at.values() if v >= n)

    def free_at(b):
        g = grp_of[b] + 1
        if g < len(starts) and O.get("strict0", 0) <= starts[g] <= STRICT:
            return max(sync_at[g], 0)
        return sync_after(4 * b + 3)
    for b in range(10, 30):
        for lo, hi in ((L_YS, L_YS + 4 * YSP), (L_RED, L_RED + 20480)):
            if slot(b) < hi and slot(b) + 8192 > lo:
                free_at(b)
    dma = []
    LA = O.get("la", 100)
    st_list = [[x] for x in w2st] + [kvst[0:2], kvst[2:4], kvst[4:6]]
    SP = O.get("stpace", 0)
    stw = []
    if O.get("stw", 0):
        import re as _re

        def turn(grp, i):
            def f():
                A(f"s_cmp_eq_u32 {sW}, {i}")
                A.begin_opt("s_cbranch_scc0", settle=False)
                for x in grp:
                    put_item(A, x)
                A.end_opt()
            return f
        k_ = 0
        G_ = O.get("stg", 1)
        while st_list:
            grp = []
            for _ in range(G_):
                grp += st_list.pop(0)
            for i in range(4):
                stw.append(dict(e=O.get("st0", 1) + k_ * O["stw"] // 10, l=sync_at[grp_of[O["p0flag"]]], c=3, it=turn(grp, i)))
                k_ += 1
    for b in range(NP0_P, 30):
        lat = sync_at[grp_of[b]]
        e = 0 if b < 10 else free_at(wdep[b])
        e = max(e, lat - LA)
        if O.get("fl", 0):
            i_ = (2 * b + 1 if b < 10 else b + 10) - O["fl"]
            d_ = i_ // 2 if i_ < 20 else i_ - 10
            e = max(e, 4 * d_ - DIST)
        its = w1_items(b)
        if b < 10:
            its = x_items(b) + its
        for it in its:
            dma.append(dict(e=e, l=lat, it=it))
        if b == O.get("gw_at", 9):
            for it in gw_ld:
                dma.append(dict(e=e, l=lat, it=it))
        if b + 1 >= O.get("st_at", 6):
            for _ in range(O.get("st_n", 6)):
                if st_list:
                    for it in st_list.pop(0):
                        dma.append(dict(e=e, l=sync_at[grp_of[O["p0flag"]]], it=it))
    if O.get("st_at", 6) <= NP0_P:
        pass
    e_q = sync_at[grp_of[9]]
    qs = [dict(e=e_q + (0 if i_ < 8 else 4), l=O.get("g_at", 44), it=x) for i_, x in enumerate(gops)]
    if QL:
        assert STRICT >= 10
        qs = [dict(e=e_q, l=free_at(9), it=(x, "rd_9")) for x in q_ld] + [dict(d, e=e_q + 3) for d in qs]
    pi = O["poll_i"]

    def ins_at(e, items):
        pos = next((i for i, d in enumerate(dma) if d["e"] > e), len(dma))
        dma[pos:pos] = [dict(e=e, it=x) for x in items]
    ins_at(pi, [lambda: poll(vPC, sTAGC, sHL, vPO, check=False)])
    if not QL:
        ins_at(O.get("q_at", 30), q_ld)
    e_h = max(free_at(9 if QL else CBS + 2), O.get('hin_at', 0))
    e_u = free_at(CBS + NCB - 1)
    misc = [(f"ds_write_b32 v{vPAD}, v{Hreg(-1)} offset:{L_HB}", "pad"), f"s_mov_b32 m0, {sCBW}"]
    misc[1:1] = [f"v_mad_u32_u24 v{vPAD}, {sDL}, 17, v{vPAD}", (f"ds_write_b32 v{vPAD}, v{Hreg(-1)} offset:{L_HB}", "pad")]
    hin = [(f"buffer_load_dwordx4 {vr(vL16)}, {sSK}, {sHIN} offen offset:{1024*i} {NT} lds", "hin") for i in range(4)]
    misc += hin[:2] + [f"s_lshl4_add_u32 {sHIN}, {sDL}, {sHIN}\ns_add_u32 m0, {sCBW}, {sDL}"] + hin[2:]
    misc += [f"s_lshr_b32 {sHIN}, {sHIN}, 12\ns_lshl_b32 {sHIN}, {sHIN}, 1", f"buffer_load_short_d16_hi v255, off, {sD}, {sHIN} offset:2",
             f"buffer_load_short_d16_hi v{vDD}, off, {sD}, {sHIN}"]
    ins_at(e_h, misc)
    pc = max(O["poll_c"], e_u, e_h)

    def col_ok():
        poll(vPC, sTAGC, sHL, vPO, issue=False)
        A(f"buffer_store_dword v{vZ}, v{vFL}, {sWS}, {sCG} offen sc1")

    def g_done():
        assert sum(f"v{vGAD} offset:" in l for l in A.out) == 32
        A.wait("grd")
    misc2 = [col_ok]
    if SHR:
        misc2 += [g_done, f"s_mov_b32 m0, {sCBW}"]
    else:
        misc2 += [(f"ds_write_b32 v{vPAD}, v{Hreg(-1)} offset:{L_UB}", "pad"), f"s_add_u32 m0, {sCBW}, {L_UB-L_HB}"]
    assert SHR
    uin = [(f"buffer_load_dwordx4 {vr(vL16)}, {sWS}, {sCH} offen offset:{1024*i} sc1 lds", "uin") for i in range(4)]
    assert TP - 2048 == 17 * 128
    misc2 += uin[:2] + [f"s_lshl4_add_u32 {sCH}, {sDL}, {sCH}\ns_add_u32 {sCH}, {sCH}, {sDL}\ns_add_u32 m0, {sCBW}, {sDL}"] + uin[2:]
    misc2 += [f"s_add_u32 {sCH}, {sCH}, {WS_YT-WS_KVT}"]
    ins_at(pc, misc2)
    NW2_G1 = O.get("w2g1", 12)
    w2s = max(pc + 2, max(d["e"] for d in dma), O.get("w2start", 0))
    for i in range(NW2_G1):
        for x in w2_items(i):
            e = w2s + (i * O.get("w2p1", 5)) // 2
            if i >= 20:
                e = max(e, 80 + i - 20 + 1)
            dma.append(dict(e=min(e, 119), it=x))
    sil = []
    for p in range(2):
        for c, x in silu_ops(p, O.get("g1pk", 0)):
            sil.append(dict(e=40 * (p + 1) + 2, l=40 * (p + 2), c=c, it=x))
    def wait_in(tag, text):
        def f():
            assert any(text in l for l in A.out), tag
            A.wait(tag, "pad")
        return f

    def g_ok():
        txt = "\n".join(A.out)
        assert O.get("skip") or gops[-1] in txt and q_ld[-1] in txt and w2st_txt in txt and not any(q_ld[0] in str(d["it"]) for d in gq[0])
        wait_in("hin", misc[-1])()
    vHFD = 15
    GA, HA = O.get("g_at", 44), O.get("h_at", 90)
    gh = [dict(e=GA, c=0, it=g_ok)]
    gh += [dict(e=GA, it=(f"ds_read_b64_tr_b16 v[{vG+2*x}:{vG+2*x+1}], v{vGAD} offset:{L_HB+128*x}", "grd")) for x in range(32)]
    gh.insert(17, dict(e=GA, it=f"v_add_u32 v{vGAD}, {sDL}, v{vGAD}"))
    if SHR:
        for d in gh:
            d["l"] = pc
    gh += [dict(e=GA, it=x) for x in (f"v_mov_b32 v{vHFD}, {sTAGR}", f"v_writelane_b32 v{vHFD}, {sG0}, 1",
                                      f"v_writelane_b32 v{vHFD}, {sG1}, 3", f"v_mov_b32 v{vU[3]}, 0")]
    gh += [dict(e=HA, c=0, it=wait_in("uin", "offen offset:3072 sc1 lds"))]
    gh += [dict(e=HA, it=f"ds_read_b64_tr_b16 v[{Hreg(n)}:{Hreg(n)+1}], v{vHAD} offset:{128*n}") for n in range(31, -1, -1)]
    gh.insert(len(gh) - 16, dict(e=HA, it=f"v_subrev_u32 v{vHAD}, {sDL}, v{vHAD}"))
    vCV = 255
    vYO = 96
    SETS = [32, 36, 40, 44, 28]
    vZ7 = 0
    CH = [dict(E=[244, 245], R1=[246, 247], R2=[248, 249]), dict(E=[16, 17], R1=[18, 19], R2=[20, 21])]
    vZZ = [250, 251]
    XSET = [vG + 60, vG + 56][:O.get("usets", 0)]
    NF = 0
    J = O.get("join", 24)
    DP = "row_mask:0xf bank_mask:0xf"
    MD = O.get("mdel", 3)
    vDD2 = vHAD
    sCH0 = sHIN

    def conv_plan(seq, CHN, cks, sets, W_=1, zipped=False):
        order = [x for x in seq if x[1] >= 0]
        top = {c: max(n for c_, n in order if c_ == c) for c, _ in order}
        first, last, setof, nxt_use = {}, {}, {}, {}
        cva, ring = [], list(sets)
        for g0 in range(0, len(order), W_):
            steps = []
            for t_, r_ in [y for y in ring if isinstance(y, tuple) and y[0] in last]:
                ring.remove((t_, r_))
                ring.insert(0, r_)
            for j_, x in enumerate(order[g0:g0 + W_]):
                c, n = x
                r_ = next(y for y in ring if not isinstance(y, tuple))
                ring.remove(r_)
                ring.append(r_)
                for m in setof:
                    if setof[m] == r_ and m not in nxt_use:
                        nxt_use[m] = x
                setof[x] = r_
                for q in range(n // 2 + 1):
                    g_, h_ = vG + 4 * (8 * c + q), Hreg(16 * c + n - 2 * q)
                    steps.append((q, j_, x, f"v_mfma_f32_16x16x32_bf16 v[{r_}:{r_+3}], v[{g_}:{g_+3}], v[{h_}:{h_+3}], " +
                                  ("0" if q == 0 else f"v[{r_}:{r_+3}]")))
            for q, j_, x, s_ in sorted(steps):
                first.setdefault(x, len(cva))
                last[x] = len(cva)
                cva.append([s_])
            for c, n in order[g0:g0 + W_]:
                if O.get("pstamp", 0) and n % 4 == 0:
                    cva[-1].append((lambda nm: (lambda: stamp(nm)))(f"t{16*c+n}"))
        comb = []
        ureg = lambda si: vU[si & 3]

        def uread(si):
            if si < len(seq) and seq[si][1] >= 0:
                return [f"ds_read_u16_d16_hi v{ureg(si)}, v{vUAD} offset:{128*(17*seq[si][0]+seq[si][1])}"]
            return []
        for si in range(4):
            comb.append(dict(e=0, it=uread(si)[0]))
        if ATM:
            vE, e, rb_ = [252, 253, 254, 109.5], 0, []
            t0 = 15 if top[0] == 31 else 0
            for si, x in enumerate(seq):
                c, n = x
                D, base = setof[x], 4224 * c + 256 * (n - t0)
                e = max(e, last[x] + MD)
                l = first[nxt_use[x]] if x in nxt_use else 1 << 30
                adds = [f"ds_add_f32 v{vYW}, v{D+1+i} offset:{base+4*(i+1)}" for i in range(3)]
                it = ([f"v_fmac_f32 v{D}, v{ureg(si)}, v{vDD2 if c else vDD}", f"ds_write_b32 v{vYW}, v{D} offset:{base}"] if n >= 16 or not t0 else [])
                it += adds + uread(si + 4)
                comb += [dict(e=e, l=l, it=y) for y in it] + rb_
                rb_ = []
                for k_, (r_, lo, so, go, tag, lim) in enumerate(cks.get(x, [])):
                    assert all(seq.index(y) <= si for y in lim if y[1] >= 0)
                    T_ = (244, vG + 24)[k_]
                    comb += [dict(e=e, it=f"ds_read_b128 v[{T_+4*j_}:{T_+4*j_+3}], v113 offset:{lo+16*j_}") for j_ in range(2)]
                    rb_ += [dict(e=e, gap=(O.get("ygap", 8) if j_ + k_ == 0 and si + 1 == len(seq) else 0),
                                 it=f"v_cvt_pk_bf16_f32 v{r_+j_}, v{T_+2*j_}, v{T_+2*j_+1}") for j_ in range(4)]
                    rb_.append(dict(e=e, it=(f"buffer_store_dwordx4 v[{r_}:{r_+3}], {vr(vL16)}, {sWS}, {so} offen offset:{go} sc1", tag)))
            return cva, comb + rb_, first, last, setof
        late, defer, e = [], [], 0
        pos = lambda x: 17 * x[0] + x[1] + 1
        for si, x in enumerate(seq):
            c, n = x
            E, R1, R2 = [CHN(c, n)[k_][n & 1] for k_ in ("E", "R1", "R2")]
            Ep, R1p, R2p = [CHN(c, n + 1)[k_][~n & 1] for k_ in ("E", "R1", "R2")]
            Z = vZZ[si & 1]
            e = max(e, last[x if n >= 0 else (c, 0)] + MD)
            l = first[nxt_use[x]] if x in nxt_use else 1 << 30
            if si & 1:
                pre, F = [], uread(si + 3) + uread(si + 4)
            else:
                pre, F = defer[:1], defer[1:]
                defer = []
            F1, F2 = F[:1], F[1:]
            if n >= 0:
                D = setof[x]
                rol = [[f"v_add_f32_dpp v{d}, v{s_}, v{D+1+i} wave_rol:1 {DP}"] if n != top[c] else []
                       for i, (d, s_) in enumerate(((R1, Ep), (R2, R1p), (Z, R2p)))]
                shl = [[f"v_add_f32_dpp v{d}, v{s_}, v{D+1+i} wave_shl:1 {DP}"] for i, (d, s_) in enumerate(((R1, E), (R2, R1), (Z, R2)))]
                fma = [f"v_fma_f32 v{E}, v{ureg(si)}, v{vDD2 if c else vDD}, v{D}"]
            else:
                rol = [[f"v_mov_b32_dpp v{d}, v{s_} wave_rol:1 {DP}"] for d, s_ in ((R1, Ep), (R2, R1p), (Z, R2p))]
                shl = [[], [f"v_mov_b32_dpp v{R2}, v{R1} wave_shl:1 {DP}"], [f"v_mov_b32_dpp v{Z}, v{R2} wave_shl:1 {DP}"]]
                fma = []
            it = rol[0] + pre + fma + rol[1] + rol[2] + shl[0] + F1 + shl[1] + F2 + shl[2]
            if zipped and not si & 1:
                held = (rol, shl, fma, pre, F, l)
                continue
            if zipped:
                ro_, sh_, fm_, pre, G_, l_ = held
                l = min(l, l_)
                it = (ro_[0] + rol[0] + pre + fm_ + fma + ro_[1] + rol[1] + G_[:1] + ro_[2] + rol[2] + sh_[0] + shl[0] + G_[1:] + F1 +
                      sh_[1] + shl[1] + F2 + sh_[2] + shl[2])
            if si & 1:
                defer = [f"v_cvt_pk_bf16_f32 v{vCV}, v{vZZ[0]}, v{Z}",
                         f"ds_write_b16 v{vYW}, v{vCV} offset:{128*pos(seq[si-1])}",
                         f"ds_write_b16_d16_hi v{vYW}, v{vCV} offset:{128*pos(x)}"]
            elif si + 1 == len(seq):
                defer = [f"v_cvt_pk_bf16_f32 v{vCV}, v{Z}, v{Z}", f"ds_write_b16 v{vYW}, v{vCV} offset:{128*pos(x)}"]
            if x in cks:
                assert defer
                it += defer
                defer = []
                for r_, lo, so, go, tag, lim in cks[x]:
                    assert all(seq.index(y) <= si for y in lim)
                    it.append(f"ds_read_b128 v[{r_}:{r_+3}], v113 offset:{122+lo}")
                    late.append((si + 1, (f"buffer_store_dwordx4 v[{r_}:{r_+3}], {vr(vL16)}, {sWS}, {so} offen offset:{go} sc1", tag)))
            for y in it:
                comb.append(dict(e=e, l=l, it=y))
            while late and (si + 1 == len(seq) or late[0][0] <= si):
                comb.append(dict(e=e, gap=(O.get("ygap", 8) if si + 1 == len(seq) else 0), it=late.pop(0)[1]))
        assert not defer
        return cva, comb, first, last, setof
    seqU = [(0, n) for n in range(31, 14, -1)]
    tl = lambda c, a_, b_: [(c, n) for n in range(a_, b_ + 1)]
    if O.get("ydefer", 1):
        ckU = {(0, 15): [(vYO, 3072, sCH, 3072, "yout0", tl(0, 23, 31)), (vYO + 4, 2048, sCH, 2048, "yout0", tl(0, 15, 23))]}
    else:
        ckU = {(0, 22): [(vYO, 3072, sCH, 3072, "yout0", tl(0, 23, 31))], (0, 15): [(vYO + 4, 2048, sCH, 2048, "yout0", tl(0, 15, 23))]}
    if ATM:
        ckU = {(0, 23): [(vYO, 256 + 2048, sCH, 3072, "yout0", tl(0, 23, 31))], (0, 15): [(vYO + 4, 256, sCH, 2048, "yout0", tl(0, 15, 23))]}
    cva, comb, first, last, setof = conv_plan(seqU, lambda c, n: CH[0], ckU, SETS[:4] + [((0, 30), vG + 60), ((0, 28), vG + 56)][:O.get("usets", 0)], O.get("ilv", 1))
    NCV = len(cva)
    seqL = [(0, n) for n in range(15, 7, -1)]
    for i in range(8):
        seqL += [(1, 15 - i), (0, 7 - i)]
    seqL += [(1, 7), (0, -1)] + [(1, n) for n in range(6, -2, -1)]
    CHL = dict(E=[vG + 28, vG + 29], R1=[vG + 30, vG + 31], R2=[vG + 26, vG + 27])
    ckL = {(0, -1): [(vYO, 0, sCH0, 0, "yl0", tl(0, -1, 7)), (vYO + 4, 1024, sCH0, 1024, "yl0", tl(0, 7, 15))],
           (1, -1): [(vYO, 2176, sCH, 2048, "yl1", tl(1, -1, 7)), (vYO + 4, 3200, sCH, 3072, "yl1", tl(1, 7, 15))]}
    LSETS = SETS[:4] + [((0, 10), vG + 20), ((0, 8), vG + 16)][:O.get("lsets", 2)]
    LORD = O.get("lord", 0)
    if ATM:
        assert LORD
        seqL = [x for x in seqL if x[1] >= 0] if LORD == 2 else [(c, n) for n in range(15, -1, -1) for c in range(2)]
        ckL = {(c, n): [(vYO + 4 * c, 4224 * c + 2048 * k_, (sCH0, sCH)[c], 2048 * c + 1024 * k_, "yl1", tl(c, n, n + 7 + k_))]
               for c in range(2) for k_, n in enumerate((0, 7))}
        if O.get("ylast", 1) and LORD == 1:
            ckL[(1, 0)] = ckL.pop((0, 0)) + ckL[(1, 0)]
            ckL[(1, 7)] = ckL.pop((0, 7)) + ckL[(1, 7)]
        LSETS = SETS[:4] + [((0, 10), vG + 20), ((0, 8), vG + 16), ((0, 6), vG + 12), ((0, 4), vG + 8)][:O.get("lsets", 4)]
        cvaL, combL, firstL, lastL, setofL = conv_plan(seqL, None, ckL, LSETS, O.get("lilv", 1))
    elif LORD:
        seqL = [(c, n) for n in range(15, -2, -1) for c in range(2)]
        CHT = dict(E=[48, 49], R1=[50, 51], R2=[52, 53])
        ckL = {(1, 7): [(vYO, 1024, sCH0, 1024, "yl1", tl(0, 7, 15)), (vYO + 4, 3200, sCH, 3072, "yl1", tl(1, 7, 15))],
               (1, -1): [(vYO, 0, sCH0, 0, "yl1", tl(0, -1, 7)), (vYO + 4, 2176, sCH, 2048, "yl1", tl(1, -1, 7))]}
        LSETS = SETS[:4] + [((0, 10), vG + 20), ((0, 8), vG + 16), ((0, 6), vG + 12), ((0, 4), vG + 8)][:O.get("lsets", 4)]
        cvaL, combL, firstL, lastL, setofL = conv_plan(seqL, lambda c, n: (CHT if n > 12 else CHL) if c else CH[0], ckL, LSETS,
                                                       O.get("lilv", 2), True)
    else:
        cvaL, combL, firstL, lastL, setofL = conv_plan(seqL, lambda c, n: CHL if c else CH[0], ckL, LSETS, O.get("ilv", 1))
    NCL = len(cvaL)
    assert (NCV, NCL) == (208, 144)
    C1 = [int(x, 16) for x in str(O.get("cap1", "866"))]
    gq = []
    for d in dma:
        t_ = d["it"][0] if isinstance(d["it"], tuple) else d["it"]
        if isinstance(t_, str) and t_.startswith("buffer_"):
            d["c"] = O.get("vmc", 2)
    c2s = [dict(e=0, l=min(e_h, O.get("q_at", 30)) if i_ < 48 - NC2 else 40, it=x) for i_, x in enumerate(calc2)]
    strm = [dma, c2s, qs, sil, gh] if O.get("gprio", 0) == 0 else [dma, c2s, qs, gh, sil]
    if stw:
        strm.insert(1, stw)
    F0, F1 = O.get("f0", HA + 2), O.get("f1", 120)
    fine, idx, cpos, caps = [], {}, {}, []
    kf = 0
    for i, grp in enumerate(anchors):
        idx[i] = len(fine)
        fine.append(grp)
        caps.append(C1[i // 40] if i < F0 or not NF else O.get("fcap", 4))
        while i >= F0 and kf < NF and kf < (i + 1 - F0) * NF / (F1 - F0):
            cpos[kf - NF] = len(fine)
            fine.append(cva[kf])
            caps.append(2)
            kf += 1
    assert kf == NF
    for st_ in strm:
        for d in st_:
            d["e"] = idx[d["e"]]
            if d.get("l", 1 << 30) < 120:
                d["l"] = idx[d["l"]]
            else:
                d["l"] = 1 << 30
    fcomb = []
    if NF:
        for nb in range(32):
            gh[-32 + nb]["l"] = cpos[nb // 2 - NF] - O.get("hdist", 1)
        while comb[0]["e"] - MD < 0:
            d = comb.pop(0)
            fcomb.append(dict(d, e=cpos[max(d["e"] - MD, -NF)] + O.get("fmdel", 2), l=cpos.get(d.get("l", 0), 1 << 30), post=d))
    left = weave3(A, fine, strm + [fcomb], lambda i: caps[i], expose=gq, padok=O.get("padok", 36))
    print("g1 leftovers", [len(x) for x in left])
    drain(A, left[:-1])
    comb[0:0] = [dict(d["post"], e=0) for d in left[-1]]
    stamp("g1end")

    PK2 = O.get("pk2", 0)
    XS, YS = 8, 28
    HQ = [48 + 4 * i for i in range(12)]
    for q in range(15, -1, -1):
        HQ += [x for x in (vG + 4 * q, vH + 4 * (15 - q)) if x not in XSET]
    HQ += XSET + [242, 246, 250, 108]
    assert len(HQ) == 48

    def hload(i):
        kk = i % 12
        vo = (vL16, vL16b, vL16c)[kk // 4]
        return f"buffer_load_dwordx4 v[{HQ[i]}:{HQ[i]+3}], v{vo}, {sWS}, {sHP[i//12]} offen offset:{1024*(kk%4)} sc1"

    def h_flag():
        assert sum(f"{sWS}, {sHB[2]} offen offset" in l for l in A.out) in (2, 4)
        stamp("hf0")
        A.wait("hout")
        stamp("hf1")
        A(f"buffer_store_dword v{vHFD}, v7, {sWS}, {sHF} offen sc1")

    vGT = 6

    def row_ok():
        stamp("ro0")
        poll(vPR, sTAGR, sRP, vPO, n=3, issue=False)
        stamp("ro1")
        A(f"v_mov_b32 v{vGT}, v{vPO+1}")

    quad_free = {}
    for q in range(16):
        t_ = max(last[(0, n_)] for n_ in range(max(2 * q, 15), 32)) + 1
        quad_free[vG + 4 * q] = quad_free[vH + 4 * (15 - q)] = t_

    PACE, HPACE = O.get("w2pace", 5), O.get("hpace", 5)
    T_HF, T_RP, T_RO = O.get("t_hf", 110), O.get("t_rp", 150), O.get("t_ro", 180)
    common = []
    t = O.get("w2t0", 2)
    GAPS = [tuple(int(y) for y in x.split("-")) for x in str(O.get("gaps", "")).split("+") if x]

    def nogap(t):
        for a_, b_ in GAPS:
            if a_ <= t < b_:
                t = b_
        return t
    wi = NW2_G1
    while wi < 60 and t <= T_RO:
        t = nogap(t)
        for x in w2_items(wi):
            common.append(dict(e=t, it=x))
        t += PACE
        wi += 1

    def cins(e, items, c=1):
        pos = next((i for i, d in enumerate(common) if d["e"] > e), len(common))
        common[pos:pos] = [dict(e=e, it=x, c=c) for x in items]
    cins(T_HF, [h_flag], 2)
    rpoll = lambda: poll(vPR, sTAGR, sRP, vPO, n=3, check=False)
    cins(T_RP, [rpoll])
    assert T_RO < NCV - 1
    cins(T_RO, [row_ok], 2)
    hl = []
    t = max(T_RO, common[-1]["e"]) + 1
    KM = 5 * (12 - O.get("ntm", 4))
    rest = [(60 * (i // 12) + min(5 * (i % 12), KM), 1, i) for i in range(48)] + [(min(i, KM), 0, i) for i in range(wi, 60)]
    tprev = t - 1
    for dl, kind, i in sorted(rest):
        t = max(min(t, NCV + dl - O.get("lead", 40)), tprev + O.get("minpace", 2))
        if kind:
            t = max(t, quad_free.get(HQ[i], 0))
            if i >= 44 - len(XSET):
                t = max(t, NCV + J)
        t = nogap(t)
        for x in ([hload(i)] if kind else w2_items(i)):
            hl.append(dict(e=min(t, NCV + dl - 1), l=NCV + dl, it=x))
        tprev = t
        t += HPACE
    while hl and hl[0]["e"] < NCV + J - 1:
        common.append(hl.pop(0))

    NTM = O.get("ntm", 4)

    def g2pos(r):
        if r < 5 * (12 - NTM):
            return divmod(r, 5)
        nt, kk = divmod(r - 5 * (12 - NTM), NTM)
        return kk + 12 - NTM, nt
    g2done = lambda nt: max(r for r in range(60) if g2pos(r)[1] == nt)
    g2need = lambda kk: min(r for r in range(60) if g2pos(r)[0] == kk)

    def g2anchor(a):
        ph, r = divmod(a, 60)
        kk, nt = g2pos(r)
        ac = (XS, YS)[ph & 1] + 4 * nt
        hq = HQ[12 * ph + kk]
        return (f"v_mfma_f32_16x16x32_bf16 v[{ac}:{ac+3}], {ar(w2reg(kk*5+nt),4)}, v[{hq}:{hq+3}], " +
                ("0" if kk == 0 and ph < 2 else f"v[{ac}:{ac+3}]"))

    A(f"s_cmp_eq_u32 {sDL}, 0")
    A.settle()
    A("s_cbranch_scc0 Lnoconv")
    import copy
    saved = (copy.deepcopy(A.q), dict(A.pend), A.nid)
    A.nopt += 1
    A.opt = A.nopt
    A._hidden = []
    optid = A.opt

    def as_common(it):
        def f():
            ids0 = A.nid
            put_item(A, it)
            for qn in A.q:
                for e in A.q[qn]:
                    if e["id"] > ids0:
                        e["opt"] = 0
        f.inner = it
        return f

    def y_flag(tag, nst_):
        assert sum(("s61 offen offset" in l or "s23 offen offset" in l) and "store" in l for l in A.out) == nst_
        A.wait(tag)
        A(f"buffer_store_dword v{vZ}, v0, {sWS}, {sYF} offen sc1")
        stamp("yfl")

    A("v_mov_b32 v0, v7")
    anchors = cva[NF:] + [[g2anchor(a)] for a in range(J)]
    if O.get("pstamp", 0):
        for a_ in range(len(anchors)):
            if f"a{a_}" in ONLY:
                anchors[a_].append((lambda nm: (lambda: stamp(nm)))(f"a{a_}"))
    so = silu_ops(2, PK2)
    if O.get("hst2", 1):
        so = [x for x in so if not isinstance(x[1], tuple)] + [x for x in so if isinstance(x[1], tuple)]
    sil2 = [dict(e=O.get("s2t0", 0), l=last[(0, 23)], c=c, it=as_common(x)) for c, x in so]
    com2 = [dict(d, it=as_common(d["it"])) for d in common]
    cq = []
    S2C = O.get("s2cap", 4)
    left = weave3(A, anchors, [com2, sil2, comb], lambda i: S2C if cq[1] else 2, expose=cq)
    print("conv leftovers", [len(x) for x in left])
    drain(A, [left[1], left[2], left[0]])
    stamp("cvm")
    A.settle()
    A("s_branch Ljoin")
    for qn in A.q:
        back = [h for h in A._hidden if h[0] == qn]
        A.q[qn] = [h[1] for h in back] + A.q[qn]
        for h in back:
            for r, v in h[2].items():
                A.pend.setdefault(r, v)
    A.opt = 0
    stateA = (A.q, A.pend, A.nid)
    A.label("Lnoconv")
    A.q, A.pend, A.nid = saved[0], saved[1], stateA[2]
    A.nopt += 1
    A.opt = A.nopt
    A._hidden = []
    A(f"v_mov_b32 v{vDD2}, v255")
    A(f"v_lshlrev_b32 v0, 2, {vr(vLANE)}" if LORD else "v_mov_b32 v0, v7")
    A(f"s_sub_u32 {sCH0}, {sCH}, {TP - 2048}")
    iro = next(i for i, d in enumerate(common) if d["it"] is row_ok)
    LP, L_HF, L_RP = O.get("lpace", 35), O.get("l_hf", 50), O.get("l_rp", 130)
    comL, k_ = [], 0
    for d in common[:iro]:
        if isinstance(d["it"], str):
            comL.append(dict(e=2 + k_ * LP // 10, it=as_common(d["it"])))
            k_ += d["it"].startswith("buffer_")
    for e_, it_, c_ in ((L_HF, h_flag, 2), (L_RP, rpoll, 1)):
        pos = next((i for i, d in enumerate(comL) if d["e"] > e_), len(comL))
        comL.insert(pos, dict(e=e_, it=as_common(it_), c=c_))
    L_RO = O.get("l_ro", 135)
    assert L_RP < L_RO < NCL
    qfL = {}
    for q in range(8):
        qfL[vG + 32 + 4 * q] = qfL[vH + 4 * (7 - q)] = max(lastL[(1, n_)] for n_ in range(2 * q, 16)) + 1
    t_ = max(L_RO, comL[-1]["e"])
    comL.append(dict(e=t_, it=as_common(row_ok), c=2))
    for d in common[iro + 1:]:
        m_ = re.match(r"buffer_load_dwordx4 v\[(\d+):", d["it"])
        if m_ and int(m_.group(1)) >= vG:
            t_ = max(t_, qfL[int(m_.group(1))])
        l_ = d.get("l", 1 << 30) - NCV + NCL
        comL.append(dict(e=min(t_, l_ - 1), l=l_, it=as_common(d["it"])))
        t_ += O.get("lhp", 2) * d["it"].startswith("buffer_")

    def fl0():
        assert sum("s23 offen offset" in l and "store" in l for l in A.out) == 2
        A.wait("yl0")
        A(f"buffer_store_dword v{vZ}, v7, {sWS}, {sYF} offen sc1")
        A(f"s_add_u32 {sYF}, {sYF}, 128")
    L_F0 = O.get("l_f0", NCL + J - 2)
    pos = next((i for i, d in enumerate(comL) if d["e"] > L_F0), len(comL))
    if not LORD:
        comL.insert(pos, dict(e=L_F0, it=fl0, c=2))
    else:
        for d in combL:
            if re.search(r"v(48|49|50|51|52|53)\b", str(d["it"])):
                d["l"] = min(d["l"], L_RO)
    silL = [dict(e=0, l=min(L_HF, lastL[(0, 7)]), c=c, it=as_common(x)) for c, x in so]
    silL[0:0] = [dict(e=2, l=firstL[(1, 14)], it=f"v_mov_b32 v{Hreg(15)+i}, 0") for i in range(2)]
    cq = []
    cvaL[-1].append(lambda: stamp("lend"))
    NIDLE = O.get("lidle", 0)
    LA_ = cvaL + [[g2anchor(a)] for a in range(J)]
    left = weave3(A, LA_, [comL, silL, combL],
                  lambda i: O.get("lcap0", 4) if cq[1] else NIDLE if i == NCL - 1 and NIDLE else O.get("lcap", 4) if i < NCL else O.get("lcap2", 3), expose=cq)
    print("lower leftovers", [len(x) for x in left])
    drain(A, [left[1], left[2], left[0]])
    ncom = lambda q, tag: ([e["tag"] for e in q if e["opt"] == 0 or e["tag"] == tag][::-1] + [tag]).index(tag)
    nB = ncom(A.q["vm"], "yl1") if any(e["tag"] == "yl1" for e in A.q["vm"]) else 1 << 30
    qa = stateA[0]["vm"]
    assert any(e["tag"] == "yout0" for e in qa)
    nA = ncom(qa, "yout0")
    print("common loads behind the last y store", nA, nB)
    if nB < nA:
        ey = [e for e in qa if e["tag"] == "yout0"][-1]
        qa.remove(ey)
        assert all(e["opt"] == 0 for e in qa[len(qa) - nB:])
        qa.insert(len(qa) - nB, ey)
    A.waitall(vm=False)
    stamp("cvm")
    A.settle()
    assert all(v[0] == "vm" and any(e["id"] == v[1] and e["opt"] == 0 for e in A.q["vm"]) for v in A.pend.values()), A.pend
    A.opt = 0
    seqB = [e["text"] for e in A.q["vm"] if e["opt"] == 0]
    seqA = [e["text"] for e in stateA[0]["vm"] if e["opt"] == 0]
    assert seqA[-len(seqB):] == seqB, (seqA, seqB)
    nid = A.nid
    A.q, A.pend, A.nid = stateA[0], stateA[1], nid
    A.label("Ljoin")
    stamp("conv")

    vGQ = 48
    vOMG = 68
    vYR = 70
    vTM = 80
    vRW, vR2, vR1, vYA, vYB, vOA, vOB = 100, 101, 102, 87, 88, 89, 90
    anchors = []
    for a in range(J, 240):
        anchors.append([g2anchor(a)])
        if O.get("pstamp", 0) and a % 60 == 59:
            anchors[-1].append((lambda nm: (lambda: stamp(nm)))(f"ph{a//60}"))
        if f"g{a}" in ONLY:
            anchors[-1].append((lambda nm: (lambda: stamp(nm)))(f"g{a}"))
    ld = [dict(d, e=d["e"] - NCV - J, l=d.get("l", 1 << 30) - NCV - J) for d in hl]

    def lins(e, items, c=1):
        e -= J
        pos = next((i for i, d in enumerate(ld) if d["e"] > e), len(ld))
        ld[pos:pos] = [dict(e=e, it=x, c=c) for x in items]
    lins(O.get("t_fb", 70), [lambda: y_flag("yout0", 6)], 2)

    def y_chk():
        stamp("ychk")
        poll(vPA, sTAGC, sYP, vPO, issue=False)
        stamp("ypass")
    y_dma = [f"s_add_u32 {sT1}, {sKVO}, {WS_YT}\ns_add_u32 m0, {sW1K}, {L_YT}",
             (f"buffer_load_dwordx4 {vr(vT)}, {sWS}, {sT1} offen sc1 lds", "yin"),
             f"s_add_u32 {sT1}, {sKVO}, {WS_YT + 32*TP}\ns_add_u32 m0, {sW1K}, {L_YT+4096}",
             (f"buffer_load_dwordx4 {vr(vT)}, {sWS}, {sT1} offen sc1 lds", "yin"),
             f"s_add_u32 {sT1}, {sKVO}, {WS_YT + 64*TP}\ns_cmp_lt_u32 {sW}, 2\ns_cselect_b32 {sT1}, {sT1}, 0x7f000000\ns_add_u32 m0, {sW1K}, {L_YT+8192}",
             (f"buffer_load_dwordx4 {vr(vT)}, {sWS}, {sT1} offen sc1 lds", "yin")]
    TI, TC = O.get("ypoll_i", 90), O.get("ypoll_c", 130)
    lins(TI, [lambda: poll(vPA, sTAGC, sYP, vPO, check=False)])
    lins(TC, [y_chk] + y_dma)

    red = []

    def rput(e, items, l=1 << 30, c=1):
        for x in items:
            red.append(dict(e=e - J, l=l - J, c=c, it=x))

    def sync(nm, tags):
        def f():
            A.wait(*tags)
            A("s_barrier")
            stamp(nm)
        return f
    BD = O.get("bdel", 12)
    wr = []

    def wput(ph, S_, l):
        for nt in range(5):
            wr.append(dict(e=60 * ph + g2done(nt) + 3 - J, l=l - J, c=1, gap=O.get("wgap", 4) if nt else 0,
                           it=(f"ds_write_b128 v{vRW}, v[{S_+4*nt}:{S_+4*nt+3}] offset:{20480*ph+1024*nt}", "red")))

    def wsync(nm, n, tags):
        def f():
            assert O.get("skip") or sum("ds_write_b128 v%d," % vRW in l for l in A.out) == n, nm
            sync(nm, tags)()
        return f
    wr += [dict(e=0, it=x) for x in (f"v_add_u32 v{vRW}, {sRED[0]}, {vr(vL16)}", f"v_add_u32 v{vR2}, {sRED[1]}, {vr(vL16)}",
                                     f"v_add_u32 v{vR1}, {sRED[2]}, {vr(vL16)}")]
    wput(0, XS, 60 + BD)
    wput(1, YS, 120 + BD)
    wput(2, XS, O.get("sync2", 192))
    rput(60 + BD, [wsync("sync0", 5, ["red"])], 120, 2)
    rput(60 + BD, [f"ds_read_b128 v[{XS+4*nt}:{XS+4*nt+3}], v{vR2} offset:{1024*nt}" for nt in range(5)], 120)
    rput(O.get("t_gen", 60 + BD), [f"v_mov_b32 v{vTM}, {sTAGR}", f"buffer_store_dword v{vTM}, v7, {sWS}, {sRG} offen sc1"])
    PK = O.get("pk", 0)
    its = [f"v_sub_f32 v{vOMG}, 1.0, v{vGT}"]
    for i in range(10):
        t0 = vTM + 1 + (i & 1)
        its += [f"v_accvgpr_read_b32 v{t0}, a{240+i}", f"v_lshlrev_b32 v{vGQ+2*i}, 16, v{t0}",
                f"v_and_b32 v{vGQ+2*i+1}, 0xffff0000, v{t0}"]
        if PK & 1:
            its += [f"v_pk_mul_f32 v[{vGQ+2*i}:{vGQ+2*i+1}], v[{vGQ+2*i}:{vGQ+2*i+1}], v[{vGT}:{vGT+1}] op_sel_hi:[1,0]"]
        else:
            its += [f"v_mul_f32 v{vGQ+2*i}, v{vGQ+2*i}, v{vGT}", f"v_mul_f32 v{vGQ+2*i+1}, v{vGQ+2*i+1}, v{vGT}"]
    rput(60 + BD, its)
    rput(120 + BD, [wsync("sync1", 10, ["red"])], 180, 2)
    rput(120 + BD, [f"ds_read_b128 v[{YS+4*nt}:{YS+4*nt+3}], v{vR2} offset:{20480+1024*nt}" for nt in range(5)], 180)
    rput(120 + BD, [f"v_accvgpr_read_b32 v{r}, a{250+i}" for i, r in enumerate((vYA, vYB, vOA, vOB))])
    e = O.get("sync2", 192)
    e3 = O.get("sync3", 212)

    def sync3():
        assert not any("yin" in str(d["it"]) for d in ldq[1]), "y loads must be out"
        wsync("sync3", 15, ["red", "yin"])()
    yrd = [f"ds_read_b64_tr_b16 v[{vYR+2*nt}:{vYR+2*nt+1}], v{va} offset:{off}"
           for nt, (va, off) in enumerate(((vYA, 0), (vYA, 512), (vYA, 4096), (vYA, 4608), (vYB, 8192)))]
    xrd = [f"ds_read_b128 v[{XS+4*nt}:{XS+4*nt+3}], v{vR1} offset:{1024*nt}" for nt in range(5)]
    if PK & 2:
        xmul = [f"v_pk_mul_f32 v[{XS+i}:{XS+i+1}], v[{XS+i}:{XS+i+1}], v[{vOMG}:{vOMG+1}] op_sel_hi:[1,0]" for i in range(0, 20, 2)]
    else:
        xmul = [f"v_mul_f32 v{XS+i}, v{XS+i}, v{vOMG}" for i in range(20)]
    if e3 > e:
        rput(e, [wsync("sync2", 15, ["red"])], c=2)
        rput(e, xrd)
        rput(e + 8, xmul)
        rput(e3, [sync3], c=2)
        rput(e3, yrd)
    else:
        rput(e, [sync3], c=2)
        rput(e, xrd + yrd)
        rput(e + 8, xmul)
    for i in range(10):
        t0 = vTM + 2 * (i & 1)
        g = vGQ + 2 * i
        rput(e3 + O.get("ydel", 7), [f"v_lshlrev_b32 v{t0}, 16, v{vYR+i}", f"v_and_b32 v{t0+1}, 0xffff0000, v{vYR+i}"] +
             ([f"v_pk_fma_f32 v[{g}:{g+1}], v[{g}:{g+1}], v[{t0}:{t0+1}], v[{XS+2*i}:{XS+2*i+1}]"] if i >= O.get("yw", 10) else
              [f"v_fma_f32 v{g}, v{g}, v{t0}, v{XS+2*i}", f"v_fma_f32 v{g+1}, v{g+1}, v{t0+1}, v{XS+2*i+1}"]))
    fin = []
    for i in range(10):
        g, a = vGQ + 2 * i, YS + 2 * i
        if i < O.get("finw", 8):
            x = [f"v_fmac_f32 v{g}, v{a}, v{vOMG}", f"v_fmac_f32 v{g+1}, v{a+1}, v{vOMG}"]
        else:
            x = [f"v_pk_fma_f32 v[{g}:{g+1}], v[{a}:{a+1}], v[{vOMG}:{vOMG+1}], v[{g}:{g+1}] op_sel_hi:[1,0,1]"]
        x.append(f"v_cvt_pk_bf16_f32 v{vYR+i}, v{g}, v{g+1}")
        if i == 3:
            x.append(f"buffer_store_dwordx4 v[{vYR}:{vYR+3}], v{vOA}, {sOUT}, {sROWOFF} offen {OF}")
        if i == 7:
            x.append(f"buffer_store_dwordx4 v[{vYR+4}:{vYR+7}], v{vOA}, {sOUT}, {sROWOFF} offen offset:64 {OF}")
        if i == 9:
            x.append(f"buffer_store_dwordx2 v[{vYR+8}:{vYR+9}], v{vOB}, {sOUT}, {sROWOFF} offen offset:128 {OF}")
        rput(180 + g2done(i // 2) + 3, x)
    ldq = []
    left = weave3(A, anchors, [wr, ld, red], 2, expose=ldq)
    print("g2 leftovers", [len(x) for x in left])
    drain(A, left)
    if O["stamps"]:
        A.waitall()
        stamp("end")
        A("s_memrealtime s[52:53]")
        A("s_waitcnt lgkmcnt(0)")
        A("v_mov_b32 v8, 0")
        for k in range(nst[0]):
            A(f"v_writelane_b32 v8, s{STR[k]}, {k}")
        A(f"s_sub_u32 s54, {sRB}, 4")
        A(f"s_cmp_ge_u32 s54, 12")
        A(f"s_cselect_b32 s54, 3, 2")
        A(f"s_lshl_b32 s54, s54, 8")
        A(f"s_or_b32 s54, s54, {sRB}")
        A(f"v_writelane_b32 v8, s54, 12")
        A("v_writelane_b32 v8, s100, 13")
        A("v_writelane_b32 v8, s52, 14")
        A(f"v_writelane_b32 v8, {sSPIN}, 15")
        A.raw("; STAMPS " + " ".join(names))
        A(f"""s_lshl_b32 s54, s2, 2
              s_add_u32 s54, s54, {sW}
              s_lshl_b32 s54, s54, 6
              s_add_u32 s54, s54, {WS_DBG}
              v_lshlrev_b32 v9, 2, {vr(vLANE)}
              v_cmp_gt_u32 vcc, 16, {vr(vLANE)}
              v_mov_b32 v10, 0x7ff00000
              v_cndmask_b32 v9, v10, v9, vcc""")
        A(f"buffer_store_dword v8, v9, {sWS}, s54 offen")
    if O.get("dbg", 0):
        A("s_load_dwordx2 s[8:9], s[0:1], 88")
        A("s_mov_b32 s10, 256")
        A("s_mov_b32 s11, 0x20000")
        A("s_getreg_b32 s55, hwreg(HW_REG_XCC_ID)")
        A("s_waitcnt lgkmcnt(0)")
        A("s_not_b32 s100, s100")
        A("v_mov_b32 v10, s100")
        A("v_mov_b32 v11, s52")
        A("v_mov_b32 v12, 0")
        A("s_mov_b64 exec, 1")
        A("buffer_atomic_umax v10, v12, s[8:11], 0 offen sc1")
        A("buffer_atomic_umax v11, v12, s[8:11], 0 offen offset:4 sc1")
        for k in range(1, nst[0]):
            A(f"s_sub_u32 s54, s{STR[k]}, s{STR[0]}")
            A(f"v_mov_b32 v{12+k}, s54")
            A(f"buffer_atomic_umax v{12+k}, v12, s[8:11], 0 offen offset:{4+4*k} sc1")
        A("s_and_b32 s55, s55, 15")
        A("s_lshl_b32 s54, s2, 2")
        A("s_lshl_b32 s53, s55, s54")
        A("s_cmp_lt_u32 s2, 8")
        A("s_cselect_b32 s53, s53, 0")
        A("v_mov_b32 v30, s53")
        A("buffer_atomic_or v30, v12, s[8:11], 0 offen offset:56 sc1")
        A("s_lshr_b32 s54, s2, 1")
        A("s_lshl_b32 s53, s55, s54")
        A("s_and_b32 s54, s2, 0xc7")
        A("s_cmp_eq_u32 s54, 0")
        A("s_cselect_b32 s53, s53, 0")
        A("v_mov_b32 v31, s53")
        A("buffer_atomic_or v31, v12, s[8:11], 0 offen offset:60 sc1")
    if O.get("padto", 0):
        A.waitall()
        A.label("Lpad")
        A.raw("  s_memrealtime s[52:53]")
        A.raw("  s_waitcnt lgkmcnt(0)")
        A.raw("  s_sub_u32 s52, s52, s100")
        A.raw(f"  s_cmp_lt_u32 s52, {O['padto']}")
        A.raw("  s_cbranch_scc1 Lpad")
    A.label("Lend")
    A("s_endpgm")

    head = f"""; Fused gated mix: one persistent launch, 256 workgroups (32 row blocks x 8 column blocks).
; Generated by a script (address maps, interleaving and wait counts are computed there).
; @launch grid=(256,1,1) block=(256,1,1) lds={LDS}
.amdgcn_target "amdgcn-amd-amdhsa--gfx950"
.text
.globl {KN}_kernel
.p2align {O.get("al", 8)}
.type {KN}_kernel,@function
{KN}_kernel:
"""
    tail = f"""
.section .rodata,"a"
.p2align 6
.amdhsa_kernel {KN}_kernel
  .amdhsa_next_free_vgpr 512
  .amdhsa_next_free_sgpr 102
  .amdhsa_accum_offset 256
  .amdhsa_group_segment_fixed_size 0
  .amdhsa_kernarg_size 104
  .amdhsa_user_sgpr_count 2
  .amdhsa_user_sgpr_kernarg_segment_ptr 1
  .amdhsa_system_sgpr_workgroup_id_x 1
.end_amdhsa_kernel
"""
    txt = head + A.text() + tail
    if O.get("touch", ""):
        import padlib
        txt = padlib.add_pads(txt, sW, O.get("tstep", 4096), [x for x in O.get("textra", "Lnoconv+Ljoin").split("+") if x])
    return txt, A.stats


if __name__ == "__main__":
    out = sys.argv[1]
    kw = {}
    for a in sys.argv[2:]:
        k, v = a.split("=")
        kw[k] = int(v) if v.lstrip("-").isdigit() else v
    s, st = gen(**kw)
    open(out, "w").write(s)
    print(out, st)
```

```python
import sys, os, re
sys.path.insert(0, os.path.dirname(os.path.abspath(__file__)))
from asmlib import *

KN = "gated_mix__ssm_conv_h3__dense_activation_silu__prompt"

DEF = dict(stamps=0, mapping="B", rot=0, gs=2, dist=5, p0flag=8, poll_i=60, poll_c=76, w2pace=5,
           spin=200000, early_w1=6)


def gen(**kw):
    O = dict(DEF)
    O.update(kw)
    A = Asm()
    GS, DIST = O["gs"], O["dist"]
    NT = "nt" if O.get("nt", 0) else ""
    NTX = "nt" if O.get("ntx", 0) else ""
    OF = O.get("of", "").replace("+", " ")

    WS_COLP0, WS_COLG, WS_ROWG, WS_ROWH, WS_YF = 0x0000, 0x8000, 0xA000, 0x40000, 0x60000
    FLW = O.get("flw", 32)
    WS_DBG = 0x20000
    WS_KVT, WS_YT, WS_W2P, WS_H = 0x100000, 0x400000, 0x700000, 0x900000
    WS_SIZE = 0x1000000
    TP = 4224
    L_S = 81920
    L_K, L_V, L_W2 = 131072, 142336, 152576
    L_BO = 65536
    CBS = O.get("cbs", 0)
    SHR = O.get("shr", 1)
    ATM = O.get("atm", 0)
    HBP, YSP = 4352, (8448 if ATM else 4480)
    L_HB = 8192 * CBS
    L_UB = L_HB if SHR else L_HB + 4 * HBP
    L_YS = O.get("lys", L_UB + 4 * HBP)
    L_RED = O.get("lred", -(-(L_YS + 4 * YSP) // 8192) * 8192)
    L_YT = L_RED + 61440
    assert L_YT + 11264 <= 163840
    LDS = 163840
    sQ, sK, sV, sSH, sSK, sD, sW1, sW2, sGW, sOUT, sWS = [f"s[{8+4*i}:{11+4*i}]" for i in range(11)]
    srd = lambda n: int(n[2:].split(":")[0])
    sW, sRB, sCB, sROT = "s3", "s4", "s5", "s6"
    sT0, sT1, sT2, sT3 = "s52", "s53", "s54", "s55"
    sROWOFF = "s56"
    sW1K = "s57"
    sW2K = "s58"
    sTAGC, sTAGR = "s59", "s60"
    sCH = "s61"
    sDL = "s54"
    sNL2E = "s[62:63]"
    sJ = [f"s{64+i}" for i in range(10)]
    sHB = ["s74", "s75", "s76"]
    sKVO = "s77"
    sW2L = "s37"
    sSPIN = "s79"
    sHL = "s38"
    sSTAMP = 82

    nst = [0]
    names = []
    STR = [82, 84, 86, 88, 90, 92, 94, 96, 98, 64, 66, 68]
    SKIPST = O.get('nostamp', 'iss0+pre+karg+tiles').split('+')
    ONLY = [x for x in O.get('only', '').split('+') if x]
    if ONLY:
        ONLY += ["start", "end"]
        SKIPST = []

    def stamp(name):
        if O.get("touch", "") == name:
            A.settle()
            A.raw("; @TOUCH")
        if O.get("skfrom", "") == name:
            A.skip = O["skip"]
        if O.get("skto", "") == name:
            A.skip = None
        if O.get("padat", "") == name:
            A("s_memrealtime s[100:101]")
        if O["stamps"] and name in names:
            r = STR[names.index(name)]
            A(f"s_memtime s[{r}:{r+1}]")
        elif O["stamps"] and name not in SKIPST and (not ONLY or name in ONLY):
            r = STR[nst[0]]
            A(f"s_memtime s[{r}:{r+1}]")
            nst[0] += 1
            names.append(name)

    def vr(a, n=1):
        return f"v{a}" if n == 1 else f"v[{a}:{a+n-1}]"

    def ar(a, n=1):
        return f"a{a}" if n == 1 else f"a[{a}:{a+n-1}]"

    vTID, vLANE, vL16, vT = 0, 1, 2, 3
    vW1 = [6, 14]
    vTR = [10, 11, 12]
    vHS = 13
    vFL = 7
    vL16b, vL16c, vPR, vPC, vPAD = 4, 5, 8, 9, 0

    def poll(voff, tag, soff, vres=None, n=1, issue=True, check=True):
        ld = (f"buffer_load_dword {vr(vres)}, {vr(voff)}, {sWS}, {soff} offen sc1" if n == 1 else
              f"buffer_load_dwordx2 {vr(vres,2)}, {vr(voff)}, {sWS}, {soff} offen sc1")
        if issue:
            A(ld)
        if check:
            lo, dn = A.newlabel("Lpoll"), A.newlabel("Lgot")

            def cmp():
                A(f"v_cmp_ne_u32 vcc, {tag}, {vr(vres)}")
                if n == 2:
                    A(f"v_cmp_ne_u32 s[52:53], {tag}, {vr(vres+1)}")
                    A("s_or_b64 vcc, vcc, s[52:53]")
            cmp()
            A(f"s_cbranch_vccz {dn}" if n != 2 else f"s_cbranch_scc0 {dn}")
            A.label(lo)
            A.raw(f"  s_sleep {O.get('psleep', 1)}")
            A.raw("  " + ld)
            A.raw("  s_waitcnt vmcnt(0)")
            A.raw(f"  s_sub_u32 {sSPIN}, {sSPIN}, 1")
            A.raw(f"  s_cbranch_scc1 Lend")
            A.raw(f"  v_cmp_ne_u32 vcc, {tag}, {vr(vres)}")
            if n == 2:
                A.raw(f"  v_cmp_ne_u32 s[52:53], {tag}, {vr(vres+1)}")
                A.raw("  s_or_b64 vcc, vcc, s[52:53]")
            A.raw(f"  s_cbranch_vccnz {lo}" if n != 2 else f"  s_cbranch_scc1 {lo}")
            A.label(dn)

    A("s_cmp_ge_u32 s2, 256")
    A("s_cbranch_scc1 Lend")
    for s, off in ((sW2, 64), (sK, 8), (sV, 16), (sQ, 0), (sW1, 56), (sWS, 96), (sSH, 24), (sGW, 72), (sSK, 32),
                   (sD, 40), (sOUT, 80)):
        A(f"s_load_dwordx2 s[{srd(s)}:{srd(s)+1}], s[0:1], {off}")
    if O["stamps"] or O.get("padto", 0):
        A("s_memrealtime s[100:101]")
    stamp("start")
    A(f"v_lshrrev_b32 v20, 6, v0")
    A(f"v_and_b32 {vr(vLANE)}, 63, v0")
    A(f"v_readfirstlane_b32 {sW}, v20")
    if O["mapping"] == "A":
        A(f"""s_lshr_b32 {sT0}, s2, 3
              s_and_b32 {sCB}, {sT0}, 7
              s_lshr_b32 {sT0}, {sT0}, 3
              s_and_b32 {sRB}, s2, 7
              s_lshl_b32 {sRB}, {sRB}, 2
              s_add_u32 {sRB}, {sRB}, {sT0}""")
    else:
        A(f"""s_lshr_b32 {sT0}, s2, 3
              s_and_b32 {sCB}, {sT0}, 3
              s_and_b32 {sT1}, s2, 1
              s_lshl_b32 {sT1}, {sT1}, 2
              s_add_u32 {sCB}, {sCB}, {sT1}
              s_bfe_u32 {sRB}, s2, 0x20001""")
        if O.get("rbint", 1):
            if O.get("rbo", 0):
                A(f"s_add_u32 {sT0}, {sT0}, {O['rbo']}")
            A(f"""s_and_b32 {sT0}, {sT0}, 28
                  s_add_u32 {sRB}, {sRB}, {sT0}""")
        else:
            A(f"""s_lshr_b32 {sT0}, {sT0}, 2
                  s_lshl_b32 {sRB}, {sRB}, 3
                  s_add_u32 {sRB}, {sRB}, {sT0}""")
    for s, size in ((sQ, 2621440), (sK, 2621440), (sV, 2621440), (sSH, 5120), (sSK, 2621440), (sD, 1280),
                    (sW1, 1966080), (sW2, 1966080), (sGW, 1280), (sOUT, 2621440), (sWS, WS_SIZE)):
        A(f"s_mov_b32 s{srd(s)+2}, {size}")
        A(f"s_mov_b32 s{srd(s)+3}, 0x20000")
    A(f"""s_mul_i32 {sROWOFF}, {sRB}, 81920
          s_mul_i32 {sT0}, {sCB}, 160
          s_add_u32 {sROWOFF}, {sROWOFF}, {sT0}
          s_lshl_b32 {sW1K}, {sW}, 10
          s_lshl_b32 {sW2K}, {sW}, 11
          s_movk_i32 {sT1}, 6554
          s_movk_i32 {sT2}, 1120
          s_sub_u32 {sT3}, {sROWOFF}, 5120""")
    for n in range(3):
        A(f"v_add_u32 v26, {256*n}, v0") if n else A("v_mov_b32 v26, v0")
        A(f"""v_mul_u32_u24 v27, {sT1}, v26
              v_lshrrev_b32 v27, 16, v27
              v_lshlrev_b32 v26, 4, v26
              v_mad_u32_u24 v{20+n}, v27, {sT2}, v26
              v_add_u32 v{23+n}, {sT3}, v{20+n}""")
    A(f"v_lshlrev_b32 {vr(vL16)}, 4, {vr(vLANE)}")
    R = O["rot"]
    if R == 1:
        A(f"""s_mul_i32 {sT0}, {sRB}, 3
              s_add_u32 {sT0}, {sT0}, {sCB}""")
    elif R == 2:
        A(f"s_lshr_b32 {sT0}, s2, 5")
    elif R == 3:
        A(f"s_and_b32 {sT0}, s2, 7")
    elif R == 4:
        A(f"""s_lshr_b32 {sT0}, s2, 5
              s_and_b32 {sT1}, s2, 7
              s_add_u32 {sT0}, {sT0}, {sT1}""")
    elif R == 5:
        A(f"""s_bfe_u32 {sT0}, s2, 0x10005
              s_mul_i32 {sT0}, {sT0}, 5""")
    elif R >= 6:
        A(f"""s_mul_i32 {sT0}, {sRB}, {O.get("ra", 3)}
              s_mul_i32 {sT1}, {sCB}, {O.get("rc", 5)}
              s_add_u32 {sT1}, {sT1}, 1
              s_lshr_b32 {sT1}, {sT1}, 1
              s_lshr_b32 {sT0}, {sT0}, {O.get("rs", 0)}
              s_add_u32 {sT0}, {sT0}, {sT1}""")
    if R:
        A(f"""s_mul_i32 {sT1}, {sT0}, 6554
              s_lshr_b32 {sT1}, {sT1}, 16
              s_mul_i32 {sT1}, {sT1}, 10
              s_sub_u32 {sROT}, {sT0}, {sT1}""")
    else:
        A(f"s_mov_b32 {sROT}, 0")
    vX0, vX1 = 114, 115
    sXO, sXE = "s81", "s7"
    A(f"""v_lshrrev_b32 v26, 3, {vr(vLANE)}
          v_lshrrev_b32 v27, 4, {vr(vLANE)}
          v_and_b32 v38, 7, {vr(vLANE)}
          v_xor_b32 v39, v38, v27
          s_movk_i32 {sT0}, 1280
          s_mul_i32 {sT1}, {sW}, 20480
          v_lshlrev_b32 v39, 4, v39
          v_mad_u32_u24 v{vX0}, v26, {sT0}, v39
          v_add_u32 v{vX0}, {sT1}, v{vX0}
          v_xor_b32 v{vX1}, 64, v{vX0}
          v_add_u32 v{vX1}, {8*1280-1024}, v{vX1}
          s_mul_i32 {sXE}, {sRB}, 81920
          s_lshl_b32 {sXO}, {sROT}, 7
          s_add_u32 {sXO}, {sXO}, {sXE}
          s_add_u32 {sXE}, {sXE}, 1280""")
    A(f"""v_and_b32 v27, 1, v27
          v_lshlrev_b32 v27, 2, v27
          v_xor_b32 v39, v38, v27
          v_lshlrev_b32 v39, 4, v39
          s_movk_i32 {sT0}, 3072
          s_mul_i32 {sT1}, {sW}, 49152
          v_mad_u32_u24 v{vW1[0]}, v26, {sT0}, v39""")
    A(f"""v_add_u32 v{vW1[0]}, {sT1}, v{vW1[0]}
          v_add_u32 v{vW1[1]}, {8*3072-1024}, v{vW1[0]}
          s_mul_i32 {sT0}, {sCB}, 384
          s_mul_i32 {sJ[0]}, {sROT}, 196608
          s_add_u32 {sJ[0]}, {sJ[0]}, {sT0}""")
    stamp("pre")
    A("s_waitcnt lgkmcnt(0)")
    stamp("karg")

    NCB = -(-(4 * HBP) // 8192)
    wslot = {b: 10 + b for b in range(10)}
    wdep = {}
    fq = []
    QL = O.get("ql", 0)
    for j in range(10):
        fq += [(10 + j, j)] + ([(j, j)] if not (CBS <= j < CBS + NCB) and j >= O.get("xs0", 0) and not QL else [])
    if QL:
        fq += [(j, 9) for j in range(10) if not (CBS <= j < CBS + NCB)]
    for b in range(10, 30):
        wslot[b], wdep[b] = fq.pop(0)
        fq.append((wslot[b], b))

    def slot(b):
        return 8192 * wslot[b]
    print("slots", [wslot[b] for b in range(20, 30)])
    assert all(slot(b) + 8192 <= L_YS or slot(b) >= L_YS + 4 * YSP for b in range(26, 30))

    def w1_items(b):
        p, j = divmod(b, 10)
        assert slot(b) >= 128 * p
        return [f"s_add_u32 m0, {sW2K}, {slot(b) - 128 * p}",
                (f"buffer_load_dwordx4 v{vW1[0]}, {sW1}, {sJ[j]} offen offset:{128*p} lds", f"w1_{b}"),
                (f"buffer_load_dwordx4 v{vW1[1]}, {sW1}, {sJ[j]} offen offset:{1024+128*p} lds", f"w1_{b}")]

    def x_items(j):
        it = [f"s_add_u32 m0, {sW2K}, {8192*j}"]
        if j:
            it = [f"s_add_u32 {sXO}, {sXO}, 128", f"s_cmp_ge_u32 {sXO}, {sXE}", f"s_cselect_b32 m0, 1280, 0",
                  f"s_sub_u32 {sXO}, {sXO}, m0"] + it
        it = ["\n".join(it)]
        it += [(f"buffer_load_dwordx4 v{vX0}, {sQ}, {sXO} offen {NTX} lds", f"w1_{j}"),
               (f"buffer_load_dwordx4 v{vX1}, {sQ}, {sXO} offen offset:1024 {NTX} lds", f"w1_{j}")]
        return it

    def pair(j):
        for it in x_items(j) + w1_items(j):
            put_item(A, it)

    def tile_dma(n, which):
        for s, reg, vo, so in which:
            A(f"s_add_u32 m0, {sW1K}, {reg + 4096*n}")
            A(f"buffer_load_dwordx4 v{vo+n}, {s}, {so} offen {NT} lds", "p0in")
    W2T, KT, VT = (sW2, L_W2, 20, sROWOFF), (sK, L_K, 23, "0"), (sV, L_V, 20, sROWOFF)
    PF = O.get("pairfirst", 0)
    TL = dict(q=(sQ, sXO), w=(sW1, sJ[0]), s=(sWS, "0"), h=(sSH, "0"), k=(sK, sROWOFF), v=(sV, sROWOFF), u=(sW2, sROWOFF),
              c=(sSK, sROWOFF), g=(sGW, "0"), d=(sD, "0"), o=(sOUT, sROWOFF))
    for i_, c_ in enumerate(str(O.get("tlb", ""))):
        A(f"buffer_load_dword v{238+i_ if i_ < 4 else 240+i_}, off, {TL[c_][0]}, {TL[c_][1]}")
    if PF:
        pair(0)
    tile_dma(0, [W2T, KT, VT])
    tile_dma(1, [W2T, KT, VT])
    A(f"s_cmp_ge_u32 {sW}, 3")
    A.begin_opt("s_cbranch_scc1", settle=False)
    tile_dma(2, [KT])
    A.end_opt()
    A(f"s_cmp_ge_u32 {sW}, 2")
    A.begin_opt("s_cbranch_scc1", settle=False)
    tile_dma(2, [W2T, VT])
    A.end_opt()

    stamp("tiles")
    vCT, vI16, vR, vCHL = 28, 29, 30, 31
    A(f"""v_lshrrev_b32 v26, 4, v0
          v_mul_u32_u24 v27, 52, v26
          v_lshrrev_b32 v27, 8, v27
          v_mul_u32_u24 v{vR}, 5, v27
          v_sub_u32 v{vCT}, v26, v{vR}
          v_mul_u32_u24 v{vR}, 24, v27
          v_min_u32 v{vR}, 40, v{vR}
          v_and_b32 v{vI16}, 15, v0
          v_lshl_add_u32 v{vCHL}, v{vCT}, 4, v{vI16}
          v_lshlrev_b32 v26, 3, v{vCHL}
          s_mul_i32 {sT0}, {sCB}, 640""")
    vSH = 168
    A(f"buffer_load_dwordx2 v[{vSH}:{vSH+1}], v26, {sSH}, {sT0} offen", "p0in")
    if not PF:
        pair(0)
    stamp("iss0")

    for j in range(1, 10):
        A(f"""s_add_u32 {sJ[j]}, {sJ[j-1]}, 196608
              s_cmp_ge_u32 {sJ[j]}, 1966080
              s_cselect_b32 {sT0}, 1966080, 0
              s_sub_u32 {sJ[j]}, {sJ[j]}, {sT0}""")
    vGW = 130
    vGWA = 154
    A(f"""v_bfe_u32 v52, {vr(vLANE)}, 3, 2
          v_add_u32 v53, {sROT}, v52""")
    for n in range(3):
        A(f"""v_add_u32 v54, {4*n}, v53
              v_subrev_u32 v55, 10, v54
              v_min_u32 v54, v54, v55
              v_lshlrev_b32 v54, 7, v54
              v_lshl_add_u32 v{vGWA+n}, v38, 4, v54""")
        if n == 2:
            A(f"""v_lshrrev_b32 v55, 1, v52
                  v_lshl_add_u32 v{vGWA+n}, v55, 16, v{vGWA+n}""")
    vKA, vBW, vBR, vRA, vRB_ = 158, 159, 160, 161, 162
    A(f"""v_lshrrev_b32 v26, 2, v{vI16}
          v_add_u32 v26, v26, v{vR}
          v_mul_u32_u24 v26, 160, v26
          v_and_b32 v27, 3, v0
          v_lshl_add_u32 v26, v27, 3, v26
          v_lshl_add_u32 v26, v{vCT}, 5, v26
          v_add_u32 v{vKA}, {L_K}, v26
          v_mul_u32_u24 v26, 144, v{vCHL}
          v_lshl_add_u32 v26, v{vR}, 1, v26
          v_add_u32 v{vBW}, {L_BO}, v26
          v_lshrrev_b32 v26, 3, v0
          v_mul_u32_u24 v54, 144, v26
          v_lshl_add_u32 v54, v38, 4, v54
          v_add_u32 v{vBR}, {L_BO}, v54
          v_mul_u32_u24 v54, {TP}, v26
          v_lshl_add_u32 {vr(vT)}, v38, 4, v54""")
    A(f"""v_lshrrev_b32 v26, 5, {vr(vLANE)}
          v_lshlrev_b32 v26, 4, v26
          v_bfe_u32 v54, {vr(vLANE)}, 2, 3
          v_add_u32 v26, v26, v54
          v_mul_u32_u24 v26, 160, v26
          s_and_b32 {sT0}, {sW}, 1
          s_mul_i32 {sT0}, {sT0}, 5120
          s_add_u32 {sT0}, {sT0}, {L_W2}
          s_lshr_b32 {sT1}, {sW}, 1
          s_lshl_b32 {sT1}, {sT1}, 6
          v_add_u32 v26, {sT0}, v26
          v_lshl_add_u32 v{vRB_}, v27, 3, v26
          v_lshl_add_u32 v{vRA}, v27, 4, v26
          v_add_u32 v{vRA}, {sT1}, v{vRA}""")
    A(f"""v_lshrrev_b32 v26, 5, {vr(vLANE)}
          v_lshlrev_b32 v26, 10, v26
          v_bfe_u32 v54, {vr(vLANE)}, 2, 2
          v_lshl_add_u32 v26, v54, 7, v26
          v_bfe_u32 v54, {vr(vLANE)}, 3, 1
          v_lshlrev_b32 v54, 6, v54
          v_xor_b32 v54, {sT1}, v54
          v_add_u32 v26, v26, v54
          v_bfe_u32 v54, {vr(vLANE)}, 4, 1
          v_lshl_add_u32 v26, v54, 5, v26
          v_lshl_add_u32 v{vTR[0]}, v27, 3, v26
          v_add_u32 v{vTR[1]}, 65536, v{vTR[0]}
          v_add_u32 v{vTR[2]}, 131072, v{vTR[0]}""")
    A(f"""v_lshrrev_b32 v26, 5, {vr(vLANE)}
          v_lshlrev_b32 v26, 8, v26
          v_lshl_add_u32 v26, v{vI16}, 4, v26
          v_mul_u32_u24 v54, 49152, v54
          v_add_u32 v{vHS}, v26, v54
          s_mul_i32 {sHB[0]}, {sRB}, 196608
          s_and_b32 {sT0}, {sW}, 1
          s_mul_i32 {sT0}, {sT0}, 98304
          s_add_u32 {sHB[0]}, {sHB[0]}, {sT0}
          s_mul_i32 {sT0}, {sCB}, 6144
          s_add_u32 {sHB[0]}, {sHB[0]}, {sT0}
          s_lshl_b32 {sT1}, {sT1}, 4
          s_add_u32 {sHB[0]}, {sHB[0]}, {sT1}
          s_add_u32 {sHB[0]}, {sHB[0]}, {WS_H}""")
    A(f"""s_add_u32 {sHB[1]}, {sHB[0]}, 2048
          s_add_u32 {sHB[2]}, {sHB[0]}, 4096""")
    A(f"""
          s_mul_i32 {sKVO}, {sCB}, {80*TP}
          s_lshl_b32 {sT0}, {sRB}, 7
          s_add_u32 {sKVO}, {sKVO}, {sT0}
          s_mul_i32 {sCH}, {sCB}, 80
          s_sub_u32 {sT0}, {sRB}, 12
          s_min_u32 {sT0}, {sT0}, {sRB}
          s_lshl_b32 {sT0}, {sT0}, 2
          s_add_u32 {sCH}, {sCH}, {sT0}
          s_add_u32 {sCH}, {sCH}, {sW}
          s_sub_u32 {sT0}, {sRB}, 4
          s_lshl_b32 {sT1}, {sT0}, 2
          s_add_u32 {sT1}, {sT1}, {sW}
          s_lshl_b32 {sT1}, {sT1}, 1
          s_mul_i32 {sDL}, {sCB}, 80
          s_add_u32 {sT1}, {sT1}, {sDL}
          s_cmp_lt_u32 {sT0}, 10
          s_cselect_b32 {sT1}, {sT1}, 0x4000
          s_cmp_ge_u32 {sT0}, 12
          s_cselect_b32 {sCH}, {sCH}, {sT1}
          s_cselect_b32 {sDL}, 0, 128
          s_mov_b32 s62, 0xbfb8aa3b
          s_mov_b32 s63, 0xbfb8aa3b
          s_mov_b32 {sSPIN}, {O["spin"]}""")
    A(f"""v_cmp_gt_u32 vcc, {FLW}, {vr(vLANE)}
          v_mov_b32 v26, 0x7ff00000
          v_lshlrev_b32 v54, 2, {vr(vLANE)}
          v_cndmask_b32 v{vFL}, v26, v54, vcc""")
    vXA = 116
    A(f"""v_and_b32 v26, 31, {vr(vLANE)}
          v_lshlrev_b32 v26, 7, v26
          v_lshrrev_b32 v54, 5, {vr(vLANE)}
          v_lshrrev_b32 v55, 1, v{vI16}
          v_xor_b32 v54, v54, v55
          v_lshl_add_u32 v26, v54, 4, v26
          s_and_b32 {sT0}, {sW}, 1
          s_lshl_b32 {sT0}, {sT0}, 12
          v_add_u32 v{vXA}, {sT0}, v26""")
    for ks in range(1, 4):
        A(f"v_xor_b32 v{vXA+ks}, {ks<<5}, v{vXA}")
    for ks in range(4):
        A(f"v_add_u32 v{vXA+4+ks}, 65536, v{vXA+ks}")
    if QL:
        A(f"""v_lshrrev_b32 v26, 4, {vr(vLANE)}
              s_mul_i32 {sT0}, {sCB}, 10
              v_lshlrev_b32 v72, 7, v{vI16}
              v_add_u32 v72, {sW2K}, v72""")
        for n in range(3):
            if n < 2:
                A(f"""s_add_u32 {sT1}, {sT0}, {4*n}
                      v_add_u32 v54, {sT1}, v26""")
            else:
                A(f"""s_add_u32 {sT1}, {sT0}, 8
                      v_lshrrev_b32 v54, 1, v26
                      v_add_u32 v54, {sT1}, v54""")
            A(f"""v_lshrrev_b32 v73, 3, v54
                  v_subrev_u32 v73, {sROT}, v73
                  v_add_u32 v74, 10, v73
                  v_min_u32 v73, v73, v74
                  v_and_b32 v54, 7, v54
                  v_xor_b32 v54, v54, v55
                  v_lshl_add_u32 v54, v54, 4, v72
                  v_lshl_add_u32 v{124+n}, v73, 13, v54""")
        A(f"""v_and_b32 v26, 1, v26
              v_lshl_add_u32 v126, v26, 3, v126""")
    vGA = 127
    A(f"""s_lshl_b32 {sT0}, {sCB}, 2
          s_add_u32 {sT0}, {sT0}, {sW}
          s_and_b32 {sT1}, {sT0}, 7
          s_lshl_b32 {sT0}, {sT0}, 8
          v_xor_b32 v26, {sT1}, v38
          v_lshlrev_b32 v26, 4, v26
          v_lshrrev_b32 v54, 5, {vr(vLANE)}
          v_lshl_add_u32 v26, v54, 7, v26
          v_add_u32 v26, {sT0}, v26
          v_lshl_add_u32 v{vGA}, v52, 13, v26
          v_and_b32 v54, 1, v52
          v_lshl_add_u32 v26, v54, 13, v26
          v_add_u32 v{vGA+1}, 65536, v26""")
    sWA, sWB = "s78", "s80"
    A(f"""s_mul_i32 {sT0}, {sCB}, 48
          s_lshl_b32 {sT1}, {sRB}, 1
          s_add_u32 {sT0}, {sT0}, {sT1}
          s_and_b32 {sT1}, {sW}, 1
          s_add_u32 {sT0}, {sT0}, {sT1}
          s_mul_i32 {sT0}, {sT0}, 5120
          s_add_u32 {sT0}, {sT0}, {WS_W2P}
          s_cmp_lt_u32 {sRB}, 24
          s_cselect_b32 {sT0}, {sT0}, 0x7f000000
          s_and_b32 {sT1}, {sW}, 2
          s_lshl_b32 {sWA}, {sT1}, 10
          s_add_u32 {sWA}, {sWA}, {sT0}
          s_add_u32 {sWB}, {sT0}, 4096
          s_cmp_eq_u32 {sT1}, 0
          s_cselect_b32 {sWB}, {sWB}, 0x7f000000""")
    stamp("calc")
    NPRE_P = O.get("prepairs", 3)
    if O.get("gw_at", 9) == 0:
        for n in range(3):
            A(f"buffer_load_dwordx4 v[{vGW+4*n}:{vGW+4*n+3}], v{vGWA+n}, {sGW}, 0 offen")
    for j in range(1, NPRE_P):
        pair(j)
    vG0, vG1 = 170, 171
    A(f"""s_lshl_b32 {sT0}, {sCB}, 8
          s_lshl_b32 {sT1}, {sRB}, 8
          s_add_u32 {sT0}, {sT0}, {WS_COLG}
          s_add_u32 {sT1}, {sT1}, {WS_ROWG}""")
    A(f"buffer_load_dword v{vG0}, off, {sWS}, {sT0} sc1")
    A(f"buffer_load_dword v{vG1}, off, {sWS}, {sT1} sc1")
    stamp("issued")
    vPO = 104
    vPA = 106
    vZ = 107
    vDD = 108
    vGAD, vHAD, vUAD, vYW = 109, 110, 111, 112
    vG = 114
    vH = 178
    Hreg = lambda b: vH + 2 * (31 - b)
    vU = [252, 253, 254, 109]
    vQA, vQB = (86, 87) if QL else (124, 125)
    sHF, sRP, sYP, sYF = "s12", "s13", "s14", "s15"
    sHP = ["s16", "s17", "s18", "s19"]
    sRED = ["s20", "s21", "s22"]
    sHIN, sCBW, sCG, sRG = "s23", "s36", "s39", sROT
    calc2 = []
    sC0, sC1 = "s0", "s1"

    def C2(t):
        for l in t.strip().split("\n"):
            l = l.strip()
            if l.startswith("s_cselect"):
                calc2[-1] += "\n" + l
            else:
                calc2.append(l)
    C2(f"v_and_b32 v85, 15, {vr(vLANE)}")
    C2(f"""s_mul_i32 {sC0}, {sW}, {HBP}
          v_min_u32 v80, 23, {vr(vLANE)}
          v_lshl_add_u32 v{vPAD}, v80, 2, {sC0}
          s_add_u32 {sCBW}, {sC0}, {L_HB+96}
          s_lshl_b32 {sHIN}, {sCH}, 12
          v_and_b32 v80, 3, {vr(vLANE)}
          v_lshrrev_b32 v81, 4, {vr(vLANE)}
          v_bfe_u32 v82, {vr(vLANE)}, 2, 2
          v_add_u32 v83, v80, v81
          v_lshlrev_b32 v83, 5, v83
          v_lshl_add_u32 v83, v82, 3, v83
          v_add_u32 v{vGAD}, {sC0}, v83
          v_sub_u32 v83, v80, v82
          v_lshlrev_b32 v84, 2, v81
          v_sub_u32 v83, v83, v84
          s_add_u32 {sC1}, {sC0}, {L_UB+192}
          s_add_u32 {sC1}, {sC1}, {sDL}
          v_lshl_add_u32 v{vHAD}, v83, 3, {sC1}
          s_add_u32 {sC1}, {sC0}, {L_UB+96}
          v_lshl_add_u32 v{vUAD}, {vr(vLANE)}, 1, {sC1}
          s_mul_i32 {sC1}, {sW}, {YSP}
          s_add_u32 {sC1}, {sC1}, {L_YS+(0 if ATM else 6)}
          v_lshl_add_u32 v{vYW}, {vr(vLANE)}, {2 if ATM else 1}, {sC1}
          v_lshl_add_u32 v113, {vr(vL16)}, {ATM}, {sC1}""")
    for r in (vDD, 255, Hreg(-1), Hreg(-1) + 1, vU[0], vU[1], vU[2]):
        C2(f"v_mov_b32 v{r}, 0")
    C2(f"""v_lshlrev_b32 v82, 7, v82
          v_lshl_add_u32 v82, v80, 3, v82
          s_lshl_b32 {sC1}, {sW}, 5
          s_add_u32 {sC1}, {sC1}, {L_YT}
          v_add_u32 v82, {sC1}, v82
          v_lshl_add_u32 v83, v81, 10, v82
          v_lshl_add_u32 v82, v81, 9, v82
          v_mul_u32_u24 v84, 1280, v85
          v_lshl_add_u32 v{vQA}, v81, 4, v84
          v_lshl_add_u32 v{vQB}, v81, 3, v84
          v_accvgpr_write_b32 a250, v83
          v_accvgpr_write_b32 a251, v82
          v_accvgpr_write_b32 a252, v{vQA}
          v_accvgpr_write_b32 a253, v{vQB}
          s_mul_i32 {sC1}, {sW}, 20480
          s_add_u32 {sROWOFF}, {sROWOFF}, {sC1}""")
    C2(f"""v_and_b32 v{vPC}, 31, {vr(vLANE)}
          v_lshlrev_b32 v{vPC}, 7, v{vPC}
          s_lshl_b32 {sHL}, {sCB}, 12
          v_lshrrev_b32 v80, 1, v85
          v_and_b32 v81, 1, {vr(vLANE)}
          v_lshlrev_b32 v81, 3, v81
          v_lshl_add_u32 v{vPR}, v80, 7, v81
          v_min_u32 v80, 23, {vr(vLANE)}
          v_lshrrev_b32 v81, 3, v80
          v_mul_u32_u24 v81, 24, v81
          v_add_u32 v80, v80, v81
          v_lshl_add_u32 v80, v80, 7, {sW1K}
          v_min_u32 v{vPA}, {79*128}, v80
          v_add_u32 v{vL16b}, 4096, {vr(vL16)}
          v_add_u32 v{vL16c}, 8192, {vr(vL16)}""")
    C2(f"""s_lshl_b32 {sCG}, {sCB}, 8
          s_add_u32 {sCG}, {sCG}, {WS_COLG}
          s_or_b32 {sC1}, {sRB}, {sW}
          s_cmp_eq_u32 {sC1}, 0
          s_cselect_b32 {sCG}, {sCG}, 0x7f000000
          s_lshl_b32 {sRG}, {sRB}, 8
          s_add_u32 {sRG}, {sRG}, {WS_ROWG}
          s_or_b32 {sC1}, {sCB}, {sW}
          s_cmp_eq_u32 {sC1}, 0
          s_cselect_b32 {sRG}, {sRG}, 0x7f000000
          s_mul_i32 {sW2L}, {sCB}, {48*5120}
          s_mul_i32 {sC1}, {sW}, {12*5120}
          s_add_u32 {sW2L}, {sW2L}, {sC1}
          s_add_u32 {sW2L}, {sW2L}, {WS_W2P}
          s_lshl_b32 {sRP}, {sRB}, 12
          s_lshl_b32 {sHF}, {sCB}, 9
          s_add_u32 {sRP}, {sRP}, {WS_ROWH}
          s_add_u32 {sHF}, {sHF}, {sRP}
          s_lshl_b32 {sC0}, {sW}, 7
          s_add_u32 {sHF}, {sHF}, {sC0}
          s_add_u32 {sRP}, {sRP}, {sW1K}
          s_mul_i32 {sC1}, {sRB}, 196608
          s_mul_i32 {sC0}, {sW}, 12288
          s_add_u32 {sC1}, {sC1}, {sC0}
          s_add_u32 {sC1}, {sC1}, {WS_H}""")
    for ph in range(4):
        C2(f"""s_add_u32 {sC0}, {sW}, {1+ph}
              s_and_b32 {sC0}, {sC0}, 3
              s_mul_i32 {sC0}, {sC0}, 49152
              s_add_u32 {sHP[ph]}, {sC0}, {sC1}""")
    C2(f"""s_lshr_b32 {sYP}, {sRB}, 4
          s_lshl_b32 {sYP}, {sYP}, 3
          s_add_u32 {sYP}, {sYP}, {sCB}
          s_mul_i32 {sYP}, {sYP}, {80*128}
          s_add_u32 {sYP}, {sYP}, {WS_YF}
          s_lshl_b32 {sYF}, {sCH}, 7
          s_add_u32 {sYF}, {sYF}, {WS_YF + 640*128}
          s_mul_i32 {sC0}, {sDL}, 640
          s_sub_u32 {sYF}, {sYF}, {sC0}
          s_cmp_lt_u32 {sCH}, 640
          s_cselect_b32 {sYF}, {sYF}, 0x7f000000
          s_mul_i32 {sCH}, {sCH}, {TP}
          s_add_u32 {sCH}, {sCH}, {WS_KVT}
          s_mul_i32 {sRED[0]}, {sW}, 5120
          s_add_u32 {sRED[0]}, {sRED[0]}, {L_RED}
          s_xor_b32 {sRED[1]}, {sW}, 2
          s_mul_i32 {sRED[1]}, {sRED[1]}, 5120
          s_add_u32 {sRED[1]}, {sRED[1]}, {L_RED}
          s_add_u32 {sRED[2]}, {sW}, 1
          s_and_b32 {sRED[2]}, {sRED[2]}, 3
          s_mul_i32 {sRED[2]}, {sRED[2]}, 5120
          s_add_u32 {sRED[2]}, {sRED[2]}, {L_RED + 40960}""")
    NC2 = O.get("c2pro", 0)
    for x in calc2[:NC2]:
        A(x)
    calc2 = calc2[NC2:]
    stamp("calc2")

    A.wait("p0in")
    A("s_barrier")
    stamp("p0in")
    vWT = 172
    vP = 184
    vVV = 198
    vO = 210
    vE = 222
    for m in range(7):
        A(f"ds_read_b64_tr_b16 v[{vP+2*m}:{vP+2*m+1}], v{vKA} offset:{640*m}")
        if m < 6:
            A(f"ds_read_b64_tr_b16 v[{vVV+2*m}:{vVV+2*m+1}], v{vKA} offset:{640*m + L_V - L_K}")
    for i, (va, off) in enumerate(((vRA, 0), (vRA, 8), (vRB_, 128))):
        A(f"ds_read_b64_tr_b16 v[{vWT+4*i}:{vWT+4*i+1}], v{va} offset:{off}")
        A(f"ds_read_b64_tr_b16 v[{vWT+4*i+2}:{vWT+4*i+3}], v{va} offset:{off+1280}")
    vWa, vWb, vWc, vWd, vWe = 163, 164, 165, 166, 167
    A(f"""s_mov_b32 {sT0}, 0xffff
          v_and_b32 v{vWa}, 0xffff, v{vSH}
          v_bfi_b32 v{vWb}, {sT0}, v{vSH+1}, v{vSH}
          v_and_b32 v{vWc}, 0xffff0000, v{vSH+1}
          v_alignbit_b32 v{vWd}, v{vSH}, v{vSH}, 16
          v_alignbit_b32 v{vWe}, v{vSH+1}, v{vSH+1}, 16""")
    w2st = [(f"buffer_store_dwordx4 v[{vWT}:{vWT+3}], {vr(vL16)}, {sWS}, {sWA} offen sc1", "p0out"),
            (f"buffer_store_dwordx4 v[{vWT+4}:{vWT+7}], {vr(vL16)}, {sWS}, {sWA} offen offset:1024 sc1", "p0out"),
            (f"buffer_store_dwordx4 v[{vWT+8}:{vWT+11}], {vr(vL16)}, {sWS}, {sWB} offen sc1", "p0out")]
    w2st_txt = w2st[-1][0]
    NP0_P = O.get("p0pairs", 6)
    mem = []
    for j in range(NPRE_P, NP0_P):
        mem += [x_items(j), w1_items(j)]
    if O.get("w2st_early", 0):
        mem = [[x] for x in w2st] + mem
        w2st = []
    for o in range(13):
        e = vE + 4 * (o & 1) * 2
        if o < 12:
            A(f"""v_dot2_f32_bf16 v{e}, v{vP+o+2}, v{vWa}, 0
                  v_dot2_f32_bf16 v{e+1}, v{vP+o+2}, v{vWd}, 0
                  v_dot2_f32_bf16 v{e}, v{vP+o+1}, v{vWb}, v{e}
                  v_dot2_f32_bf16 v{e+1}, v{vP+o+1}, v{vWe}, v{e+1}
                  v_dot2_f32_bf16 v{e}, v{vP+o}, v{vWc}, v{e}
                  v_lshlrev_b32 v{e+2}, 16, v{vVV+o}
                  v_and_b32 v{e+3}, 0xffff0000, v{vVV+o}""")
        if o > 0:
            e = vE + 4 * ((o - 1) & 1) * 2
            A(f"""v_pk_mul_f32 v[{e}:{e+1}], v[{e}:{e+1}], v[{e+2}:{e+3}]
                  v_cvt_pk_bf16_f32 v{vO+o-1}, v{e}, v{e+1}""")
            if o % 4 == 0:
                i = o // 4 - 1
                A(f"ds_write_b128 v{vBW}, v[{vO+4*i}:{vO+4*i+3}] offset:{16*i}", "bo")
        k = -(-len(mem) // (13 - o))
        if o % 2 == 1 or len(mem) >= 13 - o:
            for _ in range(min(k, len(mem))):
                for it in mem.pop(0):
                    put_item(A, it)
    stamp("p0done")

    def bo_reads():
        for n in range(3):
            A(f"ds_read_b128 v[{vP+4*n}:{vP+4*n+3}], v{vBR} offset:{4608*n}")

    sKA = [sT0, sT1, sT2]
    kvst = [f"s_add_u32 {sT3}, {sKVO}, {WS_KVT}",
            (f"buffer_store_dwordx4 v[{vP}:{vP+3}], {vr(vT)}, {sWS}, {sT3} offen sc1", "p0out"),
            f"s_add_u32 {sT3}, {sKVO}, {WS_KVT + 32*TP}",
            (f"buffer_store_dwordx4 v[{vP+4}:{vP+7}], {vr(vT)}, {sWS}, {sT3} offen sc1", "p0out"),
            f"s_add_u32 {sT3}, {sKVO}, {WS_KVT + 64*TP}\ns_cmp_lt_u32 {sW}, 2\ns_cselect_b32 {sT3}, {sT3}, 0x7f000000",
            (f"buffer_store_dwordx4 v[{vP+8}:{vP+11}], {vr(vT)}, {sWS}, {sT3} offen sc1", "p0out")]

    vGX = 142
    gw_ld = [f"buffer_load_dwordx4 v[{vGW+4*n}:{vGW+4*n+3}], v{vGWA+n}, {sGW}, 0 offen" for n in range(3)]
    q_ld = [f"buffer_load_dwordx4 a[240:243], v{vQA}, {sQ}, {sROWOFF} offen",
            f"buffer_load_dwordx4 a[244:247], v{vQA}, {sQ}, {sROWOFF} offen offset:64",
            f"buffer_load_dwordx2 a[248:249], v{vQB}, {sQ}, {sROWOFF} offen offset:128"]

    if QL:
        q_ld = [f"ds_read_b128 v[{vGX}:{vGX+3}], v{vGA}", f"ds_read_b128 v[{vGX+4}:{vGX+7}], v{vGA} offset:32768",
                f"ds_read_b128 v[{vGX+8}:{vGX+11}], v{vGA+1}",
                "ds_read_b128 a[240:243], v124", "ds_read_b128 a[244:247], v125", "ds_read_b64 a[248:249], v126"]

    def gate_read(j):
        m = (0xff << (8 * (j & 3))) if j < 8 else (0x00ff00ff << (8 * (j & 1)))
        src = f"v{vGA} offset:{32768*(j>>2)}" if j < 8 else f"v{vGA+1}"
        r = vGX + 4 * (j >> 2)
        return (f"s_mov_b32 exec_lo, {m:#x}\ns_mov_b32 exec_hi, {m:#x}\nds_read_b128 v[{r}:{r+3}], {src}\ns_mov_b64 exec, -1", f"rd_{j}")
    gops = []
    g0, g1, g2 = 154, 155, 156
    for i in range(12):
        gops.append(f"v_dot2_f32_bf16 v{g0}, v{vGX+i}, v{vGW+i}, " + ("0" if i == 0 else f"v{g0}"))
    for m in ("quad_perm:[1,0,3,2]", "quad_perm:[2,3,0,1]", "row_half_mirror", "row_mirror"):
        gops.append(f"v_add_f32_dpp v{g0}, v{g0}, v{g0} {m} row_mask:0xf bank_mask:0xf")
    gops.append(f"v_add_f32_dpp v{g0}, v{g0}, v{g0} row_bcast:15 row_mask:0xa bank_mask:0xf")
    gops += [f"v_mul_f32 v{g0}, s62, v{g0}", f"v_exp_f32 v{g0}, v{g0}", f"v_add_f32 v{g0}, 1.0, v{g0}", f"v_rcp_f32 v{g0}, v{g0}"]
    sG0, sG1 = sXE, sXO
    gops += [f"v_readlane_b32 {sG0}, v{g0}, 31", f"v_readlane_b32 {sG1}, v{g0}, 63"]

    vACC = [16, 32]
    NB = 8
    vFR = 48
    vS = 80
    vHO = 96

    def fr_reads(n):
        b, ks = divmod(n, 4)
        a = slot(b) + 2048 * ks
        base, off = vTR[a >> 16], a & 0xffff
        f = vFR + 4 * (n % NB)
        r = [f"ds_read_b64_tr_b16 v[{f}:{f+1}], v{base} offset:{off}",
             f"ds_read_b64_tr_b16 v[{f+2}:{f+3}], v{base} offset:{off+512}"]
        if n < 40:
            va, off = (vXA + ks, 8192 * b) if b < 8 else (vXA + 4 + ks, 8192 * (b - 8))
            r.append(f"ds_read_b128 {ar(4*n,4)}, v{va} offset:{off}")
        r = [(x, f"rd_{b}") for x in r]
        if n < 40 and ks == 3 and not QL:
            r.append(gate_read(b))
        return r

    GS0 = O.get("gs0", 1)
    starts = list(range(0, 10, GS0)) + [int(x) for x in str(O.get("grp", "10+12+14+16+20+24+27")).split("+")]
    STRICT = O.get("strict", 10)
    grp_of = {}
    for gi_, st_ in enumerate(starts):
        en_ = starts[gi_ + 1] if gi_ + 1 < len(starts) else 30
        for b_ in range(st_, en_):
            grp_of[b_] = gi_
    extra_tags = {}

    def group_sync(g):
        def f():
            tags = [f"w1_{b}" for b in range(30) if grp_of[b] == g] + extra_tags.get(g, [])
            if g == grp_of[O["p0flag"]]:
                tags.append("p0out")
            if O.get("strict0", 0) <= starts[g] <= STRICT:
                tags += [f"rd_{b}" for b in range(starts[g])]
            A.wait(*tags)
            A("s_barrier")
            if g == grp_of[O["p0flag"]]:
                A(f"""v_readfirstlane_b32 {sTAGC}, v{vG0}
                      v_readfirstlane_b32 {sTAGR}, v{vG1}
                      s_mul_i32 {sTAGC}, {sTAGC}, 0x2C9277B5
                      s_mul_i32 {sTAGR}, {sTAGR}, 0x2C9277B5
                      s_add_u32 {sTAGC}, {sTAGC}, 0xAC564B05
                      s_add_u32 {sTAGR}, {sTAGR}, 0xAC564B05
                      s_lshl_b32 {sT0}, {sCB}, 12
                      s_lshl_b32 {sT1}, {sRB}, 7
                      s_add_u32 {sT0}, {sT0}, {sT1}
                      s_cmp_eq_u32 {sW}, 0
                      s_cselect_b32 {sT0}, {sT0}, 0x7f000000
                      v_mov_b32 v{vZ}, {sTAGC}""")
                A(f"buffer_store_dword v{vZ}, v{vFL}, {sWS}, {sT0} offen sc1")
        return f

    def silu_ops(p, pk=False):
        ac = vACC[p & 1]
        ops = []
        for h in range(0, 8, 2):
            t0, t1 = vS + 4 * ((h >> 1) & 1), vS + 4 * ((h >> 1) & 1) + 2
            z0, z1 = ac + 2 * h, ac + 2 * h + 2
            if pk:
                ops += [(1, f"v_pk_mul_f32 v[{t0}:{t0+1}], v[{z0}:{z0+1}], {sNL2E}"),
                        (1, f"v_pk_mul_f32 v[{t1}:{t1+1}], v[{z1}:{z1+1}], {sNL2E}")]
            else:
                ops += [(1, f"v_mul_f32 v{t0+i}, s62, v{z0+i}") for i in range(4)]
            ops += [(2, f"v_exp_f32 v{t0+i}, v{t0+i}") for i in range(4)]
            if pk:
                ops += [(1, f"v_pk_add_f32 v[{t0}:{t0+1}], v[{t0}:{t0+1}], 1.0 op_sel_hi:[1,0]"),
                        (1, f"v_pk_add_f32 v[{t1}:{t1+1}], v[{t1}:{t1+1}], 1.0 op_sel_hi:[1,0]")]
            else:
                ops += [(1, f"v_add_f32 v{t0+i}, 1.0, v{t0+i}") for i in range(4)]
            ops += [(2, f"v_rcp_f32 v{t0+i}, v{t0+i}") for i in range(4)]
            if pk:
                ops += [(1, f"v_pk_mul_f32 v[{t0}:{t0+1}], v[{t0}:{t0+1}], v[{z0}:{z0+1}]"),
                        (1, f"v_pk_mul_f32 v[{t1}:{t1+1}], v[{t1}:{t1+1}], v[{z1}:{z1+1}]")]
            else:
                ops += [(1, f"v_mul_f32 v{t0+i}, v{t0+i}, v{z0+i}") for i in range(4)]
            ops += [(1, f"v_cvt_pk_bf16_f32 v{vHO+h}, v{t0}, v{t0+1}"),
                    (1, f"v_cvt_pk_bf16_f32 v{vHO+h+1}, v{t1}, v{t1+1}")]
            if h in (2, 6):
                r = h >> 2
                ops.append((1, (f"buffer_store_dwordx4 v[{vHO+4*r}:{vHO+4*r+3}], v{vHS}, {sWS}, {sHB[p]} offen offset:{512*r} sc1", "hout")))
        return ops

    def w2reg(i):
        return (4 * i + 160) % 240

    def w2_items(i):
        it = []
        if i % 4 == 0 and i:
            it.append(f"s_add_u32 {sW2L}, {sW2L}, 4096")
        it.append(f"buffer_load_dwordx4 {ar(w2reg(i),4)}, {vr(vL16)}, {sWS}, {sW2L} offen offset:{1024*(i%4)} sc1")
        return it

    extra_tags[0] = ["bo"]
    group_sync(0)()
    stamp("g1start")
    bo_reads()
    synced = {0}
    sync_at = {0: -2}
    for n in range(DIST):
        g = grp_of[n // 4]
        if g not in synced:
            A.waitall(vm=False)
            group_sync(g)(); synced.add(g); sync_at[g] = -1
        for r in fr_reads(n):
            put_item(A, r)

    def frag_wait(n):
        def f():
            rs = [("v", vFR + 4 * (n % NB) + i) for i in range(4)]
            A._wait([A.pend[r] for r in rs if r in A.pend])
        return f
    anchors = []
    for n in range(120):
        p, k = divmod(n, 40)
        ac = vACC[p & 1]
        f = vFR + 4 * (n % NB)
        grp = [f"v_mfma_f32_32x32x16_bf16 v[{ac}:{ac+15}], v[{f}:{f+3}], {ar(4*k,4)}, " + ("0" if k == 0 else f"v[{ac}:{ac+15}]")]
        if n >= 40 and n % O.get("fw", 2) == 0 and O.get("fw", 2) > 1:
            grp.insert(0, frag_wait(n + O.get("fw", 2) - 1))
        m = n + DIST
        if m < 120:
            g = grp_of[m // 4]
            if g not in synced:
                grp.append(group_sync(g)); synced.add(g); sync_at[g] = n
            grp += fr_reads(m)
        if n in (39, 79) and O.get("pstamp", 0):
            grp.append((lambda nm: (lambda: stamp(nm)))(f"pass{n//40}"))
        if f"b{n}" in ONLY:
            grp.append((lambda nm: (lambda: stamp(nm)))(f"b{n}"))
        anchors.append(grp)
    sync_after = lambda n: min(v for v in sync_at.values() if v >= n)

    def free_at(b):
        g = grp_of[b] + 1
        if g < len(starts) and O.get("strict0", 0) <= starts[g] <= STRICT:
            return max(sync_at[g], 0)
        return sync_after(4 * b + 3)
    for b in range(10, 30):
        for lo, hi in ((L_YS, L_YS + 4 * YSP), (L_RED, L_RED + 20480)):
            if slot(b) < hi and slot(b) + 8192 > lo:
                free_at(b)
    dma = []
    LA = O.get("la", 100)
    st_list = [[x] for x in w2st] + [kvst[0:2], kvst[2:4], kvst[4:6]]
    SP = O.get("stpace", 0)
    stw = []
    if O.get("stw", 0):
        import re as _re

        def turn(grp, i):
            def f():
                A(f"s_cmp_eq_u32 {sW}, {i}")
                A.begin_opt("s_cbranch_scc0", settle=False)
                for x in grp:
                    put_item(A, x)
                A.end_opt()
            return f
        k_ = 0
        G_ = O.get("stg", 1)
        while st_list:
            grp = []
            for _ in range(G_):
                grp += st_list.pop(0)
            for i in range(4):
                stw.append(dict(e=O.get("st0", 1) + k_ * O["stw"] // 10, l=sync_at[grp_of[O["p0flag"]]], c=3, it=turn(grp, i)))
                k_ += 1
    for b in range(NP0_P, 30):
        lat = sync_at[grp_of[b]]
        e = 0 if b < 10 else free_at(wdep[b])
        e = max(e, lat - LA)
        if O.get("fl", 0):
            i_ = (2 * b + 1 if b < 10 else b + 10) - O["fl"]
            d_ = i_ // 2 if i_ < 20 else i_ - 10
            e = max(e, 4 * d_ - DIST)
        its = w1_items(b)
        if b < 10:
            its = x_items(b) + its
        for it in its:
            dma.append(dict(e=e, l=lat, it=it))
        if b == O.get("gw_at", 9):
            for it in gw_ld:
                dma.append(dict(e=e, l=lat, it=it))
        if b + 1 >= O.get("st_at", 6):
            for _ in range(O.get("st_n", 6)):
                if st_list:
                    for it in st_list.pop(0):
                        dma.append(dict(e=e, l=sync_at[grp_of[O["p0flag"]]], it=it))
    if O.get("st_at", 6) <= NP0_P:
        pass
    e_q = sync_at[grp_of[9]]
    qs = [dict(e=e_q + (0 if i_ < 8 else 4), l=O.get("g_at", 44), it=x) for i_, x in enumerate(gops)]
    if QL:
        assert STRICT >= 10
        qs = [dict(e=e_q, l=free_at(9), it=(x, "rd_9")) for x in q_ld] + [dict(d, e=e_q + 3) for d in qs]
    pi = O["poll_i"]

    def ins_at(e, items):
        pos = next((i for i, d in enumerate(dma) if d["e"] > e), len(dma))
        dma[pos:pos] = [dict(e=e, it=x) for x in items]
    ins_at(pi, [lambda: poll(vPC, sTAGC, sHL, vPO, check=False)])
    if not QL:
        ins_at(O.get("q_at", 30), q_ld)
    e_h = max(free_at(9 if QL else CBS + 2), O.get('hin_at', 0))
    e_u = free_at(CBS + NCB - 1)
    misc = [(f"ds_write_b32 v{vPAD}, v{Hreg(-1)} offset:{L_HB}", "pad"), f"s_mov_b32 m0, {sCBW}"]
    misc[1:1] = [f"v_mad_u32_u24 v{vPAD}, {sDL}, 17, v{vPAD}", (f"ds_write_b32 v{vPAD}, v{Hreg(-1)} offset:{L_HB}", "pad")]
    hin = [(f"buffer_load_dwordx4 {vr(vL16)}, {sSK}, {sHIN} offen offset:{1024*i} {NT} lds", "hin") for i in range(4)]
    misc += hin[:2] + [f"s_lshl4_add_u32 {sHIN}, {sDL}, {sHIN}\ns_add_u32 m0, {sCBW}, {sDL}"] + hin[2:]
    misc += [f"s_lshr_b32 {sHIN}, {sHIN}, 12\ns_lshl_b32 {sHIN}, {sHIN}, 1", f"buffer_load_short_d16_hi v255, off, {sD}, {sHIN} offset:2",
             f"buffer_load_short_d16_hi v{vDD}, off, {sD}, {sHIN}"]
    ins_at(e_h, misc)
    pc = max(O["poll_c"], e_u, e_h)

    def col_ok():
        poll(vPC, sTAGC, sHL, vPO, issue=False)
        A(f"buffer_store_dword v{vZ}, v{vFL}, {sWS}, {sCG} offen sc1")

    def g_done():
        assert sum(f"v{vGAD} offset:" in l for l in A.out) == 32
        A.wait("grd")
    misc2 = [col_ok]
    if SHR:
        misc2 += [g_done, f"s_mov_b32 m0, {sCBW}"]
    else:
        misc2 += [(f"ds_write_b32 v{vPAD}, v{Hreg(-1)} offset:{L_UB}", "pad"), f"s_add_u32 m0, {sCBW}, {L_UB-L_HB}"]
    assert SHR
    uin = [(f"buffer_load_dwordx4 {vr(vL16)}, {sWS}, {sCH} offen offset:{1024*i} sc1 lds", "uin") for i in range(4)]
    assert TP - 2048 == 17 * 128
    misc2 += uin[:2] + [f"s_lshl4_add_u32 {sCH}, {sDL}, {sCH}\ns_add_u32 {sCH}, {sCH}, {sDL}\ns_add_u32 m0, {sCBW}, {sDL}"] + uin[2:]
    misc2 += [f"s_add_u32 {sCH}, {sCH}, {WS_YT-WS_KVT}"]
    ins_at(pc, misc2)
    NW2_G1 = O.get("w2g1", 12)
    w2s = max(pc + 2, max(d["e"] for d in dma), O.get("w2start", 0))
    for i in range(NW2_G1):
        for x in w2_items(i):
            e = w2s + (i * O.get("w2p1", 5)) // 2
            if i >= 20:
                e = max(e, 80 + i - 20 + 1)
            dma.append(dict(e=min(e, 119), it=x))
    sil = []
    for p in range(2):
        for c, x in silu_ops(p, O.get("g1pk", 0)):
            sil.append(dict(e=40 * (p + 1) + 2, l=40 * (p + 2), c=c, it=x))
    def wait_in(tag, text):
        def f():
            assert any(text in l for l in A.out), tag
            A.wait(tag, "pad")
        return f

    def g_ok():
        txt = "\n".join(A.out)
        assert O.get("skip") or gops[-1] in txt and q_ld[-1] in txt and w2st_txt in txt and not any(q_ld[0] in str(d["it"]) for d in gq[0])
        wait_in("hin", misc[-1])()
    vHFD = 15
    GA, HA = O.get("g_at", 44), O.get("h_at", 90)
    gh = [dict(e=GA, c=0, it=g_ok)]
    gh += [dict(e=GA, it=(f"ds_read_b64_tr_b16 v[{vG+2*x}:{vG+2*x+1}], v{vGAD} offset:{L_HB+128*x}", "grd")) for x in range(32)]
    gh.insert(17, dict(e=GA, it=f"v_add_u32 v{vGAD}, {sDL}, v{vGAD}"))
    if SHR:
        for d in gh:
            d["l"] = pc
    gh += [dict(e=GA, it=x) for x in (f"v_mov_b32 v{vHFD}, {sTAGR}", f"v_writelane_b32 v{vHFD}, {sG0}, 1",
                                      f"v_writelane_b32 v{vHFD}, {sG1}, 3", f"v_mov_b32 v{vU[3]}, 0")]
    gh += [dict(e=HA, c=0, it=wait_in("uin", "offen offset:3072 sc1 lds"))]
    gh += [dict(e=HA, it=f"ds_read_b64_tr_b16 v[{Hreg(n)}:{Hreg(n)+1}], v{vHAD} offset:{128*n}") for n in range(31, -1, -1)]
    gh.insert(len(gh) - 16, dict(e=HA, it=f"v_subrev_u32 v{vHAD}, {sDL}, v{vHAD}"))
    vCV = 255
    vYO = 96
    SETS = [32, 36, 40, 44, 28]
    vZ7 = 0
    CH = [dict(E=[244, 245], R1=[246, 247], R2=[248, 249]), dict(E=[16, 17], R1=[18, 19], R2=[20, 21])]
    vZZ = [250, 251]
    XSET = [vG + 60, vG + 56][:O.get("usets", 0)]
    NF = 0
    J = O.get("join", 24)
    DP = "row_mask:0xf bank_mask:0xf"
    MD = O.get("mdel", 3)
    vDD2 = vHAD
    sCH0 = sHIN

    def conv_plan(seq, CHN, cks, sets, W_=1, zipped=False):
        order = [x for x in seq if x[1] >= 0]
        top = {c: max(n for c_, n in order if c_ == c) for c, _ in order}
        first, last, setof, nxt_use = {}, {}, {}, {}
        cva, ring = [], list(sets)
        for g0 in range(0, len(order), W_):
            steps = []
            for t_, r_ in [y for y in ring if isinstance(y, tuple) and y[0] in last]:
                ring.remove((t_, r_))
                ring.insert(0, r_)
            for j_, x in enumerate(order[g0:g0 + W_]):
                c, n = x
                r_ = next(y for y in ring if not isinstance(y, tuple))
                ring.remove(r_)
                ring.append(r_)
                for m in setof:
                    if setof[m] == r_ and m not in nxt_use:
                        nxt_use[m] = x
                setof[x] = r_
                for q in range(n // 2 + 1):
                    g_, h_ = vG + 4 * (8 * c + q), Hreg(16 * c + n - 2 * q)
                    steps.append((q, j_, x, f"v_mfma_f32_16x16x32_bf16 v[{r_}:{r_+3}], v[{g_}:{g_+3}], v[{h_}:{h_+3}], " +
                                  ("0" if q == 0 else f"v[{r_}:{r_+3}]")))
            for q, j_, x, s_ in sorted(steps):
                first.setdefault(x, len(cva))
                last[x] = len(cva)
                cva.append([s_])
            for c, n in order[g0:g0 + W_]:
                if O.get("pstamp", 0) and n % 4 == 0:
                    cva[-1].append((lambda nm: (lambda: stamp(nm)))(f"t{16*c+n}"))
        comb = []
        ureg = lambda si: vU[si & 3]

        def uread(si):
            if si < len(seq) and seq[si][1] >= 0:
                return [f"ds_read_u16_d16_hi v{ureg(si)}, v{vUAD} offset:{128*(17*seq[si][0]+seq[si][1])}"]
            return []
        for si in range(4):
            comb.append(dict(e=0, it=uread(si)[0]))
        if ATM:
            vE, e, rb_ = [252, 253, 254, 109.5], 0, []
            t0 = 15 if top[0] == 31 else 0
            for si, x in enumerate(seq):
                c, n = x
                D, base = setof[x], 4224 * c + 256 * (n - t0)
                e = max(e, last[x] + MD)
                l = first[nxt_use[x]] if x in nxt_use else 1 << 30
                adds = [f"ds_add_f32 v{vYW}, v{D+1+i} offset:{base+4*(i+1)}" for i in range(3)]
                it = ([f"v_fmac_f32 v{D}, v{ureg(si)}, v{vDD2 if c else vDD}", f"ds_write_b32 v{vYW}, v{D} offset:{base}"] if n >= 16 or not t0 else [])
                it += adds + uread(si + 4)
                comb += [dict(e=e, l=l, it=y) for y in it] + rb_
                rb_ = []
                for k_, (r_, lo, so, go, tag, lim) in enumerate(cks.get(x, [])):
                    assert all(seq.index(y) <= si for y in lim if y[1] >= 0)
                    T_ = (244, vG + 24)[k_]
                    comb += [dict(e=e, it=f"ds_read_b128 v[{T_+4*j_}:{T_+4*j_+3}], v113 offset:{lo+16*j_}") for j_ in range(2)]
                    rb_ += [dict(e=e, gap=(O.get("ygap", 8) if j_ + k_ == 0 and si + 1 == len(seq) else 0),
                                 it=f"v_cvt_pk_bf16_f32 v{r_+j_}, v{T_+2*j_}, v{T_+2*j_+1}") for j_ in range(4)]
                    rb_.append(dict(e=e, it=(f"buffer_store_dwordx4 v[{r_}:{r_+3}], {vr(vL16)}, {sWS}, {so} offen offset:{go} sc1", tag)))
            return cva, comb + rb_, first, last, setof
        late, defer, e = [], [], 0
        pos = lambda x: 17 * x[0] + x[1] + 1
        for si, x in enumerate(seq):
            c, n = x
            E, R1, R2 = [CHN(c, n)[k_][n & 1] for k_ in ("E", "R1", "R2")]
            Ep, R1p, R2p = [CHN(c, n + 1)[k_][~n & 1] for k_ in ("E", "R1", "R2")]
            Z = vZZ[si & 1]
            e = max(e, last[x if n >= 0 else (c, 0)] + MD)
            l = first[nxt_use[x]] if x in nxt_use else 1 << 30
            if si & 1:
                pre, F = [], uread(si + 3) + uread(si + 4)
            else:
                pre, F = defer[:1], defer[1:]
                defer = []
            F1, F2 = F[:1], F[1:]
            if n >= 0:
                D = setof[x]
                rol = [[f"v_add_f32_dpp v{d}, v{s_}, v{D+1+i} wave_rol:1 {DP}"] if n != top[c] else []
                       for i, (d, s_) in enumerate(((R1, Ep), (R2, R1p), (Z, R2p)))]
                shl = [[f"v_add_f32_dpp v{d}, v{s_}, v{D+1+i} wave_shl:1 {DP}"] for i, (d, s_) in enumerate(((R1, E), (R2, R1), (Z, R2)))]
                fma = [f"v_fma_f32 v{E}, v{ureg(si)}, v{vDD2 if c else vDD}, v{D}"]
            else:
                rol = [[f"v_mov_b32_dpp v{d}, v{s_} wave_rol:1 {DP}"] for d, s_ in ((R1, Ep), (R2, R1p), (Z, R2p))]
                shl = [[], [f"v_mov_b32_dpp v{R2}, v{R1} wave_shl:1 {DP}"], [f"v_mov_b32_dpp v{Z}, v{R2} wave_shl:1 {DP}"]]
                fma = []
            it = rol[0] + pre + fma + rol[1] + rol[2] + shl[0] + F1 + shl[1] + F2 + shl[2]
            if zipped and not si & 1:
                held = (rol, shl, fma, pre, F, l)
                continue
            if zipped:
                ro_, sh_, fm_, pre, G_, l_ = held
                l = min(l, l_)
                it = (ro_[0] + rol[0] + pre + fm_ + fma + ro_[1] + rol[1] + G_[:1] + ro_[2] + rol[2] + sh_[0] + shl[0] + G_[1:] + F1 +
                      sh_[1] + shl[1] + F2 + sh_[2] + shl[2])
            if si & 1:
                defer = [f"v_cvt_pk_bf16_f32 v{vCV}, v{vZZ[0]}, v{Z}",
                         f"ds_write_b16 v{vYW}, v{vCV} offset:{128*pos(seq[si-1])}",
                         f"ds_write_b16_d16_hi v{vYW}, v{vCV} offset:{128*pos(x)}"]
            elif si + 1 == len(seq):
                defer = [f"v_cvt_pk_bf16_f32 v{vCV}, v{Z}, v{Z}", f"ds_write_b16 v{vYW}, v{vCV} offset:{128*pos(x)}"]
            if x in cks:
                assert defer
                it += defer
                defer = []
                for r_, lo, so, go, tag, lim in cks[x]:
                    assert all(seq.index(y) <= si for y in lim)
                    it.append(f"ds_read_b128 v[{r_}:{r_+3}], v113 offset:{122+lo}")
                    late.append((si + 1, (f"buffer_store_dwordx4 v[{r_}:{r_+3}], {vr(vL16)}, {sWS}, {so} offen offset:{go} sc1", tag)))
            for y in it:
                comb.append(dict(e=e, l=l, it=y))
            while late and (si + 1 == len(seq) or late[0][0] <= si):
                comb.append(dict(e=e, gap=(O.get("ygap", 8) if si + 1 == len(seq) else 0), it=late.pop(0)[1]))
        assert not defer
        return cva, comb, first, last, setof
    seqU = [(0, n) for n in range(31, 14, -1)]
    tl = lambda c, a_, b_: [(c, n) for n in range(a_, b_ + 1)]
    if O.get("ydefer", 1):
        ckU = {(0, 15): [(vYO, 3072, sCH, 3072, "yout0", tl(0, 23, 31)), (vYO + 4, 2048, sCH, 2048, "yout0", tl(0, 15, 23))]}
    else:
        ckU = {(0, 22): [(vYO, 3072, sCH, 3072, "yout0", tl(0, 23, 31))], (0, 15): [(vYO + 4, 2048, sCH, 2048, "yout0", tl(0, 15, 23))]}
    if ATM:
        ckU = {(0, 23): [(vYO, 256 + 2048, sCH, 3072, "yout0", tl(0, 23, 31))], (0, 15): [(vYO + 4, 256, sCH, 2048, "yout0", tl(0, 15, 23))]}
    cva, comb, first, last, setof = conv_plan(seqU, lambda c, n: CH[0], ckU, SETS[:4] + [((0, 30), vG + 60), ((0, 28), vG + 56)][:O.get("usets", 0)], O.get("ilv", 1))
    NCV = len(cva)
    seqL = [(0, n) for n in range(15, 7, -1)]
    for i in range(8):
        seqL += [(1, 15 - i), (0, 7 - i)]
    seqL += [(1, 7), (0, -1)] + [(1, n) for n in range(6, -2, -1)]
    CHL = dict(E=[vG + 28, vG + 29], R1=[vG + 30, vG + 31], R2=[vG + 26, vG + 27])
    ckL = {(0, -1): [(vYO, 0, sCH0, 0, "yl0", tl(0, -1, 7)), (vYO + 4, 1024, sCH0, 1024, "yl0", tl(0, 7, 15))],
           (1, -1): [(vYO, 2176, sCH, 2048, "yl1", tl(1, -1, 7)), (vYO + 4, 3200, sCH, 3072, "yl1", tl(1, 7, 15))]}
    LSETS = SETS[:4] + [((0, 10), vG + 20), ((0, 8), vG + 16)][:O.get("lsets", 2)]
    LORD = O.get("lord", 0)
    if ATM:
        assert LORD
        seqL = [x for x in seqL if x[1] >= 0] if LORD == 2 else [(c, n) for n in range(15, -1, -1) for c in range(2)]
        ckL = {(c, n): [(vYO + 4 * c, 4224 * c + 2048 * k_, (sCH0, sCH)[c], 2048 * c + 1024 * k_, "yl1", tl(c, n, n + 7 + k_))]
               for c in range(2) for k_, n in enumerate((0, 7))}
        if O.get("ylast", 1) and LORD == 1:
            ckL[(1, 0)] = ckL.pop((0, 0)) + ckL[(1, 0)]
            ckL[(1, 7)] = ckL.pop((0, 7)) + ckL[(1, 7)]
        LSETS = SETS[:4] + [((0, 10), vG + 20), ((0, 8), vG + 16), ((0, 6), vG + 12), ((0, 4), vG + 8)][:O.get("lsets", 4)]
        cvaL, combL, firstL, lastL, setofL = conv_plan(seqL, None, ckL, LSETS, O.get("lilv", 1))
    elif LORD:
        seqL = [(c, n) for n in range(15, -2, -1) for c in range(2)]
        CHT = dict(E=[48, 49], R1=[50, 51], R2=[52, 53])
        ckL = {(1, 7): [(vYO, 1024, sCH0, 1024, "yl1", tl(0, 7, 15)), (vYO + 4, 3200, sCH, 3072, "yl1", tl(1, 7, 15))],
               (1, -1): [(vYO, 0, sCH0, 0, "yl1", tl(0, -1, 7)), (vYO + 4, 2176, sCH, 2048, "yl1", tl(1, -1, 7))]}
        LSETS = SETS[:4] + [((0, 10), vG + 20), ((0, 8), vG + 16), ((0, 6), vG + 12), ((0, 4), vG + 8)][:O.get("lsets", 4)]
        cvaL, combL, firstL, lastL, setofL = conv_plan(seqL, lambda c, n: (CHT if n > 12 else CHL) if c else CH[0], ckL, LSETS,
                                                       O.get("lilv", 2), True)
    else:
        cvaL, combL, firstL, lastL, setofL = conv_plan(seqL, lambda c, n: CHL if c else CH[0], ckL, LSETS, O.get("ilv", 1))
    NCL = len(cvaL)
    assert (NCV, NCL) == (208, 144)
    C1 = [int(x, 16) for x in str(O.get("cap1", "866"))]
    gq = []
    for d in dma:
        t_ = d["it"][0] if isinstance(d["it"], tuple) else d["it"]
        if isinstance(t_, str) and t_.startswith("buffer_"):
            d["c"] = O.get("vmc", 2)
    c2s = [dict(e=0, l=min(e_h, O.get("q_at", 30)) if i_ < 48 - NC2 else 40, it=x) for i_, x in enumerate(calc2)]
    strm = [dma, c2s, qs, sil, gh] if O.get("gprio", 0) == 0 else [dma, c2s, qs, gh, sil]
    if stw:
        strm.insert(1, stw)
    F0, F1 = O.get("f0", HA + 2), O.get("f1", 120)
    fine, idx, cpos, caps = [], {}, {}, []
    kf = 0
    for i, grp in enumerate(anchors):
        idx[i] = len(fine)
        fine.append(grp)
        caps.append(C1[i // 40] if i < F0 or not NF else O.get("fcap", 4))
        while i >= F0 and kf < NF and kf < (i + 1 - F0) * NF / (F1 - F0):
            cpos[kf - NF] = len(fine)
            fine.append(cva[kf])
            caps.append(2)
            kf += 1
    assert kf == NF
    for st_ in strm:
        for d in st_:
            d["e"] = idx[d["e"]]
            if d.get("l", 1 << 30) < 120:
                d["l"] = idx[d["l"]]
            else:
                d["l"] = 1 << 30
    fcomb = []
    if NF:
        for nb in range(32):
            gh[-32 + nb]["l"] = cpos[nb // 2 - NF] - O.get("hdist", 1)
        while comb[0]["e"] - MD < 0:
            d = comb.pop(0)
            fcomb.append(dict(d, e=cpos[max(d["e"] - MD, -NF)] + O.get("fmdel", 2), l=cpos.get(d.get("l", 0), 1 << 30), post=d))
    left = weave3(A, fine, strm + [fcomb], lambda i: caps[i], expose=gq, padok=O.get("padok", 36))
    print("g1 leftovers", [len(x) for x in left])
    drain(A, left[:-1])
    comb[0:0] = [dict(d["post"], e=0) for d in left[-1]]
    stamp("g1end")

    PK2 = O.get("pk2", 0)
    XS, YS = 8, 28
    HQ = [48 + 4 * i for i in range(12)]
    for q in range(15, -1, -1):
        HQ += [x for x in (vG + 4 * q, vH + 4 * (15 - q)) if x not in XSET]
    HQ += XSET + [242, 246, 250, 108]
    assert len(HQ) == 48

    def hload(i):
        kk = i % 12
        vo = (vL16, vL16b, vL16c)[kk // 4]
        return f"buffer_load_dwordx4 v[{HQ[i]}:{HQ[i]+3}], v{vo}, {sWS}, {sHP[i//12]} offen offset:{1024*(kk%4)} sc1"

    def h_flag():
        assert sum(f"{sWS}, {sHB[2]} offen offset" in l for l in A.out) in (2, 4)
        stamp("hf0")
        A.wait("hout")
        stamp("hf1")
        A(f"buffer_store_dword v{vHFD}, v7, {sWS}, {sHF} offen sc1")

    vGT = 6

    def row_ok():
        stamp("ro0")
        poll(vPR, sTAGR, sRP, vPO, n=3, issue=False)
        stamp("ro1")
        A(f"v_mov_b32 v{vGT}, v{vPO+1}")

    quad_free = {}
    for q in range(16):
        t_ = max(last[(0, n_)] for n_ in range(max(2 * q, 15), 32)) + 1
        quad_free[vG + 4 * q] = quad_free[vH + 4 * (15 - q)] = t_

    PACE, HPACE = O.get("w2pace", 5), O.get("hpace", 5)
    T_HF, T_RP, T_RO = O.get("t_hf", 110), O.get("t_rp", 150), O.get("t_ro", 180)
    common = []
    t = O.get("w2t0", 2)
    GAPS = [tuple(int(y) for y in x.split("-")) for x in str(O.get("gaps", "")).split("+") if x]

    def nogap(t):
        for a_, b_ in GAPS:
            if a_ <= t < b_:
                t = b_
        return t
    wi = NW2_G1
    while wi < 60 and t <= T_RO:
        t = nogap(t)
        for x in w2_items(wi):
            common.append(dict(e=t, it=x))
        t += PACE
        wi += 1

    def cins(e, items, c=1):
        pos = next((i for i, d in enumerate(common) if d["e"] > e), len(common))
        common[pos:pos] = [dict(e=e, it=x, c=c) for x in items]
    cins(T_HF, [h_flag], 2)
    rpoll = lambda: poll(vPR, sTAGR, sRP, vPO, n=3, check=False)
    cins(T_RP, [rpoll])
    assert T_RO < NCV - 1
    cins(T_RO, [row_ok], 2)
    hl = []
    t = max(T_RO, common[-1]["e"]) + 1
    KM = 5 * (12 - O.get("ntm", 4))
    KM3 = 5 * (12 - O.get("ntm3", O.get("ntm", 4)))
    rest = [(60 * (i // 12) + min(5 * (i % 12), KM if i < 36 else KM3), 1, i) for i in range(48)] + [(min(i, KM), 0, i) for i in range(wi, 60)]
    tprev = t - 1
    for dl, kind, i in sorted(rest):
        t = max(min(t, NCV + dl - O.get("lead", 40)), tprev + O.get("minpace", 2))
        if kind:
            t = max(t, quad_free.get(HQ[i], 0))
            if i >= 44 - len(XSET):
                t = max(t, NCV + J)
        t = nogap(t)
        for x in ([hload(i)] if kind else w2_items(i)):
            hl.append(dict(e=min(t, NCV + dl - 1), l=NCV + dl, it=x))
        tprev = t
        t += HPACE
    while hl and hl[0]["e"] < NCV + J - 1:
        common.append(hl.pop(0))

    NTM = O.get("ntm", 4)

    def g2pos(r, ph=0):
        N_ = NTM if ph < 3 else O.get("ntm3", NTM)
        if r < 5 * (12 - N_):
            return divmod(r, 5)
        nt, kk = divmod(r - 5 * (12 - N_), N_)
        return kk + 12 - N_, nt
    g2done = lambda nt, ph=0: max(r for r in range(60) if g2pos(r, ph)[1] == nt)
    g2need = lambda kk: min(r for r in range(60) if g2pos(r)[0] == kk)

    def g2anchor(a):
        ph, r = divmod(a, 60)
        kk, nt = g2pos(r, ph)
        ac = (XS, YS)[ph & 1] + 4 * nt
        hq = HQ[12 * ph + kk]
        return (f"v_mfma_f32_16x16x32_bf16 v[{ac}:{ac+3}], {ar(w2reg(kk*5+nt),4)}, v[{hq}:{hq+3}], " +
                ("0" if kk == 0 and ph < 2 else f"v[{ac}:{ac+3}]"))

    A(f"s_cmp_eq_u32 {sDL}, 0")
    A.settle()
    A("s_cbranch_scc0 Lnoconv")
    import copy
    saved = (copy.deepcopy(A.q), dict(A.pend), A.nid)
    A.nopt += 1
    A.opt = A.nopt
    A._hidden = []
    optid = A.opt

    def as_common(it):
        def f():
            ids0 = A.nid
            put_item(A, it)
            for qn in A.q:
                for e in A.q[qn]:
                    if e["id"] > ids0:
                        e["opt"] = 0
        f.inner = it
        return f

    def y_flag(tag, nst_):
        assert sum(("s61 offen offset" in l or "s23 offen offset" in l) and "store" in l for l in A.out) == nst_
        A.wait(tag)
        A(f"buffer_store_dword v{vZ}, v0, {sWS}, {sYF} offen sc1")
        stamp("yfl")

    A("v_mov_b32 v0, v7")
    anchors = cva[NF:] + [[g2anchor(a)] for a in range(J)]
    if O.get("pstamp", 0):
        for a_ in range(len(anchors)):
            if f"a{a_}" in ONLY:
                anchors[a_].append((lambda nm: (lambda: stamp(nm)))(f"a{a_}"))
    so = silu_ops(2, PK2)
    if O.get("hst2", 1):
        so = [x for x in so if not isinstance(x[1], tuple)] + [x for x in so if isinstance(x[1], tuple)]
    sil2 = [dict(e=O.get("s2t0", 0), l=last[(0, 23)], c=c, it=as_common(x)) for c, x in so]
    com2 = [dict(d, it=as_common(d["it"])) for d in common]
    cq = []
    S2C = O.get("s2cap", 4)
    left = weave3(A, anchors, [com2, sil2, comb], lambda i: S2C if cq[1] else 2, expose=cq)
    print("conv leftovers", [len(x) for x in left])
    drain(A, [left[1], left[2], left[0]])
    stamp("cvm")
    A.settle()
    A("s_branch Ljoin")
    for qn in A.q:
        back = [h for h in A._hidden if h[0] == qn]
        A.q[qn] = [h[1] for h in back] + A.q[qn]
        for h in back:
            for r, v in h[2].items():
                A.pend.setdefault(r, v)
    A.opt = 0
    stateA = (A.q, A.pend, A.nid)
    A.label("Lnoconv")
    A.q, A.pend, A.nid = saved[0], saved[1], stateA[2]
    A.nopt += 1
    A.opt = A.nopt
    A._hidden = []
    A(f"v_mov_b32 v{vDD2}, v255")
    A(f"v_lshlrev_b32 v0, 2, {vr(vLANE)}" if LORD or O.get("f2", 0) else "v_mov_b32 v0, v7")
    A(f"s_sub_u32 {sCH0}, {sCH}, {TP - 2048}")
    iro = next(i for i, d in enumerate(common) if d["it"] is row_ok)
    LP, L_HF, L_RP = O.get("lpace", 35), O.get("l_hf", 50), O.get("l_rp", 130)
    comL, k_ = [], 0
    for d in common[:iro]:
        if isinstance(d["it"], str):
            comL.append(dict(e=2 + k_ * LP // 10, it=as_common(d["it"])))
            k_ += d["it"].startswith("buffer_")
    for e_, it_, c_ in ((L_HF, h_flag, 2), (L_RP, rpoll, 1)):
        pos = next((i for i, d in enumerate(comL) if d["e"] > e_), len(comL))
        comL.insert(pos, dict(e=e_, it=as_common(it_), c=c_))
    L_RO = O.get("l_ro", 135)
    assert L_RP < L_RO < NCL
    qfL = {}
    for q in range(8):
        qfL[vG + 32 + 4 * q] = qfL[vH + 4 * (7 - q)] = max(lastL[(1, n_)] for n_ in range(2 * q, 16)) + 1
    t_ = max(L_RO, comL[-1]["e"])
    comL.append(dict(e=t_, it=as_common(row_ok), c=2))
    for d in common[iro + 1:]:
        m_ = re.match(r"buffer_load_dwordx4 v\[(\d+):", d["it"])
        if m_ and int(m_.group(1)) >= vG:
            t_ = max(t_, qfL[int(m_.group(1))])
        l_ = d.get("l", 1 << 30) - NCV + NCL
        comL.append(dict(e=min(t_, l_ - 1), l=l_, it=as_common(d["it"])))
        t_ += O.get("lhp", 2) * d["it"].startswith("buffer_")

    def fl0():
        assert sum("s23 offen offset" in l and "store" in l for l in A.out) == 2
        A.wait("yl0")
        A(f"buffer_store_dword v{vZ}, v7, {sWS}, {sYF} offen sc1")
        A(f"s_add_u32 {sYF}, {sYF}, 128")
    L_F0 = O.get("l_f0", NCL + J - 2)
    pos = next((i for i, d in enumerate(comL) if d["e"] > L_F0), len(comL))
    if not LORD:
        if not O.get("f2", 0):
            comL.insert(pos, dict(e=L_F0, it=fl0, c=2))
    else:
        for d in combL:
            if re.search(r"v(48|49|50|51|52|53)\b", str(d["it"])):
                d["l"] = min(d["l"], L_RO)
    silL = [dict(e=0, l=min(L_HF, lastL[(0, 7)]), c=c, it=as_common(x)) for c, x in so]
    silL[0:0] = [dict(e=2, l=firstL[(1, 14)], it=f"v_mov_b32 v{Hreg(15)+i}, 0") for i in range(2)]
    cq = []
    cvaL[-1].append(lambda: stamp("lend"))
    NIDLE = O.get("lidle", 0)
    LA_ = cvaL + [[g2anchor(a)] for a in range(J)]
    left = weave3(A, LA_, [comL, silL, combL],
                  lambda i: O.get("lcap0", 4) if cq[1] else NIDLE if i == NCL - 1 and NIDLE else O.get("lcap", 4) if i < NCL else O.get("lcap2", 3), expose=cq)
    print("lower leftovers", [len(x) for x in left])
    drain(A, [left[1], left[2], left[0]])
    ncom = lambda q, tag: ([e["tag"] for e in q if e["opt"] == 0 or e["tag"] == tag][::-1] + [tag]).index(tag)
    nB = ncom(A.q["vm"], "yl1") if any(e["tag"] == "yl1" for e in A.q["vm"]) else 1 << 30
    qa = stateA[0]["vm"]
    assert any(e["tag"] == "yout0" for e in qa)
    nA = ncom(qa, "yout0")
    print("common loads behind the last y store", nA, nB)
    if nB < nA:
        ey = [e for e in qa if e["tag"] == "yout0"][-1]
        qa.remove(ey)
        assert all(e["opt"] == 0 for e in qa[len(qa) - nB:])
        qa.insert(len(qa) - nB, ey)
    A.waitall(vm=False)
    stamp("cvm")
    A.settle()
    assert all(v[0] == "vm" and any(e["id"] == v[1] and e["opt"] == 0 for e in A.q["vm"]) for v in A.pend.values()), A.pend
    A.opt = 0
    seqB = [e["text"] for e in A.q["vm"] if e["opt"] == 0]
    seqA = [e["text"] for e in stateA[0]["vm"] if e["opt"] == 0]
    assert seqA[-len(seqB):] == seqB, (seqA, seqB)
    nid = A.nid
    A.q, A.pend, A.nid = stateA[0], stateA[1], nid
    A.label("Ljoin")
    stamp("conv")

    vGQ = 48
    vOMG = 68
    vYR = 70
    vTM = 80
    vRW, vR2, vR1, vYA, vYB, vOA, vOB = 100, 101, 102, 87, 88, 89, 90
    anchors = []
    for a in range(J, 240):
        anchors.append([g2anchor(a)])
        if O.get("pstamp", 0) and a % 60 == 59:
            anchors[-1].append((lambda nm: (lambda: stamp(nm)))(f"ph{a//60}"))
        if f"g{a}" in ONLY:
            anchors[-1].append((lambda nm: (lambda: stamp(nm)))(f"g{a}"))
    ld = [dict(d, e=d["e"] - NCV - J, l=d.get("l", 1 << 30) - NCV - J) for d in hl]

    def lins(e, items, c=1):
        e -= J
        pos = next((i for i, d in enumerate(ld) if d["e"] > e), len(ld))
        ld[pos:pos] = [dict(e=e, it=x, c=c) for x in items]
    lins(O.get("t_fb", 70), [lambda: y_flag("yout0", 6)], 2)

    def y_chk():
        stamp("ychk")
        poll(vPA, sTAGC, sYP, vPO, issue=False)
        stamp("ypass")
    y_dma = [f"s_add_u32 {sT1}, {sKVO}, {WS_YT}\ns_add_u32 m0, {sW1K}, {L_YT}",
             (f"buffer_load_dwordx4 {vr(vT)}, {sWS}, {sT1} offen sc1 lds", "yin"),
             f"s_add_u32 {sT1}, {sKVO}, {WS_YT + 32*TP}\ns_add_u32 m0, {sW1K}, {L_YT+4096}",
             (f"buffer_load_dwordx4 {vr(vT)}, {sWS}, {sT1} offen sc1 lds", "yin"),
             f"s_add_u32 {sT1}, {sKVO}, {WS_YT + 64*TP}\ns_cmp_lt_u32 {sW}, 2\ns_cselect_b32 {sT1}, {sT1}, 0x7f000000\ns_add_u32 m0, {sW1K}, {L_YT+8192}",
             (f"buffer_load_dwordx4 {vr(vT)}, {sWS}, {sT1} offen sc1 lds", "yin")]
    TI, TC = O.get("ypoll_i", 90), O.get("ypoll_c", 130)
    lins(TI, [lambda: poll(vPA, sTAGC, sYP, vPO, check=False)])
    lins(TC, [y_chk] + y_dma)

    red = []

    def rput(e, items, l=1 << 30, c=1):
        for x in items:
            red.append(dict(e=e - J, l=l - J, c=c, it=x))

    def sync(nm, tags):
        def f():
            A.wait(*tags)
            A("s_barrier")
            stamp(nm)
        return f
    BD = O.get("bdel", 12)
    wr = []

    def wput(ph, S_, l):
        for nt in range(5):
            wr.append(dict(e=60 * ph + g2done(nt) + 3 - J, l=l - J, c=1, gap=O.get("wgap", 4) if nt else 0,
                           it=(f"ds_write_b128 v{vRW}, v[{S_+4*nt}:{S_+4*nt+3}] offset:{20480*ph+1024*nt}", "red")))

    def wsync(nm, n, tags):
        def f():
            assert O.get("skip") or sum("ds_write_b128 v%d," % vRW in l for l in A.out) == n, nm
            sync(nm, tags)()
        return f
    wr += [dict(e=0, it=x) for x in (f"v_add_u32 v{vRW}, {sRED[0]}, {vr(vL16)}", f"v_add_u32 v{vR2}, {sRED[1]}, {vr(vL16)}",
                                     f"v_add_u32 v{vR1}, {sRED[2]}, {vr(vL16)}")]
    wput(0, XS, 60 + BD)
    wput(1, YS, 120 + BD)
    wput(2, XS, O.get("sync2", 192))
    rput(60 + BD, [wsync("sync0", 5, ["red"])], 120, 2)
    rput(60 + BD, [f"ds_read_b128 v[{XS+4*nt}:{XS+4*nt+3}], v{vR2} offset:{1024*nt}" for nt in range(5)], 120)
    rput(O.get("t_gen", 60 + BD), [f"v_mov_b32 v{vTM}, {sTAGR}", f"buffer_store_dword v{vTM}, v7, {sWS}, {sRG} offen sc1"])
    PK = O.get("pk", 0)
    its = [f"v_sub_f32 v{vOMG}, 1.0, v{vGT}"]
    for i in range(10):
        t0 = vTM + 1 + (i & 1)
        its += [f"v_accvgpr_read_b32 v{t0}, a{240+i}", f"v_lshlrev_b32 v{vGQ+2*i}, 16, v{t0}",
                f"v_and_b32 v{vGQ+2*i+1}, 0xffff0000, v{t0}"]
        if PK & 1:
            its += [f"v_pk_mul_f32 v[{vGQ+2*i}:{vGQ+2*i+1}], v[{vGQ+2*i}:{vGQ+2*i+1}], v[{vGT}:{vGT+1}] op_sel_hi:[1,0]"]
        else:
            its += [f"v_mul_f32 v{vGQ+2*i}, v{vGQ+2*i}, v{vGT}", f"v_mul_f32 v{vGQ+2*i+1}, v{vGQ+2*i+1}, v{vGT}"]
    rput(60 + BD, its)
    rput(120 + BD, [wsync("sync1", 10, ["red"])], 180, 2)
    rput(120 + BD, [f"ds_read_b128 v[{YS+4*nt}:{YS+4*nt+3}], v{vR2} offset:{20480+1024*nt}" for nt in range(5)], 180)
    rput(120 + BD, [f"v_accvgpr_read_b32 v{r}, a{250+i}" for i, r in enumerate((vYA, vYB, vOA, vOB))])
    e = O.get("sync2", 192)
    e3 = O.get("sync3", 212)

    def sync3():
        assert not any("yin" in str(d["it"]) for d in ldq[1]), "y loads must be out"
        wsync("sync3", 15, ["red", "yin"])()
    yrd = [f"ds_read_b64_tr_b16 v[{vYR+2*nt}:{vYR+2*nt+1}], v{va} offset:{off}"
           for nt, (va, off) in enumerate(((vYA, 0), (vYA, 512), (vYA, 4096), (vYA, 4608), (vYB, 8192)))]
    xrd = [f"ds_read_b128 v[{XS+4*nt}:{XS+4*nt+3}], v{vR1} offset:{1024*nt}" for nt in range(5)]
    if PK & 2:
        xmul = [f"v_pk_mul_f32 v[{XS+i}:{XS+i+1}], v[{XS+i}:{XS+i+1}], v[{vOMG}:{vOMG+1}] op_sel_hi:[1,0]" for i in range(0, 20, 2)]
    else:
        xmul = [f"v_mul_f32 v{XS+i}, v{XS+i}, v{vOMG}" for i in range(20)]
    if e3 > e:
        rput(e, [wsync("sync2", 15, ["red"])], c=2)
        rput(e, xrd)
        rput(e + 8, xmul)
        rput(e3, [sync3], c=2)
        rput(e3, yrd)
    else:
        rput(e, [sync3], c=2)
        rput(e, xrd + yrd)
        rput(e + 8, xmul)
    n_red = len(red)
    for i in range(10):
        t0 = vTM + 2 * (i & 1)
        g = vGQ + 2 * i
        rput(e3 + O.get("ydel", 7), [f"v_lshlrev_b32 v{t0}, 16, v{vYR+i}", f"v_and_b32 v{t0+1}, 0xffff0000, v{vYR+i}"] +
             ([f"v_pk_fma_f32 v[{g}:{g+1}], v[{g}:{g+1}], v[{t0}:{t0+1}], v[{XS+2*i}:{XS+2*i+1}]"] if i >= O.get("yw", 10) else
              [f"v_fma_f32 v{g}, v{g}, v{t0}, v{XS+2*i}", f"v_fma_f32 v{g+1}, v{g+1}, v{t0+1}, v{XS+2*i+1}"]))
    fin = []
    for i in range(10):
        g, a = vGQ + 2 * i, YS + 2 * i
        if i < O.get("finw", 8):
            x = [f"v_fmac_f32 v{g}, v{a}, v{vOMG}", f"v_fmac_f32 v{g+1}, v{a+1}, v{vOMG}"]
        else:
            x = [f"v_pk_fma_f32 v[{g}:{g+1}], v[{a}:{a+1}], v[{vOMG}:{vOMG+1}], v[{g}:{g+1}] op_sel_hi:[1,0,1]"]
        x.append(f"v_cvt_pk_bf16_f32 v{vYR+i}, v{g}, v{g+1}")
        if i == 3:
            x.append(f"buffer_store_dwordx4 v[{vYR}:{vYR+3}], v{vOA}, {sOUT}, {sROWOFF} offen {OF}")
        if i == 7:
            x.append(f"buffer_store_dwordx4 v[{vYR+4}:{vYR+7}], v{vOA}, {sOUT}, {sROWOFF} offen offset:64 {OF}")
        if i == 9:
            x.append(f"buffer_store_dwordx2 v[{vYR+8}:{vYR+9}], v{vOB}, {sOUT}, {sROWOFF} offen offset:128 {OF}")
        fin.append((180 + g2done(i // 2, 3) + 3, x))
    ymul, k_ = red[n_red:], 0
    del red[n_red:]
    FO = O.get("fo", 10)
    for i in range(10 + FO):
        if i < 10:
            n_ = 3 if i >= O.get("yw", 10) else 4
            red.extend(ymul[k_:k_ + n_])
            k_ += n_
        if i >= FO:
            rput(*fin[i - FO])
    assert k_ == len(ymul)
    ldq = []
    left = weave3(A, anchors, [wr, ld, red], lambda i: 2 if i + J < O.get("c3at", 999) else 3, expose=ldq)
    print("g2 leftovers", [len(x) for x in left])
    drain(A, left)
    if O["stamps"]:
        A.waitall()
        stamp("end")
        A("s_memrealtime s[52:53]")
        A("s_waitcnt lgkmcnt(0)")
        A("v_mov_b32 v8, 0")
        for k in range(nst[0]):
            A(f"v_writelane_b32 v8, s{STR[k]}, {k}")
        A(f"s_sub_u32 s54, {sRB}, 4")
        A(f"s_cmp_ge_u32 s54, 12")
        A(f"s_cselect_b32 s54, 3, 2")
        A(f"s_lshl_b32 s54, s54, 8")
        A(f"s_or_b32 s54, s54, {sRB}")
        A(f"v_writelane_b32 v8, s54, 12")
        A("v_writelane_b32 v8, s100, 13")
        A("v_writelane_b32 v8, s52, 14")
        A(f"v_writelane_b32 v8, {sSPIN}, 15")
        A.raw("; STAMPS " + " ".join(names))
        A(f"""s_lshl_b32 s54, s2, 2
              s_add_u32 s54, s54, {sW}
              s_lshl_b32 s54, s54, 6
              s_add_u32 s54, s54, {WS_DBG}
              v_lshlrev_b32 v9, 2, {vr(vLANE)}
              v_cmp_gt_u32 vcc, 16, {vr(vLANE)}
              v_mov_b32 v10, 0x7ff00000
              v_cndmask_b32 v9, v10, v9, vcc""")
        A(f"buffer_store_dword v8, v9, {sWS}, s54 offen")
    if O.get("dbg", 0):
        A("s_load_dwordx2 s[8:9], s[0:1], 88")
        A("s_mov_b32 s10, 256")
        A("s_mov_b32 s11, 0x20000")
        A("s_getreg_b32 s55, hwreg(HW_REG_XCC_ID)")
        A("s_waitcnt lgkmcnt(0)")
        A("s_not_b32 s100, s100")
        A("v_mov_b32 v10, s100")
        A("v_mov_b32 v11, s52")
        A("v_mov_b32 v12, 0")
        A("s_mov_b64 exec, 1")
        A("buffer_atomic_umax v10, v12, s[8:11], 0 offen sc1")
        A("buffer_atomic_umax v11, v12, s[8:11], 0 offen offset:4 sc1")
        for k in range(1, nst[0]):
            A(f"s_sub_u32 s54, s{STR[k]}, s{STR[0]}")
            A(f"v_mov_b32 v{12+k}, s54")
            A(f"buffer_atomic_umax v{12+k}, v12, s[8:11], 0 offen offset:{4+4*k} sc1")
        A("s_and_b32 s55, s55, 15")
        A("s_lshl_b32 s54, s2, 2")
        A("s_lshl_b32 s53, s55, s54")
        A("s_cmp_lt_u32 s2, 8")
        A("s_cselect_b32 s53, s53, 0")
        A("v_mov_b32 v30, s53")
        A("buffer_atomic_or v30, v12, s[8:11], 0 offen offset:56 sc1")
        A("s_lshr_b32 s54, s2, 1")
        A("s_lshl_b32 s53, s55, s54")
        A("s_and_b32 s54, s2, 0xc7")
        A("s_cmp_eq_u32 s54, 0")
        A("s_cselect_b32 s53, s53, 0")
        A("v_mov_b32 v31, s53")
        A("buffer_atomic_or v31, v12, s[8:11], 0 offen offset:60 sc1")
    if O.get("padto", 0):
        A.waitall()
        A.label("Lpad")
        A.raw("  s_memrealtime s[52:53]")
        A.raw("  s_waitcnt lgkmcnt(0)")
        A.raw("  s_sub_u32 s52, s52, s100")
        A.raw(f"  s_cmp_lt_u32 s52, {O['padto']}")
        A.raw("  s_cbranch_scc1 Lpad")
    A.label("Lend")
    A("s_endpgm")

    head = f"""; Fused gated mix: one persistent launch, 256 workgroups (32 row blocks x 8 column blocks).
; Generated by a script (address maps, interleaving and wait counts are computed there).
; @launch grid=(256,1,1) block=(256,1,1) lds={LDS}
.amdgcn_target "amdgcn-amd-amdhsa--gfx950"
.text
.globl {KN}_kernel
.p2align {O.get("al", 8)}
.type {KN}_kernel,@function
{KN}_kernel:
"""
    tail = f"""
.section .rodata,"a"
.p2align 6
.amdhsa_kernel {KN}_kernel
  .amdhsa_next_free_vgpr 512
  .amdhsa_next_free_sgpr 102
  .amdhsa_accum_offset 256
  .amdhsa_group_segment_fixed_size 0
  .amdhsa_kernarg_size 104
  .amdhsa_user_sgpr_count 2
  .amdhsa_user_sgpr_kernarg_segment_ptr 1
  .amdhsa_system_sgpr_workgroup_id_x 1
.end_amdhsa_kernel
"""
    txt = head + A.text() + tail
    if O.get("touch", ""):
        import padlib
        txt = padlib.add_pads(txt, sW, O.get("tstep", 4096), [x for x in O.get("textra", "Lnoconv+Ljoin").split("+") if x])
    return txt, A.stats


if __name__ == "__main__":
    out = sys.argv[1]
    kw = {}
    for a in sys.argv[2:]:
        k, v = a.split("=")
        kw[k] = int(v) if v.lstrip("-").isdigit() else v
    s, st = gen(**kw)
    open(out, "w").write(s)
    print(out, st)
```
